```python
import torch

def _softmax(x, axis=-1):
    return torch.softmax(x, dim=axis)

def _gelu(x):
    return torch.nn.functional.gelu(x, approximate='tanh')

def _silu(x):
    return torch.nn.functional.silu(x)

def _sigmoid(x):
    return torch.sigmoid(x)

def _layernorm(x, axis=-1, eps=1e-05):
    m = x.mean(dim=axis, keepdim=True)
    v = x.var(dim=axis, keepdim=True, unbiased=False)
    return (x - m) / torch.sqrt(v + eps)

def _scatter_add(tgt, idx, src, axis=0):
    return tgt.clone().index_add_(axis, idx, src)

def _segment_sum(src, seg, n):
    out = torch.zeros((n,) + src.shape[1:], dtype=src.dtype)
    return out.index_add_(0, seg, src)

def _pad(x, pw):
    flat = tuple((v for pair in reversed(pw) for v in pair))
    return torch.nn.functional.pad(x, flat)
kernel_name = 'adaLN_cond__ssm_conv_s4d__moe_arch_mod__prompt'

def setup_inputs():

    _w = lambda a: (lambda t: t.to(torch.bfloat16) if t.is_floating_point() else t)(torch.as_tensor(a))

    def _A_setup():
        Bsz, L, D, N = (1, 2048, 576, 128)
        return {'u': _w((lambda *s: torch.randn(*s, dtype=torch.bfloat16) * 0.1)(Bsz, L, D)), 'log_A_real': _w((lambda *s: torch.randn(*s, dtype=torch.bfloat16) * 3.2)(D, N) * 0.5), 'A_imag': _w((lambda *s: torch.randn(*s, dtype=torch.bfloat16) * 0.4)(D, N) * 3.14), 'C_real': _w((lambda *s: torch.randn(*s, dtype=torch.bfloat16) * 0.8)(D, N) / N ** 0.5), 'C_imag': _w((lambda *s: torch.randn(*s, dtype=torch.bfloat16) * 0.8)(D, N) / N ** 0.5), 'log_dt': _w((lambda *s: torch.randn(*s, dtype=torch.bfloat16) * 0.4)(D) * 0.5 - 4.0), 'D_skip': _w((lambda *s: torch.randn(*s, dtype=torch.bfloat16) * 0.4)(D))}
    _A_in = _A_setup()

    def _B_setup():
        B, S, D, F, C = (1, 2048, 576, 4608, 8)
        return {'x': _w((lambda *s: torch.randn(*s, dtype=torch.bfloat16) * 0.1)(B, S, D)), 'w_r': _w((lambda *s: torch.randn(*s, dtype=torch.bfloat16) * 0.4)(D)), 'w_gate': _w((lambda *s: torch.randn(*s, dtype=torch.bfloat16) * 0.4)(D, F)), 'w_up': _w((lambda *s: torch.randn(*s, dtype=torch.bfloat16) * 0.4)(D, F)), 'w_down': _w((lambda *s: torch.randn(*s, dtype=torch.bfloat16) * 0.4)(F, D))}
    _B_in = _B_setup()
    return {'A_u': _A_in['u'], 'A_log_A_real': _A_in['log_A_real'], 'A_A_imag': _A_in['A_imag'], 'A_C_real': _A_in['C_real'], 'A_C_imag': _A_in['C_imag'], 'A_log_dt': _A_in['log_dt'], 'A_D_skip': _A_in['D_skip'], 'B_x': _B_in['x'], 'B_w_r': _B_in['w_r'], 'B_w_gate': _B_in['w_gate'], 'B_w_up': _B_in['w_up'], 'B_w_down': _B_in['w_down'], 'c': _w((lambda *s: torch.randn(*s, dtype=torch.bfloat16) * 0.2)(1, 576) * 8.0), 'w_mod': _w((lambda *s: torch.randn(*s, dtype=torch.bfloat16) * 0.2)(576, 6 * 576) * 576 ** (-0.5) * 8.0)}

def reference(A_u, A_log_A_real, A_A_imag, A_C_real, A_C_imag, A_log_dt, A_D_skip, B_x, B_w_r, B_w_gate, B_w_up, B_w_down, c, w_mod):

    def _A_ref(u, log_A_real, A_imag, C_real, C_imag, log_dt, D_skip):
        L = u.shape[1]
        dt = torch.exp(log_dt)
        A = -torch.exp(log_A_real) + 1j * A_imag
        C = (C_real + 1j * C_imag) * dt[:, None]
        pos = (lambda x, dt: x.to(dt))(torch.arange(L), log_dt.dtype)
        P = torch.exp((A * dt[:, None])[:, :, None] * pos[None, None, :])
        K = 2.0 * torch.einsum('dn,dnl->dl', C, P).real
        L2 = 2 * L
        u_t = (lambda x, *d: x.permute(*d))(u, 0, 2, 1)
        Kf = (lambda x, *a, **k: torch.fft.rfft(x.float(), *a, **k))(K, L2)
        Uf = (lambda x, *a, **k: torch.fft.rfft(x.float(), *a, **k))(u_t, L2)
        y = (lambda x, *a, **k: torch.fft.irfft(x, *a, **k).to(torch.bfloat16))(Uf * Kf[None, :, :], L2)[:, :, :L]
        y = (lambda x, *d: x.permute(*d))(y, 0, 2, 1)
        return y + u * D_skip[None, None, :]

    def _B_ref(x, w_r, w_gate, w_up, w_down):
        B, S, D = x.shape
        C = 8
        r = x @ w_r
        idx = torch.argsort(-r, axis=-1)[:, :C]
        idx_e = (lambda x, n, axis: torch.repeat_interleave(x, n, dim=axis))(idx.reshape(B, C, 1), D, axis=2)
        x_sel = (lambda x, i, axis: torch.take_along_dim(x, i, dim=axis))(x, idx_e, axis=1)
        g = _silu(x_sel @ w_gate)
        u = x_sel @ w_up
        y = g * u @ w_down
        r_sel = _sigmoid((lambda x, i, axis: torch.take_along_dim(x, i, dim=axis))(r, idx, axis=1))
        y = y * r_sel.reshape(B, C, 1)
        b_off = (torch.arange(B) * S).reshape(B, 1)
        flat_idx = (idx + b_off).reshape(B * C)
        zero = (x * 0.0).reshape(B * S, D)
        upd = _scatter_add(zero, flat_idx, y.reshape(B * C, D), axis=0)
        return x + upd.reshape(B, S, D)
    x = A_u
    mod = (_silu(c) @ w_mod).reshape(c.shape[0], 6, 1, -1)
    sa, ca, ga, sb, cb, gb = (mod[:, 0].clone(), mod[:, 1].clone(), mod[:, 2].clone(), mod[:, 3].clone(), mod[:, 4].clone(), mod[:, 5].clone())
    h = _layernorm(x, axis=-1) * (1 + ca) + sa
    x = x + ga * _A_ref(h, A_log_A_real, A_A_imag, A_C_real, A_C_imag, A_log_dt, A_D_skip)
    h = _layernorm(x, axis=-1) * (1 + cb) + sb
    x = x + gb * _B_ref(h, B_w_r, B_w_gate, B_w_up, B_w_down)
    return x
```

```python
class Asm:
    def __init__(self):
        self.lines = []
        self.uid = 0
    def __call__(self, s=""):
        for l in s.strip("\n").split("\n"):
            self.lines.append("  " + l.strip() if l.strip() and not l.strip().endswith(":") else l.strip())
    def raw(self, s):
        self.lines.append(s)
    def label(self, name):
        self.lines.append(name + ":")
    def newlabel(self, base="L"):
        self.uid += 1
        return f"{base}_{self.uid}"
    def text(self):
        return "\n".join(self.lines) + "\n"

def vr(i, n=1):
    return f"v{i}" if n == 1 else f"v[{i}:{i+n-1}]"
def ar(i, n=1):
    return f"a{i}" if n == 1 else f"a[{i}:{i+n-1}]"
def sr(i, n=1):
    return f"s{i}" if n == 1 else f"s[{i}:{i+n-1}]"

DPP_ALL = "row_mask:0xf bank_mask:0xf"

def kernel_head(a, name):
    a.raw(f".globl {name}")
    a.raw(".p2align 8")
    a.raw(f".type {name},@function")
    a.label(name)

def kernel_desc(a, name, vgpr, sgpr, accum=None):
    if accum is None:
        accum = (vgpr + 3) // 4 * 4
    a.raw(".p2align 6")
    a.raw(f".amdhsa_kernel {name}")
    a.raw(f"  .amdhsa_next_free_vgpr {vgpr}")
    a.raw(f"  .amdhsa_next_free_sgpr {sgpr}")
    a.raw(f"  .amdhsa_accum_offset {accum}")
    a.raw("  .amdhsa_group_segment_fixed_size 0")
    a.raw("  .amdhsa_kernarg_size 136")
    a.raw("  .amdhsa_user_sgpr_count 2")
    a.raw("  .amdhsa_user_sgpr_kernarg_segment_ptr 1")
    a.raw("  .amdhsa_system_sgpr_workgroup_id_x 1")
    a.raw("  .amdhsa_float_denorm_mode_32 3")
    a.raw("  .amdhsa_float_denorm_mode_16_64 3")
    a.raw(".end_amdhsa_kernel")

import struct
def fbits(x):
    return "0x%08x" % struct.unpack("<I", struct.pack("<f", x))[0]
```

```python
import sys, math, os
from asmlib import *
import numpy as np

WS_MOD  = 0x0
WS_P4   = 0x2000
WS_KSC  = 0x4800
WS_R    = 0x5400
WS_KL   = 0x20000
WS_SC   = 0xE000
MOD2 = int(os.environ.get('MOD2', '0'))
WS_SEL  = 0xC000
WS_XNT  = 0x100000
WS_KT   = 0x400000
KT_PITCH = 3072
WS_Z    = 0x900000
WS_H2   = int(os.environ.get("WS_H2", "0xC00000"), 16)
WS_PART = 0xF00000
KA_X, KA_LAR, KA_AIM, KA_CR, KA_CI, KA_LDT, KA_DSK, KA_BX, KA_WR, KA_WG, KA_WU, KA_WD, KA_C, KA_WMOD, KA_OUT, KA_DBG, KA_WS = [8*i for i in range(17)]

LOG2E = 1.4426950408889634
L_HI = float(np.float32(LOG2E)); L_LO = float(np.float32(LOG2E - L_HI))
LN2 = 0.6931471805599453
INV2PI = 0.15915494309189535
P_HI = float(np.float32(INV2PI)); P_LO = float(np.float32(INV2PI - P_HI))

DEFAULT_KERNELS = "ABH"
STAMP = os.environ.get("STAMP", "")
_stamp_n = {}
STREG = {}
def stamp(a, kern):
    if kern not in STAMP: return
    n = _stamp_n.get(kern, 0); _stamp_n[kern] = n + 1
    a("s_waitcnt lgkmcnt(0)")
    a("s_memtime s[98:99]")
    a("s_waitcnt lgkmcnt(0)")
    a(f"v_writelane_b32 v{STREG[kern]}, s98, {n}")
def stamp_reset(kern, n=0):
    _stamp_n[kern] = n
def stamp_flush(a, kern, wg=0, wave=0, slot=0):
    if kern not in STAMP: return
    l = a.newlabel("STF")
    r = STREG[kern]
    a(f"""
    s_waitcnt vmcnt(0)
    """)
    stamp(a, kern)
    a(f"""
    s_cmp_lg_u32 s2, {wg}
    s_cbranch_scc1 {l}
    s_cmp_lg_u32 s3, {wave}
    s_cbranch_scc1 {l}
    s_load_dwordx2 s[96:97], s[0:1], {KA_DBG}
    s_mov_b64 exec, -1
    v_and_b32 v{r+1}, 63, v0
    v_lshlrev_b32 v{r+1}, 2, v{r+1}
    s_waitcnt lgkmcnt(0)
    s_mov_b64 exec, 0xffff
    global_store_dword v{r+1}, v{r}, s[96:97] offset:{64*slot}
    {l}:
    """)

class Regs:
    def __init__(self, lo, hi):
        self.free = set(range(lo, hi)); self.hi = lo
    def get(self, n=1, align=None):
        align = align or (1 if n == 1 else 2)
        for b in sorted(self.free):
            if b % align == 0 and all((b + i) in self.free for i in range(n)):
                for i in range(n): self.free.discard(b + i)
                self.hi = max(self.hi, b + n)
                return b
        raise RuntimeError("out of regs")
    def put(self, b, n=1):
        for i in range(n):
            assert (b + i) not in self.free
            self.free.add(b + i)

class LdsQ:
    def __init__(self, a):
        self.a = a; self.issued = 0; self.done = 0
    def issue(self, text):
        self.a(text); self.issued += 1
        return self.issued - 1
    def need(self, op):
        if op < self.done: return
        n = self.issued - op - 1
        self.a(f"s_waitcnt lgkmcnt({min(n, 15)})")
        self.done = op + 1 if n <= 15 else self.issued - 15
    def drain(self):
        if self.done < self.issued:
            self.a("s_waitcnt lgkmcnt(0)"); self.done = self.issued

def cmul(a, d, x, y):
    a(f"v_pk_mul_f32 {vr(d,2)}, {vr(x,2)}, {vr(y,2)} op_sel_hi:[1,0]")
    a(f"v_pk_fma_f32 {vr(d,2)}, {vr(x,2)}, {vr(y,2)}, {vr(d,2)} op_sel:[1,1,0] op_sel_hi:[0,1,1] neg_lo:[1,0,0]")

def exp_bf16(a, dst, x, t0, t1, sL, sLlo, sLn2):
    a(f"v_mul_f32 v{t0}, s{sL}, v{x}")
    a(f"v_fma_f32 v{t1}, v{x}, s{sL}, -v{t0}")
    a(f"v_fma_f32 v{t1}, v{x}, s{sLlo}, v{t1}")
    a(f"v_exp_f32 v{t0}, v{t0}")
    a(f"v_mul_f32 v{t1}, s{sLn2}, v{t1}")
    a(f"v_fma_f32 v{t0}, v{t0}, v{t1}, v{t0}")
    a(f"v_cvt_pk_bf16_f32 v{t0}, v{t0}, v{t0}")
    a(f"v_lshlrev_b32 v{dst}, 16, v{t0}")

def wave_max_u32_to_sgpr(a, v, s):
    for sh in (1, 2, 4, 8):
        a("s_nop 1")
        a(f"v_max_u32 v{v}, v{v}, v{v} row_shr:{sh} {DPP_ALL} bound_ctrl:0")
    a("s_nop 1")
    a(f"v_max_u32 v{v}, v{v}, v{v} row_bcast:15 row_mask:0xa bank_mask:0xf")
    a("s_nop 1")
    a(f"v_max_u32 v{v}, v{v}, v{v} row_bcast:31 row_mask:0xc bank_mask:0xf")
    a("s_nop 1")
    a(f"v_readlane_b32 s{s}, v{v}, 63")

def rnd_pairs(a, P):
    for p in P: a(f"v_cvt_pk_bf16_f32 v{p+1}, v{p}, v{p+1}")
    for p in P:
        a(f"v_lshlrev_b32 v{p}, 16, v{p+1}")
        a(f"v_and_b32 v{p+1}, 0xffff0000, v{p+1}")

def rnd1(a, v):
    a(f"v_cvt_pk_bf16_f32 v{v}, v{v}, v{v}")
    a(f"v_lshlrev_b32 v{v}, 16, v{v}")

SPAN = os.environ.get("SPAN", "")
WS_SPAN = 0x1400000
def span_begin(a):
    if not SPAN: return
    a("s_memrealtime s[92:93]")
def span_end(a, kid):
    if not SPAN: return
    a(f"""
    s_waitcnt vmcnt(0) lgkmcnt(0)
    s_memrealtime s[94:95]
    s_load_dwordx2 s[90:91], s[0:1], {KA_WS}
    s_lshl_b32 s89, s2, 4
    s_add_u32 s89, s89, s3
    s_lshl_b32 s89, s89, 4
    s_add_u32 s89, s89, {WS_SPAN + kid * 0x40000}
    s_getreg_b32 s88, hwreg(HW_REG_HW_ID)
    s_getreg_b32 s87, hwreg(HW_REG_XCC_ID)
    s_waitcnt lgkmcnt(0)
    s_mov_b64 exec, 1
    v_mov_b32 v4, s92
    v_mov_b32 v5, s94
    v_mov_b32 v6, s88
    v_mov_b32 v7, s87
    v_mov_b32 v8, s89
    global_store_dwordx4 v8, v[4:7], s[90:91]
    """)

PF = {"A": os.environ.get("PF_A", "d"), "B": os.environ.get("PF_B", "u"), "C": os.environ.get("PF_C", "u"), "B0": os.environ.get("PF_B0", "g")}
PF_HALF = int(os.environ.get("PF_HALF", "0"))
PF_N = {k: len(v) * (2 if PF_HALF else 1) for k, v in PF.items()}
def prefetch_ptrs(a, kern):
    if not PF[kern] and not PF.get(kern + "0"): return
    a(f"""
    s_load_dwordx4 s[64:67], s[0:1], {KA_WG}
    s_load_dwordx2 s[68:69], s[0:1], {KA_WD}
    """)
def prefetch_weights(a, kern, v0=24, hoisted=False, first=0, per=162):
    w = PF[kern]
    if not w: return
    l = a.newlabel("NOPF")
    A, B, C, D_, E_, F_ = [v0 + i for i in range(6)]
    if not hoisted: prefetch_ptrs(a, kern)
    a(f"""
    s_lshr_b32 s70, s2, 3
    s_sub_u32 s70, s70, {first}
    s_mul_i32 s70, s70, {per}
    s_and_b32 s71, s2, 7
    s_mul_i32 s71, s71, 9
    v_lshrrev_b32 v{B}, 6, v0
    v_mul_u32_u24 v{B}, {(per+3)//4}, v{B}
    v_and_b32 v{A}, 63, v0
    v_min_u32 v{A}, {(per+3)//4 - 1}, v{A}
    v_add_u32 v{A}, v{A}, v{B}
    v_min_u32 v{A}, {per-1}, v{A}
    v_add_u32 v{A}, s70, v{A}
    v_min_u32 v{A}, 5183, v{A}
    """)
    if int(os.environ.get("PF_LOCAL", "1")):
        a(f"""
        v_mul_u32_u24 v{F_}, 7282, v{A}
        v_lshrrev_b32 v{F_}, 16, v{F_}     ; row = n/9
        v_mul_u32_u24 v{C}, 9, v{F_}
        v_sub_u32 v{B}, v{A}, v{C}         ; i = n%9
        v_add_u32 v{B}, s71, v{B}          ; Lf
        v_mul_u32_u24 v{C}, 9216, v{F_}
        v_lshl_add_u32 v{C}, v{B}, 7, v{C}
        s_mul_i32 s71, s71, 576
        v_add_u32 v{B}, s71, v{A}
        v_lshlrev_b32 v{B}, 7, v{B}
        """)
    else:
        a(f"""
    v_mul_u32_u24 v{B}, 7282, v{A}
        v_lshrrev_b32 v{B}, 22, v{B}
        v_mul_u32_u24 v{C}, 576, v{B}
        v_sub_u32 v{F_}, v{A}, v{C}
        v_mul_u32_u24 v{C}, 9216, v{F_}
        v_add_u32 v{B}, s71, v{B}
        v_lshl_add_u32 v{C}, v{B}, 7, v{C}
        v_mul_u32_u24 v{B}, 576, v{B}
        v_add_u32 v{B}, v{B}, v{F_}
        v_lshlrev_b32 v{B}, 7, v{B}
""")
    a(f"""
    """)
    if not hoisted: a("s_waitcnt lgkmcnt(0)")
    fl = os.environ.get("PF_FLAGS_" + kern, "")
    for off in ([0, 64] if PF_HALF else [0]):
        if "g" in w: a(f"global_load_dword v{D_}, v{C}, s[64:65] offset:{off} {fl}")
        if "u" in w: a(f"global_load_dword v{E_}, v{C}, s[66:67] offset:{off} {fl}")
        if "d" in w: a(f"global_load_dword v{F_}, v{B}, s[68:69] offset:{off} {fl}")

CODEPF = int(os.environ.get("CODEPF", "1"))
def prefetch_code(a, here, start, end, nwg, vbase, wpw=4, fwd=False):
    if not CODEPF: return
    l = a.newlabel("NOCP")
    A = vbase
    a(f"""
    s_cmp_ge_u32 s2, {nwg}
    s_cbranch_scc1 {l}
    s_getpc_b64 s[74:75]
    {here}:
    {"s_add_u32 s74, s74, %s - %s" % (start, here) if fwd else "s_sub_u32 s74, s74, %s - %s" % (here, start)}
    {"s_addc_u32" if fwd else "s_subb_u32"} s75, s75, 0
    s_lshr_b32 s76, s2, 3
    s_mul_i32 s76, s76, {wpw*64}
    v_add_u32 v{A+2}, s76, v0
    v_lshlrev_b32 v{A+2}, 7, v{A+2}
    v_min_u32 v{A+2}, {end} - {start} - 4, v{A+2}
    v_mov_b32 v{A+3}, 0
    v_lshl_add_u64 {vr(A,2)}, {vr(A+2,2)}, 0, s[74:75]
    global_load_dword v{A+2}, {vr(A,2)}, off
    {l}:
    """)

TLBW = int(os.environ.get("TLBW", "0"))
def tlb_warm(a, v):
    if not TLBW: return
    a(f"""
    s_cmp_lt_u32 s2, 528
    s_cbranch_scc1 NOTLB
    s_load_dwordx2 s[78:79], s[0:1], {KA_WS}
    s_load_dwordx2 s[80:81], s[0:1], {KA_OUT}
    s_load_dwordx4 s[84:87], s[0:1], {KA_WG}
    s_load_dwordx2 s[82:83], s[0:1], {KA_WD}
    v_mul_u32_u24 v{v}, {0x12000}, v0
    v_mul_u32_u24 v{v+1}, 9216, v0             ; out: 256 x 9216
    v_mul_u32_u24 v{v+2}, 20736, v0            ; weights: 256 x 20736
    s_waitcnt lgkmcnt(0)
    global_load_dword v{v+3}, v{v}, s[78:79]
    global_load_dword v{v+3}, v{v+1}, s[80:81]
    global_load_dword v{v+3}, v{v+2}, s[84:85]
    global_load_dword v{v+3}, v{v+2}, s[86:87]
    global_load_dword v{v+3}, v{v+2}, s[82:83]
    s_endpgm
    NOTLB:
    """)

def prefetch_fillers(w, v0, nb=3):
    per = -(-54 // nb)
    A, B, C, D_, F_ = [v0 + i for i in range(5)]
    out = []
    pre = f"""s_lshr_b32 s70, s2, 3
    s_mul_i32 s70, s70, 162
    s_min_u32 s72, s3, 2
    s_mul_i32 s72, s72, 54
    s_add_u32 s70, s70, s72
    s_cmp_eq_u32 s3, 2
    s_cselect_b32 s70, 6000, s70
    s_and_b32 s71, s2, 7
    s_mul_i32 s71, s71, 9
    s_mul_i32 s73, s71, 576"""
    batches = []
    for k in range(nb):
        L = []
        if k == 0: L += [x.strip() for x in pre.split("\n")]
        L += [f"v_min_u32 v{A}, {per-1}, v2", f"v_add_u32 v{A}, s70, v{A}", f"v_min_u32 v{A}, 5183, v{A}", f"s_add_u32 s70, s70, {per}"]
        if "g" in w or "u" in w:
            L += [f"v_mul_u32_u24 v{F_}, 7282, v{A}", f"v_lshrrev_b32 v{F_}, 16, v{F_}", f"v_mul_u32_u24 v{C}, 9, v{F_}", f"v_sub_u32 v{B}, v{A}, v{C}",
                  f"v_add_u32 v{B}, s71, v{B}", f"v_mul_u32_u24 v{C}, 9216, v{F_}", f"v_lshl_add_u32 v{C}, v{B}, 7, v{C}"]
        if "g" in w: L.append(f"global_load_dword v{D_}, v{C}, s[64:65]")
        if "u" in w: L.append(f"global_load_dword v{D_}, v{C}, s[66:67]")
        if "d" in w: L += [f"v_add_u32 v{B}, s73, v{A}", f"v_lshlrev_b32 v{B}, 7, v{B}", f"global_load_dword v{D_}, v{B}, s[68:69]"]
        batches.append(L)
    return batches
```

```python
from common import *
from common import _stamp_n

A_GRID = 480 if MOD2 else 528
A_NKG, A_NLN, A_NMOD = 288, 128, 108
KG_PITCH = 272
KG_HALF = 16 * KG_PITCH
KG_STAGE = 2 * KG_HALF
KG_TAB = 2048
KG_EX = [0, 12288]
A_LDS = 4 * KG_STAGE
LN_P = 1216
TST = os.environ.get('A_TST', '')
XB8 = int(os.environ.get('XB8', '0'))
ORD = int(os.environ.get('A_ORD', '1'))
NTX = os.environ.get('A_NTX', '')
ST = os.environ.get('A_ST', '')
PFPOS = int(os.environ.get('A_PFPOS', '1'))
PRIO = os.environ.get('A_PRIO', '')
NT = os.environ.get('A_NT', 'nt')
DIRECT = set(int(x) for x in os.environ.get("KG_DIRECT", "1,8,128,1024").split(","))

def gen_kgen(a, K="A", dcode=None, after_loads=None, nextra=0, out_lds=None, hookF=None, hookT0=None, hookT1=None, hookE=None, hookX=None):
    R = Regs(20, 156)
    a(f"""
    s_load_dwordx8 s[4:11], s[0:1], {KA_LAR}
    s_load_dwordx2 s[12:13], s[0:1], {KA_LDT}
    s_load_dwordx2 s[14:15], s[0:1], {KA_WS}
    """)
    if K == "A": prefetch_ptrs(a, "A")
    a(dcode)
    a(f"""
    s_and_b32 s17, s3, 1               ; hh
    s_lshl_b32 s18, s16, 8
    s_lshl_b32 s19, s17, 7
    s_add_u32 s19, s19, s18            ; d*256 + hh*128
    v_lshl_add_u32 v3, v2, 1, s19
    s_lshr_b32 s20, s16, 1
    s_lshl_b32 s20, s20, 2
    s_mov_b32 s24, {fbits(L_HI)}
    s_mov_b32 s25, {fbits(L_LO)}
    s_mov_b32 s26, {fbits(LN2)}
    s_mov_b32 s27, {fbits(P_HI)}
    s_mov_b32 s31, {fbits(P_LO)}
    s_waitcnt lgkmcnt(0)
    s_load_dword s32, s[12:13], s20
    global_load_ushort v10, v3, s[4:5] {NT}
    global_load_ushort v11, v3, s[6:7] {NT}
    global_load_ushort v12, v3, s[8:9] {NT}
    global_load_ushort v13, v3, s[10:11] {NT}
    """)
    if after_loads: after_loads()
    if K == "A" and PF["A"] and PFPOS == 3:
        prefetch_weights(a, "A", 160, True, *((24, 162) if MOD2 else (34 if ORD else 2, 173))); nextra = PF_N["A"]
    a(f"""
    s_mul_i32 s21, s3, {KG_STAGE}
    s_mov_b32 m0, s21
    v_and_b32 v7, 15, v2               ; j
    v_lshrrev_b32 v8, 4, v2            ; q
    v_mul_u32_u24 v9, {KG_PITCH}, v7
    v_lshl_add_u32 v9, v8, 4, v9
    v_add_u32 v9, s21, v9
    s_lshr_b32 s23, s3, 1
    s_mul_i32 s22, s23, {2*KG_STAGE}
    s_add_u32 s23, s22, {KG_TAB}
    """)
    a(f"""
    s_waitcnt lgkmcnt(0)
    s_bitcmp1_b32 s16, 0
    s_cselect_b32 s33, 0, 16
    s_lshl_b32 s32, s32, s33
    s_and_b32 s32, s32, 0xffff0000
    v_mov_b32 v16, s32
    """)
    stamp(a, K)
    exp_bf16(a, 16, 16, 17, 18, 24, 25, 26)
    a(f"s_waitcnt vmcnt({2 + nextra})")
    stamp(a, K)
    a("v_lshlrev_b32 v10, 16, v10")
    a("v_lshlrev_b32 v11, 16, v11")
    exp_bf16(a, 10, 10, 17, 18, 24, 25, 26)
    a("""
    v_mul_f32 v10, v10, v16
    v_mul_f32 v17, v11, v16            ; z_i
    v_mul_f32 v10, s24, v10
    v_sub_f32 v10, 0, v10              ; ar
    v_mul_f32 v11, s27, v17            ; bh
    v_fma_f32 v19, v17, s27, -v11
    v_fma_f32 v19, v17, s31, v19       ; bl
    """)
    AR, BH, BL = 10, 11, 19
    def anchor(P):
        d = R.get(2); t = R.get(2)
        pc = fbits(float(P)) if P not in (1, 2, 4) else f"{P}.0"
        a(f"v_mul_f32 v{t}, {pc}, v{AR}")
        a(f"v_mul_f32 v{t+1}, {pc}, v{BH}")
        a(f"v_exp_f32 v{t}, v{t}")
        a(f"v_fract_f32 v{t+1}, v{t+1}")
        a(f"v_mul_f32 v{d}, {pc}, v{BL}")
        a(f"v_add_f32 v{t+1}, v{t+1}, v{d}")
        a(f"v_cos_f32 v{d}, v{t+1}")
        a(f"v_sin_f32 v{d+1}, v{t+1}")
        a("s_nop 0")
        a(f"v_pk_mul_f32 {vr(d,2)}, {vr(d,2)}, {vr(t,2)} op_sel_hi:[1,0]")
        R.put(t, 2)
        return d
    def mul(x, y):
        d = R.get(2); cmul(a, d, x, y); return d
    def power(P, half):
        return anchor(P) if P in DIRECT else mul(half, half)
    PK = R.get(8, 2)
    pk = [0]
    Q = LdsQ(a)
    pending = []
    rows_since = [0]
    wq = []
    def flush_w():
        while wq: Q.issue(wq.pop(0))
    def put_row(row, x, neg):
        t = PK + 4 * (pk[0] & 1); pk[0] += 1
        n = '-' if neg else ''
        rows_since[0] += 1
        if pending and rows_since[0] >= 3:
            flush_mfma(mf_rate[0])
        a(f"v_cvt_pk_f16_f32 v{t}, v{x}, {n}v{x+1}")
        flush_w()
        a(f"v_fma_mix_f32 v{t+2}, v{t}, -1.0, v{x} op_sel_hi:[1,0,0]")
        a(f"v_fma_mix_f32 v{t+3}, v{t}, -1.0, {n}v{x+1} op_sel:[1,0,0] op_sel_hi:[1,0,0]")
        a(f"v_cvt_pk_f16_f32 v{t+1}, v{t+2}, v{t+3}")
        wq.append(f"ds_write_addtid_b32 v{t} offset:{row*KG_PITCH}")
        wq.append(f"ds_write_addtid_b32 v{t+1} offset:{KG_HALF + row*KG_PITCH}")
    mf_rate = [1]
    def flush_mfma(k):
        while k > 0 and pending:
            op, txt = pending.pop(0)
            Q.need(op); a(txt); k -= 1
    F = {}
    a(f"v_mov_b32 v{PK}, 0x3c00")
    a(f"v_mov_b32 v{PK+1}, 0")
    Q.issue(f"ds_write_addtid_b32 v{PK} offset:0")
    Q.issue(f"ds_write_addtid_b32 v{PK+1} offset:{KG_HALF}"); pk[0] = 1
    F[1] = anchor(8); put_row(1, F[1], False)
    F[2] = power(16, F[1]); put_row(2, F[2], False)
    F[3] = mul(F[1], F[2]); put_row(3, F[3], False)
    F[4] = power(32, F[2]); put_row(4, F[4], False)
    for j in (5, 6, 7):
        F[j] = mul(F[4], F[j-4]); put_row(j, F[j], False)
    F[8] = power(64, F[4]); put_row(8, F[8], False)
    for j in range(9, 16):
        t = mul(F[8], F[j-8]); put_row(j, t, False); R.put(t, 2)
    for j in range(1, 9): R.put(F[j], 2)
    BF = R.get(32, 4)
    stamp(a, K)
    flush_w()
    for k in range(4):
        Q.issue(f"ds_read_b128 {vr(BF+4*k,4)}, v9 offset:{64*k}")
        Q.issue(f"ds_read_b128 {vr(BF+16+4*k,4)}, v9 offset:{KG_HALF+64*k}")
    a(f"s_waitcnt vmcnt({nextra})")
    if hookF:
        Q.drain(); hookF(); a(f"s_mov_b32 m0, s21")
    a("""
    v_and_b32 v14, 0x7fff, v12
    v_and_b32 v15, 0x7fff, v13
    v_max_u32 v14, v14, v15
    """)
    wave_max_u32_to_sgpr(a, 14, 28)
    if K == "A" and PF["A"] and PFPOS == 1:
        prefetch_weights(a, "A", 160, True, *((24, 162) if MOD2 else (34 if ORD else 2, 173)))
    E = {}
    E[1] = anchor(1)
    a("""
    s_lshl_b32 s28, s28, 16
    v_frexp_exp_i32_f32 v14, s28
    v_sub_u32 v14, 6, v14              ; e (own)
    v_lshlrev_b32 v12, 16, v12
    v_lshlrev_b32 v13, 16, v13
    v_ldexp_f32 v12, v12, v14
    v_ldexp_f32 v13, v13, v14
    """)
    G = {0: 12}
    E[2] = power(2, E[1]); E[4] = power(4, E[2])
    E[128] = anchor(128)
    ACC = R.get(12, 4)
    AFR = R.get(32, 4)
    def tile_mfma(tau):
        flush_w()
        flush_mfma(100)
        mf_rate[0] = 2 if tau == 1 else 1
        c = vr(ACC+4*tau, 4)
        for k in range(4):
            oh = Q.issue(f"ds_read_b128 {vr(AFR+8*k,4)}, v9 offset:{64*k}")
            ol = Q.issue(f"ds_read_b128 {vr(AFR+8*k+4,4)}, v9 offset:{KG_HALF+64*k}")
            pending.append((oh, f"v_mfma_f32_16x16x32_f16 {c}, {vr(AFR+8*k,4)}, {vr(BF+4*k,4)}, {'0' if k == 0 else c}"))
            pending.append((oh, f"v_mfma_f32_16x16x32_f16 {c}, {vr(AFR+8*k,4)}, {vr(BF+16+4*k,4)}, {c}"))
            pending.append((ol, f"v_mfma_f32_16x16x32_f16 {c}, {vr(AFR+8*k+4,4)}, {vr(BF+4*k,4)}, {c}"))
        rows_since[0] = 0
    put_row(0, G[0], True)
    G[1] = mul(G[0], E[1]); put_row(1, G[1], True)
    G[2] = mul(G[0], E[2]); put_row(2, G[2], True)
    G[3] = mul(G[1], E[2]); put_row(3, G[3], True)
    G[4] = mul(G[0], E[4]); put_row(4, G[4], True)
    for r in (5, 6, 7):
        G[r] = mul(G[r-4], E[4]); put_row(r, G[r], True)
    R.put(E[1], 2); R.put(E[2], 2); R.put(E[4], 2)
    for r in range(8):
        G[128+r] = mul(G[r], E[128]); put_row(8+r, G[128+r], True)
        if r & 1:
            R.put(G[r], 2); R.put(G[128+r], 2)
    E[256] = power(256, E[128]); R.put(E[128], 2)
    E[512] = power(512, E[256])
    stamp(a, K)
    tile_mfma(0)
    if hookT0: hookT0()
    if K == "A" and PF["A"] and PFPOS == 0:
        prefetch_weights(a, "A", 160, True, *((24, 162) if MOD2 else (34 if ORD else 2, 173)))
    stamp(a, K)
    gl = [0, 4, 128, 132]
    for kk in range(2):
        for r in range(4):
            g = 128*kk + 2*r
            t = mul(G[g], E[256]); put_row(4*kk + r, t, True)
            if g in gl: G[256+g] = t
            else: R.put(t, 2); R.put(G[g], 2)
    R.put(E[256], 2)
    for r, g in enumerate(gl):
        G[512+g] = mul(G[g], E[512]); put_row(8+r, G[512+g], True)
        if g & 4: R.put(G[512+g], 2); R.put(G[g], 2)
    for r, g in enumerate(gl):
        G[768+g] = mul(G[256+g], E[512]); put_row(12+r, G[768+g], True)
        if g & 4: R.put(G[768+g], 2); R.put(G[256+g], 2)
    E[1024] = power(1024, E[512])
    R.put(E[512], 2)
    tile_mfma(1)
    if hookT1: hookT1()
    if K == "A" and PF["A"] and PFPOS == 2:
        prefetch_weights(a, "A", 160, True, *((24, 162) if MOD2 else (34 if ORD else 2, 173)))
    for k in range(8):
        t = mul(G[128*k], E[1024]); put_row(k, t, True); R.put(t, 2)
    E[2048] = power(2048, E[1024])
    t = mul(G[0], E[2048]); put_row(8, t, True); R.put(t, 2)
    tile_mfma(2)
    stamp(a, K)
    for k in range(1, 8): R.put(G[128*k], 2)
    R.put(E[1024], 2); R.put(E[2048], 2)
    TB = R.get(2)
    EX = R.get(8, 4); LO = R.get(6, 2)
    a(f"""
    s_mul_i32 s28, s17, {KG_EX[1]}
    s_add_u32 s29, s22, s28
    s_sub_u32 s28, {KG_EX[1]}, s28
    s_add_u32 s28, s22, s28
    v_lshlrev_b32 v17, 3, v2
    v_add_u32 v18, s28, v17
    v_add_u32 v17, s29, v17
    """)
    if out_lds is None:
        a(f"""
        s_mul_i32 s30, s16, {KT_PITCH}
        s_add_u32 s30, s30, {WS_KT}
        """)
    else:
        a(f"""
        s_lshr_b32 s30, s3, 1
        s_mul_i32 s30, s30, 3072
        s_add_u32 s30, s30, {out_lds[0]}
        """)
    if hookE: hookE()
    a(f"""
    s_mov_b32 s34, 0x05040100
    v_lshrrev_b32 v15, 1, v8           ; q>=2
    v_sub_u32 v4, 4, v15
    v_lshlrev_b32 v4, v4, v7
    v_lshl_add_u32 v4, v8, 8, v4
    v_mul_u32_u24 v15, 120, v15
    v_add_u32 v15, 8, v15
    v_mul_u32_u24 v15, s17, v15
    v_add3_u32 v{TB+1}, v4, v15, s30
    v_add_u32 v{TB+1}, 1024, v{TB+1}
    s_cmp_eq_u32 s17, 0
    s_cbranch_scc0 KG_H1{K}
    """)
    saved = list(pending)
    def finalize(hh):
        snd = [i for i in range(12) if (i // 6) != hh]
        keep = [i for i in range(12) if (i // 6) == hh]
        if hh == 0:
            a(f"""
            v_lshrrev_b32 v{TB}, 1, v8
            v_lshlrev_b32 v{TB}, 9, v{TB}
            v_and_b32 v15, 1, v8
            v_lshl_add_u32 v{TB}, v15, 4, v{TB}
            v_lshl_add_u32 v{TB}, v7, 5, v{TB}
            v_add_u32 v{TB}, s30, v{TB}
            """)
        else:
            a(f"""
            v_lshlrev_b32 v{TB}, 8, v8
            v_lshl_add_u32 v{TB}, v7, 2, v{TB}
            v_add_u32 v{TB}, s30, v{TB}
            """)
        a("s_waitcnt lgkmcnt(0)")
        for op, txt in saved: a(txt)
        order = [0, 1, 2] if hh == 1 else [0, 1, 2]
        a(f"ds_write_b32 v17, v14 offset:1536")
        if hh == 0:
            a(f"ds_write_b64 v17, {vr(ACC+snd[0],2)} offset:0")
            a("s_nop 5")
            a(f"ds_write_b64 v17, {vr(ACC+snd[2],2)} offset:512")
            a(f"ds_write_b64 v17, {vr(ACC+snd[4],2)} offset:1024")
        else:
            for p in range(3):
                a(f"ds_write_b64 v17, {vr(ACC+snd[2*p],2)} offset:{512*p}")
        a("s_waitcnt lgkmcnt(0)")
        a("s_barrier")
        a(f"ds_read_b32 v{EX+6}, v18 offset:1536")
        for p in range(3):
            a(f"ds_read_b64 {vr(EX+2*p,2)}, v18 offset:{512*p}")
        if hookX: hookX(hh)
        a(f"""
        s_waitcnt lgkmcnt(3)
        v_min_i32 v{EX+7}, v{EX+6}, v14       ; common e
        v_sub_u32 v{EX+6}, v{EX+7}, v{EX+6}
        v_sub_u32 v14, v{EX+7}, v14
        v_ldexp_f32 v{EX+6}, 1.0, v{EX+6}
        v_ldexp_f32 v14, 1.0, v14
        v_sub_u32 v{EX+7}, 1, v{EX+7}
        v_ldexp_f32 v16, v16, v{EX+7}
        s_waitcnt lgkmcnt(0)
        """)
        for i in range(6): a(f"v_mul_f32 v{EX+i}, v{EX+i}, v{EX+6}")
        for i in range(6): a(f"v_fmac_f32 v{EX+i}, v{ACC+keep[i]}, v14")
        for i in range(6): a(f"v_cvt_f16_f32 v{LO+i}, v{EX+i}")
        for i in range(6): a(f"v_fma_mix_f32 v{EX+i}, v{LO+i}, -1.0, v{EX+i} op_sel_hi:[1,0,0]")
        for i in range(6): a(f"v_cvt_f16_f32 v{EX+i}, v{EX+i}")
        for i in range(6): a(f"v_perm_b32 v{EX+i}, v{EX+i}, v{LO+i}, s34")
        if out_lds is not None:
            if hh == 0:
                a(f"""
                ds_write_b128 v{TB}, {vr(EX,4)}
                ds_write_b64 v{TB+1}, {vr(EX+4,2)}
                s_lshl_b32 s29, s3, 1
                v_mov_b32 v15, s29
                ds_write_b32 v15, v16 offset:{out_lds[1]}
                s_branch KG_JOIN{K}
                """)
            else:
                a(f"""
                ds_write_b64 v{TB+1}, {vr(EX,2)}
                s_mov_b32 exec_hi, 0xffff
                ds_write_b32 v{TB}, v{EX+2} offset:2048
                s_mov_b32 exec_hi, 0
                ds_write_b32 v{TB}, v{EX+3} offset:{2048+64}
                ds_write_b32 v{TB}, v{EX+4} offset:{2048+128}
                ds_write_b32 v{TB}, v{EX+5} offset:{2048+192}
                s_mov_b64 exec, -1
                """)
            return
        if hh == 0:
            a(f"""
            global_store_dwordx4 v{TB}, {vr(EX,4)}, s[14:15] {TST}
            global_store_dwordx2 v{TB+1}, {vr(EX+4,2)}, s[14:15] {TST}
            s_lshl_b32 s29, s16, 2
            s_add_u32 s29, s29, {WS_KSC}
            v_mov_b32 v15, s29
            s_mov_b64 exec, 1
            global_store_dword v15, v16, s[14:15] {TST}
            """)
        else:
            a(f"""
            global_store_dwordx2 v{TB+1}, {vr(EX,2)}, s[14:15] {TST}
            s_mov_b32 exec_hi, 0xffff
            global_store_dword v{TB}, v{EX+2}, s[14:15] offset:2048 {TST}
            s_mov_b32 exec_hi, 0
            global_store_dword v{TB}, v{EX+3}, s[14:15] offset:{2048+64} {TST}
            global_store_dword v{TB}, v{EX+4}, s[14:15] offset:{2048+128} {TST}
            global_store_dword v{TB}, v{EX+5}, s[14:15] offset:{2048+192} {TST}
            """)
        stamp_flush(a, "A", 37, hh, hh)
        span_end(a, 0)
        a("s_endpgm")
    n0 = _stamp_n.get(K, 0)
    finalize(0)
    a.label(f"KG_H1{K}")
    stamp_reset(K, n0)
    finalize(1)
    if out_lds is not None: a.label(f"KG_JOIN{K}")
    else: stamp_reset("A", 1)
    print("kgen vgpr hi", R.hi, file=sys.stderr)

def allreduce32(a, v, t):
    for m in ("quad_perm:[1,0,3,2]", "quad_perm:[2,3,0,1]", "row_half_mirror", "row_mirror"):
        a("s_nop 1")
        a(f"v_add_f32 v{v}, v{v}, v{v} {m} {DPP_ALL}")
    a("s_nop 0")
    a(f"v_mov_b32 v{t}, v{v}")
    a("s_nop 1")
    a(f"v_permlane16_swap_b32 v{v}, v{t}")
    a(f"v_add_f32 v{v}, v{v}, v{t}")

def gen_ln1(a):
    a(f"""
    s_load_dwordx2 s[4:5], s[0:1], {KA_X}
    s_load_dwordx2 s[14:15], s[0:1], {KA_WS}
    s_and_b32 s17, s36, 7              ; x
    s_lshr_b32 s18, s36, 3             ; m 0..15
    s_lshr_b32 s19, s18, 2
    s_lshl_b32 s19, s19, 3
    s_add_u32 s19, s19, s17
    s_lshl_b32 s19, s19, 2
    s_and_b32 s18, s18, 3
    s_add_u32 s19, s19, s18            ; T16
    v_lshrrev_b32 v3, 5, v0
    v_and_b32 v4, 31, v0
    v_mul_u32_u24 v5, 1152, v3
    s_mul_i32 s20, s19, {16*1152}
    v_add_u32 v5, s20, v5
    v_lshl_add_u32 v6, v4, 4, v5
    v_lshl_add_u32 v7, v4, 2, v5
    v_add_u32 v94, 9216, v6
    v_add_u32 v95, 9216, v7
    v_mul_u32_u24 v5, {LN_P}, v3
    v_lshl_add_u32 v90, v4, 4, v5
    v_lshl_add_u32 v91, v4, 2, v5
    s_waitcnt lgkmcnt(0)
    global_load_dwordx4 v[8:11], v6, s[4:5] {NTX}
    global_load_dwordx4 v[12:15], v6, s[4:5] offset:512 {NTX}
    global_load_dword v16, v7, s[4:5] offset:1024 {NTX}
    global_load_dwordx4 v[48:51], v94, s[4:5] {NTX}
    global_load_dwordx4 v[52:55], v94, s[4:5] offset:512 {NTX}
    global_load_dword v56, v95, s[4:5] offset:1024 {NTX}
    v_bfe_u32 v92, v2, 2, 2
    v_mul_u32_u24 v92, {LN_P}, v92
    v_and_b32 v93, 3, v2
    v_lshl_add_u32 v92, v93, 3, v92
    v_lshrrev_b32 v93, 4, v0
    v_lshl_add_u32 v92, v93, 5, v92
    s_mul_i32 s20, s19, 18432
    s_add_u32 s20, s20, {WS_XNT}
    v_lshl_add_u32 v93, v0, {4 if XB8 else 5}, s20
    v_add_u32 v96, 9216, v93
    """)
    stamp(a, "A")
    for ps in range(2):
        L = 8 + 40*ps; X = L + 10; T = X + 18
        a(f"s_waitcnt vmcnt({3*(1-ps)})")
        for w in range(9):
            a(f"v_lshlrev_b32 v{X+2*w}, 16, v{L+w}")
            a(f"v_and_b32 v{X+2*w+1}, 0xffff0000, v{L+w}")
        a(f"v_pk_add_f32 {vr(T,2)}, {vr(X,2)}, {vr(X+2,2)}")
        a(f"v_pk_add_f32 {vr(T+2,2)}, {vr(X+4,2)}, {vr(X+6,2)}")
        a(f"v_pk_add_f32 {vr(T+4,2)}, {vr(X+8,2)}, {vr(X+10,2)}")
        a(f"v_pk_add_f32 {vr(T+6,2)}, {vr(X+12,2)}, {vr(X+14,2)}")
        a(f"v_pk_add_f32 {vr(T,2)}, {vr(T,2)}, {vr(X+16,2)}")
        a(f"v_pk_add_f32 {vr(T+2,2)}, {vr(T+2,2)}, {vr(T+4,2)}")
        a(f"v_pk_add_f32 {vr(T,2)}, {vr(T,2)}, {vr(T+6,2)}")
        a(f"v_pk_add_f32 {vr(T,2)}, {vr(T,2)}, {vr(T+2,2)}")
        a(f"v_add_f32 v{T}, v{T}, v{T+1}")
        allreduce32(a, T, T+1)
        a(f"v_mul_f32 v{T}, {fbits(1.0/576)}, v{T}")
        for w in range(9):
            a(f"v_pk_add_f32 {vr(T+4,2)}, {vr(X+2*w,2)}, {vr(T,2)} op_sel_hi:[1,0] neg_lo:[0,1] neg_hi:[0,1]")
            if w == 0: a(f"v_pk_mul_f32 {vr(T+2,2)}, {vr(T+4,2)}, {vr(T+4,2)}")
            else: a(f"v_pk_fma_f32 {vr(T+2,2)}, {vr(T+4,2)}, {vr(T+4,2)}, {vr(T+2,2)}")
        a(f"v_add_f32 v{T+2}, v{T+2}, v{T+3}")
        allreduce32(a, T+2, T+3)
        a(f"""
        v_mul_f32 v{T+1}, {fbits(1.0/576)}, v{T+2}
        v_cvt_pk_bf16_f32 v{T+1}, v{T}, v{T+1}
        v_lshlrev_b32 v{T}, 16, v{T+1}
        v_and_b32 v{T+1}, 0xffff0000, v{T+1}
        v_add_f32 v{T+1}, {fbits(1e-5)}, v{T+1}
        v_cvt_pk_bf16_f32 v{T+1}, v{T+1}, v{T+1}
        v_lshlrev_b32 v{T+1}, 16, v{T+1}
        v_sqrt_f32 v{T+1}, v{T+1}
        s_nop 0
        v_cvt_pk_bf16_f32 v{T+1}, v{T+1}, v{T+1}
        v_lshlrev_b32 v{T+1}, 16, v{T+1}
        v_rcp_f32 v{T+2}, v{T+1}
        """)
        for w in range(9):
            a(f"v_pk_add_f32 {vr(X+2*w,2)}, {vr(X+2*w,2)}, {vr(T,2)} op_sel_hi:[1,0] neg_lo:[0,1] neg_hi:[0,1]")
        rnd_pairs(a, [X+2*w for w in range(9)])
        for w in range(9):
            a(f"v_pk_mul_f32 {vr(X+2*w,2)}, {vr(X+2*w,2)}, {vr(T+2,2)} op_sel_hi:[1,0]")
        for w in range(9):
            a(f"v_cvt_pk_bf16_f32 v{L+w}, v{X+2*w}, v{X+2*w+1}")
        a(f"""
        ds_write_b128 v90, {vr(L,4)} offset:{8*LN_P*ps}
        ds_write_b128 v90, {vr(L+4,4)} offset:{8*LN_P*ps + 512}
        ds_write_b32 v91, v{L+8} offset:{8*LN_P*ps + 1024}
        """)
    a("s_waitcnt lgkmcnt(0)")
    a("s_barrier")
    stamp(a, "A")
    for u in range(2):
        for i in range(4):
            a(f"ds_read_b64_tr_b16 {vr(8+8*u+2*i,2)}, v92 offset:{4*i*LN_P + 512*u}")
    a(f"v_add_u32 v94, {256*(16 if XB8 else 32)}, v93")
    a(f"v_add_u32 v97, 9216, v94")
    a("s_cmp_lg_u32 s3, 0")
    a("s_cbranch_scc1 LN1_NOX")
    for i in range(4):
        a(f"ds_read_b64_tr_b16 {vr(24+2*i,2)}, v92 offset:{4*i*LN_P + 1024}")
    a(f"""
    v_add_u32 v95, {512*(16 if XB8 else 32)}, v93
    v_add_u32 v98, 9216, v95
    s_waitcnt lgkmcnt(0)
    global_store_dwordx4 v95, v[24:27], s[14:15] {ST}
    global_store_dwordx4 v{98 if XB8 else 95}, v[28:31], s[14:15] offset:{0 if XB8 else 16} {ST}
    LN1_NOX:
    s_waitcnt lgkmcnt(0)
    global_store_dwordx4 v93, v[8:11], s[14:15] {ST}
    global_store_dwordx4 v{96 if XB8 else 93}, v[12:15], s[14:15] offset:{0 if XB8 else 16} {ST}
    global_store_dwordx4 v94, v[16:19], s[14:15] {ST}
    global_store_dwordx4 v{97 if XB8 else 94}, v[20:23], s[14:15] offset:{0 if XB8 else 16} {ST}
    """)
    stamp_flush(a, "A", 352 + 5, 0, 2)
    span_end(a, 0)
    a("s_endpgm")

def gen_mod(a, endlabel):
    a(f"""
    s_load_dwordx4 s[4:7], s[0:1], {KA_C}      ; c, w_mod
    s_load_dwordx2 s[14:15], s[0:1], {KA_WS}
    s_and_b32 s17, s36, 7
    s_lshr_b32 s18, s36, 3
    s_lshr_b32 s19, s18, 1
    s_lshl_b32 s19, s19, 3
    s_add_u32 s19, s19, s17
    s_lshl_b32 s19, s19, 1
    s_and_b32 s18, s18, 1
    s_add_u32 s19, s19, s18
    s_cmp_ge_u32 s19, {54 if MOD2 else 108}
    s_cbranch_scc1 {endlabel}
    v_and_b32 v3, 15, v2
    s_lshl_b32 s20, s3, 4
    v_add_u32 v3, s20, v3              ; row
    v_lshrrev_b32 v4, 4, v2            ; cq
    v_mul_u32_u24 v5, 6912, v3
    s_lshl_b32 s20, s19, 6
    v_lshl_add_u32 v5, v4, 4, v5
    v_add_u32 v5, s20, v5
    v_lshlrev_b32 v6, 3, v0
    s_mov_b32 s21, {64*6912}
    s_mov_b32 s24, {fbits(-LOG2E)}
    v_cmp_gt_u32 vcc, 144, v0
    s_waitcnt lgkmcnt(0)
    s_and_saveexec_b64 s[26:27], vcc
    s_cbranch_execz MOD_NOC
    global_load_dwordx2 v[8:9], v6, s[4:5]
    MOD_NOC:
    s_mov_b64 exec, -1
    """)
    for i in range(9):
        a(f"global_load_dwordx4 {vr(40+4*i,4)}, v5, s[6:7] {NT}")
        if i < 8: a("v_add_u32 v5, s21, v5")
    a("""
    s_waitcnt vmcnt(9)
    v_lshlrev_b32 v12, 16, v8
    v_and_b32 v13, 0xffff0000, v8
    v_lshlrev_b32 v14, 16, v9
    v_and_b32 v15, 0xffff0000, v9
    """)
    for i in range(4): a(f"v_mul_f32 v{16+i}, s24, v{12+i}")
    for i in range(4): a(f"v_exp_f32 v{16+i}, v{16+i}")
    a("s_nop 0")
    for i in range(4): a(f"v_add_f32 v{16+i}, 1.0, v{16+i}")
    for i in range(4): a(f"v_rcp_f32 v{16+i}, v{16+i}")
    a("s_nop 0")
    for i in range(4): a(f"v_mul_f32 v{12+i}, v{12+i}, v{16+i}")
    rnd_pairs(a, [12, 14])
    a(f"""
    v_lshlrev_b32 v6, 4, v0
    ds_write_b128 v6, v[12:15]
    """)
    NS = 0
    if MOD2:
        NS = 1
        a(f"""
        v_min_u32 v7, 143, v0
        v_lshlrev_b32 v7, 4, v7
        v_add_u32 v7, {WS_SC}, v7
        s_cmp_eq_u32 s19, 0
        s_cselect_b64 s[26:27], vcc, 0
        v_add_u32 v80, 4096, v7
        v_cndmask_b32 v7, v80, v7, s[26:27]
        global_store_dwordx4 v7, v[12:15], s[14:15]
        """)
    a(f"""
    v_lshlrev_b32 v6, 2, v3
    s_waitcnt lgkmcnt(0)
    s_barrier
    """)
    for i in range(9): a(f"ds_read_b32 v{8+i}, v6 offset:{256*i}")
    a("s_waitcnt lgkmcnt(0)")
    ACC = 32
    for i in range(9):
        a(f"s_waitcnt vmcnt({8-i+NS})")
        for w in range(4):
            t = 20 + 2*w
            a(f"v_lshlrev_b32 v{t}, 16, v{40+4*i+w}")
            a(f"v_and_b32 v{t+1}, 0xffff0000, v{40+4*i+w}")
            if i == 0:
                a(f"v_mul_f32 v{ACC+2*w}, v{t}, v8")
                a(f"v_mul_f32 v{ACC+2*w+1}, v{t+1}, v8")
            else:
                a(f"v_fmac_f32 v{ACC+2*w}, v{t}, v{8+i}")
                a(f"v_fmac_f32 v{ACC+2*w+1}, v{t+1}, v{8+i}")
    stamp(a, "A")
    a("s_nop 1")
    for e in range(4):
        a(f"v_add_f32 v{20+e}, v{ACC+e}, v{ACC+e} row_ror:8 row_mask:0xf bank_mask:0x3")
        a(f"v_add_f32 v{20+e}, v{ACC+4+e}, v{ACC+4+e} row_ror:8 row_mask:0xf bank_mask:0xc")
    a("s_nop 1")
    for e in range(2):
        a(f"v_add_f32 v{ACC+e}, v{20+e}, v{20+e} row_half_mirror row_mask:0xf bank_mask:0x5")
        a(f"v_add_f32 v{ACC+e}, v{22+e}, v{22+e} row_half_mirror row_mask:0xf bank_mask:0xa")
    a("s_nop 1")
    for e in range(2): a(f"v_add_f32 v{ACC+e}, v{ACC+e}, v{ACC+e} quad_perm:[1,0,3,2] {DPP_ALL}")
    a("s_nop 1")
    for e in range(2): a(f"v_add_f32 v{ACC+e}, v{ACC+e}, v{ACC+e} quad_perm:[2,3,0,1] {DPP_ALL}")
    a(f"""
    v_lshrrev_b32 v28, 2, v2
    s_lshl_b32 s22, s3, 7
    v_lshl_add_u32 v28, v28, 3, s22
    ds_write_b64 v28, {vr(ACC,2)} offset:4096
    s_waitcnt lgkmcnt(0)
    s_barrier
    s_cmp_lg_u32 s3, 0
    s_cbranch_scc1 {endlabel}
    v_and_b32 v29, 31, v2
    v_lshlrev_b32 v28, 2, v29
    """)
    for w in range(4):
        a(f"ds_read_b32 v{12+w}, v28 offset:{4096+128*w}")
    a(f"""
    s_mul_i32 s22, s19, 3641
    s_lshr_b32 s22, s22, 16
    s_mul_i32 s23, s22, 18
    s_sub_u32 s23, s19, s23
    s_lshl_b32 s23, s23, 9             ; *32 cols * 16 B
    s_lshl_b32 s25, s22, 2
    s_add_u32 s23, s23, s25
    s_add_u32 s23, s23, {WS_P4 - 12}
    s_lshl_b32 s20, s19, 7
    s_add_u32 s20, s20, {WS_MOD}
    s_cmp_lt_u32 s22, 3
    s_cselect_b32 s20, s20, s23
    s_cselect_b32 s25, 2, 4
    v_lshlrev_b32 v28, s25, v29
    v_add_u32 v28, s20, v28
    s_waitcnt lgkmcnt(0)
    """)
    for w in range(1, 4):
        a(f"v_add_f32 v12, v12, v{12+w}")
    a(f"""
    v_cvt_pk_bf16_f32 v12, v12, v12
    v_lshlrev_b32 v12, 16, v12
    s_mov_b32 exec_hi, 0
    global_store_dword v28, v12, s[14:15]
    """)
    stamp_flush(a, "A", 256 + 21, 0, 3)
    span_end(a, 0)
    a("s_endpgm")

def gen_A(a):
    STREG["A"] = 166
    kernel_head(a, "ka_kernel")
    a(f"""
    s_cmp_ge_u32 s2, {A_GRID}
    s_cbranch_scc1 KA_END
    """)
    prefetch_code(a, "KA_PC", "ka_kernel", "CODE_END", 16, 156)
    tlb_warm(a, 156)
    a(f"""
    v_lshrrev_b32 v1, 6, v0
    v_and_b32 v2, 63, v0
    s_nop 0
    v_readfirstlane_b32 s3, v1
    """)
    span_begin(a)
    stamp(a, "A")
    if MOD2:
        a(f"""
        s_mov_b32 s36, s2
        s_cmp_lt_u32 s2, 64
        s_cbranch_scc1 KA_MOD
        s_sub_u32 s36, s2, 64
        s_cmp_lt_u32 s2, 192
        s_cbranch_scc1 KA_LN1              ; ln1 0..127
        s_sub_u32 s36, s2, 192             ; kgen 0..287
        KA_KG:
        """)
    elif ORD:
        a(f"""
        s_mov_b32 s36, s2
        s_cmp_lt_u32 s2, 16
        s_cbranch_scc1 KA_LN1              ; ln1 0..15
        s_sub_u32 s36, s2, 16
        s_cmp_lt_u32 s2, 128
        s_cbranch_scc1 KA_MOD              ; mod 0..111
        s_sub_u32 s36, s2, 80
        s_cmp_lt_u32 s2, 208
        s_cbranch_scc1 KA_LN1              ; ln1 48..127
        s_add_u32 s36, s2, 32
        s_cmp_lt_u32 s2, 256
        s_cbranch_scc1 KA_KG               ; kgen 240..287
        s_sub_u32 s36, s2, 240
        s_cmp_lt_u32 s2, 272
        s_cbranch_scc1 KA_LN1              ; ln1 16..31
        s_sub_u32 s36, s2, 480
        s_cmp_ge_u32 s2, 512
        s_cbranch_scc1 KA_LN1              ; ln1 32..47
        s_sub_u32 s36, s2, 272             ; kgen 0..239
        KA_KG:
        """)
    else:
        a(f"""
        s_mov_b32 s36, s2
        s_cmp_lt_u32 s2, 16
        s_cbranch_scc1 KA_LN1              ; ln1 0..15
        s_sub_u32 s36, s2, 16
        s_cmp_lt_u32 s2, 256
        s_cbranch_scc1 KA_KG               ; kgen 0..239
        s_sub_u32 s36, s2, 240
        s_cmp_lt_u32 s2, 272
        s_cbranch_scc1 KA_LN1              ; ln1 16..31
        s_sub_u32 s36, s2, 224
        s_cmp_lt_u32 s2, 352
        s_cbranch_scc1 KA_LN1              ; ln1 48..127
        s_sub_u32 s36, s2, 352
        s_cmp_lt_u32 s2, 464
        s_cbranch_scc1 KA_MOD              ; mod 0..111
        s_sub_u32 s36, s2, 480
        s_cmp_ge_u32 s2, 512
        s_cbranch_scc1 KA_LN1              ; ln1 32..47
        s_sub_u32 s36, s2, 224             ; kgen 240..287
        KA_KG:
        """)
    gen_kgen(a, "A", """
    s_lshr_b32 s16, s3, 1
    s_lshl_b32 s17, s36, 1
    s_add_u32 s16, s16, s17
    """)
    a.label("KA_LN1")
    if PRIO: a(f"s_setprio {PRIO}")
    gen_ln1(a)
    a.label("KA_MOD")
    if PRIO: a(f"s_setprio {PRIO}")
    stamp_reset("A", 1)
    gen_mod(a, "KA_END")
    a.label("KA_END")
    a("s_endpgm")
    return ("ka_kernel", A_GRID, 256, A_LDS, 168, 100, None)
```

```python
import nc
from common import *
from ka import allreduce32

D_NWG = 144
C_ZT = 0; C_ZR = 9216; C_P = 1216
C_PRM = C_ZR + 8 * C_P
C_END = C_PRM + 4 * 2304
D_WM = C_END
D_LIST = D_WM + 64
D_RANK = D_WM + 320
D_SELW = D_WM + 576
D_ACT = D_WM + 1024
D_KEYS = D_WM + 896
SENT = int(os.environ.get('H_SENT', '1'))
WS_OD = 0x5400
WS_FL = 0x70000
NREP = int(os.environ.get('G_NREP', '8'))
D_PART = 0
D_PART = D_WM + 2048
E_RED = D_WM + 1536 - 1536
F_LDS = D_PART + 9 * 2048
WS_PUB = 0xD000
WS_CNT = 0x7400
NSH = 8
SLEEP = os.environ.get("F_SLEEP", "1")

def transpose8x8(a, L, O, sLo, sHi):
    for m in range(8):
        for p in range(4):
            sel = sHi if (m & 1) else sLo
            a(f"v_perm_b32 v{O+4*m+p}, v{L[2*p+1]+m//2}, v{L[2*p]+m//2}, s{sel}")

def c_phase(a):
    a(f"""
    s_setprio 3
    v_add_u32 v0, -320, v0
    s_sub_u32 s3, s3, 5
    v_mov_b32 v16, 0
    v_mov_b32 v17, 0
    v_mov_b32 v18, 0
    v_mov_b32 v19, 0
    v_lshlrev_b32 v20, 4, v2
    s_mov_b32 exec_hi, 0xf
    ds_write_b128 v20, v[16:19] offset:{D_WM}
    s_mov_b64 exec, -1
    s_and_b32 s17, s2, 7
    s_lshr_b32 s18, s2, 3
    s_lshr_b32 s19, s18, 3
    s_lshl_b32 s19, s19, 3
    s_add_u32 s19, s19, s17
    s_lshl_b32 s19, s19, 3
    s_and_b32 s18, s18, 7
    s_add_u32 s19, s19, s18            ; T8
    v_lshrrev_b32 v3, 5, v0
    v_and_b32 v4, 31, v0
    v_mul_u32_u24 v5, 1152, v3
    s_mul_i32 s20, s19, 9216
    v_add_u32 v5, s20, v5
    v_lshl_add_u32 v6, v4, 4, v5
    v_lshl_add_u32 v7, v4, 2, v5
    s_lshr_b32 s21, s19, 1
    s_mul_i32 s21, s21, 18432
    s_and_b32 s22, s19, 1
    s_lshl_b32 s23, s22, 5
    s_add_u32 s23, s23, s21
    s_add_u32 s23, s23, {WS_Z}
    v_lshl_add_u32 v8, v0, 6, s23
    s_lshl_b32 s22, s22, 4
    s_add_u32 s22, s22, s21
    s_add_u32 s22, s22, {WS_Z + 16384}
    v_lshl_add_u32 v12, v2, 5, s22
    v_lshlrev_b32 v9, 4, v0
    v_add_u32 v10, {WS_P4}, v9
    v_lshlrev_b32 v11, 1, v0
    s_waitcnt lgkmcnt(0)
    global_load_dwordx4 v[26:29], v8, s[14:15]
    global_load_dwordx4 v[30:33], v8, s[14:15] offset:16
    global_load_dwordx4 v[96:99], v10, s[14:15]
    v_add_u32 v13, 4096, v10
    global_load_dwordx4 v[100:103], v13, s[14:15]
    global_load_ushort v108, v11, s[6:7]
    global_load_ushort v109, v11, s[6:7] offset:512
    s_cmp_lg_u32 s3, 0
    s_cbranch_scc1 KC_L1
    v_add_u32 v13, 8192, v10
    global_load_dwordx4 v[34:37], v12, s[14:15]
    global_load_dwordx4 v[104:107], v13, s[14:15]
    global_load_ushort v110, v11, s[6:7] offset:1024
    KC_L1:
    global_load_dwordx4 v[16:19], v6, s[4:5]
    global_load_dwordx4 v[20:23], v6, s[4:5] offset:512
    global_load_dword v24, v7, s[4:5] offset:1024
    s_barrier
    v_lshlrev_b32 v13, 2, v0
    v_lshlrev_b32 v12, 1, v2
    v_mul_u32_u24 v14, {C_P}, v3
    v_lshl_add_u32 v15, v4, 2, v14
    v_lshl_add_u32 v14, v4, 4, v14
    v_lshlrev_b32 v111, 2, v0
    v_lshlrev_b32 v112, 5, v4
    v_lshlrev_b32 v113, 3, v4
    s_waitcnt vmcnt(3)
    """)
    for r in range(8): a(f"ds_write_b32 v13, v{26+r} offset:{C_ZR + r*C_P}")
    def prm(base, wr, off):
        a(f"v_add_f32 v{base+1}, 1.0, v{base+1}")
        rnd1(a, base+1)
        a(f"v_lshlrev_b32 v{wr}, 16, v{wr}")
        a(f"ds_write2st64_b32 v111, v{base+1}, v{base} offset0:{(C_PRM + off)//256} offset1:{(C_PRM + 2304 + off)//256}")
        a(f"ds_write2st64_b32 v111, v{base+2}, v{wr} offset0:{(C_PRM + 4608 + off)//256} offset1:{(C_PRM + 6912 + off)//256}")
    assert C_PRM % 256 == 0
    prm(96, 108, 0); prm(100, 109, 1024)
    a("s_cmp_lg_u32 s3, 0")
    a("s_cbranch_scc1 KC_L2")
    for r in range(8): a(f"ds_write_b16{'_d16_hi' if r & 1 else ''} v12, v{34+r//2} offset:{C_ZR + r*C_P + 1024}")
    prm(104, 110, 2048)
    a(f"""
    KC_L2:
    s_waitcnt lgkmcnt(0)
    s_barrier
    ds_read_b128 v[26:29], v14 offset:{C_ZR}
    ds_read_b128 v[30:33], v14 offset:{C_ZR + 512}
    ds_read_b32 v34, v15 offset:{C_ZR + 1024}
    """)
    stamp(a, "H")
    X = 40; H = 58; PR = 76; PR2 = 94
    def load_prm(dst, plane):
        o = C_PRM + 2304 * plane
        a(f"ds_read_b128 {vr(dst,4)}, v112 offset:{o}")
        a(f"ds_read_b128 {vr(dst+4,4)}, v112 offset:{o + 16}")
        a(f"ds_read_b128 {vr(dst+8,4)}, v112 offset:{o + 1024}")
        a(f"ds_read_b128 {vr(dst+12,4)}, v112 offset:{o + 1040}")
        a(f"ds_read_b64 {vr(dst+16,2)}, v113 offset:{o + 2048}")
    load_prm(PR, 0); load_prm(PR2, 1)
    a("s_waitcnt vmcnt(0)")
    for w in range(9):
        a(f"v_lshlrev_b32 v{X+2*w}, 16, v{16+w}")
        a(f"v_and_b32 v{X+2*w+1}, 0xffff0000, v{16+w}")
    a("s_waitcnt lgkmcnt(10)")
    for w in range(9):
        a(f"v_lshlrev_b32 v{H+2*w}, 16, v{26+w}")
        a(f"v_and_b32 v{H+2*w+1}, 0xffff0000, v{26+w}")
    XP = [X+2*w for w in range(9)]; HP = [H+2*w for w in range(9)]
    for w in range(9): a(f"v_pk_add_f32 {vr(XP[w],2)}, {vr(XP[w],2)}, {vr(HP[w],2)}")
    rnd_pairs(a, XP)
    a(f"v_pk_add_f32 v[16:17], {vr(X,2)}, {vr(X+2,2)}")
    a(f"v_pk_add_f32 v[18:19], {vr(X+4,2)}, {vr(X+6,2)}")
    a(f"v_pk_add_f32 v[20:21], {vr(X+8,2)}, {vr(X+10,2)}")
    a(f"v_pk_add_f32 v[22:23], {vr(X+12,2)}, {vr(X+14,2)}")
    a(f"v_pk_add_f32 v[16:17], v[16:17], {vr(X+16,2)}")
    a("v_pk_add_f32 v[18:19], v[18:19], v[20:21]")
    a("v_pk_add_f32 v[16:17], v[16:17], v[22:23]")
    a("v_pk_add_f32 v[16:17], v[16:17], v[18:19]")
    a("v_add_f32 v16, v16, v17")
    allreduce32(a, 16, 17)
    a(f"v_mul_f32 v16, {fbits(1.0/576)}, v16")
    for w in range(9):
        a(f"v_pk_add_f32 {vr(HP[w],2)}, {vr(XP[w],2)}, v[16:17] op_sel_hi:[1,0] neg_lo:[0,1] neg_hi:[0,1]")
    a(f"v_pk_mul_f32 v[18:19], {vr(HP[0],2)}, {vr(HP[0],2)}")
    a(f"v_pk_mul_f32 v[20:21], {vr(HP[1],2)}, {vr(HP[1],2)}")
    for w in range(2, 9):
        t = 18 + 2 * (w & 1)
        a(f"v_pk_fma_f32 {vr(t,2)}, {vr(HP[w],2)}, {vr(HP[w],2)}, {vr(t,2)}")
    a("v_pk_add_f32 v[18:19], v[18:19], v[20:21]")
    a("v_add_f32 v18, v18, v19")
    allreduce32(a, 18, 19)
    a(f"""
    v_mul_f32 v17, {fbits(1.0/576)}, v18
    v_cvt_pk_bf16_f32 v17, v16, v17
    v_lshlrev_b32 v16, 16, v17
    v_and_b32 v17, 0xffff0000, v17
    v_add_f32 v17, {fbits(1e-5)}, v17
    v_cvt_pk_bf16_f32 v17, v17, v17
    v_lshlrev_b32 v17, 16, v17
    v_sqrt_f32 v17, v17
    s_nop 0
    v_cvt_pk_bf16_f32 v17, v17, v17
    v_lshlrev_b32 v17, 16, v17
    v_rcp_f32 v18, v17
    """)
    for w in range(9):
        a(f"v_pk_add_f32 {vr(HP[w],2)}, {vr(XP[w],2)}, v[16:17] op_sel_hi:[1,0] neg_lo:[0,1] neg_hi:[0,1]")
    rnd_pairs(a, HP)
    for w in range(9): a(f"v_pk_mul_f32 {vr(HP[w],2)}, {vr(HP[w],2)}, v[18:19] op_sel_hi:[1,0]")
    rnd_pairs(a, HP)
    a("s_waitcnt lgkmcnt(0)")
    for w in range(9): a(f"v_pk_mul_f32 {vr(HP[w],2)}, {vr(HP[w],2)}, {vr(PR+2*w,2)}")
    load_prm(PR, 2)
    rnd_pairs(a, HP)
    for w in range(9): a(f"v_pk_add_f32 {vr(HP[w],2)}, {vr(HP[w],2)}, {vr(PR2+2*w,2)}")
    load_prm(PR2, 3)
    for w in range(9): a(f"v_cvt_pk_bf16_f32 v{26+w}, v{HP[w]}, v{HP[w]+1}")
    a(f"""
    v_add_u32 v8, {WS_H2}, v6
    v_add_u32 v9, {WS_H2}, v7
    global_store_dwordx4 v8, v[26:29], s[14:15] sc1
    global_store_dwordx4 v8, v[30:33], s[14:15] offset:512 sc1
    global_store_dword v9, v34, s[14:15] offset:1024 sc1
    """)
    for w in range(9):
        a(f"v_lshlrev_b32 v{HP[w]}, 16, v{26+w}")
        a(f"v_and_b32 v{HP[w]+1}, 0xffff0000, v{26+w}")
    a("s_waitcnt lgkmcnt(5)")
    GP = [114 - 0] * 0
    for w in range(9): a(f"v_pk_mul_f32 {vr(PR+2*w,2)}, {vr(HP[w],2)}, {vr(PR+2*w,2)}")
    rnd_pairs(a, [PR+2*w for w in range(9)])
    for w in range(9): a(f"v_pk_add_f32 {vr(PR+2*w,2)}, {vr(PR+2*w,2)}, {vr(XP[w],2)}")
    for w in range(9): a(f"v_cvt_pk_bf16_f32 v{X+w}, v{PR+2*w}, v{PR+2*w+1}")
    a(f"""
    s_waitcnt lgkmcnt(0)
    """)
    a(f"v_pk_mul_f32 v[20:21], {vr(HP[0],2)}, {vr(PR2,2)}")
    a(f"v_pk_mul_f32 v[22:23], {vr(HP[1],2)}, {vr(PR2+2,2)}")
    for w in range(2, 9):
        t = 20 + 2 * (w & 1)
        a(f"v_pk_fma_f32 {vr(t,2)}, {vr(HP[w],2)}, {vr(PR2+2*w,2)}, {vr(t,2)}")
    a("v_pk_add_f32 v[20:21], v[20:21], v[22:23]")
    a("v_add_f32 v20, v20, v21")
    allreduce32(a, 20, 21)
    a(f"""
    v_cvt_pk_bf16_f32 v20, v20, v20
    v_and_b32 v20, 0xffff, v20
    v_lshrrev_b32 v21, 15, v20
    v_mul_u32_u24 v21, 0x7fff, v21
    v_or_b32 v21, 0x8000, v21
    v_xor_b32 v20, v20, v21
    s_lshl_b32 s22, s19, 3
    v_add_u32 v3, s22, v3
    v_sub_u32 v21, 0xffff, v3
    v_lshl_or_b32 v20, v20, 16, v21
    v_and_b32 v22, 7, v3
    v_lshlrev_b32 v22, 2, v22
    v_mov_b32 v24, {D_WM + 32}
    v_mov_b32 v25, 1
    v_and_b32 v26, 1, v2
    v_lshlrev_b32 v26, 4, v26
    s_lshl_b32 s22, s19, 7
    s_add_u32 s22, s22, {WS_KL}
    v_lshrrev_b32 v27, 1, v2
    v_lshlrev_b32 v27, 15, v27
    v_add3_u32 v27, v27, v26, s22
    """)
    stamp(a, "H")
    a(f"""
    ds_write_b32 v22, v20 offset:{D_KEYS}
    s_waitcnt vmcnt(0)
    s_mov_b64 exec, 1
    ds_add_rtn_u32 v28, v24, v25
    s_mov_b32 exec_lo, {hex((1 << (2*NREP)) - 1) if NREP < 16 else -1}
    s_waitcnt lgkmcnt(0)
    v_readfirstlane_b32 s18, v28
    s_cmp_lg_u32 s18, 3
    s_cbranch_scc1 KG_NOSIG
    ds_read_b128 v[28:31], v26 offset:{D_KEYS}
    s_waitcnt lgkmcnt(0)
    global_store_dwordx4 v27, v[28:31], s[14:15] sc1
    KG_NOSIG:
    s_mov_b64 exec, -1
    {"s_memrealtime s[92:93]" if os.environ.get("SPANG2") else ""}
    global_store_dwordx4 v6, {vr(X,4)}, s[12:13] sc1
    global_store_dwordx4 v6, {vr(X+4,4)}, s[12:13] offset:512 sc1
    global_store_dword v7, v{X+8}, s[12:13] offset:1024 sc1
    s_lshl_b32 s37, s19, 2
    s_add_u32 s37, s37, {WS_OD}
    v_add_u32 v0, 320, v0
    s_add_u32 s3, s3, 5
    s_setprio 0
    """)
    stamp(a, "H")

def gen_H(a):
    STREG["H"] = 164
    kernel_head(a, "kc_kernel")
    WL = 64; DL = 96; WT = 128; DT = 64; ACC = 16
    a(f"""
    s_cmp_ge_u32 s2, 256
    s_cbranch_scc1 KF_END
    v_add_u32 v0, 320, v0
    v_add_u32 v1, -576, v0
    v_min_u32 v0, v0, v1
    v_lshrrev_b32 v1, 6, v0
    v_and_b32 v2, 63, v0
    s_load_dwordx2 s[14:15], s[0:1], {KA_WS}
    s_load_dwordx2 s[4:5], s[0:1], {KA_X}
    s_load_dwordx2 s[6:7], s[0:1], {KA_WR}
    s_load_dwordx4 s[8:11], s[0:1], {KA_WG}
    s_load_dwordx2 s[80:81], s[0:1], {KA_WD}
    s_load_dwordx2 s[12:13], s[0:1], {KA_OUT}
    v_readfirstlane_b32 s3, v1
    s_mov_b32 s37, {WS_OD + 1024}
    s_mov_b32 s45, 400000
    s_mov_b32 s46, {WS_Z}
    """)
    span_begin(a)
    stamp(a, "H")
    a(f"""
    s_cmp_ge_u32 s3, 5
    s_cbranch_scc1 KF_C
    s_cmp_ge_u32 s2, {D_NWG}
    s_cbranch_scc1 KF_END
    s_waitcnt lgkmcnt(0)
    s_barrier
    s_branch KF_D
    KF_C:
    """)
    c_phase(a)
    a(f"""
    s_cmp_lt_u32 s2, {D_NWG}
    s_cbranch_scc1 KF_D
    v_mov_b32 v24, {D_WM + 36}
    v_mov_b32 v25, 1
    v_mov_b32 v26, s37
    s_waitcnt vmcnt(0)
    s_mov_b64 exec, 1
    ds_add_rtn_u32 v28, v24, v25
    s_waitcnt lgkmcnt(0)
    v_readfirstlane_b32 s18, v28
    s_cmp_lg_u32 s18, 3
    s_cbranch_scc1 KF_FIN
    global_store_dword v26, v25, s[14:15] sc1
    s_branch KF_FIN
    KF_D:
    v_and_b32 v3, 15, v0               ; col'
    v_bfe_u32 v4, v0, 4, 2             ; q
    s_and_b32 s17, s2, 7
    s_lshr_b32 s18, s2, 3
    s_mul_i32 s19, s17, 18
    s_add_u32 s16, s19, s18            ; fs
    v_lshrrev_b32 v6, 3, v3
    v_lshlrev_b32 v6, 5, v6
    v_lshl_add_u32 v6, v4, 3, v6
    s_lshl_b32 s20, s3, 6
    v_add_u32 v6, s20, v6              ; k
    v_lshlrev_b32 v50, 1, v6
    v_mul_u32_u24 v6, 9216, v6
    v_and_b32 v7, 3, v3
    v_lshl_add_u32 v6, v7, 4, v6
    s_lshl_b32 s20, s16, 6
    v_add_u32 v6, s20, v6
    v_mov_b32 v7, 0
    v_and_b32 v8, 4, v3
    v_cmp_ne_u32 vcc, 0, v8
    s_mov_b32 s22, 9216
    s_mov_b32 s23, 0
    v_mov_b32 v8, s8
    v_mov_b32 v9, s9
    v_mov_b32 v10, s10
    v_mov_b32 v11, s11
    v_cndmask_b32 v8, v8, v10, vcc
    v_cndmask_b32 v9, v9, v11, vcc
    v_lshl_add_u64 v[8:9], v[6:7], 0, v[8:9]
    """)
    for e in range(8):
        a(f"global_load_dwordx4 {vr(WL+4*e,4)}, v[8:9], off {os.environ.get('H_WFL', '')}")
        if e < 7: a("v_lshl_add_u64 v[8:9], v[8:9], 0, s[22:23]")
    a(f"""
    v_lshrrev_b32 v5, 1, v2
    v_lshlrev_b32 v5, 10, v5           ; (l>>1)*8 lines
    v_and_b32 v9, 1, v2
    v_lshl_add_u32 v5, v9, 4, v5
    s_lshl_b32 s20, s3, 7
    s_add_u32 s20, s20, {WS_KL}
    s_and_b32 s21, s2, {NREP-1}
    s_lshl_b32 s21, s21, 15
    s_add_u32 s20, s20, s21
    v_add_u32 v5, s20, v5
    v_mov_b32 v60, 0
    v_mov_b32 v62, 0
    v_mov_b32 v63, 0
    v_mov_b32 v160, 0
    v_mov_b32 v161, 0
    v_mov_b32 v162, 0
    v_mov_b32 v163, 0
    v_mov_b32 v49, 0
    s_mov_b32 s26, 0x05040100
    s_mov_b32 s27, 0x07060302
    s_lshl_b32 s20, s3, 4
    v_add_u32 v51, s20, v3             ; chunk
    v_min_u32 v51, 71, v51
    v_lshrrev_b32 v52, 3, v3
    v_lshlrev_b32 v52, 9, v52
    v_lshrrev_b32 v9, 1, v4
    v_lshl_add_u32 v52, v9, 8, v52
    v_and_b32 v9, 7, v3
    v_lshl_add_u32 v52, v9, 5, v52
    v_and_b32 v9, 1, v4
    v_lshl_add_u32 v52, v9, 4, v52
    s_lshl_b32 s20, s3, 11
    s_add_u32 s20, s20, {D_PART}
    v_add_u32 v52, s20, v52
    v_and_b32 v53, 1, v2
    v_lshlrev_b32 v53, 7, v53
    v_bfe_u32 v10, v2, 1, 3
    v_lshl_add_u32 v53, v10, 2, v53
    v_lshl_add_u32 v53, v4, 5, v53
    s_lshl_b32 s20, s3, 8
    s_add_u32 s20, s20, {D_PART}
    v_add_u32 v53, s20, v53
    v_lshlrev_b32 v54, 6, v10
    v_lshl_add_u32 v54, v4, 4, v54
    s_lshl_b32 s20, s3, 1
    v_add_u32 v54, s20, v54
    v_and_b32 v55, 7, v3
    v_lshlrev_b32 v55, 6, v55
    v_lshl_add_u32 v55, v4, 4, v55
    s_cmp_ge_u32 s3, 5
    s_cbranch_scc1 KF_D2
    s_barrier
    s_lshl_b32 s20, s16, 5
    v_lshl_add_u32 v6, v4, 3, s20
    v_mul_u32_u24 v6, 1152, v6
    v_lshl_add_u32 v6, v51, 4, v6
    v_add_u32 v7, {4*1152}, v6
    v_min_u32 v10, 255, v0
    v_add_u32 v10, 320, v10
    v_mul_u32_u24 v10, 9216, v10
    s_lshl_b32 s20, s16, 6
    v_add_u32 v10, s20, v10
    global_load_dword v56, v10, s[8:9]
    global_load_dword v57, v10, s[10:11]
    """)
    LATE = int(os.environ.get("G_DLATE", "0"))
    def dloads():
        for e in range(8):
            a(f"global_load_dwordx4 {vr(DL+4*e,4)}, {'v62' if e < 4 else 'v63'}, s[80:81] offset:{(e%4)*1152} {os.environ.get('H_DFL', '')}")
    a(f"""
    s_mul_i32 s21, s16, 18432
    s_add_u32 s21, s21, {WS_PART}
    v_lshl_add_u32 v160, v51, 5, s21
    v_and_b32 v161, 1, v4
    v_lshl_add_u32 v160, v161, 4, v160
    v_lshrrev_b32 v161, 1, v4
    v_mul_u32_u24 v161, 2304, v161
    v_add_u32 v160, v160, v161
    v_add_u32 v161, {2*2304}, v160
    v_add_u32 v162, {4*2304}, v160
    v_add_u32 v163, {6*2304}, v160
    s_cmp_eq_u32 s3, 4
    s_cselect_b32 s39, 0x00ff00ff, -1
    """)
    if not SENT:
        a(f"""
    s_and_b32 s38, s39, 0xffff
    ; flag addr: consumer j = (l&7)*9 + 2w + (l>>3) ; pos = (fs%36)*16 + (fs/36)*4
    s_mul_i32 s34, s16, 1821
    s_lshr_b32 s34, s34, 16
    s_mul_i32 s35, s34, 36
    s_sub_u32 s35, s16, s35
    s_lshl_b32 s35, s35, 4
    s_lshl_b32 s34, s34, 2
    s_add_u32 s35, s35, s34
    s_mul_i32 s36, s3, 1280
    s_add_u32 s35, s35, s36
    s_add_u32 s35, s35, {WS_FL}
    v_and_b32 v48, 7, v2
    v_mul_u32_u24 v48, {9*640}, v48
    v_bfe_u32 v49, v2, 3, 1
    v_mul_u32_u24 v49, 640, v49
    v_add3_u32 v48, v48, v49, s35
    v_mov_b32 v49, 1
        """)
    a("v_mov_b32 v62, v6")
    a("v_mov_b32 v63, v7")
    if LATE:
        a(f"""
        v_min_u32 v10, 287, v0
        v_lshlrev_b32 v10, 7, v10
        s_mul_i32 s20, s16, 36864
        v_add_u32 v10, s20, v10
        s_waitcnt vmcnt(2)
        """)
        transpose8x8(a, [WL+4*e for e in range(8)], WT, 26, 27)
    else:
        dloads()
        a("s_waitcnt vmcnt(10)")
        transpose8x8(a, [WL+4*e for e in range(8)], WT, 26, 27)
        a("s_waitcnt vmcnt(0)")
        transpose8x8(a, [DL+4*e for e in range(8)], DT, 26, 27)
    a(f"""
    KF_D2:
    s_barrier
    s_cmp_lt_u32 s3, 4
    s_cbranch_scc1 KF_POLL
    s_cmp_eq_u32 s3, 4
    s_cbranch_scc1 KD_B1
    s_waitcnt vmcnt(0)
    """)
    transpose8x8(a, [WL+4*e for e in range(8)], WT, 26, 27)
    a(f"""
    s_branch KD_B1
    KF_POLL:
    global_load_dwordx4 v[12:15], v5, s[14:15] sc1
    global_load_dwordx4 v[28:31], v5, s[14:15] offset:512 sc1
    s_waitcnt vmcnt(0)
    v_min3_u32 v16, v12, v13, v14
    v_min3_u32 v17, v28, v29, v30
    v_min3_u32 v16, v16, v15, v31
    v_min_u32 v16, v16, v17
    v_cmp_eq_u32 vcc, 0, v16
    s_cbranch_vccz KF_GOT
    s_sleep {SLEEP}
    s_sub_u32 s45, s45, 1
    s_cbranch_scc0 KF_POLL
    v_max_u32 v12, 1, v12
    v_max_u32 v28, 1, v28
    KF_GOT:
    """)
    stamp_reset("H", 3)
    stamp(a, "H")
    a("""
    v_max3_u32 v16, v12, v13, v14
    v_max3_u32 v17, v28, v29, v30
    v_max_u32 v16, v16, v15
    v_max_u32 v17, v17, v31
    s_nop 0
    """)
    for m in ["row_shr:1", "row_shr:2", "row_shr:4", "row_shr:8"]:
        a(f"v_max_u32 v16, v16, v16 {m} {DPP_ALL} bound_ctrl:0")
        a(f"v_max_u32 v17, v17, v17 {m} {DPP_ALL} bound_ctrl:0")
        a("s_nop 0")
    for m in ["row_bcast:15 row_mask:0xa bank_mask:0xf", "row_bcast:31 row_mask:0xc bank_mask:0xf"]:
        a(f"v_max_u32 v16, v16, v16 {m}")
        a(f"v_max_u32 v17, v17, v17 {m}")
        a("s_nop 0")
    a(f"""
    s_lshl_b32 s20, s3, 2
    s_add_u32 s20, s20, {D_WM}
    v_mov_b32 v18, s20
    s_mov_b32 exec_lo, 0
    s_mov_b32 exec_hi, 0x80000000
    ds_write2_b32 v18, v16, v17 offset0:0 offset1:4
    s_mov_b64 exec, -1
    v_mov_b32 v18, 0
    KD_SPIN:
    ds_read_b128 v[20:23], v18 offset:{D_WM}
    ds_read_b128 v[24:27], v18 offset:{D_WM + 16}
    s_waitcnt lgkmcnt(0)
    v_min3_u32 v20, v20, v21, v22
    v_min3_u32 v24, v24, v25, v26
    v_min3_u32 v20, v20, v23, v27
    v_min_u32 v20, v20, v24            ; theta
    v_cmp_eq_u32 vcc, 0, v20
    s_cbranch_vccnz KD_SPIN
    """)
    stamp(a, "H")
    def ce(x, y, t):
        a(f"v_max_u32 v{t}, v{x}, v{y}")
        a(f"v_min_u32 v{y}, v{x}, v{y}")
        a(f"v_mov_b32 v{x}, v{t}")
    for half, K0 in enumerate((12, 28)):
        a(f"""
        s_lshl_b32 s20, s3, 5
        s_add_u32 s20, s20, {D_LIST + 128*half}
        s_mov_b32 s25, 0
        """)
        for e in range(4):
            l = a.newlabel("KD_SK")
            a(f"""
            v_cmp_ge_u32 vcc, v{K0+e}, v20
            s_cbranch_vccz {l}
            s_nop 0
            v_mbcnt_lo_u32_b32 v21, vcc_lo, 0
            v_mbcnt_hi_u32_b32 v21, vcc_hi, v21
            v_add_u32 v21, s25, v21
            v_min_u32 v21, 7, v21
            v_lshl_add_u32 v21, v21, 2, s20
            s_bcnt1_i32_b64 s30, vcc
            s_add_u32 s25, s25, s30
            s_mov_b64 exec, vcc
            ds_write_b32 v21, v{K0+e}
            s_mov_b64 exec, -1
            {l}:
            """)
        ok = a.newlabel("KD_OK"); sl = a.newlabel("KD_SLOW")
        a(f"""
        s_cmp_le_u32 s25, 8
        s_cbranch_scc1 {ok}
        """)
        k = [K0 + i for i in range(4)]
        ce(k[0], k[1], 16); ce(k[2], k[3], 16); ce(k[0], k[2], 16); ce(k[1], k[3], 16); ce(k[1], k[2], 16)
        a("s_mov_b32 s31, 0")
        a.label(sl)
        a(f"v_mov_b32 v16, v{k[0]}")
        wave_max_u32_to_sgpr(a, 16, 24)
        a(f"""
        s_mov_b32 m0, s31
        s_nop 1
        v_writelane_b32 v17, s24, m0
        v_cmp_eq_u32 vcc, s24, v{k[0]}
        s_nop 1
        v_cndmask_b32 v{k[0]}, v{k[0]}, v{k[1]}, vcc
        v_cndmask_b32 v{k[1]}, v{k[1]}, v{k[2]}, vcc
        v_cndmask_b32 v{k[2]}, v{k[2]}, v{k[3]}, vcc
        v_cndmask_b32 v{k[3]}, v{k[3]}, 0, vcc
        s_add_u32 s31, s31, 1
        s_cmp_lt_u32 s31, 8
        s_cbranch_scc1 {sl}
        v_lshl_add_u32 v16, v2, 2, s20
        s_mov_b64 exec, 0xff
        ds_write_b32 v16, v17
        s_mov_b64 exec, -1
        {ok}:
        """)
    a(f"""
    KD_B1:
    v_lshlrev_b32 v16, 2, v2
    s_lshl_b32 s20, s3, 5
    v_mov_b32 v18, s20
    s_waitcnt lgkmcnt(0)
    s_barrier
    ds_read_b32 v17, v16 offset:{D_LIST}
    s_cmp_lt_u32 s3, 8
    s_cbranch_scc0 KD_C1
    ds_read_b128 v[20:23], v18 offset:{D_LIST}
    ds_read_b128 v[24:27], v18 offset:{D_LIST + 16}
    v_mov_b32 v19, 0
    s_waitcnt lgkmcnt(0)
    """)
    for e in range(8):
        a(f"v_cmp_gt_u32 vcc, v{20+e}, v17")
        a(f"v_addc_co_u32 v19, vcc, 0, v19, vcc")
    a(f"""
    ds_add_u32 v16, v19 offset:{D_RANK}
    KD_C1:
    s_waitcnt lgkmcnt(0)
    s_barrier
    ds_read_b32 v19, v16 offset:{D_RANK}
    v_and_b32 v21, 7, v2
    v_lshl_add_u32 v21, v21, 2, v18
    s_waitcnt lgkmcnt(0)
    v_lshl_add_u32 v20, v19, 2, v18
    v_cmp_gt_u32 vcc, 8, v19
    s_mov_b64 exec, vcc
    ds_write_b32 v20, v17 offset:{D_SELW}
    s_mov_b64 exec, -1
    ds_read_b32 v22, v21 offset:{D_SELW}
    s_waitcnt lgkmcnt(0)
    v_and_b32 v23, 0xffff, v22
    v_sub_u32 v23, 0xffff, v23
    v_min_u32 v23, 2047, v23
    v_mul_u32_u24 v24, 1152, v23
    v_add_u32 v25, v24, v50
    v_add_u32 v25, {WS_H2}, v25
    global_load_dwordx4 v[12:15], v25, s[14:15] sc1
    """)
    stamp(a, "H")
    a(f"""
    s_mul_i32 s32, s2, 7282
    s_lshr_b32 s32, s32, 16            ; m
    s_mul_i32 s33, s32, 9
    s_sub_u32 s33, s2, s33             ; cgp
    s_cmp_lt_u32 s3, 5
    s_cbranch_scc1 KF_M0
    s_cmp_lt_u32 s3, 8
    s_cbranch_scc1 KF_T1
    s_lshl_b32 s31, s33, 6
    s_add_u32 s31, s31, s32
    v_and_b32 v26, 0x38, v2
    v_add_u32 v26, s31, v26
    v_min_u32 v26, 575, v26
    v_lshl_add_u32 v60, v26, 1, v24
    v_add_u32 v28, {WS_H2}, v60
    v_lshrrev_b32 v29, 4, v23
    v_mul_u32_u24 v29, 18432, v29
    v_and_b32 v30, 15, v23
    v_lshrrev_b32 v31, 1, v26
    v_lshlrev_b32 v31, 6, v31
    v_lshl_add_u32 v31, v30, 2, v31
    v_and_b32 v27, 1, v26
    v_lshl_add_u32 v31, v27, 1, v31
    v_lshlrev_b32 v27, 5, v26
    v_lshl_add_u32 v27, v30, 1, v27    ; c layout : 16384 + (d-512)*32 + 2t = 32 d + 2t
    v_cmp_gt_u32 vcc, 512, v26
    s_nop 1
    v_cndmask_b32 v31, v27, v31, vcc
    v_add3_u32 v29, v29, v31, s46
    v_mov_b32 v61, v22
    v_lshlrev_b32 v30, 4, v26
    v_add_u32 v30, {WS_P4 + 8}, v30
    v_lshrrev_b32 v49, 3, v23
    v_lshlrev_b32 v49, 2, v49
    v_add_u32 v49, {WS_OD}, v49
    global_load_dword v59, v30, s[14:15]
    global_load_ushort v56, v60, s[4:5]
    global_load_ushort v57, v29, s[14:15]
    global_load_ushort v58, v28, s[14:15] sc1
    s_waitcnt vmcnt(4)
    s_branch KF_M1
    KF_T1:
    s_waitcnt vmcnt(0)
    s_branch KF_M1
    KF_M0:
    """)
    if LATE == 1:
        dloads()
        a("s_waitcnt vmcnt(8)")
    else:
        a("s_waitcnt vmcnt(0)")
    a("""
    KF_M1:
    """)
    stamp(a, "H")
    for m in range(8):
        a(f"v_mfma_f32_16x16x32_bf16 {vr(ACC+4*m,4)}, v[12:15], {vr(WT+4*m,4)}, 0")
    a("s_nop 1")
    ZR = 128
    for g in range(2):
        for pr in range(2):
            m = 4*g + 2*pr
            for r in range(4):
                a(f"v_permlane32_swap_b32 v{ACC+4*m+r}, v{ACC+4*(m+1)+r}")
        a("s_nop 0")
        for r in range(4):
            X, Y = ACC+4*(4*g)+r, ACC+4*(4*g+1)+r
            X2, Y2 = ACC+4*(4*g+2)+r, ACC+4*(4*g+3)+r
            a(f"v_add_f32 v{ZR+4*g+r}, v{Y}, v{X} row_ror:8 row_mask:0xf bank_mask:0x3")
            a(f"v_add_f32 v{ZR+4*g+r}, v{X2}, v{Y2} row_ror:8 row_mask:0xf bank_mask:0xc")
        a(f"ds_write_b128 v52, {vr(ZR+4*g,4)} offset:{1024*g}")
    a(f"""
    s_mov_b64 exec, -1
    s_waitcnt lgkmcnt(0)
    s_barrier
    s_cmp_lt_u32 s3, 8
    s_cbranch_scc1 KH_RED
    v_mov_b32 v26, s37
    v_mov_b32 v25, 1
    s_mov_b64 exec, 1
    global_store_dword v26, v25, s[14:15] sc1
    s_mov_b64 exec, -1
    s_branch KD_NORED
    KH_RED:
    """)
    for p in range(9):
        a(f"ds_read_b32 v{16+p}, v53 offset:{2048*p}")
    a("s_waitcnt lgkmcnt(4)")
    a("v_add_f32 v16, v16, v17")
    a("v_add_f32 v18, v18, v19")
    a("v_add_f32 v16, v16, v20")
    a("s_waitcnt lgkmcnt(0)")
    a("v_add_f32 v21, v21, v22")
    a("v_add_f32 v23, v23, v24")
    a("v_add_f32 v16, v16, v18")
    a("v_add_f32 v25, v21, v23")
    a(f"""
    v_add_f32 v12, v16, v25
    v_cvt_pk_bf16_f32 v12, v12, v12
    v_lshlrev_b32 v12, 16, v12
    v_mul_f32 v13, {fbits(-LOG2E)}, v12
    v_exp_f32 v13, v13
    s_nop 0
    v_add_f32 v13, 1.0, v13
    v_rcp_f32 v13, v13
    s_nop 0
    v_mul_f32 v13, v12, v13
    v_cvt_pk_bf16_f32 v13, v13, v13
    v_lshlrev_b32 v13, 16, v13
    s_nop 1
    v_mul_f32 v13, v12, v13 quad_perm:[1,1,3,3] {DPP_ALL}
    v_cvt_pk_bf16_f32 v13, v13, v13
    s_mov_b32 exec_lo, 0x55555555
    s_mov_b32 exec_hi, 0x55555555
    ds_write_b16 v54, v13 offset:{D_ACT}
    s_mov_b64 exec, -1
    KD_NORED:
    """)
    if LATE:
        a("""
        s_cmp_lt_u32 s3, 5
        s_cbranch_scc0 KG_NT
        s_waitcnt vmcnt(0)
        """)
        transpose8x8(a, [DL+4*e for e in range(8)], DT, 26, 27)
        a.label("KG_NT")
    a(f"""
    s_waitcnt lgkmcnt(0)
    s_barrier
    s_cmp_lt_u32 s3, 5
    s_cbranch_scc0 KF_E
    ds_read_b128 v[12:15], v55 offset:{D_ACT}
    s_waitcnt lgkmcnt(0)
    """)
    stamp(a, "H")
    for m in range(8):
        a(f"v_mfma_f32_16x16x32_bf16 {vr(ACC+4*m,4)}, v[12:15], {vr(DT+4*m,4)}, 0")
    a("s_nop 1")
    for pr in range(4):
        for r in range(4):
            a(f"v_permlane32_swap_b32 v{ACC+8*pr+r}, v{ACC+8*pr+4+r}")
    if SENT:
        for pr in range(4):
            for r in range(4):
                a(f"v_min_u32 v{ACC+8*pr+r}, -2, v{ACC+8*pr+r}")
    a("s_mov_b32 exec_lo, s39")
    a("s_mov_b32 exec_hi, s39")
    for pr in range(4):
        a(f"global_store_dwordx4 v{160+pr}, {vr(ACC+8*pr,4)}, s[14:15] sc1")
    if not SENT:
        a(f"""
        s_waitcnt vmcnt(0)
        s_mov_b32 exec_lo, s38
        s_mov_b32 exec_hi, 0
        global_store_dword v48, v49, s[14:15] sc1
        """)
    a(f"""
    s_mov_b64 exec, -1
    KF_E:
    s_cmp_ge_u32 s2, 72
    s_cbranch_scc1 KF_FIN
    """)
    stamp_reset("H", 8)
    stamp(a, "H")
    a(f"""
    v_lshrrev_b32 v3, 4, v0            ; wsub
    s_mul_i32 s34, s2, 640
    s_add_u32 s34, s34, {WS_FL}
    v_min_u32 v5, 35, v2
    v_lshl_add_u32 v5, v5, 4, s34
    s_lshl_b32 s20, s2, 8
    s_add_u32 s20, s20, {WS_PART}
    v_mul_u32_u24 v3, 18432, v3
    v_and_b32 v4, 15, v0
    v_lshl_add_u32 v3, v4, 4, v3
    v_add_u32 v3, s20, v3
    v_add_u32 v4, {36*18432}, v3
    v_add_u32 v6, {72*18432}, v3
    v_add_u32 v7, {108*18432}, v3
    v_and_b32 v24, 15, v2
    v_lshrrev_b32 v25, 4, v2
    v_lshl_add_u32 v24, v24, 2, v25
    v_lshlrev_b32 v24, 2, v24
    s_lshl_b32 s22, s3, 8
    v_add_u32 v24, s22, v24
    s_cmp_lg_u32 s3, 8
    s_cbranch_scc1 KH_NOD
    KH_OD:
    global_load_dword v26, v49, s[14:15] sc1
    s_waitcnt vmcnt(0)
    v_cmp_eq_u32 vcc, 0, v26
    s_cbranch_vccz KH_OD2
    s_sub_u32 s45, s45, 1
    s_cbranch_scc0 KH_OD
    KH_OD2:
    v_lshrrev_b32 v34, 16, v61
    v_lshrrev_b32 v35, 15, v34
    v_sub_u32 v35, 1, v35
    v_mul_u32_u24 v35, 0x7fff, v35
    v_or_b32 v35, 0x8000, v35
    v_xor_b32 v34, v34, v35
    v_lshlrev_b32 v34, 16, v34
    v_mul_f32 v34, {fbits(-LOG2E)}, v34
    v_exp_f32 v34, v34
    v_lshlrev_b32 v56, 16, v56
    v_add_f32 v34, 1.0, v34
    v_rcp_f32 v34, v34
    v_lshlrev_b32 v57, 16, v57
    v_cvt_pk_bf16_f32 v34, v34, v34
    v_lshlrev_b32 v34, 16, v34
    v_add_f32 v56, v56, v57
    v_cvt_pk_bf16_f32 v56, v56, v56
    v_lshlrev_b32 v56, 16, v56         ; x1
    v_lshlrev_b32 v58, 16, v58         ; h2
    KH_NOD:
    """)
    if SENT:
        a(f"""
        s_barrier
        KF_POLL2:
        global_load_dwordx4 v[8:11], v3, s[14:15] sc1
        global_load_dwordx4 v[12:15], v4, s[14:15] sc1
        global_load_dwordx4 v[16:19], v6, s[14:15] sc1
        global_load_dwordx4 v[20:23], v7, s[14:15] sc1
        s_waitcnt vmcnt(2)
        v_max3_u32 v26, v8, v9, v10
        v_max3_u32 v27, v11, v12, v13
        v_max3_u32 v26, v26, v14, v15
        s_waitcnt vmcnt(0)
        v_max3_u32 v27, v27, v16, v17
        v_max3_u32 v26, v26, v18, v19
        v_max3_u32 v27, v27, v20, v21
        v_max3_u32 v26, v26, v22, v23
        v_max_u32 v26, v26, v27
        v_cmp_eq_u32 vcc, -1, v26
        s_cbranch_vccz KF_GOT3
        s_sub_u32 s45, s45, 1
        s_cbranch_scc0 KF_POLL2
        KF_GOT3:
        """)
        stamp(a, "H")
    else:
        a(f"""
    s_cmp_lg_u32 s3, 0
        s_cbranch_scc1 KF_GOT2
        s_sleep {os.environ.get("H_PRE", "1")}
        KF_POLL2:
        global_load_dwordx4 v[12:15], v5, s[14:15] sc1
        s_waitcnt vmcnt(0)
        v_min3_u32 v16, v12, v13, v14
        v_min_u32 v16, v16, v15
        v_cmp_eq_u32 vcc, 0, v16
        s_cbranch_vccz KF_GOT2
        s_sleep {SLEEP}
        s_branch KF_POLL2
        KF_GOT2:
        s_barrier
        global_load_dwordx4 v[8:11], v3, s[14:15] sc1
        global_load_dwordx4 v[12:15], v4, s[14:15] sc1
        global_load_dwordx4 v[16:19], v6, s[14:15] sc1
        global_load_dwordx4 v[20:23], v7, s[14:15] sc1
        """)
        stamp(a, "H")
        a(f"""
        s_waitcnt vmcnt(2)
""")
    a(f"""
    v_pk_add_f32 v[8:9], v[8:9], v[12:13]
    v_pk_add_f32 v[10:11], v[10:11], v[14:15]
    s_waitcnt vmcnt(0)
    v_pk_add_f32 v[16:17], v[16:17], v[20:21]
    v_pk_add_f32 v[18:19], v[18:19], v[22:23]
    v_pk_add_f32 v[8:9], v[8:9], v[16:17]
    v_pk_add_f32 v[10:11], v[10:11], v[18:19]
    s_nop 1
    v_permlane32_swap_b32 v8, v10
    v_permlane32_swap_b32 v9, v11
    v_add_f32 v8, v8, v10
    v_add_f32 v9, v9, v11
    s_nop 1
    v_permlane16_swap_b32 v8, v9
    v_add_f32 v8, v8, v9
    ds_write_b32 v24, v8
    s_waitcnt lgkmcnt(0)
    s_barrier
    s_cmp_lg_u32 s3, 8
    s_cbranch_scc1 KF_FIN
    v_lshlrev_b32 v9, 2, v2
    """)
    for w in range(9):
        a(f"ds_read_b32 v{12+w}, v9 offset:{256*w}")
    a(f"""
    s_waitcnt lgkmcnt(0)
    """)
    for w in range(1, 9):
        a(f"v_add_f32 v12, v12, v{12+w}")
    rnd1(a, 12); a("v_mul_f32 v12, v12, v34")
    rnd1(a, 12); a("v_add_f32 v12, v12, v58")
    rnd1(a, 12); a("v_mul_f32 v12, v12, v59")
    rnd1(a, 12); a("v_add_f32 v12, v12, v56")
    a("v_cvt_pk_bf16_f32 v12, v12, v12")
    a("global_store_short v60, v12, s[12:13] sc1")
    a(f"""
    s_cmp_lg_u32 s2, 0
    s_cbranch_scc1 KF_FIN
    v_lshlrev_b32 v31, 2, v2
    v_add_u32 v31, {WS_SEL}, v31
    s_mov_b64 exec, 0xff
    global_store_dword v31, v61, s[14:15]
    """)
    a.label("KF_FIN")
    stamp_reset("H", 10)
    stamp_flush(a, "H", 5, 0, 0)
    stamp_reset("H", 11)
    stamp_flush(a, "H", 5, 8, 1)
    span_end(a, 2)
    a.label("KF_END")
    a("s_endpgm")
    return ("kc_kernel", 256, 576, F_LDS, 168, 100, None)
```

```python
from nc import *
import re
KG_PITCH = 272
KG_STAGE = 16 * KG_PITCH
L_STG = 0
L_LNR = 25600
L_CB = L_LNR + 4 * 2592
L_PART = 0
L_STG2 = L_CB + 1024
L_HB = 49792
HB_P = 4608
L_PRM = L_HB + 3 * HB_P
L_ZERO = L_PRM + 256
L_TAB = L_ZERO + 1024 + 128
TP = 2816
L_KC = L_TAB + 6 * TP
KC_P = 4160
M_LDS = L_KC + 12 * KC_P
assert L_KC % 64 == 0 and L_HB % 16 == 0
NT = E("M_NT", "nt")
PNT = E("M_PNT", "")
XNT = E("M_XNT", "nt")
ZST = E("M_ZST", "")
SPIN = 1 << 16
BETA = float(E('BETA', '1.25'))
KST = int(E('KST', '0'))
W2LATE = int(E('M_W2LATE', '1'))
CPL = int(E('M_CPL', '10'))
DIRECT = {1, 8, 128, 1024}
sTAG, sD, sHH, sKS = 38, 42, 43, 44
sDAB, sDC, sLD = 46, 47, 48

L_CNT = L_PRM + 192
C_LN, C_TAG, C_TAB, C_K, C_H = 0, 4, 16, 32, 48
L_TAG = L_CNT + C_TAG
VZ, VONE = 248, 249
def signal(a, off, vaddr=None):
    a("s_mov_b64 exec, 1")
    a(f"ds_add_u32 v{vaddr or VZ}, v{VONE} offset:{L_CNT + off}")
    a("s_mov_b64 exec, -1")
def spin(a, off, n, vaddr=None, vt=251, st=94):
    l = a.newlabel("SP")
    a(f"""
    {l}:
    ds_read_b32 v{vt}, v{vaddr or VZ} offset:{L_CNT + off}
    s_waitcnt lgkmcnt(0)
    v_readfirstlane_b32 s{st}, v{vt}
    s_cmp_ge_u32 s{st}, {n}
    s_cbranch_scc0 {l}
    """)

def ln_stats(a, X, T, sX0, vC):
    D = T + 4
    a(f"v_readfirstlane_b32 s{sX0}, v{X}")
    a("s_nop 1")
    a(f"v_subrev_f32 v{D+8}, s{sX0}, v{X+8}")
    a(f"s_mov_b32 s{sX0+1}, s{sX0}")
    for i in range(4): a(f"v_pk_add_f32 {vr(D+2*i,2)}, {vr(X+2*i,2)}, s[{sX0}:{sX0+1}] neg_lo:[0,1] neg_hi:[0,1]")
    a(f"v_pk_mul_f32 {vr(T+2,2)}, {vr(D,2)}, {vr(D,2)}")
    a(f"v_pk_add_f32 {vr(T,2)}, {vr(D,2)}, {vr(D+2,2)}")
    a(f"v_pk_fma_f32 {vr(T+2,2)}, {vr(D+2,2)}, {vr(D+2,2)}, {vr(T+2,2)}")
    a(f"v_pk_add_f32 {vr(D,2)}, {vr(D+4,2)}, {vr(D+6,2)}")
    a(f"v_pk_fma_f32 {vr(T+2,2)}, {vr(D+4,2)}, {vr(D+4,2)}, {vr(T+2,2)}")
    a(f"v_pk_add_f32 {vr(T,2)}, {vr(T,2)}, {vr(D,2)}")
    a(f"v_pk_fma_f32 {vr(T+2,2)}, {vr(D+6,2)}, {vr(D+6,2)}, {vr(T+2,2)}")
    a(f"v_add_f32 v{T}, v{T}, v{T+1}")
    a(f"v_fmac_f32 v{T+2}, v{D+8}, v{D+8}")
    a(f"v_add_f32 v{T}, v{T}, v{D+8}")
    a(f"v_add_f32 v{T+2}, v{T+2}, v{T+3}")
    a("s_nop 0")
    for m in [f"row_shr:1 {DPP_ALL} bound_ctrl:0", f"row_shr:2 {DPP_ALL} bound_ctrl:0", f"row_shr:4 {DPP_ALL} bound_ctrl:0", f"row_shr:8 {DPP_ALL} bound_ctrl:0",
              "row_bcast:15 row_mask:0xa bank_mask:0xf", "row_bcast:31 row_mask:0xc bank_mask:0xf"]:
        a(f"v_add_f32 v{T}, v{T}, v{T} {m}")
        a(f"v_add_f32 v{T+2}, v{T+2}, v{T+2} {m}")
        a("s_nop 0")
    a(f"""
    v_readlane_b32 s{sX0+2}, v{T}, 63
    v_readlane_b32 s{sX0+3}, v{T+2}, 63
    s_nop 0
    v_mul_f32 v{T}, s{sX0+2}, v{vC}
    v_mul_f32 v{T+1}, s{sX0+3}, v{vC}
    v_fma_f32 v{T+1}, -v{T}, v{T}, v{T+1}
    v_add_f32 v{T}, s{sX0}, v{T}
    v_max_f32 v{T+1}, 0, v{T+1}
    v_cvt_pk_bf16_f32 v{T+1}, v{T}, v{T+1}
    v_lshlrev_b32 v{T}, 16, v{T+1}
    v_and_b32 v{T+1}, 0xffff0000, v{T+1}
    v_add_f32 v{T+1}, {fbits(1e-5)}, v{T+1}
    v_cvt_pk_bf16_f32 v{T+1}, v{T+1}, v{T+1}
    v_lshlrev_b32 v{T+1}, 16, v{T+1}
    v_sqrt_f32 v{T+1}, v{T+1}
    """)
    a(f"v_sub_f32 v{D+8}, v{X+8}, v{T}")
    for i in range(4): a(f"v_pk_add_f32 {vr(D+2*i,2)}, {vr(X+2*i,2)}, {vr(T,2)} op_sel_hi:[1,0] neg_lo:[0,1] neg_hi:[0,1]")
    a(f"""
    v_cvt_pk_bf16_f32 v{T+1}, v{T+1}, v{T+1}
    v_lshlrev_b32 v{T+1}, 16, v{T+1}
    v_rcp_f32 v{T+1}, v{T+1}
    """)
    rnd_pairs(a, [D, D+2, D+4, D+6]); rnd1(a, D+8)
    for i in range(4): a(f"v_pk_mul_f32 {vr(D+2*i,2)}, {vr(D+2*i,2)}, {vr(T,2)} op_sel:[0,1] op_sel_hi:[1,1]")
    a(f"v_mul_f32 v{D+8}, v{D+8}, v{T+1}")
    return D


VFA, VT0, VT1, VT2 = 210, 211, 212, 213
VE0, VE1, VE2, VE3, VE4, VC0, VC1, VC2, VED = 200, 201, 202, 203, 204, 205, 206, 207, 208
XG = 224; VMP = 236; VD = 243; VMA = 244; VXA = 252
sSH = 48
def kgen_setup(a):
    a(f"""
    s_mul_i32 s50, s3, {KG_STAGE}
    s_add_u32 s51, s50, {L_STG2 - 4*KG_STAGE}
    s_cmp_ge_u32 s3, 4
    s_cselect_b32 s50, s51, s50
    s_mov_b32 m0, s50
    v_mul_u32_u24 v{VFA}, {KG_PITCH}, v10
    v_lshl_add_u32 v{VFA}, v11, 4, v{VFA}
    v_add_u32 v{VFA}, s50, v{VFA}
    s_mul_i32 s61, s3, {TP}
    s_add_u32 s61, s61, {L_TAB}          ; own partial table
    v_lshrrev_b32 v12, 1, v11
    v_lshlrev_b32 v{VT0}, 9, v12
    v_and_b32 v13, 1, v11
    v_lshl_add_u32 v{VT0}, v13, 4, v{VT0}
    v_lshl_add_u32 v{VT0}, v10, 5, v{VT0}
    v_add_u32 v{VT0}, s61, v{VT0}
    v_sub_u32 v13, 4, v12
    v_lshlrev_b32 v13, v13, v10
    v_lshl_add_u32 v13, v11, 8, v13
    v_add_u32 v13, s61, v13
    v_add_u32 v{VT1}, 1024, v13
    v_mul_u32_u24 v12, 120, v12
    v_add3_u32 v{VT1+3}, v{VT1}, v12, 8
    v_lshlrev_b32 v{VT2}, 8, v11
    v_lshl_add_u32 v{VT2}, v10, 2, v{VT2}
    v_add_u32 v{VT2}, s61, v{VT2}
    ; expansion
    s_mul_i32 s60, s41, {2*TP}
    s_add_u32 s60, s60, {L_TAB}          ; channel table pair
    v_mov_b32 v{VC0}, s60
    v_add_u32 v{VC1}, -4, v{VC0}
    v_add_u32 v{VC2}, -8, v{VC0}
    v_sub_u32 v12, 63, v2                ; L
    s_lshl_b32 s51, s{sHH}, 8
    s_sub_u32 s51, s60, s51
    s_add_u32 s51, s51, {4*576}
    v_lshl_add_u32 v{VE0}, v12, 2, s51
    v_add_u32 v{VE1}, 4, v{VE0}
    s_add_u32 s51, s60, {4*384}
    v_lshl_add_u32 v{VE2}, v12, 3, s51
    v_add_u32 v{VE3}, 4, v{VE2}
    v_add_u32 v{VE4}, 8, v{VE2}
    v_lshlrev_b32 v13, 5, v12
    v_lshlrev_b32 v12, 4, v12
    v_add_u32 v12, 512, v12
    v_min_u32 v12, v12, v13
    v_add_u32 v12, s60, v12
    s_cmp_eq_u32 s{sHH}, 0
    s_cselect_b64 vcc, -1, 0
    s_mul_i32 s51, s41, {4*KC_P}
    s_add_u32 s51, s51, {L_KC}
    v_cndmask_b32 v{VE2}, v{VE2}, v12, vcc
    v_lshl_add_u32 v{VED}, v2, 4, s51
    s_lshl_b32 s51, s41, 2
    v_mov_b32 v{VED+1}, s51
    s_lshl_b32 s{sSH}, s{sHH}, 4
    s_sub_u32 s{sSH}, 16, s{sSH}
    s_mov_b32 s52, {fbits(L_HI)}
    s_mov_b32 s53, {fbits(L_LO)}
    s_mov_b32 s54, {fbits(LN2)}
    s_mov_b32 s55, {fbits(P_HI)}
    s_mov_b32 s56, {fbits(P_LO)}
    s_mov_b32 s58, {fbits(BETA)}
    """)

def gen_kgen(a, cp, hooks):
    R = Regs(56, 200)
    AR, BH, CR, CI, DT, T0, T1, BL, VE = 40, 41, 42, 43, 44, 45, 46, 47, 48
    if cp: a(f"""
    s_waitcnt vmcnt({cp})
    s_cmp_eq_u32 s3, 3
    s_cbranch_scc1 KG_W1
    """)
    a(f"s_waitcnt vmcnt({max(cp-1, 0)})")
    a.label("KG_W1")
    stamp(a, 13)
    a(f"v_lshlrev_b32 v{DT}, 16, v{DT}")
    a(f"v_lshlrev_b32 v{AR}, s{sSH}, v{AR}")
    a(f"v_lshlrev_b32 v{BH}, s{sSH}, v{BH}")
    exp_bf16(a, DT, DT, T0, T1, 52, 53, 54)
    a(f"v_and_b32 v{AR}, 0xffff0000, v{AR}")
    a(f"v_and_b32 v{BH}, 0xffff0000, v{BH}")
    exp_bf16(a, AR, AR, T0, T1, 52, 53, 54)
    a(f"""
    v_mul_f32 v{AR}, v{AR}, v{DT}
    v_mul_f32 v{T0}, v{BH}, v{DT}
    v_mul_f32 v{AR}, s52, v{AR}
    v_sub_f32 v{AR}, 0, v{AR}
    v_mul_f32 v{BH}, s55, v{T0}
    v_fma_f32 v{BL}, v{T0}, s55, -v{BH}
    v_fma_f32 v{BL}, v{T0}, s56, v{BL}
    v_and_b32 v{VE}, 0x7fff7fff, v{CR}
    v_and_b32 v{T1}, 0x7fff7fff, v{CI}
    v_pk_max_u16 v{VE}, v{VE}, v{T1}
    v_lshlrev_b32 v{T1}, 16, v{VE}
    v_max_u32 v{VE}, v{VE}, v{T1}
    """)
    def anchor(Pp):
        d = R.get(2); t = R.get(2)
        pc = fbits(float(Pp)) if Pp not in (1, 2, 4) else f"{Pp}.0"
        a(f"v_mul_f32 v{t}, {pc}, v{AR}")
        a(f"v_mul_f32 v{t+1}, {pc}, v{BH}")
        a(f"v_exp_f32 v{t}, v{t}")
        a(f"v_fract_f32 v{t+1}, v{t+1}")
        a(f"v_fmamk_f32 v{t+1}, v{BL}, {fbits(float(Pp))}, v{t+1}")
        a(f"v_cos_f32 v{d}, v{t+1}")
        a(f"v_sin_f32 v{d+1}, v{t+1}")
        a("s_nop 0")
        a(f"v_pk_mul_f32 {vr(d,2)}, {vr(d,2)}, {vr(t,2)} op_sel_hi:[1,0]")
        R.put(t, 2)
        return d
    def mul(x, y):
        d = R.get(2); cmul(a, d, x, y); return d
    def power(Pp, half):
        return anchor(Pp) if Pp in DIRECT else mul(half, half)
    NPK = 6
    PK = R.get(NPK, 2); pk = [0]
    Q = LdsQ(a); pending = []; rows_since = [0]; wq = []; late = []
    WB = int(E("KG_WB", "2"))
    def flush_w():
        while wq: Q.issue(wq.pop(0))
    def put_row(row, x, neg):
        t = PK + (pk[0] % NPK); pk[0] += 1
        rows_since[0] += 1
        if pending and rows_since[0] >= 4: flush_mfma(1)
        if late and rows_since[0] >= 11: Q.issue(late.pop(0))
        a(f"v_cvt_pk_f16_f32 v{t}, v{x}, {'-' if neg else ''}v{x+1}")
        if len(wq) >= WB: flush_w()
        wq.append(f"ds_write_addtid_b32 v{t} offset:{row*KG_PITCH}")
    def flush_mfma(k):
        while k > 0 and pending:
            op, txt = pending.pop(0)
            Q.need(op); a(txt); k -= 1
    F = {}
    a(f"v_mov_b32 v{PK}, 0x3c00")
    Q.issue(f"ds_write_addtid_b32 v{PK} offset:0"); pk[0] = 1
    F[1] = anchor(8); put_row(1, F[1], False)
    dpp = [f"row_shr:1 {DPP_ALL} bound_ctrl:0", f"row_shr:2 {DPP_ALL} bound_ctrl:0", f"row_shr:4 {DPP_ALL} bound_ctrl:0", f"row_shr:8 {DPP_ALL} bound_ctrl:0",
           "row_bcast:15 row_mask:0xa bank_mask:0xf", "row_bcast:31 row_mask:0xc bank_mask:0xf"]
    def dstep():
        if dpp: a(f"v_max_u32 v{VE}, v{VE}, v{VE} {dpp.pop(0)}")
    F[2] = power(16, F[1]); put_row(2, F[2], False); dstep()
    F[3] = mul(F[1], F[2]); put_row(3, F[3], False); dstep()
    F[4] = power(32, F[2]); put_row(4, F[4], False); dstep()
    for j in (5, 6, 7):
        F[j] = mul(F[4], F[j-4]); put_row(j, F[j], False); dstep()
    F[8] = power(64, F[4]); put_row(8, F[8], False)
    a(f"v_readlane_b32 s57, v{VE}, 63")
    for j in range(9, 16):
        t = mul(F[8], F[j-8]); put_row(j, t, False); R.put(t, 2)
    for j in range(1, 9): R.put(F[j], 2)
    BF = R.get(16, 4)
    flush_w()
    if KST: stamp(a, 14)
    for k in range(4): Q.issue(f"ds_read_b128 {vr(BF+4*k,4)}, v{VFA} offset:{64*k}")
    Ee = {}
    Ee[1] = anchor(1)
    a(f"""
    s_and_b32 s57, s57, 0xffff0000
    v_frexp_exp_i32_f32 v{VE}, s57
    v_lshlrev_b32 v{CR}, s{sSH}, v{CR}
    v_lshlrev_b32 v{CI}, s{sSH}, v{CI}
    v_sub_u32 v{VE}, 6, v{VE}
    v_and_b32 v{CR}, 0xffff0000, v{CR}
    v_and_b32 v{CI}, 0xffff0000, v{CI}
    v_ldexp_f32 v{T0}, s58, v{VE}
    v_mul_f32 v{DT}, {fbits(1.0/BETA)}, v{DT}
    v_mul_f32 v{CR}, v{CR}, v{T0}
    v_mul_f32 v{CI}, v{CI}, v{T0}
    v_sub_u32 v{VE}, 1, v{VE}
    v_ldexp_f32 v{DT}, v{DT}, v{VE}
    """)
    Q.issue(f"ds_write_b32 v{VED+1}, v{DT} offset:{L_PRM + 5*16}")
    G = {0: CR}
    Ee[2] = power(2, Ee[1]); Ee[4] = power(4, Ee[2])
    Ee[128] = anchor(128)
    ACC = R.get(12, 4); AFR = R.get(16, 4)
    def tile_mfma(tau):
        flush_w(); flush_mfma(100)
        while late: Q.issue(late.pop(0))
        c = vr(ACC+4*tau, 4)
        for k in range(4):
            oh = Q.issue(f"ds_read_b128 {vr(AFR+4*k,4)}, v{VFA} offset:{64*k}")
            pending.append((oh, f"v_mfma_f32_16x16x32_f16 {c}, {vr(AFR+4*k,4)}, {vr(BF+4*k,4)}, {'0' if k == 0 else c}"))
        rows_since[0] = 0
        if tau == 0: late.append(f"ds_write_b128 v{VT0}, {c}")
    put_row(0, G[0], True)
    G[1] = mul(G[0], Ee[1]); put_row(1, G[1], True)
    G[2] = mul(G[0], Ee[2]); put_row(2, G[2], True)
    G[3] = mul(G[1], Ee[2]); put_row(3, G[3], True)
    G[4] = mul(G[0], Ee[4]); put_row(4, G[4], True)
    for r in (5, 6, 7):
        G[r] = mul(G[r-4], Ee[4]); put_row(r, G[r], True)
    R.put(Ee[1], 2); R.put(Ee[2], 2); R.put(Ee[4], 2)
    for r in range(8):
        G[128+r] = mul(G[r], Ee[128]); put_row(8+r, G[128+r], True)
        if r & 1:
            R.put(G[r], 2); R.put(G[128+r], 2)
    Ee[256] = power(256, Ee[128]); R.put(Ee[128], 2)
    if KST: stamp(a, 15)
    tile_mfma(0)
    Ee[512] = power(512, Ee[256])
    hooks.get("t0", lambda: None)()
    gl = [0, 4, 128, 132]
    for kk in range(2):
        for r in range(4):
            g = 128*kk + 2*r
            t = mul(G[g], Ee[256]); put_row(4*kk + r, t, True)
            if g in gl: G[256+g] = t
            else: R.put(t, 2); R.put(G[g], 2)
    R.put(Ee[256], 2)
    for r, g in enumerate(gl):
        G[512+g] = mul(G[g], Ee[512]); put_row(8+r, G[512+g], True)
        if g & 4: R.put(G[512+g], 2); R.put(G[g], 2)
    for r, g in enumerate(gl):
        G[768+g] = mul(G[256+g], Ee[512]); put_row(12+r, G[768+g], True)
        if g & 4: R.put(G[768+g], 2); R.put(G[256+g], 2)
    R.put(Ee[512], 2)
    if KST: stamp(a, 16)
    tile_mfma(1)
    Ee[1024] = power(1024, None)
    hooks.get("t1", lambda: None)()
    for k in range(8):
        t = mul(G[128*k], Ee[1024]); put_row(k, t, True); R.put(t, 2)
    Ee[2048] = power(2048, Ee[1024])
    t = mul(G[0], Ee[2048]); put_row(8, t, True); R.put(t, 2)
    tile_mfma(2)
    hooks.get("t2", lambda: None)()
    Q.issue(f"ds_write_b64 v{VT1}, {vr(ACC+4,2)}")
    Q.issue(f"ds_write_b64 v{VT1+3}, {vr(ACC+6,2)}")
    flush_mfma(100)
    a(f"""
    s_mov_b32 exec_hi, 0xffff
    s_nop 6
    ds_write_b32 v{VT2}, v{ACC+8} offset:2048
    s_mov_b32 exec_hi, 0
    ds_write_b32 v{VT2}, v{ACC+9} offset:{2048+64}
    ds_write_b32 v{VT2}, v{ACC+10} offset:{2048+128}
    ds_write_b32 v{VT2}, v{ACC+11} offset:{2048+192}
    """)
    print("kgen vgpr hi", R.hi, file=sys.stderr)

def expand_emit(a, W, C4, C5, T, rho):
    o = 1024*rho
    a(f"""
    ds_write_b128 v{VED}, {vr(W,4)} offset:{3*KC_P + o}
    v_mov_b32 v{C4}, v{W} wave_shl:1 {DPP_ALL}
    v_mov_b32 v{C5}, v{W+1} wave_shl:1 {DPP_ALL}
    v_alignbit_b32 v{T}, v{W+1}, v{W}, 16
    v_alignbit_b32 v{T+1}, v{W+2}, v{W+1}, 16
    v_alignbit_b32 v{T+2}, v{W+3}, v{W+2}, 16
    v_alignbit_b32 v{T+3}, v{C4}, v{W+3}, 16
    v_mov_b32 v{T+4}, v{W+1}
    v_mov_b32 v{T+5}, v{W+2}
    ds_write_b128 v{VED}, {vr(T,4)} offset:{2*KC_P + o}
    v_mov_b32 v{T+6}, v{W+3}
    v_mov_b32 v{T+7}, v{C4}
    v_mov_b32 v{T+8}, v{T+1}
    v_mov_b32 v{T+9}, v{T+2}
    ds_write_b128 v{VED}, {vr(T+4,4)} offset:{KC_P + o}
    v_mov_b32 v{T+10}, v{T+3}
    v_alignbit_b32 v{T+11}, v{C5}, v{C4}, 16
    ds_write_b128 v{VED}, {vr(T+8,4)} offset:{o}
    """)

def expand(a, hh):
    r2 = lambda d, v, o: a(f"ds_read2st64_b32 {vr(d,2)}, v{v} offset0:{o} offset1:{o + TP//256}")
    r2(56, VE0, 0); r2(58, VE1, 0); r2(60, VC0, 9 - hh)
    if hh: r2(62, VC1, 8)
    if hh == 0:
        for i in range(2):
            a(f"ds_read_b128 {vr(64+4*i,4)}, v{VE2} offset:{16*i}")
            a(f"ds_read_b128 {vr(72+4*i,4)}, v{VE2} offset:{TP + 16*i}")
        n2 = 4
    else:
        r2(64, VE2, 0); r2(66, VE3, 0); r2(68, VE4, 0); r2(70, VC0, 6); r2(72, VC1, 6); r2(74, VC2, 6)
        n2 = 6
    a(f"""
    s_mov_b32 vcc_lo, 0x55555555
    s_mov_b32 vcc_hi, 0x55555555
    s_waitcnt lgkmcnt({n2})
    v_add_f32 v56, v56, v57
    v_add_f32 v58, v58, v59
    v_add_f32 v60, v60, v61
    """)
    if hh: a("v_add_f32 v62, v62, v63")
    a(f"""
    v_cndmask_b32 v57, v56, v58, vcc
    v_cvt_pk_f16_f32 v80, v58, v58
    v_cvt_pk_f16_f32 v82, v56, v56
    v_cvt_pk_f16_f32 v81, v58, v57
    v_cvt_pk_f16_f32 v84, v60, v60
    v_mov_b32 v83, v82
    v_cvt_pk_f16_f32 v85, v{62 if hh else 60}, v{62 if hh else 60}
    """)
    expand_emit(a, 80, 84, 85, 88, hh)
    a("s_waitcnt lgkmcnt(4)")
    if hh == 0:
        for i in range(8): a(f"v_add_f32 v{64+i}, v{64+i}, v{72+i}")
        a(f"""
        v_cvt_pk_f16_f32 v100, v71, v70
        v_cvt_pk_f16_f32 v101, v69, v68
        v_cvt_pk_f16_f32 v102, v67, v66
        v_cvt_pk_f16_f32 v103, v65, v64
        v_mov_b32 v104, 0
        v_mov_b32 v105, 0
        s_mov_b32 exec_hi, 0
        v_cvt_pk_f16_f32 v100, v68, v67
        v_cvt_pk_f16_f32 v101, v66, v66
        v_cvt_pk_f16_f32 v102, v66, v65
        v_cvt_pk_f16_f32 v103, v64, v64
        s_mov_b64 exec, -1
        """)
    else:
        for i in range(6): a(f"v_add_f32 v{64+2*i}, v{64+2*i}, v{65+2*i}")
        a(f"""
        v_cvt_pk_f16_f32 v100, v68, v68
        v_cvt_pk_f16_f32 v101, v66, v66
        v_cvt_pk_f16_f32 v102, v66, v64
        v_cvt_pk_f16_f32 v103, v64, v64
        v_cvt_pk_f16_f32 v104, v70, v72
        v_cvt_pk_f16_f32 v105, v74, v74
        """)
    expand_emit(a, 100, 104, 105, 108, 3 - hh)

def pf_lines(a, mat, part, v0):
    A, B, C = v0, v0+1, v0+2
    a(f"""
    s_lshr_b32 s64, s2, 3
    s_mul_i32 s64, s64, 162
    s_add_u32 s64, s64, {54*part}
    s_and_b32 s65, s2, 7
    s_mul_i32 s65, s65, 9
    v_min_u32 v{A}, 53, v2
    v_add_u32 v{A}, s64, v{A}
    """)
    fl = E("M_PFFL", "nt")
    if mat == "d":
        a(f"""
        s_mul_i32 s65, s65, 576
        v_add_u32 v{B}, s65, v{A}
        v_lshlrev_b32 v{B}, 7, v{B}
        global_load_dword v15, v{B}, {P(sWD)} {fl}
        """)
    else:
        a(f"""
        v_mul_u32_u24 v{C}, 7282, v{A}
        v_lshrrev_b32 v{C}, 16, v{C}
        v_mul_u32_u24 v{B}, 9, v{C}
        v_sub_u32 v{B}, v{A}, v{B}
        v_add_u32 v{B}, s65, v{B}
        v_mul_u32_u24 v{C}, 9216, v{C}
        v_lshl_add_u32 v{C}, v{B}, 7, v{C}
        """)
        for m in mat: a(f"global_load_dword v15, v{C}, {P(sWG if m == 'g' else sWU)} {fl}")

JA = [(k, v) for v in (0, 1, 2) for k in range(3, 8) if k + v <= 7]
JB = [(k, v) for v in (0, 1, 2) for k in range(3)]
JC = [(k, v) for v in (3, 4) for k in range(5) if k + v <= 7]
JD = [(k, v) for v in (5, 6, 7) for k in range(3) if k + v <= 7]
POFF = {"A": (0, 3), "B": (5, 0), "C": (10, 3), "D": (15, 5)}
def JCH(k): return [(kb, g - kb) for g in (k, 7 - k) for kb in range(g + 1)]
VA = 64
VACC = 224
VB = 32
NB = 8
VAS = 16
NH = int(E("M_NH", "5"))
VKA, VHA = 4, 6
VPW = 8

class Job:
    def __init__(self, parts):
        self.parts = parts
        use = {}
        for ci, bl, _ in parts:
            for kb, vb in bl: use[(ci, kb)] = use.get((ci, kb), 0) + 1
        order = sorted(use, key=lambda x: (-use[x], x))
        self.held = {g: i for i, g in enumerate(order[:NH])}
    def preload(self, a):
        for (ci, kb), i in self.held.items():
            for x in range(8):
                kap = 8*kb + x; r = VA + 32*i + 4*x
                a(f"ds_read_b64 {vr(r,2)}, v{VKA+ci} offset:{64*(63-kap)}")
                a(f"ds_read_b64 {vr(r+2,2)}, v{VKA+ci} offset:{64*(63-kap)+8}")
    def run(self, a, fill_end=None):
        Q = LdsQ(a)
        acc = {}; seq = []
        for ci, bl, tag in self.parts:
            vbs = sorted(set(v for _, v in bl))
            for vb in vbs:
                for y in range(8):
                    seq.append(((ci, 8*vb + y), [((ci, kb, 7 - y), (ci, kb + vb)) for kb, v in bl if v == vb]))
        for _, ms in seq:
            for _, tk in ms:
                if tk not in acc: acc[tk] = VACC + 4*len(acc)
        assert len(acc) <= 6
        mf = []
        for bi, (bk, ms) in enumerate(seq):
            for ak, tk in ms: mf.append((bi, ak, tk))
        if int(E("M_STAG", "1")) and self.parts[-1][2]:
            nl = len(seq) - 8
            body = [m for m in mf if m[0] < nl]; tail = [m for m in mf if m[0] >= nl]
            tks = sorted(set(m[2] for m in tail))
            if len(tks) > 1:
                tail = sorted(tail, key=lambda m: (max(tks.index(m[2]) - 1, 0), m[0], m[2]))
            mf = body + tail
        last = {}
        for n, (_, _, tk) in enumerate(mf): last[tk] = n
        loads = []; sa = 0; areg = {}
        firstuse = {}
        for n, (bi, ak, tk) in enumerate(mf):
            if ("b", bi) not in firstuse:
                firstuse[("b", bi)] = n
                ci, v = seq[bi][0]
                loads.append((n, ("b", bi), [f"ds_read_b128 {vr(VB + 4*(bi % NB),4)}, v{VHA+ci} offset:{64*v}"]))
            ci, kb, x = ak
            if (ci, kb) in self.held: areg[n] = VA + 32*self.held[(ci, kb)] + 4*x
            else:
                r = VAS + 4*(sa % 4); kap = 8*kb + x
                loads.append((n, ("a", sa), [f"ds_read_b64 {vr(r,2)}, v{VKA+ci} offset:{64*(63-kap)}", f"ds_read_b64 {vr(r+2,2)}, v{VKA+ci} offset:{64*(63-kap)+8}"]))
                areg[n] = r; firstuse[("a", sa)] = n; sa += 1
        lastuse_b = {}
        for n, (bi, _, _) in enumerate(mf): lastuse_b[bi] = n
        opid = {}; li = 0; started = set(); pend = []
        LEAD = int(E("M_LEAD", "10"))
        def can_issue(key, n):
            if key[0] == "b": return key[1] < NB or lastuse_b[key[1] - NB] < n
            return key[1] < 4 or firstuse[("a", key[1] - 4)] < n
        akey_of = {}
        for (n0, key, _) in loads:
            if key[0] == "a": akey_of[n0] = key
        tagof = {ci: tag for ci, _, tag in self.parts}
        for n, (bi, ak, tk) in enumerate(mf):
            while li < len(loads) and loads[li][0] <= n + LEAD and can_issue(loads[li][1], n):
                for t in loads[li][2]: opid[loads[li][1]] = Q.issue(t)
                li += 1
            need = opid[("b", bi)]
            if n in akey_of: need = max(need, opid[akey_of[n]])
            Q.need(need)
            c = acc[tk]
            a(f"v_mfma_f32_16x16x32_f16 {vr(c,4)}, {vr(areg[n],4)}, {vr(VB + 4*(bi % NB),4)}, {'0' if tk not in started else vr(c,4)}")
            started.add(tk)
            if last[tk] == n and tagof[tk[0]]: pend.append((n + 9, tk))
            while pend and pend[0][0] <= n:
                tk2 = pend.pop(0)[1]
                s0, g0 = POFF[tagof[tk2[0]]]
                Q.issue(f"ds_write_b128 v{VPW+tk2[0]}, {vr(acc[tk2],4)} offset:{(s0 + tk2[1] - g0)*1024}")
        a("s_nop 7")
        for _, tk2 in pend:
            s0, g0 = POFF[tagof[tk2[0]]]
            Q.issue(f"ds_write_b128 v{VPW+tk2[0]}, {vr(acc[tk2],4)} offset:{(s0 + tk2[1] - g0)*1024}")
        return acc

def epi_core(a, Y, H, T, ks, dd, ga, n):
    for e in range(n): a(f"v_mul_f32 v{Y+e}, {ks}, v{Y+e}")
    for e in range(n): a(f"v_fma_mix_f32 v{T+e}, v{H+e//2}, {dd}, 0 op_sel:[{e&1},0,0] op_sel_hi:[1,0,0]")
    rnd_pairs(a, [Y+2*i for i in range(n//2)] + [T+2*i for i in range(n//2)])
    for e in range(n): a(f"v_add_f32 v{Y+e}, v{Y+e}, v{T+e}")
    rnd_pairs(a, [Y+2*i for i in range(n//2)])
    for e in range(n): a(f"v_mul_f32 v{Y+e}, {ga}, v{Y+e}")

def gen_M(a, fused=False):
    kernel_head(a, "ka_kernel")
    a(f"""
    s_cmp_ge_u32 s2, 256
    s_cbranch_scc1 M_END
    s_load_dwordx16 s[4:19], s[0:1], 0
    s_load_dwordx16 s[20:35], s[0:1], 64
    s_load_dwordx2 s[36:37], s[0:1], 128
    v_lshrrev_b32 v1, 6, v0
    v_and_b32 v2, 63, v0
    """)
    if ST: a(f"v_mov_b32 v{VST}, 0")
    a("v_readfirstlane_b32 s3, v1")
    stamp(a, 0)
    LL = 10; X = 16; T = 26
    a(f"""
    s_lshl_b32 s40, s2, 3
    s_add_u32 s40, s40, s3
    s_mul_i32 s40, s40, 1152
    v_lshl_add_u32 v3, v2, 4, s40
    v_lshl_add_u32 v4, v2, 1, s40
    v_mov_b32 v20, 0
    v_mov_b32 v21, 0
    v_mov_b32 v22, 0
    v_mov_b32 v23, 0
    v_mov_b32 v{VZ}, 0
    v_mov_b32 v{VONE}, 1
    v_lshlrev_b32 v24, 4, v2
    s_cmp_eq_u32 s3, 0
    s_cbranch_scc0 M_Z1
    s_mov_b64 exec, 0x3fffffff
    ds_write_b128 v24, v[20:23] offset:{L_HB}
    ds_write_b128 v24, v[20:23] offset:{L_HB + HB_P}
    ds_write_b128 v24, v[20:23] offset:{L_HB + 2*HB_P}
    M_Z1:
    s_cmp_eq_u32 s3, 1
    s_cbranch_scc0 M_Z2
    v_lshrrev_b32 v25, 1, v2
    v_mul_u32_u24 v25, {KC_P}, v25
    v_and_b32 v26, 1, v2
    v_lshl_add_u32 v25, v26, 4, v25
    v_add_u32 v25, {L_KC + 4096}, v25
    s_mov_b64 exec, 0xffffff
    ds_write_b128 v25, v[20:23]
    M_Z2:
    s_cmp_eq_u32 s3, 2
    s_cbranch_scc0 M_Z3
    ds_write_b128 v24, v[20:23] offset:{L_ZERO}
    M_Z3:
    s_cmp_eq_u32 s3, 3
    s_cbranch_scc0 M_Z0
    s_mov_b64 exec, 0xf
    ds_write_b128 v24, v[20:23] offset:{L_CNT}
    M_Z0:
    s_mov_b64 exec, -1
    s_lshr_b32 s41, s3, 1
    s_lshl_b32 s{sD}, s2, 1
    s_add_u32 s{sD}, s{sD}, s41
    s_lshr_b32 s45, s2, 2
    s_add_u32 s45, s45, 512            ; channel c
    s_cmp_eq_u32 s41, 2
    s_cselect_b32 s{sD}, s45, s{sD}
    s_and_b32 s{sHH}, s3, 1
    ; mod item: cg = u % 27, ks = u / 27
    s_mul_i32 s{sKS}, s2, 2428
    s_lshr_b32 s{sKS}, s{sKS}, 16
    s_mul_i32 s40, s{sKS}, 27
    s_sub_u32 s49, s2, s40             ; cg
    v_lshrrev_b32 v25, 2, v2
    s_lshl_b32 s40, s{sKS}, 6
    v_add_u32 v25, s40, v25
    v_mul_u32_u24 v25, 6912, v25
    v_and_b32 v26, 3, v2
    v_lshl_add_u32 v25, v26, 4, v25
    v_add_u32 v39, s40, v2
    s_lshl_b32 s40, s49, 7
    s_lshl_b32 s50, s{sHH}, 6
    s_add_u32 s40, s40, s50
    v_add_u32 v216, s40, v25
    v_lshlrev_b32 v39, 1, v39
    s_lshl_b32 s40, s{sD}, 8
    v_lshl_add_u32 v5, v2, 2, s40
    s_lshl_b32 s40, s{sD}, 1
    v_mov_b32 v6, s40
    s_waitcnt lgkmcnt(0)
    global_load_dwordx4 {vr(LL,4)}, v3, {P(sX)} {XNT}
    global_load_ushort v{LL+4}, v4, {P(sX)} offset:1024 {XNT}
    s_mov_b32 s50, {16*6912}
    v_add_u32 v217, s50, v216
    v_add_u32 v218, s50, v217
    v_add_u32 v219, s50, v218
    v_mov_b32 v7, {WS_EPOCH}
    s_cmp_ge_u32 s3, 6
    s_cbranch_scc1 M_T0MOD
    s_barrier                          ; B0
    global_load_ushort v44, v6, {P(sLDT)}
    global_load_dword v40, v5, {P(sLAR)} {PNT}
    global_load_dword v41, v5, {P(sAIM)} {PNT}
    global_load_dword v42, v5, {P(sCR)} {PNT}
    global_load_dword v43, v5, {P(sCI)} {PNT}
    s_mov_b32 s62, 5
    """)
    if CPL:
        a(f"""
        s_cmp_lg_u32 s3, 3
        s_cbranch_scc1 M_T0J
        s_getpc_b64 s[74:75]
        M_PC:
        s_sub_u32 s74, s74, M_PC - ka_kernel
        s_subb_u32 s75, s75, 0
        s_lshr_b32 s76, s2, 3
        s_mul_i32 s76, s76, {CPL}
        v_min_u32 v25, {CPL-1}, v2
        v_add_u32 v25, s76, v25
        v_lshlrev_b32 v25, 7, v25
        v_min_u32 v25, CODE_END - ka_kernel - 4, v25
        global_load_dword v250, v25, s[74:75]
        s_mov_b32 s62, 6
        """)
    a(f"""
    s_branch M_T0J
    M_T0MOD:
    s_setprio 2
    s_barrier                          ; B0
    global_load_dword v47, v7, {P(sWS)}
    s_mov_b32 s62, 1
    s_cmp_ge_u32 s2, 243
    s_cbranch_scc1 M_T0J
    global_load_ushort v44, v39, {P(sC)}
    """)
    for i in range(4): a(f"global_load_dwordx4 {vr(48+4*i,4)}, v{216+i}, {P(sWMOD)} {NT}")
    a(f"""
    s_mov_b32 s62, 6
    M_T0J:
    """)
    UN = {2: 0, 3: 3, 6: 6, 7: 9, 0: 12, 1: 14, 4: 0, 5: 0}
    unib = sum(UN[w] << (4*w) for w in range(8))
    a(f"""
    s_lshl_b32 s40, s3, 2
    s_lshr_b32 s63, {hex(unib)}, s40
    s_and_b32 s63, s63, 15
    s_lshl_b32 s50, s63, 10
    s_lshl_b32 s51, s2, 14
    s_add_u32 s50, s50, s51
    s_add_u32 s50, s50, {WS_XN}
    v_lshl_add_u32 v{VXA}, v2, 4, s50
    v_lshrrev_b32 v21, 4, v2
    s_lshl_b32 s50, s2, 1
    v_add_u32 v20, s50, v21
    v_mov_b32 v22, s45
    v_cmp_gt_u32 vcc, 2, v21
    v_and_b32 v23, 15, v2
    v_min_u32 v23, 8, v23
    v_cndmask_b32 v20, v22, v20, vcc   ; channel
    v_lshlrev_b32 v23, 9, v23
    v_lshlrev_b32 v{VD}, 1, v20
    v_lshrrev_b32 v22, 6, v20
    v_mul_u32_u24 v22, {9*512}, v22
    v_and_b32 v20, 63, v20
    v_lshl_add_u32 v20, v20, 3, v22
    v_add_u32 v20, v20, v23
    v_add_u32 v{VMA}, {WS_MP}, v20
    v_add_u32 v{VMA+1}, {WS_MP + 9*9*512}, v20
    v_add_u32 v{VMA+2}, {WS_MP + 18*9*512}, v20
    v_and_b32 v20, 15, v2              ; i / j
    v_and_b32 v22, 3, v20
    v_mul_u32_u24 v22, {KC_P}, v22
    v_lshrrev_b32 v23, 2, v20
    v_lshlrev_b32 v23, 3, v23
    v_lshl_add_u32 v23, v21, 4, v23
    v_sub_u32 v22, v22, v23
    v_add_u32 v22, {L_KC + 72}, v22
    v_lshlrev_b32 v23, 5, v20
    v_lshlrev_b32 v24, 4, v21
    v_sub_u32 v24, v23, v24
    v_add_u32 v24, {L_HB + 48}, v24
    v_lshl_add_u32 v3, v21, 3, v23     ; 32j + 8q
    s_lshr_b32 s40, 0x01021100, s40
    s_and_b32 s40, s40, 15
    s_mul_i32 s50, s40, {4*KC_P}
    v_add_u32 v{VKA}, s50, v22
    v_add_u32 v{VKA+1}, {4*KC_P}, v22
    s_mul_i32 s50, s40, {HB_P}
    v_add_u32 v{VHA}, s50, v24
    v_add_u32 v{VHA+1}, {HB_P}, v24
    s_mul_i32 s50, s40, 18432
    v_lshl_add_u32 v{VPW}, v2, 4, s50
    v_lshlrev_b32 v{VPW+1}, 4, v2
    v_add_u32 v{VPW+1}, 18432, v{VPW+1}
    s_lshl_b32 s40, s40, 2
    v_mov_b32 v1, s40
    """)
    k0 = len(a.lines)
    kgen_setup(a)
    for i in range(k0, len(a.lines)):
        for o, n in (("v10", "v20"), ("v11", "v21"), ("v12", "v22"), ("v13", "v23")):
            a.lines[i] = re.sub(rf"\b{o}\b", n, a.lines[i])
    a(f"""
    s_lshr_b32 s40, s3, 1
    s_mul_i32 s40, s40, 2592
    s_mul_i32 s50, s{sHH}, 1280
    s_add_u32 s40, s40, s50
    s_add_u32 s40, s40, {L_LNR}
    v_lshl_add_u32 v220, v2, 4, s40
    s_lshl_b32 s40, s3, 1
    s_add_u32 s40, s40, {L_CB}
    v_lshl_add_u32 v221, v2, 4, s40
    v_lshrrev_b32 v22, 2, v2
    s_and_b32 s40, s3, 3
    s_lshl_b32 s40, s40, 6
    v_add_u32 v22, s40, v22            ; u'
    v_and_b32 v23, 3, v2
    v_mul_u32_u24 v222, 2592, v23
    v_lshl_add_u32 v222, v22, 2, v222
    v_add_u32 v222, {L_LNR}, v222
    v_lshrrev_b32 v223, 2, v22
    v_lshlrev_b32 v223, 4, v223
    v_lshl_add_u32 v223, v23, 2, v223
    v_add_u32 v223, {L_CB}, v223
    v_lshlrev_b32 v22, 14, v22
    v_lshl_add_u32 v22, v23, 4, v22
    s_lshl_b32 s40, s2, 6
    s_add_u32 s40, s40, {WS_XN}
    v_add_u32 v253, s40, v22
    v_mov_b32 v15, {fbits(1.0/576)}
    s_cmp_eq_u32 s62, 6
    s_cbranch_scc1 M_W6
    s_cmp_eq_u32 s62, 5
    s_cbranch_scc1 M_W5
    s_waitcnt vmcnt(1)
    M_W5:
    s_waitcnt vmcnt(5)
    M_W6:
    s_waitcnt vmcnt(6)
    """)
    stamp(a, 1)
    for w in range(4): unpk(a, X+2*w, X+2*w+1, LL+w)
    a(f"v_lshlrev_b32 v{X+8}, 16, v{LL+4}")
    D = ln_stats(a, X, T, 66, 15)
    for i in range(4): a(f"v_cvt_pk_bf16_f32 v{LL+i}, v{D+2*i}, v{D+2*i+1}")
    a(f"""
    v_cvt_pk_bf16_f32 v{LL+4}, v{D+8}, v{D+8}
    ds_write_b128 v220, {vr(LL,4)}
    ds_write_b16 v221, v{LL+4}
    s_cmp_lg_u32 s3, 6
    s_cbranch_scc1 M_NTAG
    s_cmp_eq_u32 s62, 6
    s_cbranch_scc1 M_TG5
    s_waitcnt vmcnt(0)
    M_TG5:
    s_waitcnt vmcnt(5)
    s_mov_b32 s40, 0x9E3779B1
    v_mul_lo_u32 v47, v47, s40
    v_add_u32 v47, 0x7F4A7C15, v47
    ds_write_b32 v{VZ}, v47 offset:{L_TAG}
    M_NTAG:
    """)
    signal(a, C_LN)
    a(f"""
    s_cmp_lt_u32 s3, 4
    s_cbranch_scc1 M_KG
    s_cmp_lt_u32 s3, 6
    s_cbranch_scc1 M_PACK
    s_cmp_ge_u32 s2, 243
    s_cbranch_scc1 M_PACK
    s_mov_b32 s40, {fbits(-LOG2E)}
    s_waitcnt vmcnt(4)
    v_lshlrev_b32 v44, 16, v44
    v_mul_f32 v45, s40, v44
    v_exp_f32 v45, v45
    v_lshrrev_b32 v46, 2, v2
    v_add_f32 v45, 1.0, v45
    v_rcp_f32 v45, v45
    v_lshlrev_b32 v46, 2, v46
    v_mul_f32 v44, v44, v45
    v_cvt_pk_bf16_f32 v44, v44, 0
    """)
    for i in range(4): a(f"ds_bpermute_b32 v{28+i}, v46, v44 offset:{64*i}")
    a.label("M_PACK")
    G0 = 80
    for i in range(1, 4): a(f"v_add_u32 v{16+i}, {64*i}, v222")
    a(f"""
    s_mov_b32 s41, {16 << 14}
    M_SPL:
    ds_read_b64 v[96:97], v{VZ} offset:{L_CNT + C_LN}
    """)
    for i in range(4):
        a(f"ds_read2st64_b32 {vr(G0+4*i,2)}, v{222 if i == 0 else 16+i} offset0:0 offset1:5")
        a(f"ds_read_b32 v{G0+4*i+2}, v223 offset:{64*i}")
    a(f"""
    s_waitcnt lgkmcnt(8)
    v_readfirstlane_b32 s94, v96
    v_readfirstlane_b32 s{sTAG}, v97
    s_cmp_ge_u32 s94, 8
    s_cbranch_scc0 M_SPL
    """)
    for i in range(4):
        a(f"v_mov_b32 v{G0+4*i+3}, v97")
        a(f"s_waitcnt lgkmcnt({6-2*i})")
        a(f"global_store_dwordx4 v253, {vr(G0+4*i,4)}, {P(sWS)} sc1")
        if i < 3: a("v_add_u32 v253, s41, v253")
    stamp(a, 2)
    a(f"""
    s_cmp_ge_u32 s3, 6
    s_cbranch_scc1 M_MOD
    s_waitcnt vmcnt(4)
    """)
    signal(a, C_H)
    a("s_branch KG_W1")
    a.label("M_KG")
    stamp(a, 2)
    def mp_issue():
        for c in range(3): a(f"global_load_dwordx2 {vr(VMP+2*c,2)}, v{VMA+c}, {P(sWS)} sc1")
    def xn_issue(n=3):
        for i in range(n): a(f"global_load_dwordx4 {vr(XG+4*i,4)}, v{VXA}, {P(sWS)} offset:{1024*i} sc1")
    def first_issue():
        l = a.newlabel("NI")
        a(f"""
        s_cmp_ge_u32 s3, 4
        s_cbranch_scc1 {l}
        s_cmp_lt_u32 s3, 2
        s_cbranch_scc1 {l}B
        global_load_dwordx4 {vr(XG+8,4)}, v{VXA}, {P(sWS)} offset:2048 sc1
        {l}B:
        global_load_ushort v{VD}, v{VD}, {P(sDSK)}
        """)
        mp_issue(); xn_issue(2)
        a.label(l)
    def prefill():
        if fused: return
        a(f"""
        s_mul_i32 s40, s2, 10368
        s_add_u32 s40, s40, {WS_PART}
        v_lshl_add_u32 v28, v2, 4, s40
        s_lshl_b32 s41, s3, 10
        v_add_u32 v28, s41, v28
        v_mov_b32 v32, -1
        v_mov_b32 v33, -1
        v_mov_b32 v34, -1
        v_mov_b32 v35, -1
        v_min_u32 v29, 263, v0
        v_lshl_add_u32 v29, v29, 4, s40
        v_add_u32 v29, 6144, v29
        global_store_dwordx4 v28, v[32:35], {P(sWS)} {E("M_SST", "")}
        global_store_dwordx4 v29, v[32:35], {P(sWS)} {E("M_SST", "")}
        """)
    XAT = E("M_XAT", "tab"); PFAT = E("M_PFAT", "run")
    hooks = {PFAT: prefill}
    if XAT != "tab": hooks[XAT] = first_issue
    gen_kgen(a, 1 if CPL else 0, hooks)
    signal(a, C_TAB, VED+1)
    if XAT == "tab": first_issue()
    stamp(a, 4)
    spin(a, C_TAB, 2, VED+1)
    stamp(a, 5)
    a(f"""
    s_cmp_eq_u32 s{sHH}, 0
    s_cbranch_scc0 M_EXB
    """)
    expand(a, 0)
    a("s_branch M_EXD")
    a.label("M_EXB")
    expand(a, 1)
    a.label("M_EXD")
    signal(a, C_K, VED+1)
    stamp(a, 6)
    a("s_branch M_CSET")
    a.label("M_MOD")
    a(f"""
    s_cmp_ge_u32 s2, 243
    s_cbranch_scc1 M_MODX
    """)
    for i in range(4): a(f"global_load_dwordx4 {vr(64+4*i,4)}, v{216+i}, {P(sWMOD)} offset:3456 {NT}")
    a(f"""
    s_mul_i32 s40, s49, 9
    s_add_u32 s40, s40, s{sKS}
    s_lshl_b32 s40, s40, 9
    s_lshl_b32 s41, s{sHH}, 8
    s_add_u32 s40, s40, s41
    s_add_u32 s40, s40, {WS_MP}
    v_and_b32 v45, 3, v2
    v_lshlrev_b32 v45, 6, v45
    v_lshrrev_b32 v46, 3, v2
    v_lshl_add_u32 v45, v46, 3, v45
    v_add_u32 v45, s40, v45
    v_add_u32 v46, {27*9*512}, v45
    v_mov_b32 v33, s{sTAG}
    """)
    for i in range(4): a(f"v_lshlrev_b32 v{24+i}, 16, v{28+i}")
    AC = 112
    for rho in range(2):
        for e in range(8): a(f"v_mov_b32 v{AC+e}, 0")
        for i in range(4):
            a(f"s_waitcnt vmcnt({11 - i if rho == 0 else 4 - i})")
            for w in range(4):
                a(f"v_dot2c_f32_bf16 v{AC+2*w}, v{48+16*rho+4*i+w}, v{28+i}")
                a(f"v_dot2c_f32_bf16 v{AC+2*w+1}, v{48+16*rho+4*i+w}, v{24+i}")
        a("s_nop 2")
        for e in range(4): a(f"v_permlane32_swap_b32 v{AC+e}, v{AC+4+e}")
        for e in range(4): a(f"v_add_f32 v{AC+e}, v{AC+e}, v{AC+4+e}")
        a("s_nop 0")
        a(f"v_permlane16_swap_b32 v{AC}, v{AC+2}")
        a(f"v_permlane16_swap_b32 v{AC+1}, v{AC+3}")
        a(f"v_add_f32 v{AC}, v{AC}, v{AC+2}")
        a(f"v_add_f32 v{AC+1}, v{AC+1}, v{AC+3}")
        a("s_nop 1")
        a(f"v_add_f32 v32, v{AC}, v{AC} row_ror:8 row_mask:0xf bank_mask:0x3")
        a(f"v_add_f32 v32, v{AC+1}, v{AC+1} row_ror:8 row_mask:0xf bank_mask:0xc")
        a("s_nop 1")
        a(f"v_add_f32 v32, v32, v32 row_shl:4 row_mask:0xf bank_mask:0x5")
        a("s_mov_b32 exec_lo, 0x0f0f0f0f")
        a("s_mov_b32 exec_hi, 0x0f0f0f0f")
        a(f"global_store_dwordx2 v{45+rho}, v[32:33], {P(sWS)} sc1")
        a("s_mov_b64 exec, -1")
        if rho == 0:
            a("s_setprio 0")
            stamp(a, 7)
    a.label("M_MODX")
    a("s_setprio 0")
    stamp(a, 3)
    def pf_waves(spec, tag, v0):
        for grp in filter(None, spec.split(";")):
            w, items = grp.split(":")
            l = a.newlabel("PF")
            a(f"s_cmp_lg_u32 s3, {w}"); a(f"s_cbranch_scc1 {l}")
            for it in items.split(","): pf_lines(a, it[:-1], int(it[-1]), v0)
            a.label(l)
    pf_waves(E("M_PFA", ""), "a", 100)
    if not fused:
        a(f"""
        s_cmp_lg_u32 s3, 6
        s_cbranch_scc1 M_NOOD
        v_mov_b32 v100, 0
        v_mov_b32 v101, 0
        v_mov_b32 v102, 0
        v_mov_b32 v103, 0
        v_lshrrev_b32 v104, 1, v2
        v_lshlrev_b32 v104, 15, v104
        v_and_b32 v105, 1, v2
        v_lshl_add_u32 v104, v105, 4, v104
        s_lshl_b32 s40, s2, 7
        s_add_u32 s40, s40, {WS_KL}
        v_add_u32 v104, s40, v104
        v_lshlrev_b32 v105, 4, v2
        v_add_u32 v105, {WS_OD}, v105
        s_mov_b64 exec, 0xffff
        global_store_dwordx4 v104, v[100:103], {P(sWS)}
        s_mov_b64 exec, -1
        s_cmp_lg_u32 s2, 255
        s_cbranch_scc1 M_NOOD
        global_store_dwordx4 v105, v[100:103], {P(sWS)}
        M_NOOD:
        """)
    spin(a, C_TAB + 4, int(E("M_W6N", "1")))
    a(f"global_load_dwordx4 {vr(XG+8,4)}, v{VXA}, {P(sWS)} offset:2048 sc1")
    a(f"global_load_ushort v{VD}, v{VD}, {P(sDSK)}")
    mp_issue(); xn_issue(2)
    a.label("M_CSET")
    jobs = {"A": Job([(0, JA, "A")]), "B": Job([(0, JB, "B")]), "C": Job([(0, JC, "C")]), "D": Job([(1, JD, "D"), (0, JD, "D")])}
    for k in range(4): jobs[f"K{k}"] = Job([(0, JCH(k), None)])
    a(f"""
    s_lshl_b32 s40, s3, 2
    s_lshr_b32 s40, 0x31242010, s40
    s_and_b32 s62, s40, 15
    s_and_b32 s40, s2, 3
    s_cmp_eq_u32 s62, 4
    s_cselect_b32 s40, s40, 0
    s_add_u32 s62, s62, s40
    """)
    def dispatch(pre):
        for i, nm in enumerate(list(jobs)[:-1]):
            a(f"s_cmp_eq_u32 s62, {i}")
            a(f"s_cbranch_scc1 {pre}{nm}")
        a(f"s_branch {pre}K3")
    spin(a, C_K, 2, 1)
    dispatch("M_PL")
    for nm, jb in jobs.items():
        a.label(f"M_PL{nm}")
        if nm == "D": spin(a, C_K + 4, 2)
        jb.preload(a)
        a("s_branch M_STG")
    a.label("M_STG")
    stamp(a, 8)
    a(f"""
    s_and_b32 s40, s3, 6
    s_cmp_eq_u32 s40, 4
    s_cbranch_scc1 M_HW
    M_TGS:
    ds_read_b64 v[16:17], v{VZ} offset:{L_CNT + C_LN}
    s_lshl_b32 s40, s63, 8
    s_add_u32 s40, s40, {L_HB + 480}
    s_mov_b32 m0, s40
    s_mov_b32 s41, {SPIN}
    v_mov_b32 v30, 0x3f80
    v_mov_b32 v31, 0x3f800000
    s_waitcnt lgkmcnt(0)
    v_readfirstlane_b32 s94, v16
    v_readfirstlane_b32 s{sTAG}, v17
    s_cmp_ge_u32 s94, 8
    s_cbranch_scc0 M_TGS
    M_MP:
    s_waitcnt vmcnt(2)
    v_xor_b32 v16, s{sTAG}, v{VMP+1}
    v_xor_b32 v17, s{sTAG}, v{VMP+3}
    v_xor_b32 v18, s{sTAG}, v{VMP+5}
    v_or3_b32 v16, v16, v17, v18
    v_cmp_ne_u32 vcc, 0, v16
    s_cbranch_vccz M_MPD
    """)
    mp_issue()
    a(f"""
    s_waitcnt vmcnt(0)
    s_sub_u32 s41, s41, 1
    s_cbranch_scc0 M_MP
    M_MPD:
    s_mov_b32 exec_lo, 0xfe00fe00
    s_mov_b32 exec_hi, 0xfe00fe00
    v_mov_b32 v{VMP}, 0
    v_mov_b32 v{VMP+2}, 0
    v_mov_b32 v{VMP+4}, 0
    s_mov_b64 exec, -1
    """)
    for sh in (1, 2, 4, 8):
        for r in (VMP, VMP+2, VMP+4): a(f"v_add_f32 v{r}, v{r}, v{r} row_shr:{sh} {DPP_ALL} bound_ctrl:0")
    a(f"""
    v_cvt_pk_bf16_f32 v17, v{VMP}, v{VMP+2}
    v_cvt_pk_bf16_f32 v18, v{VMP+4}, v{VMP+4}
    v_lshlrev_b32 v16, 16, v17         ; sa
    v_and_b32 v17, 0xffff0000, v17     ; ca
    v_add_f32 v17, 1.0, v17
    v_cvt_pk_bf16_f32 v17, v17, v17
    v_and_b32 v17, 0xffff0000, v17     ; c1
    v_mul_f32 v19, 0x42800000, v17
    v_add_f32 v19, abs(v19), abs(v16)
    v_frexp_exp_i32_f32 v19, v19
    v_sub_u32 v19, 15, v19
    v_ldexp_f32 v17, v17, v19
    v_ldexp_f32 v16, v16, v19
    v_readlane_b32 s67, v17, 31
    v_readlane_b32 s66, v17, 15
    v_readlane_b32 s69, v17, 47
    v_readlane_b32 s70, v16, 15
    v_readlane_b32 s71, v16, 31
    v_readlane_b32 s72, v16, 47
    s_lshr_b32 s66, s66, 16
    s_lshr_b32 s68, s69, 16
    s_cmp_lg_u32 s3, 7
    s_cbranch_scc1 M_XP
    v_sub_u32 v19, 0, v19
    v_lshlrev_b32 v{VD}, 16, v{VD}
    v_lshlrev_b32 v18, 16, v18
    v_ldexp_f32 v{VD}, v{VD}, v19
    v_lshrrev_b32 v20, 2, v2
    v_and_b32 v20, 12, v20
    s_mov_b32 exec_lo, 0x80008000
    s_mov_b32 exec_hi, 0x00008000
    ds_write_b32 v20, v{VD} offset:{L_PRM + 32}
    ds_write_b32 v20, v18 offset:{L_PRM + 48}
    ds_write_b32 v20, v19 offset:{L_PRM + 64}
    s_mov_b64 exec, -1
    M_XP:
    s_waitcnt vmcnt(0)
    v_xor_b32 v16, s{sTAG}, v{XG+3}
    v_xor_b32 v17, s{sTAG}, v{XG+7}
    v_xor_b32 v18, s{sTAG}, v{XG+11}
    s_cmp_lt_u32 s3, 2
    s_cselect_b32 s40, 0, -1
    v_and_b32 v18, s40, v18
    v_or3_b32 v16, v16, v17, v18
    v_cmp_ne_u32 vcc, 0, v16
    s_cbranch_vccz M_XD
    s_mov_b64 exec, vcc
    """)
    xn_issue()
    a(f"""
    s_mov_b64 exec, -1
    s_sub_u32 s41, s41, 1
    s_cbranch_scc0 M_XP
    M_XD:
    """)
    stamp(a, 9)
    def units(lst):
        Y = 32
        for n, u in enumerate(lst):
            g = XG + 4*u; y = Y + 6*n
            for k, (src, cs) in enumerate(((g, 66), (g+1, 66), (g, 67), (g+1, 67), (g+2, 68), (g+2, 69))):
                a(f"v_dot2_f32_bf16 v{y+k}, v{src}, s{cs}, 0")
        if len(lst) == 1: a("s_nop 0")
        prs = [Y + 2*i for i in range(3*len(lst))]
        for p in prs: a(f"v_cvt_pk_bf16_f32 v{p+1}, v{p}, v{p+1}")
        for i, p in enumerate(prs):
            a(f"v_dot2_f32_bf16 v{p}, v{p+1}, v30, s{70 + i%3}")
            a(f"v_dot2_f32_bf16 v{p+1}, v{p+1}, v31, s{70 + i%3}")
        a("s_nop 1")
        rnd_pairs(a, prs)
        for i, p in enumerate(prs): a(f"v_cvt_pk_f16_f32 v{16+i}, v{p}, v{p+1}")
        for i, p in enumerate(prs): a(f"ds_write_addtid_b32 v{16+i} offset:{(i%3)*HB_P + lst[i//3]*256}")
    a("""
    s_cmp_lt_u32 s3, 2
    s_cbranch_scc1 M_U2
    """)
    units([0, 1, 2])
    a("s_branch M_U3")
    a.label("M_U2")
    units([0, 1])
    a.label("M_U3")
    signal(a, C_H)
    RR = 160
    a(f"""
    s_cmp_lg_u32 s3, 6
    s_cbranch_scc1 M_HW
    s_add_u32 s40, s2, 27
    s_min_u32 s40, s40, 53
    s_mul_i32 s40, s40, {9*512}
    s_add_u32 s40, s40, {WS_MP}
    v_lshl_add_u32 v250, v2, 3, s40
    v_add_u32 v253, 4096, v250
    """)
    def red_issue():
        for s_ in range(8): a(f"global_load_dwordx2 {vr(RR+2*s_,2)}, v250, {P(sWS)} offset:{512*s_} sc1")
        a(f"global_load_dwordx2 {vr(RR+16,2)}, v253, {P(sWS)} sc1")
    a(f"""
    s_cmp_ge_u32 s2, 27
    s_cbranch_scc1 M_HW
    """)
    red_issue()
    a.label("M_HW")
    if PFAT == "run":
        a("s_cmp_ge_u32 s3, 6"); a("s_cbranch_scc1 M_HW2"); prefill(); a.label("M_HW2")
    pf_waves(E("M_PFR", ""), "r", 10)
    spin(a, C_H, 8)
    stamp(a, 10)
    dispatch("M_RUN")
    for nm, jb in jobs.items():
        a.label(f"M_RUN{nm}")
        acc = jb.run(a)
        if nm[0] == "K":
            k = int(nm[1])
            a(f"""
            ds_read_b32 v40, v{VZ} offset:{L_PRM + 32 + 8}
            ds_read_b32 v41, v{VZ} offset:{L_PRM + 48 + 8}
            ds_read_b32 v42, v{VZ} offset:{L_PRM + 64 + 8}
            ds_read_b32 v43, v{VZ} offset:{L_PRM + 80 + 8}
            ds_read_b64 v[44:45], v3 offset:{L_HB + 2*HB_P + 480 + 512*k}
            ds_read_b64 v[46:47], v3 offset:{L_HB + 2*HB_P + 480 + 512*(7-k)}
            v_and_b32 v10, 15, v2
            v_mul_u32_u24 v10, 18432, v10
            v_lshrrev_b32 v11, 4, v2
            v_lshl_add_u32 v10, v11, 3, v10
            s_lshr_b32 s40, s2, 2
            s_lshl_b32 s40, s40, 5
            s_add_u32 s40, s40, {WS_Z + 16384 + k*16*18432}
            v_add_u32 v10, s40, v10
            v_add_u32 v11, {(7-2*k)*16*18432}, v10
            s_waitcnt lgkmcnt(0)
            v_ldexp_f32 v43, v43, v42
            """)
            c0, c1 = acc[(0, k)], acc[(0, 7-k)]
            assert c1 == c0 + 4
            epi_core(a, c0, 44, 48, "v43", "v40", "v41", 8)
            for i in range(4): a(f"v_cvt_pk_bf16_f32 v{48+i}, v{c0+2*i}, v{c0+2*i+1}")
            a(f"global_store_dwordx2 v10, v[48:49], {P(sWS)} {ZST}")
            a(f"global_store_dwordx2 v11, v[50:51], {P(sWS)} {ZST}")
        a("s_branch M_FIN")
    a.label("M_FIN")
    stamp(a, 11)
    a(f"""
    s_add_u32 s50, s3, 5               ; B[w]
    s_add_u32 s51, s3, -3              ; A
    s_add_u32 s52, s3, 7               ; C
    s_add_u32 s53, s3, 10              ; D
    s_cmp_ge_u32 s3, 5
    s_cselect_b32 s50, s53, s50
    s_lshl_b32 s50, s50, 10
    s_lshl_b32 s51, s51, 10
    s_lshl_b32 s52, s52, 10
    s_add_u32 s54, s51, 18432
    s_add_u32 s55, s52, 18432
    s_cmp_lt_u32 s3, 3
    s_cselect_b32 s51, {L_ZERO}, s51
    s_cselect_b32 s52, {L_ZERO}, s52
    s_cselect_b32 s54, {L_ZERO}, s54
    s_cselect_b32 s55, {L_ZERO}, s55
    v_lshlrev_b32 v10, 4, v2
    v_add_u32 v11, s51, v10
    v_add_u32 v12, s52, v10
    v_add_u32 v13, s54, v10
    v_add_u32 v14, s55, v10
    v_add_u32 v10, s50, v10
    s_lshl_b32 s40, s3, 9
    v_add_u32 v3, s40, v3
    ds_read_b64 v[64:65], v{VZ} offset:{L_PRM + 32}
    ds_read_b64 v[66:67], v{VZ} offset:{L_PRM + 48}
    ds_read_b64 v[68:69], v{VZ} offset:{L_PRM + 64}
    ds_read_b64 v[70:71], v{VZ} offset:{L_PRM + 80}
    ds_read_b64 v[72:73], v3 offset:{L_HB + 480}
    ds_read_b64 v[74:75], v3 offset:{L_HB + HB_P + 480}
    v_and_b32 v4, 15, v2
    v_mul_u32_u24 v4, 18432, v4
    v_and_b32 v5, 0x30, v2
    v_add_u32 v4, v4, v5
    s_mul_i32 s40, s3, {16*18432}
    s_lshl_b32 s41, s2, 6
    s_add_u32 s40, s40, s41
    s_add_u32 s40, s40, {WS_Z}
    v_add_u32 v4, s40, v4
    s_waitcnt lgkmcnt(0)
    v_ldexp_f32 v70, v70, v68
    v_ldexp_f32 v71, v71, v69
    """)
    for e in range(4): a(f"v_fma_mix_f32 v{104+e}, v{72+e//2}, v64, 0 op_sel:[{e&1},0,0] op_sel_hi:[1,0,0]")
    for e in range(4): a(f"v_fma_mix_f32 v{108+e}, v{74+e//2}, v65, 0 op_sel:[{e&1},0,0] op_sel_hi:[1,0,0]")
    rnd_pairs(a, [104, 106, 108, 110])
    a(f"""
    s_barrier                          ; B6
    ds_read_b128 v[80:83], v10
    ds_read_b128 v[84:87], v11
    ds_read_b128 v[88:91], v12
    ds_read_b128 v[92:95], v10 offset:18432
    ds_read_b128 v[96:99], v13
    ds_read_b128 v[100:103], v14
    """)
    a("s_waitcnt lgkmcnt(3)")
    for e in range(4): a(f"v_add_f32 v{80+e}, v{80+e}, v{84+e}")
    for e in range(4): a(f"v_add_f32 v{80+e}, v{80+e}, v{88+e}")
    a("s_waitcnt lgkmcnt(0)")
    for e in range(4): a(f"v_add_f32 v{84+e}, v{92+e}, v{96+e}")
    for e in range(4): a(f"v_add_f32 v{84+e}, v{84+e}, v{100+e}")
    for e in range(8): a(f"v_mul_f32 v{80+e}, v{70+e//4}, v{80+e}")
    rnd_pairs(a, [80, 82, 84, 86])
    for e in range(8): a(f"v_add_f32 v{80+e}, v{80+e}, v{104+e}")
    rnd_pairs(a, [80, 82, 84, 86])
    for e in range(8): a(f"v_mul_f32 v{80+e}, v{66+e//4}, v{80+e}")
    for e in range(4): a(f"v_cvt_pk_bf16_f32 v{88+e}, v{80+e}, v{84+e}")
    a(f"global_store_dwordx4 v4, v[88:91], {P(sWS)} {ZST}")
    stamp(a, 17)
    a(f"""
    s_cmp_lg_u32 s3, 6
    s_cbranch_scc1 M_FL
    s_cmp_lg_u32 s2, 0
    s_cbranch_scc1 M_NOE2
    v_mov_b32 v10, {WS_EPOCH}
    v_mov_b32 v11, s{sTAG}
    s_mov_b64 exec, 1
    global_store_dword v10, v11, {P(sWS)}
    s_mov_b64 exec, -1
    M_NOE2:
    s_cmp_ge_u32 s2, 27
    s_cbranch_scc1 M_FL
    s_mov_b32 s41, {SPIN}
    s_add_u32 s40, s2, 27
    s_mul_i32 s40, s40, {9*512}
    s_add_u32 s40, s40, {WS_MP}
    v_lshl_add_u32 v250, v2, 3, s40
    v_add_u32 v253, 4096, v250
    M_RP:
    s_waitcnt vmcnt(0)
    v_xor_b32 v24, s{sTAG}, v{RR+17}
    """)
    for s_ in range(8):
        a(f"v_xor_b32 v25, s{sTAG}, v{RR+2*s_+1}")
        a("v_or_b32 v24, v24, v25")
    a(f"""
    v_cmp_ne_u32 vcc, 0, v24
    s_cbranch_vccz M_RD
    """)
    red_issue()
    a(f"""
    s_sub_u32 s41, s41, 1
    s_cbranch_scc0 M_RP
    M_RD:
    """)
    for s_ in range(8): a(f"v_add_f32 v{RR+16}, v{RR+16}, v{RR+2*s_}")
    a(f"""
    v_cvt_pk_bf16_f32 v24, v{RR+16}, v{RR+16}
    v_lshlrev_b32 v24, 16, v24
    s_mul_i32 s40, s2, 7282
    s_lshr_b32 s40, s40, 16            ; chunk = u/9
    s_mul_i32 s41, s40, 9
    s_sub_u32 s41, s2, s41
    s_lshl_b32 s41, s41, 10
    s_lshl_b32 s40, s40, 2
    s_add_u32 s41, s41, s40
    s_add_u32 s41, s41, {WS_P4}
    v_lshl_add_u32 v25, v2, 4, s41
    global_store_dword v25, v24, {P(sWS)}
    M_FL:
    """)
    stamp_flush(a, 12, 0)
    a.label("M_END")
    a("s_endpgm")
    return ("ka_kernel", 256, 512, M_LDS, 256, 100, 256)
```

```python
import sys, os
sys.path.insert(0, os.path.join(os.path.dirname(os.path.abspath(__file__)), "..", "gen"))
from asmlib import *
import numpy as np
E = os.environ.get
KA_X, KA_LAR, KA_AIM, KA_CR, KA_CI, KA_LDT, KA_DSK, KA_BX, KA_WR, KA_WG, KA_WU, KA_WD, KA_C, KA_WMOD, KA_OUT, KA_DBG, KA_WS = [8*i for i in range(17)]
sX, sLAR, sAIM, sCR, sCI, sLDT, sDSK = 4, 6, 8, 10, 12, 14, 16
sWR, sWG, sWU, sWD, sC, sWMOD, sOUT, sDBG, sWS = 20, 22, 24, 26, 28, 30, 32, 34, 36
def P(s): return f"s[{s}:{s+1}]"
LOG2E = 1.4426950408889634
L_HI = float(np.float32(LOG2E)); L_LO = float(np.float32(LOG2E - L_HI))
LN2 = 0.6931471805599453
INV2PI = 0.15915494309189535
P_HI = float(np.float32(INV2PI)); P_LO = float(np.float32(INV2PI - P_HI))
WS_P4 = 0x2000; WS_OD = 0x5400; WS_SEL = 0xC000; WS_KL = 0x20000
WS_MP = 0x80000; WS_XN = 0x100000; WS_EPOCH = 0x500000
WS_Z = 0x900000; WS_H2 = 0xC00000; WS_PART = 0xF00000
WS_ST = 0x1400000
WS_DUMP = 0x1800000

class Regs:
    def __init__(self, lo, hi):
        self.free = set(range(lo, hi)); self.hi = lo
    def get(self, n=1, align=None):
        align = align or (1 if n == 1 else 2)
        for b in sorted(self.free):
            if b % align == 0 and all((b + i) in self.free for i in range(n)):
                for i in range(n): self.free.discard(b + i)
                self.hi = max(self.hi, b + n)
                return b
        raise RuntimeError("out of regs")
    def put(self, b, n=1):
        for i in range(n):
            assert (b + i) not in self.free
            self.free.add(b + i)

class LdsQ:
    def __init__(self, a):
        self.a = a; self.issued = 0; self.done = 0
    def issue(self, text):
        self.a(text); self.issued += 1
        return self.issued - 1
    def need(self, op):
        if op < self.done: return False
        n = self.issued - op - 1
        self.a(f"s_waitcnt lgkmcnt({min(n, 15)})")
        self.done = op + 1 if n <= 15 else self.issued - 15
        return True
    def drain(self):
        if self.done < self.issued:
            self.a("s_waitcnt lgkmcnt(0)"); self.done = self.issued

def cmul(a, d, x, y):
    a(f"v_pk_mul_f32 {vr(d,2)}, {vr(x,2)}, {vr(y,2)} op_sel_hi:[1,0]")
    a(f"v_pk_fma_f32 {vr(d,2)}, {vr(x,2)}, {vr(y,2)}, {vr(d,2)} op_sel:[1,1,0] op_sel_hi:[0,1,1] neg_lo:[1,0,0]")

def exp_bf16(a, dst, x, t0, t1, sL, sLlo, sLn2):
    a(f"v_mul_f32 v{t0}, s{sL}, v{x}")
    a(f"v_fma_f32 v{t1}, v{x}, s{sL}, -v{t0}")
    a(f"v_fma_f32 v{t1}, v{x}, s{sLlo}, v{t1}")
    a(f"v_exp_f32 v{t0}, v{t0}")
    a(f"v_mul_f32 v{t1}, s{sLn2}, v{t1}")
    a(f"v_fma_f32 v{t0}, v{t0}, v{t1}, v{t0}")
    a(f"v_cvt_pk_bf16_f32 v{t0}, v{t0}, v{t0}")
    a(f"v_lshlrev_b32 v{dst}, 16, v{t0}")

def wave_max_u32_to_sgpr(a, v, s):
    for sh in (1, 2, 4, 8):
        a("s_nop 1")
        a(f"v_max_u32 v{v}, v{v}, v{v} row_shr:{sh} {DPP_ALL} bound_ctrl:0")
    a("s_nop 1")
    a(f"v_max_u32 v{v}, v{v}, v{v} row_bcast:15 row_mask:0xa bank_mask:0xf")
    a("s_nop 1")
    a(f"v_max_u32 v{v}, v{v}, v{v} row_bcast:31 row_mask:0xc bank_mask:0xf")
    a("s_nop 1")
    a(f"v_readlane_b32 s{s}, v{v}, 63")

def unpk(a, lo, hi, src):
    a(f"v_lshlrev_b32 v{lo}, 16, v{src}")
    a(f"v_and_b32 v{hi}, 0xffff0000, v{src}")
def rnd_pairs(a, Pp):
    for p in Pp: a(f"v_cvt_pk_bf16_f32 v{p+1}, v{p}, v{p+1}")
    for p in Pp: unpk(a, p, p+1, p+1)
def rnd1(a, v):
    a(f"v_cvt_pk_bf16_f32 v{v}, v{v}, v{v}")
    a(f"v_lshlrev_b32 v{v}, 16, v{v}")

ST = int(E("ST", "0"))
VST = 255
def stamp(a, n):
    if not ST: return
    a("s_waitcnt lgkmcnt(0)")
    a("s_memrealtime s[98:99]")
    a("s_waitcnt lgkmcnt(0)")
    a(f"v_writelane_b32 v{VST}, s98, {n}")
    a("s_memtime s[98:99]")
    a("s_waitcnt lgkmcnt(0)")
    a(f"v_writelane_b32 v{VST}, s98, {32 + n}")
ST_LAST = [-1]
def stamp_flush(a, n, kid=0):
    if not ST: return
    a("s_waitcnt vmcnt(0)")
    ST_LAST[0] = n
    stamp(a, n)
    a(f"""
    s_load_dwordx2 s[96:97], s[0:1], {KA_WS}
    s_mov_b64 exec, -1
    s_lshl_b32 s95, s2, 4
    s_add_u32 s95, s95, s3
    s_lshl_b32 s95, s95, 8
    s_add_u32 s95, s95, {WS_ST + kid*0x100000}
    v_and_b32 v254, 63, v0
    v_lshl_add_u32 v254, v254, 2, s95
    s_waitcnt lgkmcnt(0)
    global_store_dword v254, v{VST}, s[96:97]
    """)
```

```python
import sys, os
sys.path.insert(0, os.path.dirname(os.path.abspath(__file__)))
from nc import *
import m, h1
def main():
    body = Asm(); launches = []
    launches.append(m.gen_M(body))
    launches.append(h1.gen_H(body))
    a = Asm()
    for n, g, b, l, v, s, acc in launches:
        a.raw(f"; @launch kernel={n} grid=({g},1,1) block=({b},1,1) lds={l}")
    a.raw('.amdgcn_target "amdgcn-amd-amdhsa--gfx950"')
    a.raw(".text")
    a.lines += body.lines
    a.raw("CODE_END:")
    a.raw('.section .rodata,"a"')
    for n, g, b, l, v, s, acc in launches:
        kernel_desc(a, n, v, s, acc)
    out = sys.argv[1] if len(sys.argv) > 1 else "adaLN_cond__ssm_conv_s4d__moe_arch_mod__prompt.s"
    open(out, "w").write(a.text())
main()
```

```python
from nc import *
import re
KG_PITCH = 272
KG_STAGE = 16 * KG_PITCH
L_PRM = 0
L_ZERO = 512
L_STG = 1536
L_PART = 1536
L_LNR = L_STG + 25600
L_CB = L_LNR + 4 * 2592
KC_P = 4160
L_KC2 = L_CB + 1024
L_STG2 = L_KC2
L_HB = L_KC2 + 4 * KC_P
HB_P = 4608
L_TAB = 69120
TP = 2816
L_KC = L_TAB + 6 * TP
L_DN = L_KC + 8 * KC_P
L_PT = L_DN + 36864
M_LDS = L_PT + 4608
L_GU = L_DN - 73728
assert L_KC % 64 == 0 and L_KC2 % 64 == 0 and L_HB + 3 * HB_P <= L_TAB
ZR_P = 1056
L_ZR = 1536
L_ZC = L_ZR + 8 * ZR_P
L_LIST = L_ZC + 1280
SR_P = 1168
L_SH = L_LIST + 8448
L_SX = L_SH + 8 * SR_P
L_GP = L_ZR
L_ACT = L_SX + 8 * SR_P
L_RED = L_ACT + 640
assert L_RED + 1024 <= L_GU
WS_Z2 = 0x600000; WS_KEY = 0x10000; WS_ROW = 0x60000; WS_PT16 = 0x70000; WS_PF = 0x72000; WS_PT = 0xA00000; WS_EPOCH = 0xD00000
NREP = int(E("F_NREP", "8")); RREP = int(E("F_RREP", "1"))
NT = E("M_NT", "nt")
PNT = E("M_PNT", "")
XNT = E("M_XNT", "nt")
ZST = E("M_ZST", "")
SPIN = 1 << 16
BETA = float(E('BETA', '1.25'))
KST = int(E('KST', '0'))
W2LATE = int(E('M_W2LATE', '1'))
CPL = int(E('M_CPL', '10'))
DIRECT = {1, 8, 128, 1024}
sTAG, sD, sHH, sKS = 38, 42, 43, 44
sDAB, sDC, sLD = 46, 47, 48

L_CNT = L_PRM + 192
C_LN, C_TAG, C_TAB, C_K, C_H = 0, 4, 16, 32, 48
C_P, C_KEY, C_N, C_KP = 52, 56, 60, 64
C_MX, C_KEYS, C_SEL = 96, 128, 192
L_TAG = L_CNT + C_TAG
VZ, VONE = 248, 249
def signal(a, off, vaddr=None):
    a("s_mov_b64 exec, 1")
    a(f"ds_add_u32 v{vaddr or VZ}, v{VONE} offset:{L_CNT + off}")
    a("s_mov_b64 exec, -1")
def spin(a, off, n, vaddr=None, vt=251, st=94):
    l = a.newlabel("SP")
    a(f"""
    {l}:
    ds_read_b32 v{vt}, v{vaddr or VZ} offset:{L_CNT + off}
    s_waitcnt lgkmcnt(0)
    v_readfirstlane_b32 s{st}, v{vt}
    s_cmp_ge_u32 s{st}, {n}
    s_cbranch_scc0 {l}
    """)

def ln_stats(a, X, T, sX0, vC):
    D = T + 4
    a(f"v_readfirstlane_b32 s{sX0}, v{X}")
    a("s_nop 1")
    a(f"v_subrev_f32 v{D+8}, s{sX0}, v{X+8}")
    a(f"s_mov_b32 s{sX0+1}, s{sX0}")
    for i in range(4): a(f"v_pk_add_f32 {vr(D+2*i,2)}, {vr(X+2*i,2)}, s[{sX0}:{sX0+1}] neg_lo:[0,1] neg_hi:[0,1]")
    a(f"v_pk_mul_f32 {vr(T+2,2)}, {vr(D,2)}, {vr(D,2)}")
    a(f"v_pk_add_f32 {vr(T,2)}, {vr(D,2)}, {vr(D+2,2)}")
    a(f"v_pk_fma_f32 {vr(T+2,2)}, {vr(D+2,2)}, {vr(D+2,2)}, {vr(T+2,2)}")
    a(f"v_pk_add_f32 {vr(D,2)}, {vr(D+4,2)}, {vr(D+6,2)}")
    a(f"v_pk_fma_f32 {vr(T+2,2)}, {vr(D+4,2)}, {vr(D+4,2)}, {vr(T+2,2)}")
    a(f"v_pk_add_f32 {vr(T,2)}, {vr(T,2)}, {vr(D,2)}")
    a(f"v_pk_fma_f32 {vr(T+2,2)}, {vr(D+6,2)}, {vr(D+6,2)}, {vr(T+2,2)}")
    a(f"v_add_f32 v{T}, v{T}, v{T+1}")
    a(f"v_fmac_f32 v{T+2}, v{D+8}, v{D+8}")
    a(f"v_add_f32 v{T}, v{T}, v{D+8}")
    a(f"v_add_f32 v{T+2}, v{T+2}, v{T+3}")
    a("s_nop 0")
    for m in [f"row_shr:1 {DPP_ALL} bound_ctrl:0", f"row_shr:2 {DPP_ALL} bound_ctrl:0", f"row_shr:4 {DPP_ALL} bound_ctrl:0", f"row_shr:8 {DPP_ALL} bound_ctrl:0",
              "row_bcast:15 row_mask:0xa bank_mask:0xf", "row_bcast:31 row_mask:0xc bank_mask:0xf"]:
        a(f"v_add_f32 v{T}, v{T}, v{T} {m}")
        a(f"v_add_f32 v{T+2}, v{T+2}, v{T+2} {m}")
        a("s_nop 0")
    a(f"""
    v_readlane_b32 s{sX0+2}, v{T}, 63
    v_readlane_b32 s{sX0+3}, v{T+2}, 63
    s_nop 0
    v_mul_f32 v{T}, s{sX0+2}, v{vC}
    v_mul_f32 v{T+1}, s{sX0+3}, v{vC}
    v_fma_f32 v{T+1}, -v{T}, v{T}, v{T+1}
    v_add_f32 v{T}, s{sX0}, v{T}
    v_max_f32 v{T+1}, 0, v{T+1}
    v_cvt_pk_bf16_f32 v{T+1}, v{T}, v{T+1}
    v_lshlrev_b32 v{T}, 16, v{T+1}
    v_and_b32 v{T+1}, 0xffff0000, v{T+1}
    v_add_f32 v{T+1}, {fbits(1e-5)}, v{T+1}
    v_cvt_pk_bf16_f32 v{T+1}, v{T+1}, v{T+1}
    v_lshlrev_b32 v{T+1}, 16, v{T+1}
    v_sqrt_f32 v{T+1}, v{T+1}
    """)
    a(f"v_sub_f32 v{D+8}, v{X+8}, v{T}")
    for i in range(4): a(f"v_pk_add_f32 {vr(D+2*i,2)}, {vr(X+2*i,2)}, {vr(T,2)} op_sel_hi:[1,0] neg_lo:[0,1] neg_hi:[0,1]")
    a(f"""
    v_cvt_pk_bf16_f32 v{T+1}, v{T+1}, v{T+1}
    v_lshlrev_b32 v{T+1}, 16, v{T+1}
    v_rcp_f32 v{T+1}, v{T+1}
    """)
    rnd_pairs(a, [D, D+2, D+4, D+6]); rnd1(a, D+8)
    for i in range(4): a(f"v_pk_mul_f32 {vr(D+2*i,2)}, {vr(D+2*i,2)}, {vr(T,2)} op_sel:[0,1] op_sel_hi:[1,1]")
    a(f"v_mul_f32 v{D+8}, v{D+8}, v{T+1}")
    return D


VFA, VT0, VT1, VT2 = 210, 211, 212, 213
VE0, VE1, VE2, VE3, VE4, VC0, VC1, VC2, VED = 200, 201, 202, 203, 204, 205, 206, 207, 208
XG = 224; VMP = 236; VD = 243; VMA = 244; VXA = 252
sSH = 48
def kgen_setup(a):
    a(f"""
    s_mul_i32 s50, s3, {KG_STAGE}
    s_add_u32 s51, s50, {L_STG2 - 4*KG_STAGE}
    s_add_u32 s50, s50, {L_STG}
    s_cmp_ge_u32 s3, 4
    s_cselect_b32 s50, s51, s50
    s_mov_b32 m0, s50
    v_mul_u32_u24 v{VFA}, {KG_PITCH}, v10
    v_lshl_add_u32 v{VFA}, v11, 4, v{VFA}
    v_add_u32 v{VFA}, s50, v{VFA}
    s_mul_i32 s61, s3, {TP}
    s_add_u32 s61, s61, {L_TAB}          ; own partial table
    v_lshrrev_b32 v12, 1, v11
    v_lshlrev_b32 v{VT0}, 9, v12
    v_and_b32 v13, 1, v11
    v_lshl_add_u32 v{VT0}, v13, 4, v{VT0}
    v_lshl_add_u32 v{VT0}, v10, 5, v{VT0}
    v_add_u32 v{VT0}, s61, v{VT0}
    v_sub_u32 v13, 4, v12
    v_lshlrev_b32 v13, v13, v10
    v_lshl_add_u32 v13, v11, 8, v13
    v_add_u32 v13, s61, v13
    v_add_u32 v{VT1}, 1024, v13
    v_mul_u32_u24 v12, 120, v12
    v_add3_u32 v{VT1+3}, v{VT1}, v12, 8
    v_lshlrev_b32 v{VT2}, 8, v11
    v_lshl_add_u32 v{VT2}, v10, 2, v{VT2}
    v_add_u32 v{VT2}, s61, v{VT2}
    ; expansion
    s_mul_i32 s60, s41, {2*TP}
    s_add_u32 s60, s60, {L_TAB}          ; channel table pair
    v_mov_b32 v{VC0}, s60
    v_add_u32 v{VC1}, -4, v{VC0}
    v_add_u32 v{VC2}, -8, v{VC0}
    v_sub_u32 v12, 63, v2                ; L
    s_lshl_b32 s51, s{sHH}, 8
    s_sub_u32 s51, s60, s51
    s_add_u32 s51, s51, {4*576}
    v_lshl_add_u32 v{VE0}, v12, 2, s51
    v_add_u32 v{VE1}, 4, v{VE0}
    s_add_u32 s51, s60, {4*384}
    v_lshl_add_u32 v{VE2}, v12, 3, s51
    v_add_u32 v{VE3}, 4, v{VE2}
    v_add_u32 v{VE4}, 8, v{VE2}
    v_lshlrev_b32 v13, 5, v12
    v_lshlrev_b32 v12, 4, v12
    v_add_u32 v12, 512, v12
    v_min_u32 v12, v12, v13
    v_add_u32 v12, s60, v12
    s_cmp_eq_u32 s{sHH}, 0
    s_cselect_b64 vcc, -1, 0
    s_mul_i32 s51, s41, {4*KC_P}
    s_add_u32 s51, s51, {L_KC}
    s_cmp_eq_u32 s41, 2
    s_cselect_b32 s51, {L_KC2}, s51
    v_cndmask_b32 v{VE2}, v{VE2}, v12, vcc
    v_lshrrev_b32 v12, 1, v2
    v_mul_u32_u24 v12, {KC_P}, v12
    v_and_b32 v13, 1, v2
    v_lshl_add_u32 v12, v13, 4, v12
    v_add_u32 v{VT1+2}, s51, v12
    v_lshl_add_u32 v{VED}, v2, 4, s51
    s_lshl_b32 s51, s41, 2
    v_mov_b32 v{VED+1}, s51
    s_lshl_b32 s{sSH}, s{sHH}, 4
    s_sub_u32 s{sSH}, 16, s{sSH}
    s_mov_b32 s52, {fbits(L_HI)}
    s_mov_b32 s53, {fbits(L_LO)}
    s_mov_b32 s54, {fbits(LN2)}
    s_mov_b32 s55, {fbits(P_HI)}
    s_mov_b32 s56, {fbits(P_LO)}
    s_mov_b32 s58, {fbits(BETA)}
    """)

def gen_kgen(a, cp, hooks):
    R = Regs(56, 200)
    AR, BH, CR, CI, DT, T0, T1, BL, VE = 40, 41, 42, 43, 44, 45, 46, 47, 48
    if cp: a(f"""
    s_waitcnt vmcnt({cp})
    s_cmp_eq_u32 s3, 3
    s_cbranch_scc1 KG_W1
    """)
    a(f"s_waitcnt vmcnt({max(cp-1, 0)})")
    a.label("KG_W1")
    stamp(a, 13)
    a(f"v_lshlrev_b32 v{DT}, 16, v{DT}")
    a(f"v_lshlrev_b32 v{AR}, s{sSH}, v{AR}")
    a(f"v_lshlrev_b32 v{BH}, s{sSH}, v{BH}")
    exp_bf16(a, DT, DT, T0, T1, 52, 53, 54)
    a(f"v_and_b32 v{AR}, 0xffff0000, v{AR}")
    a(f"v_and_b32 v{BH}, 0xffff0000, v{BH}")
    exp_bf16(a, AR, AR, T0, T1, 52, 53, 54)
    a(f"""
    v_mul_f32 v{AR}, v{AR}, v{DT}
    v_mul_f32 v{T0}, v{BH}, v{DT}
    v_mul_f32 v{AR}, s52, v{AR}
    v_sub_f32 v{AR}, 0, v{AR}
    v_mul_f32 v{BH}, s55, v{T0}
    v_fma_f32 v{BL}, v{T0}, s55, -v{BH}
    v_fma_f32 v{BL}, v{T0}, s56, v{BL}
    v_and_b32 v{VE}, 0x7fff7fff, v{CR}
    v_and_b32 v{T1}, 0x7fff7fff, v{CI}
    v_pk_max_u16 v{VE}, v{VE}, v{T1}
    v_lshlrev_b32 v{T1}, 16, v{VE}
    v_max_u32 v{VE}, v{VE}, v{T1}
    """)
    def anchor(Pp):
        d = R.get(2); t = R.get(2)
        pc = fbits(float(Pp)) if Pp not in (1, 2, 4) else f"{Pp}.0"
        a(f"v_mul_f32 v{t}, {pc}, v{AR}")
        a(f"v_mul_f32 v{t+1}, {pc}, v{BH}")
        a(f"v_exp_f32 v{t}, v{t}")
        a(f"v_fract_f32 v{t+1}, v{t+1}")
        a(f"v_fmamk_f32 v{t+1}, v{BL}, {fbits(float(Pp))}, v{t+1}")
        a(f"v_cos_f32 v{d}, v{t+1}")
        a(f"v_sin_f32 v{d+1}, v{t+1}")
        a("s_nop 0")
        a(f"v_pk_mul_f32 {vr(d,2)}, {vr(d,2)}, {vr(t,2)} op_sel_hi:[1,0]")
        R.put(t, 2)
        return d
    def mul(x, y):
        d = R.get(2); cmul(a, d, x, y); return d
    def power(Pp, half):
        return anchor(Pp) if Pp in DIRECT else mul(half, half)
    NPK = 6
    PK = R.get(NPK, 2); pk = [0]
    Q = LdsQ(a); pending = []; rows_since = [0]; wq = []; late = []
    WB = int(E("KG_WB", "2"))
    def flush_w():
        while wq: Q.issue(wq.pop(0))
    def put_row(row, x, neg):
        t = PK + (pk[0] % NPK); pk[0] += 1
        rows_since[0] += 1
        if pending and rows_since[0] >= 4: flush_mfma(1)
        if late and rows_since[0] >= 11: Q.issue(late.pop(0))
        a(f"v_cvt_pk_f16_f32 v{t}, v{x}, {'-' if neg else ''}v{x+1}")
        if len(wq) >= WB: flush_w()
        wq.append(f"ds_write_addtid_b32 v{t} offset:{row*KG_PITCH}")
    def flush_mfma(k):
        while k > 0 and pending:
            op, txt = pending.pop(0)
            Q.need(op); a(txt); k -= 1
    F = {}
    a(f"v_mov_b32 v{PK}, 0x3c00")
    Q.issue(f"ds_write_addtid_b32 v{PK} offset:0"); pk[0] = 1
    F[1] = anchor(8); put_row(1, F[1], False)
    dpp = [f"row_shr:1 {DPP_ALL} bound_ctrl:0", f"row_shr:2 {DPP_ALL} bound_ctrl:0", f"row_shr:4 {DPP_ALL} bound_ctrl:0", f"row_shr:8 {DPP_ALL} bound_ctrl:0",
           "row_bcast:15 row_mask:0xa bank_mask:0xf", "row_bcast:31 row_mask:0xc bank_mask:0xf"]
    def dstep():
        if dpp: a(f"v_max_u32 v{VE}, v{VE}, v{VE} {dpp.pop(0)}")
    F[2] = power(16, F[1]); put_row(2, F[2], False); dstep()
    F[3] = mul(F[1], F[2]); put_row(3, F[3], False); dstep()
    F[4] = power(32, F[2]); put_row(4, F[4], False); dstep()
    for j in (5, 6, 7):
        F[j] = mul(F[4], F[j-4]); put_row(j, F[j], False); dstep()
    F[8] = power(64, F[4]); put_row(8, F[8], False)
    a(f"v_readlane_b32 s57, v{VE}, 63")
    for j in range(9, 16):
        t = mul(F[8], F[j-8]); put_row(j, t, False); R.put(t, 2)
    for j in range(1, 9): R.put(F[j], 2)
    BF = R.get(16, 4)
    flush_w()
    if KST: stamp(a, 14)
    for k in range(4): Q.issue(f"ds_read_b128 {vr(BF+4*k,4)}, v{VFA} offset:{64*k}")
    Ee = {}
    Ee[1] = anchor(1)
    a(f"""
    s_and_b32 s57, s57, 0xffff0000
    v_frexp_exp_i32_f32 v{VE}, s57
    v_lshlrev_b32 v{CR}, s{sSH}, v{CR}
    v_lshlrev_b32 v{CI}, s{sSH}, v{CI}
    v_sub_u32 v{VE}, 6, v{VE}
    v_and_b32 v{CR}, 0xffff0000, v{CR}
    v_and_b32 v{CI}, 0xffff0000, v{CI}
    v_ldexp_f32 v{T0}, s58, v{VE}
    v_mul_f32 v{DT}, {fbits(1.0/BETA)}, v{DT}
    v_mul_f32 v{CR}, v{CR}, v{T0}
    v_mul_f32 v{CI}, v{CI}, v{T0}
    v_sub_u32 v{VE}, 1, v{VE}
    v_ldexp_f32 v{DT}, v{DT}, v{VE}
    """)
    Q.issue(f"ds_write_b32 v{VED+1}, v{DT} offset:{L_PRM + 5*16}")
    G = {0: CR}
    Ee[2] = power(2, Ee[1]); Ee[4] = power(4, Ee[2])
    Ee[128] = anchor(128)
    ACC = R.get(12, 4); AFR = R.get(16, 4)
    def tile_mfma(tau):
        flush_w(); flush_mfma(100)
        while late: Q.issue(late.pop(0))
        c = vr(ACC+4*tau, 4)
        for k in range(4):
            oh = Q.issue(f"ds_read_b128 {vr(AFR+4*k,4)}, v{VFA} offset:{64*k}")
            pending.append((oh, f"v_mfma_f32_16x16x32_f16 {c}, {vr(AFR+4*k,4)}, {vr(BF+4*k,4)}, {'0' if k == 0 else c}"))
        rows_since[0] = 0
        if tau == 0: late.append(f"ds_write_b128 v{VT0}, {c}")
    put_row(0, G[0], True)
    G[1] = mul(G[0], Ee[1]); put_row(1, G[1], True)
    G[2] = mul(G[0], Ee[2]); put_row(2, G[2], True)
    G[3] = mul(G[1], Ee[2]); put_row(3, G[3], True)
    G[4] = mul(G[0], Ee[4]); put_row(4, G[4], True)
    for r in (5, 6, 7):
        G[r] = mul(G[r-4], Ee[4]); put_row(r, G[r], True)
    R.put(Ee[1], 2); R.put(Ee[2], 2); R.put(Ee[4], 2)
    for r in range(8):
        G[128+r] = mul(G[r], Ee[128]); put_row(8+r, G[128+r], True)
        if r & 1:
            R.put(G[r], 2); R.put(G[128+r], 2)
    Ee[256] = power(256, Ee[128]); R.put(Ee[128], 2)
    if KST: stamp(a, 15)
    tile_mfma(0)
    Ee[512] = power(512, Ee[256])
    hooks.get("t0", lambda: None)()
    gl = [0, 4, 128, 132]
    for kk in range(2):
        for r in range(4):
            g = 128*kk + 2*r
            t = mul(G[g], Ee[256]); put_row(4*kk + r, t, True)
            if g in gl: G[256+g] = t
            else: R.put(t, 2); R.put(G[g], 2)
    R.put(Ee[256], 2)
    for r, g in enumerate(gl):
        G[512+g] = mul(G[g], Ee[512]); put_row(8+r, G[512+g], True)
        if g & 4: R.put(G[512+g], 2); R.put(G[g], 2)
    for r, g in enumerate(gl):
        G[768+g] = mul(G[256+g], Ee[512]); put_row(12+r, G[768+g], True)
        if g & 4: R.put(G[768+g], 2); R.put(G[256+g], 2)
    R.put(Ee[512], 2)
    if KST: stamp(a, 16)
    tile_mfma(1)
    Ee[1024] = power(1024, None)
    hooks.get("t1", lambda: None)()
    for k in range(8):
        t = mul(G[128*k], Ee[1024]); put_row(k, t, True); R.put(t, 2)
    Ee[2048] = power(2048, Ee[1024])
    t = mul(G[0], Ee[2048]); put_row(8, t, True); R.put(t, 2)
    tile_mfma(2)
    hooks.get("t2", lambda: None)()
    Q.issue(f"ds_write_b64 v{VT1}, {vr(ACC+4,2)}")
    Q.issue(f"ds_write_b64 v{VT1+3}, {vr(ACC+6,2)}")
    flush_mfma(100)
    a(f"""
    s_mov_b32 exec_hi, 0xffff
    s_nop 6
    ds_write_b32 v{VT2}, v{ACC+8} offset:2048
    s_mov_b32 exec_hi, 0
    ds_write_b32 v{VT2}, v{ACC+9} offset:{2048+64}
    ds_write_b32 v{VT2}, v{ACC+10} offset:{2048+128}
    ds_write_b32 v{VT2}, v{ACC+11} offset:{2048+192}
    """)
    print("kgen vgpr hi", R.hi, file=sys.stderr)

def expand_emit(a, W, C4, C5, T, rho):
    o = 1024*rho
    a(f"""
    ds_write_b128 v{VED}, {vr(W,4)} offset:{3*KC_P + o}
    v_mov_b32 v{C4}, v{W} wave_shl:1 {DPP_ALL}
    v_mov_b32 v{C5}, v{W+1} wave_shl:1 {DPP_ALL}
    v_alignbit_b32 v{T}, v{W+1}, v{W}, 16
    v_alignbit_b32 v{T+1}, v{W+2}, v{W+1}, 16
    v_alignbit_b32 v{T+2}, v{W+3}, v{W+2}, 16
    v_alignbit_b32 v{T+3}, v{C4}, v{W+3}, 16
    v_mov_b32 v{T+4}, v{W+1}
    v_mov_b32 v{T+5}, v{W+2}
    ds_write_b128 v{VED}, {vr(T,4)} offset:{2*KC_P + o}
    v_mov_b32 v{T+6}, v{W+3}
    v_mov_b32 v{T+7}, v{C4}
    v_mov_b32 v{T+8}, v{T+1}
    v_mov_b32 v{T+9}, v{T+2}
    ds_write_b128 v{VED}, {vr(T+4,4)} offset:{KC_P + o}
    v_mov_b32 v{T+10}, v{T+3}
    v_alignbit_b32 v{T+11}, v{C5}, v{C4}, 16
    ds_write_b128 v{VED}, {vr(T+8,4)} offset:{o}
    """)

def expand(a, hh):
    r2 = lambda d, v, o: a(f"ds_read2st64_b32 {vr(d,2)}, v{v} offset0:{o} offset1:{o + TP//256}")
    r2(56, VE0, 0); r2(58, VE1, 0); r2(60, VC0, 9 - hh)
    if hh: r2(62, VC1, 8)
    if hh == 0:
        for i in range(2):
            a(f"ds_read_b128 {vr(64+4*i,4)}, v{VE2} offset:{16*i}")
            a(f"ds_read_b128 {vr(72+4*i,4)}, v{VE2} offset:{TP + 16*i}")
        n2 = 4
    else:
        r2(64, VE2, 0); r2(66, VE3, 0); r2(68, VE4, 0); r2(70, VC0, 6); r2(72, VC1, 6); r2(74, VC2, 6)
        n2 = 6
    a(f"""
    s_mov_b32 vcc_lo, 0x55555555
    s_mov_b32 vcc_hi, 0x55555555
    s_waitcnt lgkmcnt({n2})
    v_add_f32 v56, v56, v57
    v_add_f32 v58, v58, v59
    v_add_f32 v60, v60, v61
    """)
    if hh: a("v_add_f32 v62, v62, v63")
    a(f"""
    v_cndmask_b32 v57, v56, v58, vcc
    v_cvt_pk_f16_f32 v80, v58, v58
    v_cvt_pk_f16_f32 v82, v56, v56
    v_cvt_pk_f16_f32 v81, v58, v57
    v_cvt_pk_f16_f32 v84, v60, v60
    v_mov_b32 v83, v82
    v_cvt_pk_f16_f32 v85, v{62 if hh else 60}, v{62 if hh else 60}
    """)
    expand_emit(a, 80, 84, 85, 88, hh)
    a("s_waitcnt lgkmcnt(4)")
    if hh == 0:
        for i in range(8): a(f"v_add_f32 v{64+i}, v{64+i}, v{72+i}")
        a(f"""
        v_cvt_pk_f16_f32 v100, v71, v70
        v_cvt_pk_f16_f32 v101, v69, v68
        v_cvt_pk_f16_f32 v102, v67, v66
        v_cvt_pk_f16_f32 v103, v65, v64
        v_mov_b32 v104, 0
        v_mov_b32 v105, 0
        s_mov_b32 exec_hi, 0
        v_cvt_pk_f16_f32 v100, v68, v67
        v_cvt_pk_f16_f32 v101, v66, v66
        v_cvt_pk_f16_f32 v102, v66, v65
        v_cvt_pk_f16_f32 v103, v64, v64
        s_mov_b64 exec, -1
        """)
    else:
        for i in range(6): a(f"v_add_f32 v{64+2*i}, v{64+2*i}, v{65+2*i}")
        a(f"""
        v_cvt_pk_f16_f32 v100, v68, v68
        v_cvt_pk_f16_f32 v101, v66, v66
        v_cvt_pk_f16_f32 v102, v66, v64
        v_cvt_pk_f16_f32 v103, v64, v64
        v_cvt_pk_f16_f32 v104, v70, v72
        v_cvt_pk_f16_f32 v105, v74, v74
        """)
    expand_emit(a, 100, 104, 105, 108, 3 - hh)
    if hh == 0: a(f"""
    v_mov_b32 v104, 0
    v_mov_b32 v105, 0
    v_mov_b32 v106, 0
    v_mov_b32 v107, 0
    s_mov_b64 exec, 0xff
    ds_write_b128 v{VT1+2}, v[104:107] offset:4096
    """)

def pf_lines(a, mat, part, v0):
    A, B, C = v0, v0+1, v0+2
    a(f"""
    s_lshr_b32 s64, s2, 3
    s_mul_i32 s64, s64, 162
    s_add_u32 s64, s64, {54*part}
    s_and_b32 s65, s2, 7
    s_mul_i32 s65, s65, 9
    v_min_u32 v{A}, 53, v2
    v_add_u32 v{A}, s64, v{A}
    """)
    fl = E("M_PFFL", "")
    if mat == "d":
        a(f"""
        s_mul_i32 s65, s65, 576
        v_add_u32 v{B}, s65, v{A}
        v_lshlrev_b32 v{B}, 7, v{B}
        global_load_dword v250, v{B}, {P(sWD)} {fl}
        """)
    else:
        a(f"""
        v_mul_u32_u24 v{C}, 7282, v{A}
        v_lshrrev_b32 v{C}, 16, v{C}
        v_mul_u32_u24 v{B}, 9, v{C}
        v_sub_u32 v{B}, v{A}, v{B}
        v_add_u32 v{B}, s65, v{B}
        v_mul_u32_u24 v{C}, 9216, v{C}
        v_lshl_add_u32 v{C}, v{B}, 7, v{C}
        """)
        for m in mat:
            a(f"global_load_dword v250, v{C}, {P(sWG if m == 'g' else sWU)} {fl}")
            if int(E("M_PFH", "0")): a(f"global_load_dword v250, v{C}, {P(sWG if m == 'g' else sWU)} offset:64 {fl}")

JA = [(k, v) for v in (0, 1, 2) for k in range(3, 8) if k + v <= 7]
JB = [(k, v) for v in (0, 1, 2) for k in range(3)]
JC = [(k, v) for v in (3, 4) for k in range(5) if k + v <= 7]
JD = [(k, v) for v in (5, 6, 7) for k in range(3) if k + v <= 7]
POFF = {"A": (0, 3), "B": (5, 0), "C": (10, 3), "D": (15, 5)}
def JCH(k): return [(kb, g - kb) for g in (k, 7 - k) for kb in range(g + 1)]
VA = 64
VACC = 224
VB = 32
NB = 8
VAS = 16
NH = int(E("M_NH", "5"))
VKA, VHA = 4, 6
VPW = 8

class Job:
    def __init__(self, parts):
        self.parts = parts
        use = {}
        for ci, bl, _ in parts:
            for kb, vb in bl: use[(ci, kb)] = use.get((ci, kb), 0) + 1
        order = sorted(use, key=lambda x: (-use[x], x))
        self.held = {g: i for i, g in enumerate(order[:NH])}
    def preload(self, a):
        for (ci, kb), i in self.held.items():
            for x in range(8):
                kap = 8*kb + x; r = VA + 32*i + 4*x
                a(f"ds_read_b64 {vr(r,2)}, v{VKA+ci} offset:{64*(63-kap)}")
                a(f"ds_read_b64 {vr(r+2,2)}, v{VKA+ci} offset:{64*(63-kap)+8}")
    def run(self, a, fill_end=None):
        Q = LdsQ(a)
        acc = {}; seq = []
        for ci, bl, tag in self.parts:
            vbs = sorted(set(v for _, v in bl))
            for vb in vbs:
                for y in range(8):
                    seq.append(((ci, 8*vb + y), [((ci, kb, 7 - y), (ci, kb + vb)) for kb, v in bl if v == vb]))
        for _, ms in seq:
            for _, tk in ms:
                if tk not in acc: acc[tk] = VACC + 4*len(acc)
        assert len(acc) <= 6
        mf = []
        for bi, (bk, ms) in enumerate(seq):
            for ak, tk in ms: mf.append((bi, ak, tk))
        if int(E("M_STAG", "1")) and self.parts[-1][2]:
            nl = len(seq) - 8
            body = [m for m in mf if m[0] < nl]; tail = [m for m in mf if m[0] >= nl]
            tks = sorted(set(m[2] for m in tail))
            if len(tks) > 1:
                tail = sorted(tail, key=lambda m: (max(tks.index(m[2]) - 1, 0), m[0], m[2]))
            mf = body + tail
        last = {}
        for n, (_, _, tk) in enumerate(mf): last[tk] = n
        loads = []; sa = 0; areg = {}
        firstuse = {}
        for n, (bi, ak, tk) in enumerate(mf):
            if ("b", bi) not in firstuse:
                firstuse[("b", bi)] = n
                ci, v = seq[bi][0]
                loads.append((n, ("b", bi), [f"ds_read_b128 {vr(VB + 4*(bi % NB),4)}, v{VHA+ci} offset:{64*v}"]))
            ci, kb, x = ak
            if (ci, kb) in self.held: areg[n] = VA + 32*self.held[(ci, kb)] + 4*x
            else:
                r = VAS + 4*(sa % 4); kap = 8*kb + x
                loads.append((n, ("a", sa), [f"ds_read_b64 {vr(r,2)}, v{VKA+ci} offset:{64*(63-kap)}", f"ds_read_b64 {vr(r+2,2)}, v{VKA+ci} offset:{64*(63-kap)+8}"]))
                areg[n] = r; firstuse[("a", sa)] = n; sa += 1
        lastuse_b = {}
        for n, (bi, _, _) in enumerate(mf): lastuse_b[bi] = n
        opid = {}; li = 0; started = set(); pend = []
        LEAD = int(E("M_LEAD", "10"))
        def can_issue(key, n):
            if key[0] == "b": return key[1] < NB or lastuse_b[key[1] - NB] < n
            return key[1] < 4 or firstuse[("a", key[1] - 4)] < n
        akey_of = {}
        for (n0, key, _) in loads:
            if key[0] == "a": akey_of[n0] = key
        tagof = {ci: tag for ci, _, tag in self.parts}
        for n, (bi, ak, tk) in enumerate(mf):
            while li < len(loads) and loads[li][0] <= n + LEAD and can_issue(loads[li][1], n):
                for t in loads[li][2]: opid[loads[li][1]] = Q.issue(t)
                li += 1
            need = opid[("b", bi)]
            if n in akey_of: need = max(need, opid[akey_of[n]])
            Q.need(need)
            c = acc[tk]
            a(f"v_mfma_f32_16x16x32_f16 {vr(c,4)}, {vr(areg[n],4)}, {vr(VB + 4*(bi % NB),4)}, {'0' if tk not in started else vr(c,4)}")
            started.add(tk)
            if last[tk] == n and tagof[tk[0]]: pend.append((n + 9, tk))
            while pend and pend[0][0] <= n:
                tk2 = pend.pop(0)[1]
                s0, g0 = POFF[tagof[tk2[0]]]
                Q.issue(f"ds_write_b128 v{VPW+tk2[0]}, {vr(acc[tk2],4)} offset:{(s0 + tk2[1] - g0)*1024}")
        a("s_nop 7")
        for _, tk2 in pend:
            s0, g0 = POFF[tagof[tk2[0]]]
            Q.issue(f"ds_write_b128 v{VPW+tk2[0]}, {vr(acc[tk2],4)} offset:{(s0 + tk2[1] - g0)*1024}")
        return acc

def epi_core(a, Y, H, T, ks, dd, ga, n):
    for e in range(n): a(f"v_mul_f32 v{Y+e}, {ks}, v{Y+e}")
    for e in range(n): a(f"v_fma_mix_f32 v{T+e}, v{H+e//2}, {dd}, 0 op_sel:[{e&1},0,0] op_sel_hi:[1,0,0]")
    rnd_pairs(a, [Y+2*i for i in range(n//2)] + [T+2*i for i in range(n//2)])
    for e in range(n): a(f"v_add_f32 v{Y+e}, v{Y+e}, v{T+e}")
    rnd_pairs(a, [Y+2*i for i in range(n//2)])
    for e in range(n): a(f"v_mul_f32 v{Y+e}, {ga}, v{Y+e}")

def gen_F(a):
    kernel_head(a, "ka_kernel")
    a(f"""
    s_cmp_ge_u32 s2, 256
    s_cbranch_scc1 M_END
    s_load_dwordx16 s[4:19], s[0:1], 0
    s_load_dwordx16 s[20:35], s[0:1], 64
    s_load_dwordx2 s[36:37], s[0:1], 128
    v_lshrrev_b32 v1, 6, v0
    v_and_b32 v2, 63, v0
    """)
    if ST: a(f"v_mov_b32 v{VST}, 0")
    a("v_readfirstlane_b32 s3, v1")
    stamp(a, 0)
    if CPL:
        a(f"""
        s_cmp_lg_u32 s3, 3
        s_cbranch_scc1 M_NCP
        s_getpc_b64 s[74:75]
        M_PC:
        s_sub_u32 s74, s74, M_PC - ka_kernel
        s_subb_u32 s75, s75, 0
        s_lshr_b32 s76, s2, 3
        s_mul_i32 s76, s76, {CPL}
        v_min_u32 v25, {CPL-1}, v2
        v_add_u32 v25, s76, v25
        v_lshlrev_b32 v25, 7, v25
        v_min_u32 v25, CODE_END - ka_kernel - 4, v25
        global_load_dword v250, v25, s[74:75]
        M_NCP:
        """)
    LL = 10; X = 16; T = 26
    a(f"""
    s_lshl_b32 s40, s2, 3
    s_add_u32 s40, s40, s3
    s_mul_i32 s40, s40, 1152
    v_lshl_add_u32 v3, v2, 4, s40
    v_lshl_add_u32 v4, v2, 1, s40
    v_mov_b32 v20, 0
    v_mov_b32 v21, 0
    v_mov_b32 v22, 0
    v_mov_b32 v23, 0
    v_mov_b32 v{VZ}, 0
    v_mov_b32 v{VONE}, 1
    v_lshlrev_b32 v24, 4, v2
    s_cmp_eq_u32 s3, 0
    s_cbranch_scc0 M_Z1
    s_mov_b64 exec, 0x3fffffff
    ds_write_b128 v24, v[20:23] offset:{L_HB}
    ds_write_b128 v24, v[20:23] offset:{L_HB + HB_P}
    ds_write_b128 v24, v[20:23] offset:{L_HB + 2*HB_P}
    M_Z1:
    s_cmp_eq_u32 s3, 2
    s_cbranch_scc0 M_Z3
    ds_write_b128 v24, v[20:23] offset:{L_ZERO}
    M_Z3:
    s_cmp_eq_u32 s3, 3
    s_cbranch_scc0 M_Z0
    s_mov_b64 exec, 0xfffff
    ds_write_b128 v24, v[20:23] offset:{L_CNT}
    M_Z0:
    s_mov_b64 exec, -1
    s_lshr_b32 s41, s3, 1
    s_lshl_b32 s{sD}, s2, 1
    s_add_u32 s{sD}, s{sD}, s41
    s_lshr_b32 s45, s2, 2
    s_add_u32 s45, s45, 512            ; channel c
    s_cmp_eq_u32 s41, 2
    s_cselect_b32 s{sD}, s45, s{sD}
    s_and_b32 s{sHH}, s3, 1
    ; mod item: cg = u % 27, ks = u / 27
    s_mul_i32 s{sKS}, s2, 2428
    s_lshr_b32 s{sKS}, s{sKS}, 16
    s_mul_i32 s40, s{sKS}, 27
    s_sub_u32 s49, s2, s40             ; cg
    v_lshrrev_b32 v25, 2, v2
    s_lshl_b32 s40, s{sKS}, 6
    v_add_u32 v25, s40, v25
    v_mul_u32_u24 v25, 6912, v25
    v_and_b32 v26, 3, v2
    v_lshl_add_u32 v25, v26, 4, v25
    v_add_u32 v39, s40, v2
    s_lshl_b32 s40, s49, 7
    s_lshl_b32 s50, s{sHH}, 6
    s_add_u32 s40, s40, s50
    v_add_u32 v216, s40, v25
    v_lshlrev_b32 v39, 1, v39
    s_lshl_b32 s40, s{sD}, 8
    v_lshl_add_u32 v5, v2, 2, s40
    s_lshl_b32 s40, s{sD}, 1
    v_mov_b32 v6, s40
    s_waitcnt lgkmcnt(0)
    global_load_dwordx4 {vr(LL,4)}, v3, {P(sX)} {XNT}
    global_load_ushort v{LL+4}, v4, {P(sX)} offset:1024 {XNT}
    s_mov_b32 s50, {16*6912}
    v_add_u32 v217, s50, v216
    v_add_u32 v218, s50, v217
    v_add_u32 v219, s50, v218
    v_mov_b32 v7, {WS_EPOCH}
    s_cmp_ge_u32 s3, 6
    s_cbranch_scc1 M_T0MOD
    s_barrier                          ; B0
    global_load_ushort v44, v6, {P(sLDT)}
    global_load_dword v40, v5, {P(sLAR)} {PNT}
    global_load_dword v41, v5, {P(sAIM)} {PNT}
    global_load_dword v42, v5, {P(sCR)} {PNT}
    global_load_dword v43, v5, {P(sCI)} {PNT}
    s_mov_b32 s62, 5
    """)
    a(f"""
    s_branch M_T0J
    M_T0MOD:
    s_setprio 2
    s_barrier                          ; B0
    global_load_dword v47, v7, {P(sWS)}
    s_mov_b32 s62, 1
    s_cmp_ge_u32 s2, 243
    s_cbranch_scc1 M_T0J
    global_load_ushort v44, v39, {P(sC)}
    """)
    for i in range(4): a(f"global_load_dwordx4 {vr(48+4*i,4)}, v{216+i}, {P(sWMOD)} {NT}")
    a(f"""
    s_mov_b32 s62, 6
    M_T0J:
    """)
    UN = {2: 0, 3: 3, 6: 6, 7: 9, 0: 12, 1: 14, 4: 0, 5: 0}
    unib = sum(UN[w] << (4*w) for w in range(8))
    a(f"""
    s_lshl_b32 s40, s3, 2
    s_lshr_b32 s63, {hex(unib)}, s40
    s_and_b32 s63, s63, 15
    s_lshl_b32 s50, s63, 10
    s_lshl_b32 s51, s2, 14
    s_add_u32 s50, s50, s51
    s_add_u32 s50, s50, {WS_XN}
    v_lshl_add_u32 v{VXA}, v2, 4, s50
    v_lshrrev_b32 v21, 4, v2
    s_lshl_b32 s50, s2, 1
    v_add_u32 v20, s50, v21
    v_mov_b32 v22, s45
    v_cmp_gt_u32 vcc, 2, v21
    v_and_b32 v23, 15, v2
    v_min_u32 v23, 8, v23
    v_cndmask_b32 v20, v22, v20, vcc   ; channel
    v_lshlrev_b32 v23, 9, v23
    v_lshlrev_b32 v{VD}, 1, v20
    v_lshrrev_b32 v22, 6, v20
    v_mul_u32_u24 v22, {9*512}, v22
    v_and_b32 v20, 63, v20
    v_lshl_add_u32 v20, v20, 3, v22
    v_add_u32 v20, v20, v23
    v_add_u32 v{VMA}, {WS_MP}, v20
    v_add_u32 v{VMA+1}, {WS_MP + 9*9*512}, v20
    v_add_u32 v{VMA+2}, {WS_MP + 18*9*512}, v20
    v_and_b32 v20, 15, v2              ; i / j
    v_and_b32 v22, 3, v20
    v_mul_u32_u24 v22, {KC_P}, v22
    v_lshrrev_b32 v23, 2, v20
    v_lshlrev_b32 v23, 3, v23
    v_lshl_add_u32 v23, v21, 4, v23
    v_sub_u32 v22, v22, v23
    v_add_u32 v22, {L_KC + 72}, v22
    v_lshlrev_b32 v23, 5, v20
    v_lshlrev_b32 v24, 4, v21
    v_sub_u32 v24, v23, v24
    v_add_u32 v24, {L_HB + 48}, v24
    v_lshl_add_u32 v3, v21, 3, v23     ; 32j + 8q
    v_add_u32 v3, {L_HB + 480}, v3
    s_lshr_b32 s40, 0x01021100, s40
    s_and_b32 s40, s40, 15
    s_mul_i32 s50, s40, {4*KC_P}
    s_cmp_eq_u32 s40, 2
    s_cselect_b32 s50, {(L_KC2 - L_KC) & 0xffffffff}, s50
    v_add_u32 v{VKA}, s50, v22
    v_add_u32 v{VKA+1}, {4*KC_P}, v22
    s_mul_i32 s50, s40, {HB_P}
    v_add_u32 v{VHA}, s50, v24
    v_add_u32 v{VHA+1}, {HB_P}, v24
    s_mul_i32 s50, s40, 18432
    s_add_u32 s50, s50, {L_PART}
    v_lshl_add_u32 v{VPW}, v2, 4, s50
    v_lshlrev_b32 v{VPW+1}, 4, v2
    v_add_u32 v{VPW+1}, {L_PART + 18432}, v{VPW+1}
    s_lshl_b32 s40, s40, 2
    v_mov_b32 v1, s40
    """)
    k0 = len(a.lines)
    kgen_setup(a)
    for i in range(k0, len(a.lines)):
        for o, n in (("v10", "v20"), ("v11", "v21"), ("v12", "v22"), ("v13", "v23")):
            a.lines[i] = re.sub(rf"\b{o}\b", n, a.lines[i])
    a(f"""
    s_lshr_b32 s40, s3, 1
    s_mul_i32 s40, s40, 2592
    s_mul_i32 s50, s{sHH}, 1280
    s_add_u32 s40, s40, s50
    s_add_u32 s40, s40, {L_LNR}
    v_lshl_add_u32 v220, v2, 4, s40
    s_lshl_b32 s40, s3, 1
    s_add_u32 s40, s40, {L_CB}
    v_lshl_add_u32 v221, v2, 4, s40
    v_lshrrev_b32 v22, 2, v2
    s_and_b32 s40, s3, 3
    s_lshl_b32 s40, s40, 6
    v_add_u32 v22, s40, v22            ; u'
    v_and_b32 v23, 3, v2
    v_mul_u32_u24 v222, 2592, v23
    v_lshl_add_u32 v222, v22, 2, v222
    v_add_u32 v222, {L_LNR}, v222
    v_lshrrev_b32 v223, 2, v22
    v_lshlrev_b32 v223, 4, v223
    v_lshl_add_u32 v223, v23, 2, v223
    v_add_u32 v223, {L_CB}, v223
    v_lshlrev_b32 v22, 14, v22
    v_lshl_add_u32 v22, v23, 4, v22
    s_lshl_b32 s40, s2, 6
    s_add_u32 s40, s40, {WS_XN}
    v_add_u32 v253, s40, v22
    v_mov_b32 v15, {fbits(1.0/576)}
    s_cmp_eq_u32 s62, 6
    s_cbranch_scc1 M_W6
    s_cmp_eq_u32 s62, 5
    s_cbranch_scc1 M_W5
    s_waitcnt vmcnt(1)
    M_W5:
    s_waitcnt vmcnt(5)
    M_W6:
    s_waitcnt vmcnt(6)
    """)
    stamp(a, 1)
    for w in range(4): unpk(a, X+2*w, X+2*w+1, LL+w)
    a(f"v_lshlrev_b32 v{X+8}, 16, v{LL+4}")
    D = ln_stats(a, X, T, 66, 15)
    for i in range(4): a(f"v_cvt_pk_bf16_f32 v{X+i}, v{D+2*i}, v{D+2*i+1}")
    a(f"""
    v_cvt_pk_bf16_f32 v{X+4}, v{D+8}, v{D+8}
    ds_write_b128 v220, {vr(X,4)}
    ds_write_b16 v221, v{X+4}
    s_cmp_lg_u32 s3, 6
    s_cbranch_scc1 M_NTAG
    s_cmp_eq_u32 s62, 6
    s_cbranch_scc1 M_TG5
    s_waitcnt vmcnt(0)
    M_TG5:
    s_waitcnt vmcnt(5)
    s_mov_b32 s40, 0x9E3779B1
    v_mul_lo_u32 v47, v47, s40
    v_add_u32 v47, 0x7F4A7C15, v47
    ds_write_b32 v{VZ}, v47 offset:{L_TAG}
    M_NTAG:
    """)
    signal(a, C_LN)
    a(f"""
    s_cmp_lt_u32 s3, 4
    s_cbranch_scc1 M_KG
    s_cmp_lt_u32 s3, 6
    s_cbranch_scc1 M_PACK
    s_cmp_ge_u32 s2, 243
    s_cbranch_scc1 M_PACK
    s_mov_b32 s40, {fbits(-LOG2E)}
    s_waitcnt vmcnt(4)
    v_lshlrev_b32 v44, 16, v44
    v_mul_f32 v45, s40, v44
    v_exp_f32 v45, v45
    v_lshrrev_b32 v46, 2, v2
    v_add_f32 v45, 1.0, v45
    v_rcp_f32 v45, v45
    v_lshlrev_b32 v46, 2, v46
    v_mul_f32 v44, v44, v45
    v_cvt_pk_bf16_f32 v44, v44, 0
    """)
    for i in range(4): a(f"ds_bpermute_b32 v{28+i}, v46, v44 offset:{64*i}")
    a.label("M_PACK")
    G0 = 80
    for i in range(1, 4): a(f"v_add_u32 v{20+i}, {64*i}, v222")
    a(f"""
    s_mov_b32 s41, {16 << 14}
    M_SPL:
    ds_read_b64 v[96:97], v{VZ} offset:{L_CNT + C_LN}
    """)
    for i in range(4):
        a(f"ds_read2st64_b32 {vr(G0+4*i,2)}, v{222 if i == 0 else 20+i} offset0:0 offset1:5")
        a(f"ds_read_b32 v{G0+4*i+2}, v223 offset:{64*i}")
    a(f"""
    s_waitcnt lgkmcnt(8)
    v_readfirstlane_b32 s94, v96
    v_readfirstlane_b32 s{sTAG}, v97
    s_cmp_ge_u32 s94, 8
    s_cbranch_scc0 M_SPL
    """)
    for i in range(4):
        a(f"v_mov_b32 v{G0+4*i+3}, v97")
        a(f"s_waitcnt lgkmcnt({6-2*i})")
        a(f"global_store_dwordx4 v253, {vr(G0+4*i,4)}, {P(sWS)} sc1")
        if i < 3: a("v_add_u32 v253, s41, v253")
    stamp(a, 2)
    a(f"""
    s_cmp_ge_u32 s3, 6
    s_cbranch_scc1 M_MOD
    s_waitcnt vmcnt(4)
    """)
    signal(a, C_H)
    a("s_branch KG_W1")
    a.label("M_KG")
    stamp(a, 2)
    def mp_issue():
        for c in range(3): a(f"global_load_dwordx2 {vr(VMP+2*c,2)}, v{VMA+c}, {P(sWS)} sc1")
    def xn_issue(n=3):
        for i in range(n): a(f"global_load_dwordx4 {vr(XG+4*i,4)}, v{VXA}, {P(sWS)} offset:{1024*i} sc1")
    def first_issue():
        l = a.newlabel("NI")
        a(f"""
        s_cmp_ge_u32 s3, 4
        s_cbranch_scc1 {l}
        s_cmp_lt_u32 s3, 2
        s_cbranch_scc1 {l}B
        global_load_dwordx4 {vr(XG+8,4)}, v{VXA}, {P(sWS)} offset:2048 sc1
        {l}B:
        global_load_ushort v{VD}, v{VD}, {P(sDSK)}
        """)
        mp_issue(); xn_issue(2)
        a.label(l)
    XAT = E("M_XAT", "tab")
    hooks = {}
    if XAT != "tab": hooks[XAT] = first_issue
    gen_kgen(a, 0, hooks)
    signal(a, C_TAB, VED+1)
    if XAT == "tab": first_issue()
    stamp(a, 4)
    spin(a, C_TAB, 2, VED+1)
    stamp(a, 5)
    a(f"""
    s_cmp_eq_u32 s{sHH}, 0
    s_cbranch_scc0 M_EXB
    """)
    expand(a, 0)
    a("s_branch M_EXD")
    a.label("M_EXB")
    expand(a, 1)
    a.label("M_EXD")
    signal(a, C_K, VED+1)
    stamp(a, 6)
    a("s_branch M_CSET")
    a.label("M_MOD")
    a(f"""
    s_cmp_ge_u32 s2, 243
    s_cbranch_scc1 M_MODX
    """)
    for i in range(4): a(f"global_load_dwordx4 {vr(64+4*i,4)}, v{216+i}, {P(sWMOD)} offset:3456 {NT}")
    a(f"""
    s_mul_i32 s40, s49, 9
    s_add_u32 s40, s40, s{sKS}
    s_lshl_b32 s40, s40, 9
    s_lshl_b32 s41, s{sHH}, 8
    s_add_u32 s40, s40, s41
    s_add_u32 s40, s40, {WS_MP}
    v_and_b32 v45, 3, v2
    v_lshlrev_b32 v45, 6, v45
    v_lshrrev_b32 v46, 3, v2
    v_lshl_add_u32 v45, v46, 3, v45
    v_add_u32 v45, s40, v45
    v_add_u32 v46, {27*9*512}, v45
    v_mov_b32 v33, s{sTAG}
    """)
    for i in range(4): a(f"v_lshlrev_b32 v{24+i}, 16, v{28+i}")
    AC = 112
    for rho in range(2):
        for e in range(8): a(f"v_mov_b32 v{AC+e}, 0")
        for i in range(4):
            a(f"s_waitcnt vmcnt({11 - i if rho == 0 else 4 - i})")
            for w in range(4):
                a(f"v_dot2c_f32_bf16 v{AC+2*w}, v{48+16*rho+4*i+w}, v{28+i}")
                a(f"v_dot2c_f32_bf16 v{AC+2*w+1}, v{48+16*rho+4*i+w}, v{24+i}")
        a("s_nop 2")
        for e in range(4): a(f"v_permlane32_swap_b32 v{AC+e}, v{AC+4+e}")
        for e in range(4): a(f"v_add_f32 v{AC+e}, v{AC+e}, v{AC+4+e}")
        a("s_nop 0")
        a(f"v_permlane16_swap_b32 v{AC}, v{AC+2}")
        a(f"v_permlane16_swap_b32 v{AC+1}, v{AC+3}")
        a(f"v_add_f32 v{AC}, v{AC}, v{AC+2}")
        a(f"v_add_f32 v{AC+1}, v{AC+1}, v{AC+3}")
        a("s_nop 1")
        a(f"v_add_f32 v32, v{AC}, v{AC} row_ror:8 row_mask:0xf bank_mask:0x3")
        a(f"v_add_f32 v32, v{AC+1}, v{AC+1} row_ror:8 row_mask:0xf bank_mask:0xc")
        a("s_nop 1")
        a(f"v_add_f32 v32, v32, v32 row_shl:4 row_mask:0xf bank_mask:0x5")
        a("s_mov_b32 exec_lo, 0x0f0f0f0f")
        a("s_mov_b32 exec_hi, 0x0f0f0f0f")
        a(f"global_store_dwordx2 v{45+rho}, v[32:33], {P(sWS)} sc1")
        a("s_mov_b64 exec, -1")
        if rho == 0:
            a("s_setprio 0")
            stamp(a, 7)
    a.label("M_MODX")
    a("s_setprio 0")
    stamp(a, 3)
    def pf_waves(spec, tag, v0):
        for grp in filter(None, spec.split(";")):
            w, items = grp.split(":")
            l = a.newlabel("PF")
            a(f"s_cmp_lg_u32 s3, {w}"); a(f"s_cbranch_scc1 {l}")
            for it in items.split(","): pf_lines(a, it[:-1], int(it[-1]), v0)
            a.label(l)
    pf_waves(E("M_PFA", ""), "a", 100)
    spin(a, C_TAB + 4, int(E("M_W6N", "1")))
    a(f"global_load_dwordx4 {vr(XG+8,4)}, v{VXA}, {P(sWS)} offset:2048 sc1")
    a(f"global_load_ushort v{VD}, v{VD}, {P(sDSK)}")
    mp_issue(); xn_issue(2)
    a.label("M_CSET")
    jobs = {"A": Job([(0, JA, "A")]), "B": Job([(0, JB, "B")]), "C": Job([(0, JC, "C")]), "D": Job([(1, JD, "D"), (0, JD, "D")])}
    for k in range(4): jobs[f"K{k}"] = Job([(0, JCH(k), None)])
    a(f"""
    s_lshl_b32 s40, s3, 2
    s_lshr_b32 s40, 0x31242010, s40
    s_and_b32 s62, s40, 15
    s_and_b32 s40, s2, 3
    s_cmp_eq_u32 s62, 4
    s_cselect_b32 s40, s40, 0
    s_add_u32 s62, s62, s40
    """)
    def dispatch(pre):
        for i, nm in enumerate(list(jobs)[:-1]):
            a(f"s_cmp_eq_u32 s62, {i}")
            a(f"s_cbranch_scc1 {pre}{nm}")
        a(f"s_branch {pre}K3")
    spin(a, C_K, 2, 1)
    dispatch("M_PL")
    for nm, jb in jobs.items():
        a.label(f"M_PL{nm}")
        if nm == "D": spin(a, C_K + 4, 2)
        jb.preload(a)
        a("s_branch M_STG")
    a.label("M_STG")
    stamp(a, 8)
    a(f"""
    s_and_b32 s40, s3, 6
    s_cmp_eq_u32 s40, 4
    s_cbranch_scc1 M_HW
    M_TGS:
    ds_read_b64 v[16:17], v{VZ} offset:{L_CNT + C_LN}
    s_lshl_b32 s40, s63, 8
    s_add_u32 s40, s40, {L_HB + 480}
    s_mov_b32 m0, s40
    s_mov_b32 s41, {SPIN}
    v_mov_b32 v30, 0x3f80
    v_mov_b32 v31, 0x3f800000
    s_waitcnt lgkmcnt(0)
    v_readfirstlane_b32 s94, v16
    v_readfirstlane_b32 s{sTAG}, v17
    s_cmp_ge_u32 s94, 8
    s_cbranch_scc0 M_TGS
    M_MP:
    s_waitcnt vmcnt(2)
    v_xor_b32 v16, s{sTAG}, v{VMP+1}
    v_xor_b32 v17, s{sTAG}, v{VMP+3}
    v_xor_b32 v18, s{sTAG}, v{VMP+5}
    v_or3_b32 v16, v16, v17, v18
    v_cmp_ne_u32 vcc, 0, v16
    s_cbranch_vccz M_MPD
    """)
    mp_issue()
    a(f"""
    s_waitcnt vmcnt(0)
    s_sub_u32 s41, s41, 1
    s_cbranch_scc0 M_MP
    M_MPD:
    s_mov_b32 exec_lo, 0xfe00fe00
    s_mov_b32 exec_hi, 0xfe00fe00
    v_mov_b32 v{VMP}, 0
    v_mov_b32 v{VMP+2}, 0
    v_mov_b32 v{VMP+4}, 0
    s_mov_b64 exec, -1
    """)
    for sh in (1, 2, 4, 8):
        for r in (VMP, VMP+2, VMP+4): a(f"v_add_f32 v{r}, v{r}, v{r} row_shr:{sh} {DPP_ALL} bound_ctrl:0")
    a(f"""
    v_cvt_pk_bf16_f32 v17, v{VMP}, v{VMP+2}
    v_cvt_pk_bf16_f32 v18, v{VMP+4}, v{VMP+4}
    v_lshlrev_b32 v16, 16, v17         ; sa
    v_and_b32 v17, 0xffff0000, v17     ; ca
    v_add_f32 v17, 1.0, v17
    v_cvt_pk_bf16_f32 v17, v17, v17
    v_and_b32 v17, 0xffff0000, v17     ; c1
    v_mul_f32 v19, 0x42800000, v17
    v_add_f32 v19, abs(v19), abs(v16)
    v_frexp_exp_i32_f32 v19, v19
    v_sub_u32 v19, 15, v19
    v_ldexp_f32 v17, v17, v19
    v_ldexp_f32 v16, v16, v19
    v_readlane_b32 s67, v17, 31
    v_readlane_b32 s66, v17, 15
    v_readlane_b32 s69, v17, 47
    v_readlane_b32 s70, v16, 15
    v_readlane_b32 s71, v16, 31
    v_readlane_b32 s72, v16, 47
    s_lshr_b32 s66, s66, 16
    s_lshr_b32 s68, s69, 16
    s_cmp_lg_u32 s3, 7
    s_cbranch_scc1 M_XP
    v_sub_u32 v19, 0, v19
    v_lshlrev_b32 v{VD}, 16, v{VD}
    v_lshlrev_b32 v18, 16, v18
    v_ldexp_f32 v{VD}, v{VD}, v19
    v_lshrrev_b32 v20, 2, v2
    v_and_b32 v20, 12, v20
    s_mov_b32 exec_lo, 0x80008000
    s_mov_b32 exec_hi, 0x00008000
    ds_write_b32 v20, v{VD} offset:{L_PRM + 32}
    ds_write_b32 v20, v18 offset:{L_PRM + 48}
    ds_write_b32 v20, v19 offset:{L_PRM + 64}
    s_mov_b64 exec, -1
    M_XP:
    s_waitcnt vmcnt(0)
    v_xor_b32 v16, s{sTAG}, v{XG+3}
    v_xor_b32 v17, s{sTAG}, v{XG+7}
    v_xor_b32 v18, s{sTAG}, v{XG+11}
    s_cmp_lt_u32 s3, 2
    s_cselect_b32 s40, 0, -1
    v_and_b32 v18, s40, v18
    v_or3_b32 v16, v16, v17, v18
    v_cmp_ne_u32 vcc, 0, v16
    s_cbranch_vccz M_XD
    s_mov_b64 exec, vcc
    """)
    xn_issue()
    a(f"""
    s_mov_b64 exec, -1
    s_sub_u32 s41, s41, 1
    s_cbranch_scc0 M_XP
    M_XD:
    """)
    stamp(a, 9)
    def units(lst):
        Y = 32
        for n, u in enumerate(lst):
            g = XG + 4*u; y = Y + 6*n
            for k, (src, cs) in enumerate(((g, 66), (g+1, 66), (g, 67), (g+1, 67), (g+2, 68), (g+2, 69))):
                a(f"v_dot2_f32_bf16 v{y+k}, v{src}, s{cs}, 0")
        if len(lst) == 1: a("s_nop 0")
        prs = [Y + 2*i for i in range(3*len(lst))]
        for p in prs: a(f"v_cvt_pk_bf16_f32 v{p+1}, v{p}, v{p+1}")
        for i, p in enumerate(prs):
            a(f"v_dot2_f32_bf16 v{p}, v{p+1}, v30, s{70 + i%3}")
            a(f"v_dot2_f32_bf16 v{p+1}, v{p+1}, v31, s{70 + i%3}")
        a("s_nop 1")
        rnd_pairs(a, prs)
        for i, p in enumerate(prs): a(f"v_cvt_pk_f16_f32 v{16+i}, v{p}, v{p+1}")
        for i, p in enumerate(prs): a(f"ds_write_addtid_b32 v{16+i} offset:{(i%3)*HB_P + lst[i//3]*256}")
    a("""
    s_cmp_lt_u32 s3, 2
    s_cbranch_scc1 M_U2
    """)
    units([0, 1, 2])
    a("s_branch M_U3")
    a.label("M_U2")
    units([0, 1])
    a.label("M_U3")
    signal(a, C_H)
    RR = 160
    def red_issue():
        for s_ in range(8): a(f"global_load_dwordx2 {vr(RR+2*s_,2)}, v178, {P(sWS)} offset:{512*s_} sc1")
        a(f"global_load_dwordx2 {vr(RR+16,2)}, v179, {P(sWS)} sc1")
    def red_addr():
        a(f"""
        s_sub_u32 s40, s2, {229 - 27}
        s_mul_i32 s40, s40, {9*512}
        s_add_u32 s40, s40, {WS_MP}
        v_lshl_add_u32 v178, v2, 3, s40
        v_add_u32 v179, 4096, v178
        """)
    a(f"""
    s_cmp_lg_u32 s3, 1
    s_cbranch_scc1 M_HW
    s_cmp_lt_u32 s2, 229
    s_cbranch_scc1 M_HW
    """)
    red_addr(); red_issue()
    a(f"""
    M_HW:
    s_and_b32 s40, s2, 7
    s_mul_i32 s40, s40, 18
    s_lshr_b32 s41, s2, 3
    s_add_u32 s46, s40, s41            ; fs
    s_cmp_ge_u32 s2, 144
    s_cbranch_scc1 M_NODN
    s_mul_i32 s40, s46, 36864
    s_lshl_b32 s41, s3, 10
    s_add_u32 s40, s40, s41
    s_add_u32 m0, s41, {L_DN}
    v_lshl_add_u32 v16, v2, 4, s40
    """)
    for i in range(5):
        if i == 4: a("s_cmp_ge_u32 s3, 4"); a("s_cbranch_scc1 M_NODN")
        a(f"global_load_lds_dwordx4 v16, {P(sWD)} {E('F_DFL', '')}")
        if i < 4:
            a("s_add_u32 m0, m0, 8192")
            a("v_add_u32 v16, 8192, v16")
    a.label("M_NODN")
    pf_waves(E("M_PFR", "0:g0;7:g1;2:g2;3:u0;4:u1;5:u2"), "r", 16)
    spin(a, C_H, 8)
    stamp(a, 10)
    dispatch("M_RUN")
    for nm, jb in jobs.items():
        a.label(f"M_RUN{nm}")
        acc = jb.run(a)
        if nm[0] == "K":
            k = int(nm[1])
            a(f"""
            ds_read_b32 v40, v{VZ} offset:{L_PRM + 32 + 8}
            ds_read_b32 v41, v{VZ} offset:{L_PRM + 48 + 8}
            ds_read_b32 v42, v{VZ} offset:{L_PRM + 64 + 8}
            ds_read_b32 v43, v{VZ} offset:{L_PRM + 80 + 8}
            ds_read_b64 v[44:45], v3 offset:{2*HB_P + 512*k}
            ds_read_b64 v[46:47], v3 offset:{2*HB_P + 512*(7-k)}
            v_and_b32 v16, 15, v2
            v_mul_u32_u24 v16, 96, v16
            v_lshrrev_b32 v17, 5, v2
            v_mul_u32_u24 v17, 48, v17
            v_bfe_u32 v18, v2, 4, 1
            v_lshl_add_u32 v17, v18, 3, v17
            v_add_u32 v16, v16, v17
            v_add_u32 v16, {L_TAB + 32}, v16
            s_waitcnt lgkmcnt(0)
            v_ldexp_f32 v43, v43, v42
            """)
            c0, c1 = acc[(0, k)], acc[(0, 7-k)]
            assert c1 == c0 + 4
            epi_core(a, c0, 44, 48, "v43", "v40", "v41", 8)
            for i in range(4): a(f"v_cvt_pk_bf16_f32 v{48+i}, v{c0+2*i}, v{c0+2*i+1}")
            a(f"ds_write_b64 v16, v[48:49] offset:{1536*k}")
            a(f"ds_write_b64 v16, v[50:51] offset:{1536*(7-k)}")
        a("s_branch M_FIN")
    a.label("M_FIN")
    stamp(a, 11)
    a(f"""
    s_cmp_lg_u32 s3, 1
    s_cbranch_scc1 M_NRED
    s_cmp_lt_u32 s2, 229
    s_cbranch_scc1 M_NRED
    s_mov_b32 s41, {SPIN}
    """)
    red_addr()
    a(f"""
    M_RP:
    s_waitcnt vmcnt(0)
    v_xor_b32 v24, s{sTAG}, v{RR+17}
    """)
    for s_ in range(8):
        a(f"v_xor_b32 v25, s{sTAG}, v{RR+2*s_+1}")
        a("v_or_b32 v24, v24, v25")
    a(f"""
    v_cmp_ne_u32 vcc, 0, v24
    s_cbranch_vccz M_RD
    """)
    red_issue()
    a(f"""
    s_sub_u32 s41, s41, 1
    s_cbranch_scc0 M_RP
    M_RD:
    """)
    for s_ in range(8): a(f"v_add_f32 v{RR+16}, v{RR+16}, v{RR+2*s_}")
    a(f"""
    v_cvt_pk_bf16_f32 v24, v{RR+16}, v{RR+16}
    s_sub_u32 s40, s2, {229 + 9}
    s_cmp_lt_u32 s40, 9
    s_cbranch_scc0 M_RNC
    v_lshlrev_b32 v24, 16, v24
    v_add_f32 v24, 1.0, v24
    v_cvt_pk_bf16_f32 v24, v24, v24
    M_RNC:
    s_sub_u32 s40, s2, 229
    s_lshl_b32 s40, s40, 7
    s_add_u32 s41, s40, {WS_PT16}
    v_lshl_add_u32 v25, v2, 1, s41
    global_store_short v25, v24, {P(sWS)} sc1
    s_add_u32 s40, s40, {WS_PF}
    v_mov_b32 v25, s40
    v_mov_b32 v24, s{sTAG}
    s_waitcnt vmcnt(0)
    s_mov_b64 exec, 1
    global_store_dword v25, v24, {P(sWS)} sc1
    s_mov_b64 exec, -1
    M_NRED:
    """)
    a(f"""
    s_add_u32 s50, s3, 5               ; B[w]
    s_add_u32 s51, s3, -3              ; A
    s_add_u32 s52, s3, 7               ; C
    s_add_u32 s53, s3, 10              ; D
    s_cmp_ge_u32 s3, 5
    s_cselect_b32 s50, s53, s50
    s_lshl_b32 s50, s50, 10
    s_lshl_b32 s51, s51, 10
    s_lshl_b32 s52, s52, 10
    s_add_u32 s54, s51, 18432
    s_add_u32 s55, s52, 18432
    s_cmp_lt_u32 s3, 3
    s_cselect_b32 s51, {(L_ZERO - L_PART) & 0xffffffff}, s51
    s_cselect_b32 s52, {(L_ZERO - L_PART) & 0xffffffff}, s52
    s_cselect_b32 s54, {(L_ZERO - L_PART) & 0xffffffff}, s54
    s_cselect_b32 s55, {(L_ZERO - L_PART) & 0xffffffff}, s55
    v_lshlrev_b32 v16, 4, v2
    v_add_u32 v16, {L_PART}, v16
    v_add_u32 v17, s51, v16
    v_add_u32 v18, s52, v16
    v_add_u32 v19, s54, v16
    v_add_u32 v20, s55, v16
    v_add_u32 v16, s50, v16
    s_lshl_b32 s40, s3, 9
    v_add_u32 v3, s40, v3
    ds_read_b64 v[64:65], v{VZ} offset:{L_PRM + 32}
    ds_read_b64 v[66:67], v{VZ} offset:{L_PRM + 48}
    ds_read_b64 v[68:69], v{VZ} offset:{L_PRM + 64}
    ds_read_b64 v[70:71], v{VZ} offset:{L_PRM + 80}
    ds_read_b64 v[72:73], v3
    ds_read_b64 v[74:75], v3 offset:{HB_P}
    s_mul_i32 s40, s3, 1536
    s_add_u32 s40, s40, {L_TAB}
    v_and_b32 v4, 15, v2
    v_mul_u32_u24 v4, 96, v4
    v_lshrrev_b32 v5, 5, v2
    v_mul_u32_u24 v5, 48, v5
    v_and_b32 v6, 16, v2
    v_add3_u32 v4, v4, v5, v6
    v_add_u32 v4, s40, v4
    v_lshrrev_b32 v6, 2, v2
    v_mul_u32_u24 v5, 96, v6
    v_and_b32 v7, 3, v2
    v_mul_u32_u24 v8, 12, v7
    v_add3_u32 v5, v5, v8, s40
    v_lshlrev_b32 v6, 15, v6
    v_lshl_add_u32 v6, v7, 4, v6
    s_lshl_b32 s40, s3, 19
    s_lshl_b32 s41, s2, 6
    s_add_u32 s40, s40, s41
    s_add_u32 s40, s40, {WS_Z2}
    v_add_u32 v6, s40, v6
    v_add_u32 v7, 16384, v6
    v_mov_b32 v119, s{sTAG}
    v_mov_b32 v123, s{sTAG}
    s_waitcnt lgkmcnt(0)
    v_ldexp_f32 v70, v70, v68
    v_ldexp_f32 v71, v71, v69
    """)
    for e in range(4): a(f"v_fma_mix_f32 v{104+e}, v{72+e//2}, v64, 0 op_sel:[{e&1},0,0] op_sel_hi:[1,0,0]")
    for e in range(4): a(f"v_fma_mix_f32 v{108+e}, v{74+e//2}, v65, 0 op_sel:[{e&1},0,0] op_sel_hi:[1,0,0]")
    rnd_pairs(a, [104, 106, 108, 110])
    a(f"""
    s_barrier                          ; B6
    ds_read_b128 v[80:83], v16
    ds_read_b128 v[84:87], v17
    ds_read_b128 v[88:91], v18
    ds_read_b128 v[92:95], v16 offset:18432
    ds_read_b128 v[96:99], v19
    ds_read_b128 v[100:103], v20
    """)
    a("s_waitcnt lgkmcnt(3)")
    for e in range(4): a(f"v_add_f32 v{80+e}, v{80+e}, v{84+e}")
    for e in range(4): a(f"v_add_f32 v{80+e}, v{80+e}, v{88+e}")
    a("s_waitcnt lgkmcnt(0)")
    for e in range(4): a(f"v_add_f32 v{84+e}, v{92+e}, v{96+e}")
    for e in range(4): a(f"v_add_f32 v{84+e}, v{84+e}, v{100+e}")
    for e in range(8): a(f"v_mul_f32 v{80+e}, v{70+e//4}, v{80+e}")
    for i in range(4): a(f"v_cvt_pk_bf16_f32 v{88+i}, v{80+2*i}, v{81+2*i}")
    a("v_mov_b32 v62, 0x3f80")
    a("v_mov_b32 v63, 0x3f800000")
    for e in range(8): a(f"v_dot2_f32_bf16 v{80+e}, v{88+e//2}, v{62+(e&1)}, v{104+e}")
    rnd_pairs(a, [80, 82, 84, 86])
    for e in range(8): a(f"v_mul_f32 v{80+e}, v{66+e//4}, v{80+e}")
    for e in range(4): a(f"v_cvt_pk_bf16_f32 v{88+e}, v{80+e}, v{84+e}")
    a(f"""
    ds_write_b128 v4, v[88:91]
    ds_read2_b32 v[116:117], v5 offset0:0 offset1:1
    ds_read_b32 v118, v5 offset:8
    ds_read2_b32 v[120:121], v5 offset0:12 offset1:13
    ds_read_b32 v122, v5 offset:56
    s_waitcnt lgkmcnt(2)
    global_store_dwordx4 v6, v[116:119], {P(sWS)} sc1
    s_waitcnt lgkmcnt(0)
    global_store_dwordx4 v7, v[120:123], {P(sWS)} sc1
    """)
    stamp(a, 17)
    gen_tail(a)
    return ("ka_kernel", 256, 512, M_LDS, 256, 100, 256)

def reduce2(a, A, B):
    for m in [f"row_shr:1 {DPP_ALL} bound_ctrl:0", f"row_shr:2 {DPP_ALL} bound_ctrl:0", f"row_shr:4 {DPP_ALL} bound_ctrl:0", f"row_shr:8 {DPP_ALL} bound_ctrl:0",
              "row_bcast:15 row_mask:0xa bank_mask:0xf", "row_bcast:31 row_mask:0xc bank_mask:0xf"]:
        a(f"v_add_f32 v{A}, v{A}, v{A} {m}")
        if B is not None: a(f"v_add_f32 v{B}, v{B}, v{B} {m}")
        a("s_nop 0" if B is not None else "s_nop 1")

def gen_tail(a):
    XF, C1, SB, GB, WR = 16, 26, 36, 46, 56
    ONES, LO, HI, RC = 61, 62, 63, 15
    Z, X1, P1, T, H2, O = 64, 70, 80, 86, 96, 102
    WG_, WD_ = 136, 176
    ZG, ZA = 192, 208
    sel = lambda e: LO + (e & 1)
    sKEY, sOWN = 47, 48
    a(f"""
    s_barrier                          ; B7
    s_cmp_ge_u32 s3, 4
    s_cbranch_scc1 T_ZW
    s_cmp_ge_u32 s2, 144
    s_cbranch_scc1 T_COM
    v_lshrrev_b32 v64, 2, v2
    s_and_b32 s40, s3, 1
    s_mul_i32 s40, s40, 288
    v_add_u32 v64, s40, v64
    v_mul_u32_u24 v64, 9216, v64
    v_and_b32 v65, 3, v2
    v_lshl_add_u32 v64, v65, 4, v64
    s_lshl_b32 s40, s46, 6
    v_add_u32 v64, s40, v64
    s_mul_i32 s40, s3, 18432
    s_add_u32 m0, s40, {L_GU}
    s_cmp_ge_u32 s3, 2
    s_cselect_b32 s50, s{sWU}, s{sWG}
    s_cselect_b32 s51, s{sWU+1}, s{sWG+1}
    s_mov_b32 s40, {16*9216}
    """)
    for i in range(18):
        a(f"global_load_lds_dwordx4 v64, s[50:51] {E('F_GFL', '')}")
        if i < 17:
            a("s_add_u32 m0, m0, 1024")
            a("v_add_u32 v64, s40, v64")
    a(f"""
    s_branch T_COM
    T_ZW:
    s_sub_u32 s40, s3, 4
    s_lshl_b32 s41, s40, 12
    s_lshl_b32 s50, s2, 14
    s_add_u32 s41, s41, s50
    s_add_u32 s41, s41, {WS_Z2}
    v_lshl_add_u32 v{ZA+3}, v2, 4, s41
    s_lshl_b32 s40, s40, 8             ; 4 * 64(w-4)
    v_lshrrev_b32 v64, 2, v2
    v_lshl_add_u32 v65, v64, 2, s40    ; 4p
    v_and_b32 v66, 3, v2               ; g
    v_mul_u32_u24 v67, {3*ZR_P}, v66
    v_add_u32 v{ZA}, v65, v67
    v_add_u32 v{ZA}, {L_ZR}, v{ZA}
    v_add_u32 v{ZA+1}, {ZR_P}, v{ZA}
    v_add_u32 v{ZA+2}, {2*ZR_P}, v{ZA}
    s_lshr_b32 s41, s2, 5
    s_sub_u32 s50, 7, s41
    s_min_u32 s41, s41, s50            ; owner k
    v_and_b32 v67, 3, v64
    v_and_b32 v65, -16, v65            ; (p>>2)*16
    v_add_u32 v65, {L_ZC}, v65
    v_mov_b32 v68, {L_ZC + 1024}
    v_cmp_eq_u32 vcc, s41, v67
    s_nop 1
    v_cndmask_b32 v65, v68, v65, vcc
    v_add_u32 v67, 4, v65
    v_add_u32 v68, 8, v65
    v_add_u32 v69, 12, v65
    v_cmp_eq_u32 vcc, 2, v66
    s_nop 1
    v_cndmask_b32 v{ZA+2}, v{ZA+2}, v65, vcc
    v_cmp_eq_u32 vcc, 3, v66
    s_nop 1
    v_cndmask_b32 v{ZA}, v{ZA}, v67, vcc
    v_cndmask_b32 v{ZA+1}, v{ZA+1}, v68, vcc
    v_cndmask_b32 v{ZA+2}, v{ZA+2}, v69, vcc
    s_cmp_lg_u32 s3, 5
    s_cbranch_scc1 T_COM
    ; wave 5: parameter tables
    s_mov_b32 s41, {SPIN}
    v_min_u32 v112, 26, v2
    v_lshlrev_b32 v112, 7, v112
    v_add_u32 v112, {WS_PF}, v112
    T_PF:
    global_load_dword v113, v112, {P(sWS)} sc1
    s_waitcnt vmcnt(0)
    v_cmp_ne_u32 vcc, s{sTAG}, v113
    s_cbranch_vccz T_PFD
    s_sub_u32 s41, s41, 1
    s_cbranch_scc0 T_PF
    T_PFD:
    v_lshlrev_b32 v64, 4, v2
    v_add_u32 v65, {WS_PT16}, v64
    s_mov_b32 m0, {L_PT}
    s_nop 0
    global_load_lds_dwordx4 v65, {P(sWS)} sc1
    global_load_lds_dwordx4 v65, {P(sWS)} offset:1024 sc1
    global_load_lds_dwordx4 v65, {P(sWS)} offset:2048 sc1
    s_mov_b64 exec, 0xffffff
    global_load_lds_dwordx4 v65, {P(sWS)} offset:3072 sc1
    s_mov_b64 exec, -1
    s_mov_b32 m0, {L_PT + 3456}
    s_nop 0
    global_load_lds_dwordx4 v64, {P(sWR)}
    s_mov_b64 exec, 0xff
    global_load_lds_dwordx4 v64, {P(sWR)} offset:1024
    s_waitcnt vmcnt(0)
    """)
    signal(a, C_P)
    a.label("T_COM")
    a(f"""
    v_mov_b32 v64, 0
    v_mov_b32 v65, 0
    v_mov_b32 v66, 0
    v_mov_b32 v67, 0
    v_lshlrev_b32 v68, 4, v0
    v_min_u32 v69, 15, v0
    v_lshlrev_b32 v69, 4, v69
    ds_write_b128 v68, v[64:67] offset:{L_LIST}
    ds_write_b128 v69, v[64:67] offset:{L_LIST + 8192}
    v_mov_b32 v{ONES}, 0x3f803f80
    v_mov_b32 v{RC}, {fbits(1.0/576)}
    """)
    for w in range(4): unpk(a, XF+2*w, XF+2*w+1, 10+w)
    a(f"""
    v_lshlrev_b32 v{XF+8}, 16, v14
    v_lshlrev_b32 v4, 4, v2
    v_add_u32 v4, {L_PT}, v4
    v_lshlrev_b32 v5, 1, v2
    v_add_u32 v5, {L_PT + 1024}, v5
    s_mul_i32 s40, s3, {ZR_P}
    s_add_u32 s40, s40, {L_ZR}
    v_lshl_add_u32 v6, v2, 4, s40
    s_lshl_b32 s40, s3, 1
    s_add_u32 s40, s40, {L_ZC}
    v_lshl_add_u32 v7, v2, 4, s40
    s_cmp_lt_u32 s3, 4
    s_cbranch_scc1 T_NZ
    s_waitcnt vmcnt(0)
    """)
    def z_issue():
        for n in range(4): a(f"global_load_dwordx4 {vr(ZG+4*n,4)}, v{ZA+3}, {P(sWS)} offset:{1024*n} sc1")
    z_issue()
    a.label("T_NZ")
    stamp(a, 18)
    spin(a, C_P, 1)
    for t, d in ((0, 112), (1, 118), (2, 124)):
        a(f"ds_read_b128 {vr(72+8*t, 4)}, v4 offset:{1152*t}")
        a(f"ds_read_u16 v{76+8*t}, v5 offset:{1152*t}")
    a(f"""
    ds_read_b128 {vr(WR,4)}, v4 offset:3456
    ds_read_u16 v{WR+4}, v5 offset:3456
    s_waitcnt lgkmcnt(4)
    """)
    for w in range(4): unpk(a, SB+2*w, SB+2*w+1, 72+w)
    a(f"v_lshlrev_b32 v{SB+8}, 16, v76")
    for w in range(4):
        a(f"v_and_b32 v{C1+2*w}, 0xffff, v{80+w}")
        a(f"v_and_b32 v{C1+2*w+1}, 0xffff0000, v{80+w}")
    a(f"v_mov_b32 v{C1+8}, v84")
    a("s_waitcnt lgkmcnt(2)")
    for w in range(4):
        a(f"v_and_b32 v{GB+2*w}, 0xffff, v{88+w}")
        a(f"v_and_b32 v{GB+2*w+1}, 0xffff0000, v{88+w}")
    a(f"""
    v_mov_b32 v{GB+8}, v92
    s_cmp_lt_u32 s3, 4
    s_cbranch_scc1 T_B9
    s_mov_b32 s41, {SPIN}
    T_ZP:
    s_waitcnt vmcnt(0)
    v_xor_b32 v64, s{sTAG}, v{ZG+3}
    v_xor_b32 v65, s{sTAG}, v{ZG+7}
    v_xor_b32 v66, s{sTAG}, v{ZG+11}
    v_xor_b32 v67, s{sTAG}, v{ZG+15}
    v_or3_b32 v64, v64, v65, v66
    v_or_b32 v64, v64, v67
    v_cmp_ne_u32 vcc, 0, v64
    s_cbranch_vccz T_ZD
    s_mov_b64 exec, vcc
    """)
    z_issue()
    a(f"""
    s_mov_b64 exec, -1
    s_sub_u32 s41, s41, 1
    s_cbranch_scc0 T_ZP
    T_ZD:
    """)
    stamp(a, 19)
    for n in range(4):
        for s_ in range(3): a(f"ds_write_b32 v{ZA+s_}, v{ZG+4*n+s_} offset:{64*n}")
    a(f"""
    T_B9:
    s_waitcnt lgkmcnt(0)
    s_barrier                          ; B9
    ds_read_b128 {vr(Z,4)}, v6
    ds_read_u16 v{Z+4}, v7
    s_waitcnt lgkmcnt(0)
    """)
    stamp(a, 20)
    def pack(dst, src):
        for i in range(4): a(f"v_cvt_pk_bf16_f32 v{dst+i}, v{src+2*i}, v{src+2*i+1}")
        a(f"v_cvt_pk_bf16_f32 v{dst+4}, v{src+8}, 0")
    def dots(dst, src, bf, cf):
        for e in (8, 0, 1, 2, 3, 4, 5, 6, 7): a(f"v_dot2_f32_bf16 v{dst+e}, v{src+e//2}, {bf(e)}, {cf(e)}")
    vsel = lambda e: f"v{sel(e)}"
    dots(X1, Z, vsel, lambda e: f"v{XF+e}")
    pack(P1, X1)
    for i in range(5):
        a(f"v_dot2_f32_bf16 v{T}, v{P1+i}, v{ONES}, {'0' if i == 0 else 'v%d' % T}")
        a(f"v_dot2_f32_bf16 v{T+2}, v{P1+i}, v{P1+i}, {'0' if i == 0 else 'v%d' % (T+2)}")
    a("s_nop 2")
    reduce2(a, T, T+2)
    a(f"""
    v_readlane_b32 s66, v{T}, 63
    v_readlane_b32 s67, v{T+2}, 63
    s_nop 0
    v_mul_f32 v{T}, s66, v{RC}
    v_mul_f32 v{T+1}, s67, v{RC}
    v_mul_f32 v{T+2}, v{T}, v{T}
    v_sub_f32 v{T+1}, v{T+1}, v{T+2}
    v_mul_f32 v{T+3}, 0x41800000, v{T+1}
    v_cmp_gt_f32 vcc, v{T+2}, v{T+3}
    s_cbranch_vccz T_FAST
    v_sub_f32 v{T+3}, 0, v{T}
    """)
    dots(X1, P1, vsel, lambda e: f"v{T+3}")
    a(f"v_mul_f32 v{T+2}, v{X1+8}, v{X1+8}")
    for e in range(8): a(f"v_fmac_f32 v{T+2}, v{X1+e}, v{X1+e}")
    a("s_nop 1")
    reduce2(a, T+2, None)
    a(f"""
    v_readlane_b32 s67, v{T+2}, 63
    s_nop 1
    v_mul_f32 v{T+1}, s67, v{RC}
    T_FAST:
    v_cvt_pk_bf16_f32 v{T+1}, -v{T}, v{T+1}
    v_lshlrev_b32 v{T}, 16, v{T+1}
    v_and_b32 v{T+1}, 0xffff0000, v{T+1}
    v_add_f32 v{T+1}, {fbits(1e-5)}, v{T+1}
    v_cvt_pk_bf16_f32 v{T+1}, v{T+1}, v{T+1}
    v_lshlrev_b32 v{T+1}, 16, v{T+1}
    v_sqrt_f32 v{T+1}, v{T+1}
    """)
    dots(X1, P1, vsel, lambda e: f"v{T}")
    a(f"""
    v_cvt_pk_bf16_f32 v{T+1}, v{T+1}, v{T+1}
    v_lshlrev_b32 v{T+1}, 16, v{T+1}
    v_rcp_f32 v{T+1}, v{T+1}
    """)
    rnd1(a, X1+8); rnd_pairs(a, [X1, X1+2, X1+4, X1+6])
    a(f"v_mul_f32 v{X1+8}, v{X1+8}, v{T+1}")
    for i in range(4): a(f"v_pk_mul_f32 {vr(X1+2*i,2)}, {vr(X1+2*i,2)}, {vr(T,2)} op_sel:[0,1] op_sel_hi:[1,1]")
    pack(Z, X1)
    dots(X1, Z, lambda e: f"v{C1+e}", lambda e: "0")
    pack(Z, X1)
    dots(X1, Z, vsel, lambda e: f"v{SB+e}")
    pack(H2, X1)
    for i in range(5): a(f"v_dot2_f32_bf16 v{T}, v{H2+i}, v{WR+i}, {'0' if i == 0 else 'v%d' % T}")
    a(f"""
    s_lshl_b32 s40, s2, 3
    s_add_u32 s40, s40, s3
    s_sub_u32 s40, 0xffff, s40
    """)
    reduce2(a, T, None)
    a(f"""
    v_cvt_pk_bf16_f32 v{T}, v{T}, v{T}
    s_lshl_b32 s41, s3, 3
    v_mov_b32 v{T+2}, s41
    v_readlane_b32 s{sKEY}, v{T}, 63
    v_mov_b32 v{T+1}, s{sTAG}
    s_and_b32 s{sKEY}, s{sKEY}, 0xffff0000
    s_ashr_i32 s41, s{sKEY}, 31
    s_or_b32 s41, s41, 0x80000000
    s_xor_b32 s{sKEY}, s{sKEY}, s41
    s_and_b32 s{sKEY}, s{sKEY}, 0xffff0000
    s_or_b32 s{sKEY}, s{sKEY}, s40
    v_mov_b32 v{T}, s{sKEY}
    s_mov_b64 exec, 1
    ds_write_b64 v{T+2}, {vr(T,2)} offset:{L_CNT + C_KEYS}
    ds_add_rtn_u32 v{T+3}, v{VZ}, v{VONE} offset:{L_CNT + C_KEY}
    s_mov_b64 exec, -1
    v_and_b32 v4, 3, v2
    v_lshlrev_b32 v4, 4, v4
    v_lshrrev_b32 v5, 2, v2
    v_lshlrev_b32 v5, 14, v5
    s_lshl_b32 s41, s2, 6
    s_add_u32 s41, s41, {WS_KEY}
    v_add3_u32 v5, v5, v4, s41
    s_waitcnt lgkmcnt(0)
    v_readfirstlane_b32 s41, v{T+3}
    s_cmp_lg_u32 s41, 7
    s_cbranch_scc1 T_NK
    ds_read_b128 v[108:111], v4 offset:{L_CNT + C_KEYS}
    {"s_mov_b32 exec_hi, 0" if NREP == 8 else ("" if NREP == 16 else "s_mov_b64 exec, %s" % hex((1 << (4*NREP)) - 1))}
    s_waitcnt lgkmcnt(0)
    global_store_dwordx4 v5, v[108:111], {P(sWS)} sc1
    s_mov_b64 exec, -1
    T_NK:
    """)
    stamp(a, 21)
    dots(X1, H2, lambda e: f"v{GB+e}", lambda e: "0")
    for w in range(4): unpk(a, XF+2*w, XF+2*w+1, P1+w)
    a(f"v_lshlrev_b32 v{XF+8}, 16, v{P1+4}")
    pack(Z, X1)
    dots(X1, Z, vsel, lambda e: f"v{XF+e}")
    a(f"""
    s_and_b32 s40, s2, {NREP-1}
    s_lshl_b32 s40, s40, 14
    s_lshl_b32 s50, s3, 11
    s_add_u32 s40, s40, s50
    s_add_u32 s40, s40, {WS_KEY}
    v_lshl_add_u32 v6, v2, 4, s40
    """)
    pack(O, X1)
    a(f"""
    s_cmp_lg_u32 s41, 7
    s_cbranch_scc1 T_NK2
    s_waitcnt vmcnt(0)
    """)
    signal(a, C_KP)
    a(f"""
    T_NK2:
    s_cmp_ge_u32 s2, 144
    s_cbranch_scc1 T_NW
    s_cmp_ge_u32 s3, 4
    s_cbranch_scc1 T_W2
    s_waitcnt vmcnt(0)
    T_W2:
    """)
    signal(a, C_KP + 4)
    a(f"""
    v_bfe_u32 v7, v2, 2, 2             ; r
    v_lshrrev_b32 v8, 4, v2            ; q
    v_lshl_add_u32 v7, v8, 3, v7       ; 8q + r
    v_and_b32 v8, 3, v2
    v_lshlrev_b32 v8, 3, v8            ; 8c
    v_mul_u32_u24 v9, 1152, v7
    v_add_u32 v9, v9, v8
    s_lshl_b32 s40, s3, 5
    s_add_u32 s40, s40, {L_DN}
    v_add_u32 v9, s40, v9
    v_lshl_add_u32 v7, v7, 6, v8
    s_lshr_b32 s40, s3, 1
    s_mul_i32 s50, s40, 5
    s_cmp_eq_u32 s40, 3
    s_cselect_b32 s50, 14, s50
    s_lshl_b32 s51, s50, 11
    s_and_b32 s40, s3, 1
    s_lshl_b32 s40, s40, 5
    s_add_u32 s40, s40, s51
    s_add_u32 s40, s40, {L_GU}
    v_add_u32 v7, s40, v7
    """)
    spin(a, C_KP + 4, 8)
    for i in range(5):
        a(f"ds_read_b64_tr_b16 {vr(WG_+8*i,2)}, v7 offset:{2048*i}")
        a(f"ds_read_b64_tr_b16 {vr(WG_+8*i+2,2)}, v7 offset:{2048*i + 256}")
        a(f"ds_read_b64_tr_b16 {vr(WG_+8*i+4,2)}, v7 offset:{36864 + 2048*i}")
        a(f"ds_read_b64_tr_b16 {vr(WG_+8*i+6,2)}, v7 offset:{36864 + 2048*i + 256}")
    for i in range(5):
        a(f"ds_read_b64_tr_b16 {vr(WD_+4*i,2)}, v9 offset:{256*i}")
        a(f"ds_read_b64_tr_b16 {vr(WD_+4*i+2,2)}, v9 offset:{256*i + 4608}")
    a.label("T_NW")
    KK = 108
    def k_issue():
        a(f"global_load_dwordx4 {vr(KK,4)}, v6, {P(sWS)} sc1")
        a(f"global_load_dwordx4 {vr(KK+4,4)}, v6, {P(sWS)} offset:1024 sc1")
    spin(a, C_KP, 1)
    k_issue()
    stamp(a, 22)
    a(f"""
    v_and_b32 v4, 3, v2
    v_lshlrev_b32 v4, 3, v4
    s_mov_b32 s41, {SPIN}
    T_KP:
    s_waitcnt vmcnt(0)
    v_xor_b32 v64, s{sTAG}, v{KK+1}
    v_xor_b32 v65, s{sTAG}, v{KK+3}
    v_xor_b32 v66, s{sTAG}, v{KK+5}
    v_xor_b32 v67, s{sTAG}, v{KK+7}
    v_or3_b32 v64, v64, v65, v66
    v_or_b32 v64, v64, v67
    v_cmp_ne_u32 vcc, 0, v64
    s_cbranch_vccz T_KD
    s_mov_b64 exec, vcc
    """)
    k_issue()
    a(f"""
    s_mov_b64 exec, -1
    s_sub_u32 s41, s41, 1
    s_cbranch_scc0 T_KP
    T_KD:
    """)
    stamp(a, 23)
    a(f"""
    v_max_u32 v64, v{KK}, v{KK+4}
    v_max_u32 v65, v{KK+2}, v{KK+6}
    s_nop 0
    v_max_u32 v64, v64, v64 row_shr:4 {DPP_ALL} bound_ctrl:0
    v_max_u32 v65, v65, v65 row_shr:4 {DPP_ALL} bound_ctrl:0
    s_nop 0
    v_max_u32 v64, v64, v64 row_shr:8 {DPP_ALL} bound_ctrl:0
    v_max_u32 v65, v65, v65 row_shr:8 {DPP_ALL} bound_ctrl:0
    s_mov_b32 exec_lo, 0xf000f000
    s_mov_b32 exec_hi, 0xf000f000
    ds_max_u32 v4, v64 offset:{L_CNT + C_MX}
    ds_max_u32 v4, v65 offset:{L_CNT + C_MX + 4}
    s_mov_b64 exec, -1
    s_waitcnt lgkmcnt(0)
    s_barrier                          ; B10
    ds_read_b128 v[64:67], v{VZ} offset:{L_CNT + C_MX}
    ds_read_b128 v[68:71], v{VZ} offset:{L_CNT + C_MX + 16}
    s_waitcnt lgkmcnt(0)
    v_min3_u32 v64, v64, v65, v66
    v_min3_u32 v68, v68, v69, v70
    v_min3_u32 v64, v64, v67, v71
    v_min_u32 v64, v64, v68            ; theta
    """)
    for i in range(4): a(f"v_cmp_ge_u32 s[{66+2*i}:{67+2*i}], v{KK+2*i}, v64")
    a(f"""
    s_bcnt1_i32_b64 s74, s[66:67]
    s_bcnt1_i32_b64 s75, s[68:69]
    s_bcnt1_i32_b64 s76, s[70:71]
    s_bcnt1_i32_b64 s77, s[72:73]
    s_add_u32 s75, s75, s74
    s_add_u32 s76, s76, s75
    s_add_u32 s77, s77, s76
    v_mov_b32 v65, s77
    s_mov_b64 exec, 1
    ds_add_rtn_u32 v66, v{VZ}, v65 offset:{L_CNT + C_N}
    s_mov_b64 exec, -1
    """)
    for i in range(4):
        a(f"v_mbcnt_lo_u32_b32 v{68+i}, s{66+2*i}, {0 if i == 0 else 's%d' % (73+i)}" if i == 0 else f"v_mov_b32 v{68+i}, s{73+i}")
        if i: a(f"v_mbcnt_lo_u32_b32 v{68+i}, s{66+2*i}, v{68+i}")
        a(f"v_mbcnt_hi_u32_b32 v{68+i}, s{67+2*i}, v{68+i}")
    a(f"""
    s_waitcnt lgkmcnt(0)
    v_readfirstlane_b32 s74, v66
    s_nop 1
    """)
    for i in range(4):
        a(f"v_add_lshl_u32 v{68+i}, v{68+i}, s74, 2")
    for i in range(4):
        a(f"s_mov_b64 exec, s[{66+2*i}:{67+2*i}]")
        a(f"ds_write_b32 v{68+i}, v{KK+2*i} offset:{L_LIST}")
    a(f"""
    s_mov_b64 exec, -1
    v_lshlrev_b32 v4, 2, v2
    s_mov_b32 s{sOWN}, 8
    s_mov_b32 s76, 0
    s_waitcnt lgkmcnt(0)
    s_barrier                          ; B11
    ds_read_b32 v65, v{VZ} offset:{L_CNT + C_N}
    T_OUT:
    ds_read_b32 v64, v4 offset:{L_LIST}
    """)
    NPRE = 6
    for i in range(NPRE): a(f"ds_read_b128 {vr(KK+4*i,4)}, v{VZ} offset:{L_LIST + 16*i}")
    a(f"""
    v_mov_b32 v66, 0
    v_mov_b32 v67, {16*NPRE}
    s_waitcnt lgkmcnt({NPRE})
    v_readfirstlane_b32 s74, v65       ; n
    """)
    for i in range(NPRE):
        a(f"s_waitcnt lgkmcnt({NPRE-1-i})")
        for e in range(4):
            a(f"v_cmp_gt_u32 vcc, v{KK+4*i+e}, v64")
            a(f"v_addc_co_u32 v66, vcc, 0, v66, vcc")
        if i in (2, 3, 4):
            a(f"s_cmp_le_u32 s74, {4*i+4}")
            a("s_cbranch_scc1 T_RK")
    a(f"""
    s_mov_b32 s75, {4*NPRE}
    T_IN:
    s_cmp_ge_u32 s75, s74
    s_cbranch_scc1 T_RK
    ds_read_b128 {vr(KK,4)}, v67 offset:{L_LIST}
    v_add_u32 v67, 16, v67
    s_add_u32 s75, s75, 4
    s_waitcnt lgkmcnt(0)
    """)
    for e in range(4):
        a(f"v_cmp_gt_u32 vcc, v{KK+e}, v64")
        a(f"v_addc_co_u32 v66, vcc, 0, v66, vcc")
    a(f"""
    s_branch T_IN
    T_RK:
    s_waitcnt lgkmcnt(0)
    v_cmp_eq_u32 vcc, s{sKEY}, v64
    v_min_u32 v66, 8, v66
    v_lshlrev_b32 v67, 2, v66
    s_ff1_i32_b64 s75, vcc
    ds_write_b32 v67, v64 offset:{L_CNT + C_SEL}
    s_cbranch_vccz T_NOWN
    v_readlane_b32 s{sOWN}, v66, s75
    T_NOWN:
    v_add_u32 v4, 256, v4
    s_add_u32 s76, s76, 64
    s_cmp_lt_u32 s76, s74
    s_cbranch_scc1 T_OUT
    """)
    stamp(a, 24)
    a(f"""
    s_lshl_b32 s40, s2, 3
    s_add_u32 s40, s40, s3
    s_mul_i32 s40, s40, 1152
    s_cmp_lt_u32 s{sOWN}, 8
    s_cbranch_scc0 T_STO
    s_mul_i32 s40, s{sOWN}, 3072
    s_add_u32 s40, s40, {WS_ROW}
    v_lshl_add_u32 v4, v2, 4, s40
    v_mov_b32 v64, v{H2+3}
    v_mov_b32 v65, v{P1+3}
    v_lshl_or_b32 v66, v{P1+4}, 16, v{H2+4}
    v_mov_b32 v67, s{sTAG}
    v_mov_b32 v{H2+3}, s{sTAG}
    v_mov_b32 v{P1+3}, s{sTAG}
    """)
    for r_ in range(RREP):
        a(f"global_store_dwordx4 v4, {vr(H2,4)}, {P(sWS)} sc1")
        a(f"global_store_dwordx4 v4, v[64:67], {P(sWS)} offset:1024 sc1")
        a(f"global_store_dwordx4 v4, {vr(P1,4)}, {P(sWS)} offset:2048 sc1")
        if r_ < RREP - 1: a("v_add_u32 v4, 24576, v4")
    a(f"""
    s_branch T_STD
    T_STO:
    v_lshl_add_u32 v4, v2, 4, s40
    v_lshl_add_u32 v5, v2, 1, s40
    global_store_dwordx4 v4, {vr(O,4)}, {P(sOUT)}
    global_store_short v5, v{O+4}, {P(sOUT)} offset:1024
    T_STD:
    s_cmp_ge_u32 s2, 144
    s_cbranch_scc1 T_END
    s_mul_i32 s40, s3, 3072
    s_lshr_b32 s41, s2, 3
    s_and_b32 s41, s41, {RREP-1}
    s_mul_i32 s41, s41, 24576
    s_add_u32 s40, s40, s41
    s_add_u32 s40, s40, {WS_ROW}
    v_lshl_add_u32 v4, v2, 4, s40
    s_mul_i32 s40, s3, {SR_P}
    s_add_u32 s40, s40, {L_SH}
    v_lshl_add_u32 v5, v2, 4, s40
    v_lshl_add_u32 v6, v2, 1, s40
    s_mov_b32 s41, {SPIN}
    T_RP:
    global_load_dwordx4 v[64:67], v4, {P(sWS)} sc1
    global_load_dwordx4 v[68:71], v4, {P(sWS)} offset:1024 sc1
    global_load_dwordx4 v[72:75], v4, {P(sWS)} offset:2048 sc1
    v_and_b32 v7, 7, v2
    v_mul_u32_u24 v17, 80, v7
    v_mul_u32_u24 v7, {SR_P}, v7
    v_and_b32 v8, 0x30, v2
    v_add_u32 v17, v17, v8
    s_lshl_b32 s40, s50, 6
    s_add_u32 s40, s40, {L_SH}
    v_add3_u32 v7, v7, v8, s40
    s_lshl_b32 s40, s3, 10
    s_add_u32 s40, s40, {L_GP}
    v_lshl_add_u32 v8, v2, 4, s40
    v_and_b32 v9, 1, v2
    v_lshlrev_b32 v9, 9, v9
    v_bfe_u32 v16, v2, 1, 4
    v_lshl_add_u32 v9, v16, 4, v9
    v_lshrrev_b32 v16, 5, v2
    v_lshl_add_u32 v9, v16, 10, v9
    s_lshr_b32 s40, s3, 2
    s_lshl_b32 s40, s40, 8
    s_and_b32 s51, s3, 3
    s_lshl_b32 s51, s51, 2
    s_add_u32 s40, s40, s51
    s_add_u32 s40, s40, {L_GP}
    v_add_u32 v9, s40, v9
    s_mul_i32 s40, s3, 80
    v_and_b32 v16, -2, v2
    v_add_u32 v16, s40, v16
    s_waitcnt vmcnt(0)
    v_xor_b32 v76, s{sTAG}, v67
    v_xor_b32 v77, s{sTAG}, v71
    v_xor_b32 v78, s{sTAG}, v75
    v_or3_b32 v76, v76, v77, v78
    v_cmp_ne_u32 vcc, 0, v76
    s_cbranch_vccz T_RD
    s_sub_u32 s41, s41, 1
    s_cbranch_scc0 T_RP
    T_RD:
    v_mov_b32 v67, v68
    v_mov_b32 v75, v69
    ds_write_b128 v5, v[64:67]
    ds_write_b16 v6, v70 offset:1024
    ds_write_b128 v5, v[72:75] offset:{L_SX - L_SH}
    ds_write_b16_d16_hi v6, v70 offset:{L_SX - L_SH + 1024}
    s_waitcnt lgkmcnt(2)
    """)
    stamp(a, 25)
    a("s_barrier                          ; B12")
    AF = 64; AG, AU = 84, 88
    for i in range(5): a(f"ds_read_b128 {vr(AF+4*i,4)}, v7 offset:{64*i}")
    for i in range(5):
        if i == 4: a("s_cmp_ge_u32 s3, 4"); a("s_cbranch_scc1 T_G4")
        a(f"s_waitcnt lgkmcnt({4-i})")
        a(f"v_mfma_f32_16x16x32_bf16 {vr(AG,4)}, {vr(AF+4*i,4)}, {vr(WG_+8*i,4)}, {'0' if i == 0 else vr(AG,4)}")
        a(f"v_mfma_f32_16x16x32_bf16 {vr(AU,4)}, {vr(AF+4*i,4)}, {vr(WG_+8*i+4,4)}, {'0' if i == 0 else vr(AU,4)}")
    a(f"""
    T_G4:
    v_lshrrev_b32 v18, 5, v2
    v_lshlrev_b32 v18, 5, v18
    v_bfe_u32 v19, v2, 3, 2
    v_add_u32 v18, v18, v19
    s_lshl_b32 s40, s3, 2
    v_add_u32 v18, s40, v18
    v_mul_u32_u24 v18, {144*128}, v18
    s_mov_b32 exec_hi, 0
    ds_write_b128 v8, {vr(AG,4)}
    ds_write_b128 v8, {vr(AU,4)} offset:512
    s_mov_b64 exec, -1
    v_and_b32 v19, 7, v2
    v_lshl_add_u32 v18, v19, 4, v18
    s_lshl_b32 s40, s2, 7
    s_add_u32 s40, s40, {WS_PT}
    v_add_u32 v18, s40, v18
    v_add_u32 v19, {64*144*128}, v18
    v_add_u32 v20, {128*144*128}, v18
    s_waitcnt lgkmcnt(0)
    s_barrier                          ; B13
    ds_read_b32 v64, v9
    ds_read_b32 v65, v9 offset:2048
    ds_read_b32 v66, v9 offset:4096
    ds_read_b32 v67, v9 offset:6144
    s_mov_b32 s52, 0x05030201
    s_mov_b32 s53, 0x06050302
    s_mov_b32 s54, 0x07060503
    v_mov_b32 v71, s{sTAG}
    v_mov_b32 v75, s{sTAG}
    v_mov_b32 v79, s{sTAG}
    s_waitcnt lgkmcnt(2)
    v_add_f32 v64, v64, v65
    s_waitcnt lgkmcnt(0)
    v_add_f32 v66, v66, v67
    v_add_f32 v64, v64, v66
    v_cvt_pk_bf16_f32 v64, v64, v64
    v_lshlrev_b32 v64, 16, v64
    v_mul_f32 v65, {fbits(-LOG2E)}, v64
    v_exp_f32 v65, v65
    s_nop 0
    v_add_f32 v65, 1.0, v65
    v_rcp_f32 v65, v65
    s_nop 0
    v_mul_f32 v65, v64, v65
    v_cvt_pk_bf16_f32 v65, v65, v65
    v_lshlrev_b32 v65, 16, v65
    s_nop 0
    v_mul_f32 v65, v64, v65 quad_perm:[1,1,3,3] {DPP_ALL}
    v_cvt_pk_bf16_f32 v65, v65, v65
    s_mov_b32 exec_lo, 0x55555555
    s_mov_b32 exec_hi, 0x55555555
    ds_write_b16 v16, v65 offset:{L_ACT}
    s_mov_b64 exec, -1
    s_waitcnt lgkmcnt(0)
    s_barrier                          ; B14
    ds_read_b128 v[64:67], v17 offset:{L_ACT}
    s_waitcnt lgkmcnt(0)
    """)
    stamp(a, 26)
    DA = 80
    for i in range(5): a(f"v_mfma_f32_16x16x32_bf16 {vr(DA+4*i,4)}, v[64:67], {vr(WD_+4*i,4)}, 0")
    a(f"""
    s_mul_i32 s40, s2, {144*128}
    s_add_u32 s40, s40, {WS_PT}
    v_lshl_add_u32 v4, v0, 4, s40
    v_add_u32 v5, 8192, v4
    v_add_u32 v6, 16384, v4
    s_nop 0
    """)
    def p24(d, s_):
        a(f"v_perm_b32 v{d}, v{s_+1}, v{s_}, s52")
        a(f"v_perm_b32 v{d+1}, v{s_+2}, v{s_+1}, s53")
        a(f"v_perm_b32 v{d+2}, v{s_+3}, v{s_+2}, s54")
    for r_ in range(4): a(f"v_permlane32_swap_b32 v{DA+r_}, v{DA+4+r_}")
    p24(68, DA)
    a(f"global_store_dwordx4 v18, v[68:71], {P(sWS)} sc1")
    for r_ in range(4): a(f"v_permlane32_swap_b32 v{DA+8+r_}, v{DA+12+r_}")
    p24(72, DA+8)
    a(f"global_store_dwordx4 v19, v[72:75], {P(sWS)} sc1")
    a("s_cmp_ge_u32 s3, 4")
    a("s_cbranch_scc1 T_NS3")
    p24(76, DA+16)
    a(f"""
    s_mov_b32 exec_hi, 0
    global_store_dwordx4 v20, v[76:79], {P(sWS)} sc1
    s_mov_b64 exec, -1
    T_NS3:
    """)
    stamp(a, 27)
    a(f"""
    s_cmp_lg_u32 s3, 7
    s_cbranch_scc1 T_NF
    s_lshr_b32 s40, s2, 2
    s_lshl_b32 s40, s40, 4
    s_and_b32 s41, s2, 1
    s_lshl_b32 s41, s41, 3
    s_add_u32 s40, s40, s41
    v_and_b32 v24, 7, v2
    v_add_u32 v24, s40, v24
    v_lshlrev_b32 v24, 1, v24          ; 2d
    v_bfe_u32 v25, v2, 3, 2
    s_and_b32 s41, s2, 2
    s_lshl_b32 s41, s41, 1
    v_add_u32 v25, s41, v25            ; row
    v_lshlrev_b32 v26, 2, v25
    v_mul_u32_u24 v25, {SR_P}, v25
    v_add_u32 v25, v25, v24
    v_add_u32 v27, {L_PT + 2304}, v24
    ds_read_b32 v28, v26 offset:{L_CNT + C_SEL}
    ds_read_u16 v29, v25 offset:{L_SH}
    ds_read_u16 v30, v25 offset:{L_SX}
    ds_read_u16 v31, v27
    s_waitcnt lgkmcnt(0)
    v_and_b32 v32, 0xffff, v28
    v_sub_u32 v32, 0xffff, v32
    v_min_u32 v32, 2047, v32
    v_mul_u32_u24 v32, 1152, v32
    v_add_u32 v32, v32, v24
    v_ashrrev_i32 v33, 31, v28
    v_not_b32 v33, v33
    v_or_b32 v33, 0x80000000, v33
    v_xor_b32 v33, v33, v28
    v_and_b32 v33, 0xffff0000, v33     ; r
    v_mul_f32 v33, {fbits(-LOG2E)}, v33
    v_exp_f32 v33, v33
    v_lshlrev_b32 v29, 16, v29
    v_add_f32 v33, 1.0, v33
    v_rcp_f32 v33, v33
    v_lshlrev_b32 v30, 16, v30
    v_cvt_pk_bf16_f32 v33, v33, v33
    v_lshlrev_b32 v33, 16, v33
    v_lshlrev_b32 v31, 16, v31
    s_cmp_lg_u32 s2, 0
    s_cbranch_scc1 T_NF
    v_mov_b32 v34, {WS_EPOCH}
    v_mov_b32 v35, s{sTAG}
    s_mov_b64 exec, 1
    global_store_dword v34, v35, {P(sWS)}
    s_mov_b64 exec, -1
    T_NF:
    s_mov_b32 s52, 0x0201000c
    s_mov_b32 s53, 0x0504030c
    s_mov_b32 s54, 0x0403020c
    s_mov_b32 s55, 0x0302010c
    v_mov_b32 v107, s{sTAG}
    v_mov_b32 v104, 0
    v_mov_b32 v105, 0
    v_mov_b32 v106, 0
    v_bfe_u32 v7, v2, 4, 2
    v_lshlrev_b32 v7, 5, v7
    v_and_b32 v8, 7, v2
    v_lshl_add_u32 v7, v8, 2, v7
    s_lshl_b32 s40, s3, 7
    v_add_u32 v7, s40, v7
    s_mov_b32 s41, {SPIN}
    s_waitcnt vmcnt(0)
    T_GP:
    global_load_dwordx4 v[96:99], v4, {P(sWS)} sc1
    global_load_dwordx4 v[100:103], v5, {P(sWS)} sc1
    s_cmp_ge_u32 s3, 2
    s_cbranch_scc1 T_G3
    global_load_dwordx4 v[104:107], v6, {P(sWS)} sc1
    T_G3:
    s_waitcnt vmcnt(0)
    s_mov_b64 exec, -1
    v_xor_b32 v64, s{sTAG}, v99
    v_xor_b32 v65, s{sTAG}, v103
    v_xor_b32 v66, s{sTAG}, v107
    v_or3_b32 v64, v64, v65, v66
    v_cmp_ne_u32 vcc, 0, v64
    s_cbranch_vccz T_GD
    s_mov_b64 exec, vcc
    s_sub_u32 s41, s41, 1
    s_cbranch_scc0 T_GP
    s_mov_b64 exec, -1
    T_GD:
    """)
    stamp(a, 28)
    for n in range(3):
        g = 96 + 4*n; d = 64 + 4*n
        a(f"v_perm_b32 v{d}, v{g}, v{g}, s52")
        a(f"v_perm_b32 v{d+1}, v{g+1}, v{g}, s53")
        a(f"v_perm_b32 v{d+2}, v{g+2}, v{g+1}, s54")
        a(f"v_perm_b32 v{d+3}, v{g+2}, v{g+2}, s55")
    for e in range(4): a(f"v_add_f32 v{64+e}, v{64+e}, v{68+e}")
    for e in range(4): a(f"v_add_f32 v{64+e}, v{64+e}, v{72+e}")
    a(f"""
    s_nop 1
    v_permlane32_swap_b32 v64, v66
    v_permlane32_swap_b32 v65, v67
    v_add_f32 v64, v64, v66
    v_add_f32 v65, v65, v67
    s_nop 1
    v_permlane16_swap_b32 v64, v65
    v_add_f32 v64, v64, v65
    s_nop 1
    v_add_f32 v64, v64, v64 row_shl:8 row_mask:0xf bank_mask:0x3
    s_mov_b32 exec_lo, 0x00ff00ff
    s_mov_b32 exec_hi, 0x00ff00ff
    ds_write_b32 v7, v64 offset:{L_RED}
    s_mov_b64 exec, -1
    v_lshlrev_b32 v8, 2, v2
    s_waitcnt lgkmcnt(0)
    s_barrier                          ; B15
    s_cmp_lg_u32 s3, 7
    s_cbranch_scc1 T_END
    """)
    for w in range(8): a(f"ds_read_b32 v{64+w}, v8 offset:{L_RED + 128*w}")
    a("s_waitcnt lgkmcnt(4)")
    a("v_add_f32 v64, v64, v65"); a("v_add_f32 v66, v66, v67")
    a("s_waitcnt lgkmcnt(0)")
    a("v_add_f32 v68, v68, v69"); a("v_add_f32 v70, v70, v71")
    a("v_add_f32 v64, v64, v66"); a("v_add_f32 v68, v68, v70"); a("v_add_f32 v64, v64, v68")
    rnd1(a, 64); a("v_mul_f32 v64, v64, v33")
    rnd1(a, 64); a("v_add_f32 v64, v64, v29")
    rnd1(a, 64); a("v_mul_f32 v64, v64, v31")
    rnd1(a, 64); a("v_add_f32 v64, v64, v30")
    a(f"""
    v_cvt_pk_bf16_f32 v64, v64, v64
    s_mov_b32 exec_hi, 0
    global_store_short v32, v64, {P(sOUT)}
    """)
    if int(E("F_DBG", "0")): a(f"""
    s_cmp_ge_u32 s2, 4
    s_cbranch_scc1 T_END
    v_lshlrev_b32 v26, 0, v26
    v_add_u32 v26, {WS_SEL}, v26
    global_store_dword v26, v28, {P(sWS)}
    """)
    a.label("T_END")
    diag_end(a)
    stamp_flush(a, 29, 0)
    a.label("M_END")
    a("s_endpgm")
```

```python
import sys, os
sys.path.insert(0, os.path.dirname(os.path.abspath(__file__)))
from nc import *
import f
def main():
    body = Asm()
    n, g, b, l, v, s, acc = f.gen_F(body)
    a = Asm()
    a.raw(f"; @launch kernel={n} grid=({g},1,1) block=({b},1,1) lds={l}")
    a.raw('.amdgcn_target "amdgcn-amd-amdhsa--gfx950"')
    a.raw(".text")
    a.lines += body.lines
    a.raw("CODE_END:")
    a.raw('.section .rodata,"a"')
    kernel_desc(a, n, v, s, acc)
    out = sys.argv[1] if len(sys.argv) > 1 else "adaLN_cond__ssm_conv_s4d__moe_arch_mod__prompt.s"
    open(out, "w").write(a.text())
main()
```

```python
import sys, os
sys.path.insert(0, os.path.join(os.path.dirname(os.path.abspath(__file__)), "..", "gen"))
from asmlib import *
import numpy as np
E = os.environ.get
KA_X, KA_LAR, KA_AIM, KA_CR, KA_CI, KA_LDT, KA_DSK, KA_BX, KA_WR, KA_WG, KA_WU, KA_WD, KA_C, KA_WMOD, KA_OUT, KA_DBG, KA_WS = [8*i for i in range(17)]
sX, sLAR, sAIM, sCR, sCI, sLDT, sDSK = 4, 6, 8, 10, 12, 14, 16
sWR, sWG, sWU, sWD, sC, sWMOD, sOUT, sDBG, sWS = 20, 22, 24, 26, 28, 30, 32, 34, 36
def P(s): return f"s[{s}:{s+1}]"
LOG2E = 1.4426950408889634
L_HI = float(np.float32(LOG2E)); L_LO = float(np.float32(LOG2E - L_HI))
LN2 = 0.6931471805599453
INV2PI = 0.15915494309189535
P_HI = float(np.float32(INV2PI)); P_LO = float(np.float32(INV2PI - P_HI))
WS_P4 = 0x2000; WS_OD = 0x5400; WS_SEL = 0xC000; WS_KL = 0x20000
WS_MP = 0x80000; WS_XN = 0x100000; WS_EPOCH = 0x500000
WS_Z = 0x900000; WS_H2 = 0xC00000; WS_PART = 0xF00000
WS_ST = 0x1400000
WS_DUMP = 0x1800000

class Regs:
    def __init__(self, lo, hi):
        self.free = set(range(lo, hi)); self.hi = lo
    def get(self, n=1, align=None):
        align = align or (1 if n == 1 else 2)
        for b in sorted(self.free):
            if b % align == 0 and all((b + i) in self.free for i in range(n)):
                for i in range(n): self.free.discard(b + i)
                self.hi = max(self.hi, b + n)
                return b
        raise RuntimeError("out of regs")
    def put(self, b, n=1):
        for i in range(n):
            assert (b + i) not in self.free
            self.free.add(b + i)

class LdsQ:
    def __init__(self, a):
        self.a = a; self.issued = 0; self.done = 0
    def issue(self, text):
        self.a(text); self.issued += 1
        return self.issued - 1
    def need(self, op):
        if op < self.done: return False
        n = self.issued - op - 1
        self.a(f"s_waitcnt lgkmcnt({min(n, 15)})")
        self.done = op + 1 if n <= 15 else self.issued - 15
        return True
    def drain(self):
        if self.done < self.issued:
            self.a("s_waitcnt lgkmcnt(0)"); self.done = self.issued

def cmul(a, d, x, y):
    a(f"v_pk_mul_f32 {vr(d,2)}, {vr(x,2)}, {vr(y,2)} op_sel_hi:[1,0]")
    a(f"v_pk_fma_f32 {vr(d,2)}, {vr(x,2)}, {vr(y,2)}, {vr(d,2)} op_sel:[1,1,0] op_sel_hi:[0,1,1] neg_lo:[1,0,0]")

def exp_bf16(a, dst, x, t0, t1, sL, sLlo, sLn2):
    a(f"v_mul_f32 v{t0}, s{sL}, v{x}")
    a(f"v_fma_f32 v{t1}, v{x}, s{sL}, -v{t0}")
    a(f"v_fma_f32 v{t1}, v{x}, s{sLlo}, v{t1}")
    a(f"v_exp_f32 v{t0}, v{t0}")
    a(f"v_mul_f32 v{t1}, s{sLn2}, v{t1}")
    a(f"v_fma_f32 v{t0}, v{t0}, v{t1}, v{t0}")
    a(f"v_cvt_pk_bf16_f32 v{t0}, v{t0}, v{t0}")
    a(f"v_lshlrev_b32 v{dst}, 16, v{t0}")

def wave_max_u32_to_sgpr(a, v, s):
    for sh in (1, 2, 4, 8):
        a("s_nop 1")
        a(f"v_max_u32 v{v}, v{v}, v{v} row_shr:{sh} {DPP_ALL} bound_ctrl:0")
    a("s_nop 1")
    a(f"v_max_u32 v{v}, v{v}, v{v} row_bcast:15 row_mask:0xa bank_mask:0xf")
    a("s_nop 1")
    a(f"v_max_u32 v{v}, v{v}, v{v} row_bcast:31 row_mask:0xc bank_mask:0xf")
    a("s_nop 1")
    a(f"v_readlane_b32 s{s}, v{v}, 63")

def unpk(a, lo, hi, src):
    a(f"v_lshlrev_b32 v{lo}, 16, v{src}")
    a(f"v_and_b32 v{hi}, 0xffff0000, v{src}")
def rnd_pairs(a, Pp):
    for p in Pp: a(f"v_cvt_pk_bf16_f32 v{p+1}, v{p}, v{p+1}")
    for p in Pp: unpk(a, p, p+1, p+1)
def rnd1(a, v):
    a(f"v_cvt_pk_bf16_f32 v{v}, v{v}, v{v}")
    a(f"v_lshlrev_b32 v{v}, 16, v{v}")

ST = int(E("ST", "0"))
VST = 255
DIAG = int(E("DIAG", "-1"))
def diag_end(a):
    if DIAG < 0: return
    a("""
    s_cmp_lg_u32 s2, 0
    s_cbranch_scc1 DG_E
    s_cmp_lg_u32 s3, 7
    s_cbranch_scc1 DG_E
    DG_L:
    s_memrealtime s[92:93]
    s_waitcnt lgkmcnt(0)
    s_sub_u32 s92, s92, s90
    s_cmp_lt_u32 s92, 3000
    s_cbranch_scc1 DG_L
    DG_E:
    """)
def stamp(a, n):
    if n == DIAG and n != 31:
        a("s_waitcnt lgkmcnt(0)")
        a("s_memrealtime s[90:91]")
        a("s_waitcnt lgkmcnt(0)")
    if not ST: return
    if E("STL") and n not in [0, 29] + [int(x) for x in E("STL").split(",")]: return
    a("s_waitcnt lgkmcnt(0)")
    a("s_memrealtime s[98:99]")
    a("s_waitcnt lgkmcnt(0)")
    a(f"v_writelane_b32 v{VST}, s98, {n}")
    if not E("STC"): return
    a("s_memtime s[98:99]")
    a("s_waitcnt lgkmcnt(0)")
    a(f"v_writelane_b32 v{VST}, s98, {32 + n}")
ST_LAST = [-1]
def stamp_flush(a, n, kid=0):
    if not ST: return
    a("s_waitcnt vmcnt(0)")
    ST_LAST[0] = n
    stamp(a, n)
    a(f"""
    s_load_dwordx2 s[96:97], s[0:1], {KA_WS}
    s_mov_b64 exec, -1
    s_lshl_b32 s95, s2, 4
    s_add_u32 s95, s95, s3
    s_lshl_b32 s95, s95, 8
    s_add_u32 s95, s95, {WS_ST + kid*0x100000}
    v_and_b32 v254, 63, v0
    v_lshl_add_u32 v254, v254, 2, s95
    s_waitcnt lgkmcnt(0)
    global_store_dword v254, v{VST}, s[96:97]
    """)
```

```python
from nc import *
import re
KG_PITCH = 272
KG_STAGE = 16 * KG_PITCH
L_PRM = 0
L_ZERO = 512
L_STG = 1536
L_PART = 1536
L_LNR = L_STG + 25600
L_CB = L_LNR + 4 * 2592
KC_P = 4160
L_KC2 = L_CB + 1024
L_STG2 = L_KC2
L_HB = L_KC2 + 4 * KC_P
HB_P = 4608
L_TAB = 69120
TP = 2816
L_KC = L_TAB + 6 * TP
L_DN = L_KC + 8 * KC_P
L_PT = L_DN + 36864
M_LDS = L_PT + 4608
L_GU = L_DN - 73728
assert L_KC % 64 == 0 and L_KC2 % 64 == 0 and L_HB + 3 * HB_P <= L_TAB
ZR_P = 1056
L_ZR = 1536
L_ZC = L_ZR + 8 * ZR_P
L_LIST = L_ZC + 1280
SR_P = 1168
L_SH = L_LIST + 8448
L_SX = L_SH + 8 * SR_P
L_GP = L_ZR
L_ACT = L_SX + 8 * SR_P
L_RED = L_ACT + 640
assert L_RED + 1024 <= L_GU
WS_Z2 = 0x600000; WS_KEY = 0x10000; WS_ROW = 0x60000; WS_PT16 = 0x70000; WS_PF = 0x72000; WS_PT = 0xA00000; WS_EPOCH = 0xD00000
NREP = int(E("F_NREP", "8")); RREP = int(E("F_RREP", "1"))
NT = E("M_NT", "nt")
PNT = E("M_PNT", "")
XNT = E("M_XNT", "nt")
ZST = E("M_ZST", "")
SPIN = 1 << 16
BETA = float(E('BETA', '1.25'))
KST = int(E('KST', '0'))
W2LATE = int(E('M_W2LATE', '1'))
CPL = int(E('M_CPL', '10'))
DIRECT = {1, 8, 128, 1024}
sTAG, sD, sHH, sKS = 38, 42, 43, 44
sDAB, sDC, sLD = 46, 47, 48

L_CNT = L_PRM + 192
C_LN, C_TAG, C_TAB, C_K, C_H = 0, 4, 16, 32, 48
C_P, C_KEY, C_N, C_KP = 52, 56, 60, 64
C_MX, C_KEYS, C_SEL = 96, 128, 192
L_TAG = L_CNT + C_TAG
VZ, VONE = 248, 249
def signal(a, off, vaddr=None):
    a("s_mov_b64 exec, 1")
    a(f"ds_add_u32 v{vaddr or VZ}, v{VONE} offset:{L_CNT + off}")
    a("s_mov_b64 exec, -1")
def spin(a, off, n, vaddr=None, vt=251, st=94):
    l = a.newlabel("SP")
    a(f"""
    {l}:
    ds_read_b32 v{vt}, v{vaddr or VZ} offset:{L_CNT + off}
    s_waitcnt lgkmcnt(0)
    v_readfirstlane_b32 s{st}, v{vt}
    s_cmp_ge_u32 s{st}, {n}
    s_cbranch_scc0 {l}
    """)

def ln_stats(a, X, T, sX0, vC):
    D = T + 4
    a(f"v_readfirstlane_b32 s{sX0}, v{X}")
    a("s_nop 1")
    a(f"v_subrev_f32 v{D+8}, s{sX0}, v{X+8}")
    a(f"s_mov_b32 s{sX0+1}, s{sX0}")
    for i in range(4): a(f"v_pk_add_f32 {vr(D+2*i,2)}, {vr(X+2*i,2)}, s[{sX0}:{sX0+1}] neg_lo:[0,1] neg_hi:[0,1]")
    a(f"v_pk_mul_f32 {vr(T+2,2)}, {vr(D,2)}, {vr(D,2)}")
    a(f"v_pk_add_f32 {vr(T,2)}, {vr(D,2)}, {vr(D+2,2)}")
    a(f"v_pk_fma_f32 {vr(T+2,2)}, {vr(D+2,2)}, {vr(D+2,2)}, {vr(T+2,2)}")
    a(f"v_pk_add_f32 {vr(D,2)}, {vr(D+4,2)}, {vr(D+6,2)}")
    a(f"v_pk_fma_f32 {vr(T+2,2)}, {vr(D+4,2)}, {vr(D+4,2)}, {vr(T+2,2)}")
    a(f"v_pk_add_f32 {vr(T,2)}, {vr(T,2)}, {vr(D,2)}")
    a(f"v_pk_fma_f32 {vr(T+2,2)}, {vr(D+6,2)}, {vr(D+6,2)}, {vr(T+2,2)}")
    a(f"v_add_f32 v{T}, v{T}, v{T+1}")
    a(f"v_fmac_f32 v{T+2}, v{D+8}, v{D+8}")
    a(f"v_add_f32 v{T}, v{T}, v{D+8}")
    a(f"v_add_f32 v{T+2}, v{T+2}, v{T+3}")
    a("s_nop 0")
    for m in [f"row_shr:1 {DPP_ALL} bound_ctrl:0", f"row_shr:2 {DPP_ALL} bound_ctrl:0", f"row_shr:4 {DPP_ALL} bound_ctrl:0", f"row_shr:8 {DPP_ALL} bound_ctrl:0",
              "row_bcast:15 row_mask:0xa bank_mask:0xf", "row_bcast:31 row_mask:0xc bank_mask:0xf"]:
        a(f"v_add_f32 v{T}, v{T}, v{T} {m}")
        a(f"v_add_f32 v{T+2}, v{T+2}, v{T+2} {m}")
        a("s_nop 0")
    a(f"""
    v_readlane_b32 s{sX0+2}, v{T}, 63
    v_readlane_b32 s{sX0+3}, v{T+2}, 63
    s_nop 0
    v_mul_f32 v{T}, s{sX0+2}, v{vC}
    v_mul_f32 v{T+1}, s{sX0+3}, v{vC}
    v_fma_f32 v{T+1}, -v{T}, v{T}, v{T+1}
    v_add_f32 v{T}, s{sX0}, v{T}
    v_max_f32 v{T+1}, 0, v{T+1}
    v_cvt_pk_bf16_f32 v{T+1}, v{T}, v{T+1}
    v_lshlrev_b32 v{T}, 16, v{T+1}
    v_and_b32 v{T+1}, 0xffff0000, v{T+1}
    v_add_f32 v{T+1}, {fbits(1e-5)}, v{T+1}
    v_cvt_pk_bf16_f32 v{T+1}, v{T+1}, v{T+1}
    v_lshlrev_b32 v{T+1}, 16, v{T+1}
    v_sqrt_f32 v{T+1}, v{T+1}
    """)
    a(f"v_sub_f32 v{D+8}, v{X+8}, v{T}")
    for i in range(4): a(f"v_pk_add_f32 {vr(D+2*i,2)}, {vr(X+2*i,2)}, {vr(T,2)} op_sel_hi:[1,0] neg_lo:[0,1] neg_hi:[0,1]")
    a(f"""
    v_cvt_pk_bf16_f32 v{T+1}, v{T+1}, v{T+1}
    v_lshlrev_b32 v{T+1}, 16, v{T+1}
    v_rcp_f32 v{T+1}, v{T+1}
    """)
    rnd_pairs(a, [D, D+2, D+4, D+6]); rnd1(a, D+8)
    for i in range(4): a(f"v_pk_mul_f32 {vr(D+2*i,2)}, {vr(D+2*i,2)}, {vr(T,2)} op_sel:[0,1] op_sel_hi:[1,1]")
    a(f"v_mul_f32 v{D+8}, v{D+8}, v{T+1}")
    return D


VFA, VT0, VT1, VT2 = 210, 211, 212, 213
VE0, VE1, VE2, VE3, VE4, VC0, VC1, VC2, VED = 200, 201, 202, 203, 204, 205, 206, 207, 208
XG = 224; VMP = 236; VD = 243; VMA = 244; VXA = 252
sSH = 48
def kgen_setup(a):
    a(f"""
    s_mul_i32 s50, s3, {KG_STAGE}
    s_add_u32 s51, s50, {L_STG2 - 4*KG_STAGE}
    s_add_u32 s50, s50, {L_STG}
    s_cmp_ge_u32 s3, 4
    s_cselect_b32 s50, s51, s50
    s_mov_b32 m0, s50
    v_mul_u32_u24 v{VFA}, {KG_PITCH}, v10
    v_lshl_add_u32 v{VFA}, v11, 4, v{VFA}
    v_add_u32 v{VFA}, s50, v{VFA}
    s_mul_i32 s61, s3, {TP}
    s_add_u32 s61, s61, {L_TAB}          ; own partial table
    v_lshrrev_b32 v12, 1, v11
    v_lshlrev_b32 v{VT0}, 9, v12
    v_and_b32 v13, 1, v11
    v_lshl_add_u32 v{VT0}, v13, 4, v{VT0}
    v_lshl_add_u32 v{VT0}, v10, 5, v{VT0}
    v_add_u32 v{VT0}, s61, v{VT0}
    v_sub_u32 v13, 4, v12
    v_lshlrev_b32 v13, v13, v10
    v_lshl_add_u32 v13, v11, 8, v13
    v_add_u32 v13, s61, v13
    v_add_u32 v{VT1}, 1024, v13
    v_mul_u32_u24 v12, 120, v12
    v_add3_u32 v{VT1+3}, v{VT1}, v12, 8
    v_lshlrev_b32 v{VT2}, 8, v11
    v_lshl_add_u32 v{VT2}, v10, 2, v{VT2}
    v_add_u32 v{VT2}, s61, v{VT2}
    ; expansion
    s_mul_i32 s60, s41, {2*TP}
    s_add_u32 s60, s60, {L_TAB}          ; channel table pair
    v_mov_b32 v{VC0}, s60
    v_add_u32 v{VC1}, -4, v{VC0}
    v_add_u32 v{VC2}, -8, v{VC0}
    v_sub_u32 v12, 63, v2                ; L
    s_lshl_b32 s51, s{sHH}, 8
    s_sub_u32 s51, s60, s51
    s_add_u32 s51, s51, {4*576}
    v_lshl_add_u32 v{VE0}, v12, 2, s51
    v_add_u32 v{VE1}, 4, v{VE0}
    s_add_u32 s51, s60, {4*384}
    v_lshl_add_u32 v{VE2}, v12, 3, s51
    v_add_u32 v{VE3}, 4, v{VE2}
    v_add_u32 v{VE4}, 8, v{VE2}
    v_lshlrev_b32 v13, 5, v12
    v_lshlrev_b32 v12, 4, v12
    v_add_u32 v12, 512, v12
    v_min_u32 v12, v12, v13
    v_add_u32 v12, s60, v12
    s_cmp_eq_u32 s{sHH}, 0
    s_cselect_b64 vcc, -1, 0
    s_mul_i32 s51, s41, {4*KC_P}
    s_add_u32 s51, s51, {L_KC}
    s_cmp_eq_u32 s41, 2
    s_cselect_b32 s51, {L_KC2}, s51
    v_cndmask_b32 v{VE2}, v{VE2}, v12, vcc
    v_lshrrev_b32 v12, 1, v2
    v_mul_u32_u24 v12, {KC_P}, v12
    v_and_b32 v13, 1, v2
    v_lshl_add_u32 v12, v13, 4, v12
    v_add_u32 v{VT1+2}, s51, v12
    v_lshl_add_u32 v{VED}, v2, 4, s51
    s_lshl_b32 s51, s41, 2
    v_mov_b32 v{VED+1}, s51
    s_lshl_b32 s{sSH}, s{sHH}, 4
    s_sub_u32 s{sSH}, 16, s{sSH}
    s_mov_b32 s52, {fbits(L_HI)}
    s_mov_b32 s53, {fbits(L_LO)}
    s_mov_b32 s54, {fbits(LN2)}
    s_mov_b32 s55, {fbits(P_HI)}
    s_mov_b32 s56, {fbits(P_LO)}
    s_mov_b32 s58, {fbits(BETA)}
    """)

def gen_kgen(a, cp, hooks):
    R = Regs(56, 200)
    AR, BH, CR, CI, DT, T0, T1, BL, VE = 40, 41, 42, 43, 44, 45, 46, 47, 48
    if cp: a(f"""
    s_waitcnt vmcnt({cp})
    s_cmp_eq_u32 s3, 3
    s_cbranch_scc1 KG_W1
    """)
    a(f"s_waitcnt vmcnt({max(cp-1, 0)})")
    a.label("KG_W1")
    stamp(a, 13)
    a(f"v_lshlrev_b32 v{DT}, 16, v{DT}")
    a(f"v_lshlrev_b32 v{AR}, s{sSH}, v{AR}")
    a(f"v_lshlrev_b32 v{BH}, s{sSH}, v{BH}")
    exp_bf16(a, DT, DT, T0, T1, 52, 53, 54)
    a(f"v_and_b32 v{AR}, 0xffff0000, v{AR}")
    a(f"v_and_b32 v{BH}, 0xffff0000, v{BH}")
    exp_bf16(a, AR, AR, T0, T1, 52, 53, 54)
    a(f"""
    v_mul_f32 v{AR}, v{AR}, v{DT}
    v_mul_f32 v{T0}, v{BH}, v{DT}
    v_mul_f32 v{AR}, s52, v{AR}
    v_sub_f32 v{AR}, 0, v{AR}
    v_mul_f32 v{BH}, s55, v{T0}
    v_fma_f32 v{BL}, v{T0}, s55, -v{BH}
    v_fma_f32 v{BL}, v{T0}, s56, v{BL}
    v_and_b32 v{VE}, 0x7fff7fff, v{CR}
    v_and_b32 v{T1}, 0x7fff7fff, v{CI}
    v_pk_max_u16 v{VE}, v{VE}, v{T1}
    v_lshlrev_b32 v{T1}, 16, v{VE}
    v_max_u32 v{VE}, v{VE}, v{T1}
    """)
    def anchor(Pp):
        d = R.get(2); t = R.get(2)
        pc = fbits(float(Pp)) if Pp not in (1, 2, 4) else f"{Pp}.0"
        a(f"v_mul_f32 v{t}, {pc}, v{AR}")
        a(f"v_mul_f32 v{t+1}, {pc}, v{BH}")
        a(f"v_exp_f32 v{t}, v{t}")
        a(f"v_fract_f32 v{t+1}, v{t+1}")
        a(f"v_fmamk_f32 v{t+1}, v{BL}, {fbits(float(Pp))}, v{t+1}")
        a(f"v_cos_f32 v{d}, v{t+1}")
        a(f"v_sin_f32 v{d+1}, v{t+1}")
        a("s_nop 0")
        a(f"v_pk_mul_f32 {vr(d,2)}, {vr(d,2)}, {vr(t,2)} op_sel_hi:[1,0]")
        R.put(t, 2)
        return d
    def mul(x, y):
        d = R.get(2); cmul(a, d, x, y); return d
    def power(Pp, half):
        return anchor(Pp) if Pp in DIRECT else mul(half, half)
    NPK = 6
    PK = R.get(NPK, 2); pk = [0]
    Q = LdsQ(a); pending = []; rows_since = [0]; wq = []; late = []
    WB = int(E("KG_WB", "2"))
    def flush_w():
        while wq: Q.issue(wq.pop(0))
    def put_row(row, x, neg):
        t = PK + (pk[0] % NPK); pk[0] += 1
        rows_since[0] += 1
        if pending and rows_since[0] >= 4: flush_mfma(1)
        if late and rows_since[0] >= 11: Q.issue(late.pop(0))
        a(f"v_cvt_pk_f16_f32 v{t}, v{x}, {'-' if neg else ''}v{x+1}")
        if len(wq) >= WB: flush_w()
        wq.append(f"ds_write_addtid_b32 v{t} offset:{row*KG_PITCH}")
    def flush_mfma(k):
        while k > 0 and pending:
            op, txt = pending.pop(0)
            Q.need(op); a(txt); k -= 1
    F = {}
    a(f"v_mov_b32 v{PK}, 0x3c00")
    Q.issue(f"ds_write_addtid_b32 v{PK} offset:0"); pk[0] = 1
    F[1] = anchor(8); put_row(1, F[1], False)
    dpp = [f"row_shr:1 {DPP_ALL} bound_ctrl:0", f"row_shr:2 {DPP_ALL} bound_ctrl:0", f"row_shr:4 {DPP_ALL} bound_ctrl:0", f"row_shr:8 {DPP_ALL} bound_ctrl:0",
           "row_bcast:15 row_mask:0xa bank_mask:0xf", "row_bcast:31 row_mask:0xc bank_mask:0xf"]
    def dstep():
        if dpp: a(f"v_max_u32 v{VE}, v{VE}, v{VE} {dpp.pop(0)}")
    F[2] = power(16, F[1]); put_row(2, F[2], False); dstep()
    F[3] = mul(F[1], F[2]); put_row(3, F[3], False); dstep()
    F[4] = power(32, F[2]); put_row(4, F[4], False); dstep()
    for j in (5, 6, 7):
        F[j] = mul(F[4], F[j-4]); put_row(j, F[j], False); dstep()
    F[8] = power(64, F[4]); put_row(8, F[8], False)
    a(f"v_readlane_b32 s57, v{VE}, 63")
    for j in range(9, 16):
        t = mul(F[8], F[j-8]); put_row(j, t, False); R.put(t, 2)
    for j in range(1, 9): R.put(F[j], 2)
    BF = R.get(16, 4)
    flush_w()
    if KST: stamp(a, 14)
    for k in range(4): Q.issue(f"ds_read_b128 {vr(BF+4*k,4)}, v{VFA} offset:{64*k}")
    Ee = {}
    Ee[1] = anchor(1)
    a(f"""
    s_and_b32 s57, s57, 0xffff0000
    v_frexp_exp_i32_f32 v{VE}, s57
    v_lshlrev_b32 v{CR}, s{sSH}, v{CR}
    v_lshlrev_b32 v{CI}, s{sSH}, v{CI}
    v_sub_u32 v{VE}, 6, v{VE}
    v_and_b32 v{CR}, 0xffff0000, v{CR}
    v_and_b32 v{CI}, 0xffff0000, v{CI}
    v_ldexp_f32 v{T0}, s58, v{VE}
    v_mul_f32 v{DT}, {fbits(1.0/BETA)}, v{DT}
    v_mul_f32 v{CR}, v{CR}, v{T0}
    v_mul_f32 v{CI}, v{CI}, v{T0}
    v_sub_u32 v{VE}, 1, v{VE}
    v_ldexp_f32 v{DT}, v{DT}, v{VE}
    """)
    Q.issue(f"ds_write_b32 v{VED+1}, v{DT} offset:{L_PRM + 5*16}")
    G = {0: CR}
    Ee[2] = power(2, Ee[1]); Ee[4] = power(4, Ee[2])
    Ee[128] = anchor(128)
    ACC = R.get(12, 4); AFR = R.get(16, 4)
    def tile_mfma(tau):
        flush_w(); flush_mfma(100)
        while late: Q.issue(late.pop(0))
        c = vr(ACC+4*tau, 4)
        for k in range(4):
            oh = Q.issue(f"ds_read_b128 {vr(AFR+4*k,4)}, v{VFA} offset:{64*k}")
            pending.append((oh, f"v_mfma_f32_16x16x32_f16 {c}, {vr(AFR+4*k,4)}, {vr(BF+4*k,4)}, {'0' if k == 0 else c}"))
        rows_since[0] = 0
        if tau == 0: late.append(f"ds_write_b128 v{VT0}, {c}")
    put_row(0, G[0], True)
    G[1] = mul(G[0], Ee[1]); put_row(1, G[1], True)
    G[2] = mul(G[0], Ee[2]); put_row(2, G[2], True)
    G[3] = mul(G[1], Ee[2]); put_row(3, G[3], True)
    G[4] = mul(G[0], Ee[4]); put_row(4, G[4], True)
    for r in (5, 6, 7):
        G[r] = mul(G[r-4], Ee[4]); put_row(r, G[r], True)
    R.put(Ee[1], 2); R.put(Ee[2], 2); R.put(Ee[4], 2)
    for r in range(8):
        G[128+r] = mul(G[r], Ee[128]); put_row(8+r, G[128+r], True)
        if r & 1:
            R.put(G[r], 2); R.put(G[128+r], 2)
    Ee[256] = power(256, Ee[128]); R.put(Ee[128], 2)
    if KST: stamp(a, 15)
    tile_mfma(0)
    Ee[512] = power(512, Ee[256])
    hooks.get("t0", lambda: None)()
    gl = [0, 4, 128, 132]
    for kk in range(2):
        for r in range(4):
            g = 128*kk + 2*r
            t = mul(G[g], Ee[256]); put_row(4*kk + r, t, True)
            if g in gl: G[256+g] = t
            else: R.put(t, 2); R.put(G[g], 2)
    R.put(Ee[256], 2)
    for r, g in enumerate(gl):
        G[512+g] = mul(G[g], Ee[512]); put_row(8+r, G[512+g], True)
        if g & 4: R.put(G[512+g], 2); R.put(G[g], 2)
    for r, g in enumerate(gl):
        G[768+g] = mul(G[256+g], Ee[512]); put_row(12+r, G[768+g], True)
        if g & 4: R.put(G[768+g], 2); R.put(G[256+g], 2)
    R.put(Ee[512], 2)
    if KST: stamp(a, 16)
    tile_mfma(1)
    Ee[1024] = power(1024, None)
    hooks.get("t1", lambda: None)()
    for k in range(8):
        t = mul(G[128*k], Ee[1024]); put_row(k, t, True); R.put(t, 2)
    Ee[2048] = power(2048, Ee[1024])
    t = mul(G[0], Ee[2048]); put_row(8, t, True); R.put(t, 2)
    tile_mfma(2)
    hooks.get("t2", lambda: None)()
    Q.issue(f"ds_write_b64 v{VT1}, {vr(ACC+4,2)}")
    Q.issue(f"ds_write_b64 v{VT1+3}, {vr(ACC+6,2)}")
    flush_mfma(100)
    a(f"""
    s_mov_b32 exec_hi, 0xffff
    s_nop 6
    ds_write_b32 v{VT2}, v{ACC+8} offset:2048
    s_mov_b32 exec_hi, 0
    ds_write_b32 v{VT2}, v{ACC+9} offset:{2048+64}
    ds_write_b32 v{VT2}, v{ACC+10} offset:{2048+128}
    ds_write_b32 v{VT2}, v{ACC+11} offset:{2048+192}
    """)
    print("kgen vgpr hi", R.hi, file=sys.stderr)

def expand_emit(a, W, C4, C5, T, rho):
    o = 1024*rho
    a(f"""
    ds_write_b128 v{VED}, {vr(W,4)} offset:{3*KC_P + o}
    v_mov_b32 v{C4}, v{W} wave_shl:1 {DPP_ALL}
    v_mov_b32 v{C5}, v{W+1} wave_shl:1 {DPP_ALL}
    v_alignbit_b32 v{T}, v{W+1}, v{W}, 16
    v_alignbit_b32 v{T+1}, v{W+2}, v{W+1}, 16
    v_alignbit_b32 v{T+2}, v{W+3}, v{W+2}, 16
    v_alignbit_b32 v{T+3}, v{C4}, v{W+3}, 16
    v_mov_b32 v{T+4}, v{W+1}
    v_mov_b32 v{T+5}, v{W+2}
    ds_write_b128 v{VED}, {vr(T,4)} offset:{2*KC_P + o}
    v_mov_b32 v{T+6}, v{W+3}
    v_mov_b32 v{T+7}, v{C4}
    v_mov_b32 v{T+8}, v{T+1}
    v_mov_b32 v{T+9}, v{T+2}
    ds_write_b128 v{VED}, {vr(T+4,4)} offset:{KC_P + o}
    v_mov_b32 v{T+10}, v{T+3}
    v_alignbit_b32 v{T+11}, v{C5}, v{C4}, 16
    ds_write_b128 v{VED}, {vr(T+8,4)} offset:{o}
    """)

def expand(a, hh):
    r2 = lambda d, v, o: a(f"ds_read2st64_b32 {vr(d,2)}, v{v} offset0:{o} offset1:{o + TP//256}")
    r2(56, VE0, 0); r2(58, VE1, 0); r2(60, VC0, 9 - hh)
    if hh: r2(62, VC1, 8)
    if hh == 0:
        for i in range(2):
            a(f"ds_read_b128 {vr(64+4*i,4)}, v{VE2} offset:{16*i}")
            a(f"ds_read_b128 {vr(72+4*i,4)}, v{VE2} offset:{TP + 16*i}")
        n2 = 4
    else:
        r2(64, VE2, 0); r2(66, VE3, 0); r2(68, VE4, 0); r2(70, VC0, 6); r2(72, VC1, 6); r2(74, VC2, 6)
        n2 = 6
    a(f"""
    s_mov_b32 vcc_lo, 0x55555555
    s_mov_b32 vcc_hi, 0x55555555
    s_waitcnt lgkmcnt({n2})
    v_add_f32 v56, v56, v57
    v_add_f32 v58, v58, v59
    v_add_f32 v60, v60, v61
    """)
    if hh: a("v_add_f32 v62, v62, v63")
    a(f"""
    v_cndmask_b32 v57, v56, v58, vcc
    v_cvt_pk_f16_f32 v80, v58, v58
    v_cvt_pk_f16_f32 v82, v56, v56
    v_cvt_pk_f16_f32 v81, v58, v57
    v_cvt_pk_f16_f32 v84, v60, v60
    v_mov_b32 v83, v82
    v_cvt_pk_f16_f32 v85, v{62 if hh else 60}, v{62 if hh else 60}
    """)
    expand_emit(a, 80, 84, 85, 88, hh)
    a("s_waitcnt lgkmcnt(4)")
    if hh == 0:
        for i in range(8): a(f"v_add_f32 v{64+i}, v{64+i}, v{72+i}")
        a(f"""
        v_cvt_pk_f16_f32 v100, v71, v70
        v_cvt_pk_f16_f32 v101, v69, v68
        v_cvt_pk_f16_f32 v102, v67, v66
        v_cvt_pk_f16_f32 v103, v65, v64
        v_mov_b32 v104, 0
        v_mov_b32 v105, 0
        s_mov_b32 exec_hi, 0
        v_cvt_pk_f16_f32 v100, v68, v67
        v_cvt_pk_f16_f32 v101, v66, v66
        v_cvt_pk_f16_f32 v102, v66, v65
        v_cvt_pk_f16_f32 v103, v64, v64
        s_mov_b64 exec, -1
        """)
    else:
        for i in range(6): a(f"v_add_f32 v{64+2*i}, v{64+2*i}, v{65+2*i}")
        a(f"""
        v_cvt_pk_f16_f32 v100, v68, v68
        v_cvt_pk_f16_f32 v101, v66, v66
        v_cvt_pk_f16_f32 v102, v66, v64
        v_cvt_pk_f16_f32 v103, v64, v64
        v_cvt_pk_f16_f32 v104, v70, v72
        v_cvt_pk_f16_f32 v105, v74, v74
        """)
    expand_emit(a, 100, 104, 105, 108, 3 - hh)
    if hh == 0: a(f"""
    v_mov_b32 v104, 0
    v_mov_b32 v105, 0
    v_mov_b32 v106, 0
    v_mov_b32 v107, 0
    s_mov_b64 exec, 0xff
    ds_write_b128 v{VT1+2}, v[104:107] offset:4096
    """)

def pf_lines(a, mat, part, v0):
    A, B, C = v0, v0+1, v0+2
    a(f"""
    s_lshr_b32 s64, s2, 3
    s_mul_i32 s64, s64, 162
    s_add_u32 s64, s64, {54*part}
    s_and_b32 s65, s2, 7
    s_mul_i32 s65, s65, 9
    v_min_u32 v{A}, 53, v2
    v_add_u32 v{A}, s64, v{A}
    """)
    fl = E("M_PFFL", "")
    if mat == "d":
        a(f"""
        s_mul_i32 s65, s65, 576
        v_add_u32 v{B}, s65, v{A}
        v_lshlrev_b32 v{B}, 7, v{B}
        global_load_dword v250, v{B}, {P(sWD)} {fl}
        """)
    else:
        a(f"""
        v_mul_u32_u24 v{C}, 7282, v{A}
        v_lshrrev_b32 v{C}, 16, v{C}
        v_mul_u32_u24 v{B}, 9, v{C}
        v_sub_u32 v{B}, v{A}, v{B}
        v_add_u32 v{B}, s65, v{B}
        v_mul_u32_u24 v{C}, 9216, v{C}
        v_lshl_add_u32 v{C}, v{B}, 7, v{C}
        """)
        for m in mat:
            a(f"global_load_dword v250, v{C}, {P(sWG if m == 'g' else sWU)} {fl}")
            if int(E("M_PFH", "0")): a(f"global_load_dword v250, v{C}, {P(sWG if m == 'g' else sWU)} offset:64 {fl}")

JA = [(k, v) for v in (0, 1, 2) for k in range(3, 8) if k + v <= 7]
JB = [(k, v) for v in (0, 1, 2) for k in range(3)]
JC = [(k, v) for v in (3, 4) for k in range(5) if k + v <= 7]
JD = [(k, v) for v in (5, 6, 7) for k in range(3) if k + v <= 7]
POFF = {"A": (0, 3), "B": (5, 0), "C": (10, 3), "D": (15, 5)}
def JCH(k): return [(kb, g - kb) for g in (k, 7 - k) for kb in range(g + 1)]
VA = 64
VACC = 224
VB = 32
NB = 8
VAS = 16
NH = int(E("M_NH", "5"))
VKA, VHA = 4, 6
VPW = 8

class Job:
    def __init__(self, parts):
        self.parts = parts
        use = {}
        for ci, bl, _ in parts:
            for kb, vb in bl: use[(ci, kb)] = use.get((ci, kb), 0) + 1
        order = sorted(use, key=lambda x: (-use[x], x))
        self.held = {g: i for i, g in enumerate(order[:NH])}
    def preload(self, a):
        for (ci, kb), i in self.held.items():
            for x in range(8):
                kap = 8*kb + x; r = VA + 32*i + 4*x
                a(f"ds_read_b64 {vr(r,2)}, v{VKA+ci} offset:{64*(63-kap)}")
                a(f"ds_read_b64 {vr(r+2,2)}, v{VKA+ci} offset:{64*(63-kap)+8}")
    def run(self, a, fill_end=None):
        Q = LdsQ(a)
        acc = {}; seq = []
        for ci, bl, tag in self.parts:
            vbs = sorted(set(v for _, v in bl))
            for vb in vbs:
                for y in range(8):
                    seq.append(((ci, 8*vb + y), [((ci, kb, 7 - y), (ci, kb + vb)) for kb, v in bl if v == vb]))
        for _, ms in seq:
            for _, tk in ms:
                if tk not in acc: acc[tk] = VACC + 4*len(acc)
        assert len(acc) <= 6
        mf = []
        for bi, (bk, ms) in enumerate(seq):
            for ak, tk in ms: mf.append((bi, ak, tk))
        if int(E("M_STAG", "1")) and self.parts[-1][2]:
            nl = len(seq) - 8
            body = [m for m in mf if m[0] < nl]; tail = [m for m in mf if m[0] >= nl]
            tks = sorted(set(m[2] for m in tail))
            if len(tks) > 1:
                tail = sorted(tail, key=lambda m: (max(tks.index(m[2]) - 1, 0), m[0], m[2]))
            mf = body + tail
        last = {}
        for n, (_, _, tk) in enumerate(mf): last[tk] = n
        loads = []; sa = 0; areg = {}
        firstuse = {}
        for n, (bi, ak, tk) in enumerate(mf):
            if ("b", bi) not in firstuse:
                firstuse[("b", bi)] = n
                ci, v = seq[bi][0]
                loads.append((n, ("b", bi), [f"ds_read_b128 {vr(VB + 4*(bi % NB),4)}, v{VHA+ci} offset:{64*v}"]))
            ci, kb, x = ak
            if (ci, kb) in self.held: areg[n] = VA + 32*self.held[(ci, kb)] + 4*x
            else:
                r = VAS + 4*(sa % 4); kap = 8*kb + x
                loads.append((n, ("a", sa), [f"ds_read_b64 {vr(r,2)}, v{VKA+ci} offset:{64*(63-kap)}", f"ds_read_b64 {vr(r+2,2)}, v{VKA+ci} offset:{64*(63-kap)+8}"]))
                areg[n] = r; firstuse[("a", sa)] = n; sa += 1
        lastuse_b = {}
        for n, (bi, _, _) in enumerate(mf): lastuse_b[bi] = n
        opid = {}; li = 0; started = set(); pend = []
        LEAD = int(E("M_LEAD", "10"))
        def can_issue(key, n):
            if key[0] == "b": return key[1] < NB or lastuse_b[key[1] - NB] < n
            return key[1] < 4 or firstuse[("a", key[1] - 4)] < n
        akey_of = {}
        for (n0, key, _) in loads:
            if key[0] == "a": akey_of[n0] = key
        tagof = {ci: tag for ci, _, tag in self.parts}
        for n, (bi, ak, tk) in enumerate(mf):
            while li < len(loads) and loads[li][0] <= n + LEAD and can_issue(loads[li][1], n):
                for t in loads[li][2]: opid[loads[li][1]] = Q.issue(t)
                li += 1
            need = opid[("b", bi)]
            if n in akey_of: need = max(need, opid[akey_of[n]])
            Q.need(need)
            c = acc[tk]
            a(f"v_mfma_f32_16x16x32_f16 {vr(c,4)}, {vr(areg[n],4)}, {vr(VB + 4*(bi % NB),4)}, {'0' if tk not in started else vr(c,4)}")
            started.add(tk)
            if last[tk] == n and tagof[tk[0]]: pend.append((n + 9, tk))
            while pend and pend[0][0] <= n:
                tk2 = pend.pop(0)[1]
                s0, g0 = POFF[tagof[tk2[0]]]
                Q.issue(f"ds_write_b128 v{VPW+tk2[0]}, {vr(acc[tk2],4)} offset:{(s0 + tk2[1] - g0)*1024}")
        a("s_nop 7")
        for _, tk2 in pend:
            s0, g0 = POFF[tagof[tk2[0]]]
            Q.issue(f"ds_write_b128 v{VPW+tk2[0]}, {vr(acc[tk2],4)} offset:{(s0 + tk2[1] - g0)*1024}")
        return acc

def epi_core(a, Y, H, T, ks, dd, ga, n):
    for e in range(n): a(f"v_mul_f32 v{Y+e}, {ks}, v{Y+e}")
    for e in range(n): a(f"v_fma_mix_f32 v{T+e}, v{H+e//2}, {dd}, 0 op_sel:[{e&1},0,0] op_sel_hi:[1,0,0]")
    rnd_pairs(a, [Y+2*i for i in range(n//2)] + [T+2*i for i in range(n//2)])
    for e in range(n): a(f"v_add_f32 v{Y+e}, v{Y+e}, v{T+e}")
    rnd_pairs(a, [Y+2*i for i in range(n//2)])
    for e in range(n): a(f"v_mul_f32 v{Y+e}, {ga}, v{Y+e}")

def gen_F(a):
    kernel_head(a, "ka_kernel")
    a(f"""
    s_cmp_ge_u32 s2, 256
    s_cbranch_scc1 M_END
    s_load_dwordx16 s[4:19], s[0:1], 0
    s_load_dwordx16 s[20:35], s[0:1], 64
    s_load_dwordx2 s[36:37], s[0:1], 128
    v_lshrrev_b32 v1, 6, v0
    v_and_b32 v2, 63, v0
    """)
    if ST: a(f"v_mov_b32 v{VST}, 0")
    a("v_readfirstlane_b32 s3, v1")
    stamp(a, 0)
    if CPL:
        a(f"""
        s_cmp_lg_u32 s3, 3
        s_cbranch_scc1 M_NCP
        s_getpc_b64 s[74:75]
        M_PC:
        s_sub_u32 s74, s74, M_PC - ka_kernel
        s_subb_u32 s75, s75, 0
        s_lshr_b32 s76, s2, 3
        s_mul_i32 s76, s76, {CPL}
        v_min_u32 v25, {CPL-1}, v2
        v_add_u32 v25, s76, v25
        v_lshlrev_b32 v25, 7, v25
        v_min_u32 v25, CODE_END - ka_kernel - 4, v25
        global_load_dword v250, v25, s[74:75]
        M_NCP:
        """)
    LL = 10; X = 16; T = 26
    a(f"""
    s_lshl_b32 s40, s2, 3
    s_add_u32 s40, s40, s3
    s_mul_i32 s40, s40, 1152
    v_lshl_add_u32 v3, v2, 4, s40
    v_lshl_add_u32 v4, v2, 1, s40
    v_mov_b32 v20, 0
    v_mov_b32 v21, 0
    v_mov_b32 v22, 0
    v_mov_b32 v23, 0
    v_mov_b32 v{VZ}, 0
    v_mov_b32 v{VONE}, 1
    v_lshlrev_b32 v24, 4, v2
    s_cmp_eq_u32 s3, 0
    s_cbranch_scc0 M_Z1
    s_mov_b64 exec, 0x3fffffff
    ds_write_b128 v24, v[20:23] offset:{L_HB}
    ds_write_b128 v24, v[20:23] offset:{L_HB + HB_P}
    ds_write_b128 v24, v[20:23] offset:{L_HB + 2*HB_P}
    M_Z1:
    s_cmp_eq_u32 s3, 2
    s_cbranch_scc0 M_Z3
    ds_write_b128 v24, v[20:23] offset:{L_ZERO}
    M_Z3:
    s_cmp_eq_u32 s3, 3
    s_cbranch_scc0 M_Z0
    s_mov_b64 exec, 0xfffff
    ds_write_b128 v24, v[20:23] offset:{L_CNT}
    M_Z0:
    s_mov_b64 exec, -1
    s_lshr_b32 s41, s3, 1
    s_lshl_b32 s{sD}, s2, 1
    s_add_u32 s{sD}, s{sD}, s41
    s_lshr_b32 s45, s2, 2
    s_add_u32 s45, s45, 512            ; channel c
    s_cmp_eq_u32 s41, 2
    s_cselect_b32 s{sD}, s45, s{sD}
    s_and_b32 s{sHH}, s3, 1
    ; mod item: cg = u % 27, ks = u / 27
    s_mul_i32 s{sKS}, s2, 2428
    s_lshr_b32 s{sKS}, s{sKS}, 16
    s_mul_i32 s40, s{sKS}, 27
    s_sub_u32 s49, s2, s40             ; cg
    v_lshrrev_b32 v25, 2, v2
    s_lshl_b32 s40, s{sKS}, 6
    v_add_u32 v25, s40, v25
    v_mul_u32_u24 v25, 6912, v25
    v_and_b32 v26, 3, v2
    v_lshl_add_u32 v25, v26, 4, v25
    v_add_u32 v39, s40, v2
    s_lshl_b32 s40, s49, 7
    s_lshl_b32 s50, s{sHH}, 6
    s_add_u32 s40, s40, s50
    v_add_u32 v216, s40, v25
    v_lshlrev_b32 v39, 1, v39
    s_lshl_b32 s40, s{sD}, 8
    v_lshl_add_u32 v5, v2, 2, s40
    s_lshl_b32 s40, s{sD}, 1
    v_mov_b32 v6, s40
    s_waitcnt lgkmcnt(0)
    global_load_dwordx4 {vr(LL,4)}, v3, {P(sX)} {XNT}
    global_load_ushort v{LL+4}, v4, {P(sX)} offset:1024 {XNT}
    s_mov_b32 s50, {16*6912}
    v_add_u32 v217, s50, v216
    v_add_u32 v218, s50, v217
    v_add_u32 v219, s50, v218
    v_mov_b32 v7, {WS_EPOCH}
    s_cmp_ge_u32 s3, 6
    s_cbranch_scc1 M_T0MOD
    s_barrier                          ; B0
    global_load_ushort v44, v6, {P(sLDT)}
    global_load_dword v40, v5, {P(sLAR)} {PNT}
    global_load_dword v41, v5, {P(sAIM)} {PNT}
    global_load_dword v42, v5, {P(sCR)} {PNT}
    global_load_dword v43, v5, {P(sCI)} {PNT}
    s_mov_b32 s62, 5
    """)
    a(f"""
    s_branch M_T0J
    M_T0MOD:
    s_setprio 2
    s_barrier                          ; B0
    global_load_dword v47, v7, {P(sWS)}
    s_mov_b32 s62, 1
    s_cmp_ge_u32 s2, 243
    s_cbranch_scc1 M_T0J
    global_load_ushort v44, v39, {P(sC)}
    """)
    for i in range(4): a(f"global_load_dwordx4 {vr(48+4*i,4)}, v{216+i}, {P(sWMOD)} {NT}")
    a(f"""
    s_mov_b32 s62, 6
    M_T0J:
    """)
    UN = {2: 0, 3: 3, 6: 6, 7: 9, 0: 12, 1: 14, 4: 0, 5: 0}
    unib = sum(UN[w] << (4*w) for w in range(8))
    a(f"""
    s_lshl_b32 s40, s3, 2
    s_lshr_b32 s63, {hex(unib)}, s40
    s_and_b32 s63, s63, 15
    s_lshl_b32 s50, s63, 10
    s_lshl_b32 s51, s2, 14
    s_add_u32 s50, s50, s51
    s_add_u32 s50, s50, {WS_XN}
    v_lshl_add_u32 v{VXA}, v2, 4, s50
    v_lshrrev_b32 v21, 4, v2
    s_lshl_b32 s50, s2, 1
    v_add_u32 v20, s50, v21
    v_mov_b32 v22, s45
    v_cmp_gt_u32 vcc, 2, v21
    v_and_b32 v23, 15, v2
    v_min_u32 v23, 8, v23
    v_cndmask_b32 v20, v22, v20, vcc   ; channel
    v_lshlrev_b32 v23, 9, v23
    v_lshlrev_b32 v{VD}, 1, v20
    v_lshrrev_b32 v22, 6, v20
    v_mul_u32_u24 v22, {9*512}, v22
    v_and_b32 v20, 63, v20
    v_lshl_add_u32 v20, v20, 3, v22
    v_add_u32 v20, v20, v23
    v_add_u32 v{VMA}, {WS_MP}, v20
    v_add_u32 v{VMA+1}, {WS_MP + 9*9*512}, v20
    v_add_u32 v{VMA+2}, {WS_MP + 18*9*512}, v20
    v_and_b32 v20, 15, v2              ; i / j
    v_and_b32 v22, 3, v20
    v_mul_u32_u24 v22, {KC_P}, v22
    v_lshrrev_b32 v23, 2, v20
    v_lshlrev_b32 v23, 3, v23
    v_lshl_add_u32 v23, v21, 4, v23
    v_sub_u32 v22, v22, v23
    v_add_u32 v22, {L_KC + 72}, v22
    v_lshlrev_b32 v23, 5, v20
    v_lshlrev_b32 v24, 4, v21
    v_sub_u32 v24, v23, v24
    v_add_u32 v24, {L_HB + 48}, v24
    v_lshl_add_u32 v3, v21, 3, v23     ; 32j + 8q
    v_add_u32 v3, {L_HB + 480}, v3
    s_lshr_b32 s40, 0x01021100, s40
    s_and_b32 s40, s40, 15
    s_mul_i32 s50, s40, {4*KC_P}
    s_cmp_eq_u32 s40, 2
    s_cselect_b32 s50, {(L_KC2 - L_KC) & 0xffffffff}, s50
    v_add_u32 v{VKA}, s50, v22
    v_add_u32 v{VKA+1}, {4*KC_P}, v22
    s_mul_i32 s50, s40, {HB_P}
    v_add_u32 v{VHA}, s50, v24
    v_add_u32 v{VHA+1}, {HB_P}, v24
    s_mul_i32 s50, s40, 18432
    s_add_u32 s50, s50, {L_PART}
    v_lshl_add_u32 v{VPW}, v2, 4, s50
    v_lshlrev_b32 v{VPW+1}, 4, v2
    v_add_u32 v{VPW+1}, {L_PART + 18432}, v{VPW+1}
    s_lshl_b32 s40, s40, 2
    v_mov_b32 v1, s40
    """)
    k0 = len(a.lines)
    kgen_setup(a)
    for i in range(k0, len(a.lines)):
        for o, n in (("v10", "v20"), ("v11", "v21"), ("v12", "v22"), ("v13", "v23")):
            a.lines[i] = re.sub(rf"\b{o}\b", n, a.lines[i])
    a(f"""
    s_lshr_b32 s40, s3, 1
    s_mul_i32 s40, s40, 2592
    s_mul_i32 s50, s{sHH}, 1280
    s_add_u32 s40, s40, s50
    s_add_u32 s40, s40, {L_LNR}
    v_lshl_add_u32 v220, v2, 4, s40
    s_lshl_b32 s40, s3, 1
    s_add_u32 s40, s40, {L_CB}
    v_lshl_add_u32 v221, v2, 4, s40
    v_lshrrev_b32 v22, 2, v2
    s_and_b32 s40, s3, 3
    s_lshl_b32 s40, s40, 6
    v_add_u32 v22, s40, v22            ; u'
    v_and_b32 v23, 3, v2
    v_mul_u32_u24 v222, 2592, v23
    v_lshl_add_u32 v222, v22, 2, v222
    v_add_u32 v222, {L_LNR}, v222
    v_lshrrev_b32 v223, 2, v22
    v_lshlrev_b32 v223, 4, v223
    v_lshl_add_u32 v223, v23, 2, v223
    v_add_u32 v223, {L_CB}, v223
    v_lshlrev_b32 v22, 14, v22
    v_lshl_add_u32 v22, v23, 4, v22
    s_lshl_b32 s40, s2, 6
    s_add_u32 s40, s40, {WS_XN}
    v_add_u32 v253, s40, v22
    v_mov_b32 v15, {fbits(1.0/576)}
    s_cmp_eq_u32 s62, 6
    s_cbranch_scc1 M_W6
    s_cmp_eq_u32 s62, 5
    s_cbranch_scc1 M_W5
    s_waitcnt vmcnt(1)
    M_W5:
    s_waitcnt vmcnt(5)
    M_W6:
    s_waitcnt vmcnt(6)
    """)
    stamp(a, 1)
    for w in range(4): unpk(a, X+2*w, X+2*w+1, LL+w)
    a(f"v_lshlrev_b32 v{X+8}, 16, v{LL+4}")
    D = ln_stats(a, X, T, 66, 15)
    for i in range(4): a(f"v_cvt_pk_bf16_f32 v{X+i}, v{D+2*i}, v{D+2*i+1}")
    a(f"""
    v_cvt_pk_bf16_f32 v{X+4}, v{D+8}, v{D+8}
    ds_write_b128 v220, {vr(X,4)}
    ds_write_b16 v221, v{X+4}
    s_cmp_lg_u32 s3, 6
    s_cbranch_scc1 M_NTAG
    s_cmp_eq_u32 s62, 6
    s_cbranch_scc1 M_TG5
    s_waitcnt vmcnt(0)
    M_TG5:
    s_waitcnt vmcnt(5)
    s_mov_b32 s40, 0x9E3779B1
    v_mul_lo_u32 v47, v47, s40
    v_add_u32 v47, 0x7F4A7C15, v47
    ds_write_b32 v{VZ}, v47 offset:{L_TAG}
    M_NTAG:
    """)
    signal(a, C_LN)
    a(f"""
    s_cmp_lt_u32 s3, 4
    s_cbranch_scc1 M_KG
    s_cmp_lt_u32 s3, 6
    s_cbranch_scc1 M_PACK
    s_cmp_ge_u32 s2, 243
    s_cbranch_scc1 M_PACK
    s_mov_b32 s40, {fbits(-LOG2E)}
    s_waitcnt vmcnt(4)
    v_lshlrev_b32 v44, 16, v44
    v_mul_f32 v45, s40, v44
    v_exp_f32 v45, v45
    v_lshrrev_b32 v46, 2, v2
    v_add_f32 v45, 1.0, v45
    v_rcp_f32 v45, v45
    v_lshlrev_b32 v46, 2, v46
    v_mul_f32 v44, v44, v45
    v_cvt_pk_bf16_f32 v44, v44, 0
    """)
    for i in range(4): a(f"ds_bpermute_b32 v{28+i}, v46, v44 offset:{64*i}")
    a.label("M_PACK")
    G0 = 80
    for i in range(1, 4): a(f"v_add_u32 v{20+i}, {64*i}, v222")
    a(f"""
    s_mov_b32 s41, {16 << 14}
    M_SPL:
    ds_read_b64 v[96:97], v{VZ} offset:{L_CNT + C_LN}
    """)
    for i in range(4):
        a(f"ds_read2st64_b32 {vr(G0+4*i,2)}, v{222 if i == 0 else 20+i} offset0:0 offset1:5")
        a(f"ds_read_b32 v{G0+4*i+2}, v223 offset:{64*i}")
    a(f"""
    s_waitcnt lgkmcnt(8)
    v_readfirstlane_b32 s94, v96
    v_readfirstlane_b32 s{sTAG}, v97
    s_cmp_ge_u32 s94, 8
    s_cbranch_scc0 M_SPL
    """)
    for i in range(4):
        a(f"v_mov_b32 v{G0+4*i+3}, v97")
        a(f"s_waitcnt lgkmcnt({6-2*i})")
        a(f"global_store_dwordx4 v253, {vr(G0+4*i,4)}, {P(sWS)} sc1")
        if i < 3: a("v_add_u32 v253, s41, v253")
    stamp(a, 2)
    a(f"""
    s_cmp_ge_u32 s3, 6
    s_cbranch_scc1 M_MOD
    s_waitcnt vmcnt(4)
    """)
    signal(a, C_H)
    a("s_branch KG_W1")
    a.label("M_KG")
    stamp(a, 2)
    def mp_issue():
        for c in range(3): a(f"global_load_dwordx2 {vr(VMP+2*c,2)}, v{VMA+c}, {P(sWS)} sc1")
    def xn_issue(n=3):
        for i in range(n): a(f"global_load_dwordx4 {vr(XG+4*i,4)}, v{VXA}, {P(sWS)} offset:{1024*i} sc1")
    def first_issue():
        l = a.newlabel("NI")
        a(f"""
        s_cmp_ge_u32 s3, 4
        s_cbranch_scc1 {l}
        s_cmp_lt_u32 s3, 2
        s_cbranch_scc1 {l}B
        global_load_dwordx4 {vr(XG+8,4)}, v{VXA}, {P(sWS)} offset:2048 sc1
        {l}B:
        global_load_ushort v{VD}, v{VD}, {P(sDSK)}
        """)
        mp_issue(); xn_issue(2)
        a.label(l)
    XAT = E("M_XAT", "tab")
    hooks = {}
    if XAT != "tab": hooks[XAT] = first_issue
    gen_kgen(a, 0, hooks)
    signal(a, C_TAB, VED+1)
    if XAT == "tab": first_issue()
    stamp(a, 4)
    spin(a, C_TAB, 2, VED+1)
    stamp(a, 5)
    a(f"""
    s_cmp_eq_u32 s{sHH}, 0
    s_cbranch_scc0 M_EXB
    """)
    expand(a, 0)
    a("s_branch M_EXD")
    a.label("M_EXB")
    expand(a, 1)
    a.label("M_EXD")
    signal(a, C_K, VED+1)
    stamp(a, 6)
    a("s_branch M_CSET")
    a.label("M_MOD")
    a(f"""
    s_cmp_ge_u32 s2, 243
    s_cbranch_scc1 M_MODX
    """)
    for i in range(4): a(f"global_load_dwordx4 {vr(64+4*i,4)}, v{216+i}, {P(sWMOD)} offset:3456 {NT}")
    a(f"""
    s_mul_i32 s40, s49, 9
    s_add_u32 s40, s40, s{sKS}
    s_lshl_b32 s40, s40, 9
    s_lshl_b32 s41, s{sHH}, 8
    s_add_u32 s40, s40, s41
    s_add_u32 s40, s40, {WS_MP}
    v_and_b32 v45, 3, v2
    v_lshlrev_b32 v45, 6, v45
    v_lshrrev_b32 v46, 3, v2
    v_lshl_add_u32 v45, v46, 3, v45
    v_add_u32 v45, s40, v45
    v_add_u32 v46, {27*9*512}, v45
    v_mov_b32 v33, s{sTAG}
    """)
    for i in range(4): a(f"v_lshlrev_b32 v{24+i}, 16, v{28+i}")
    AC = 112
    for rho in range(2):
        for e in range(8): a(f"v_mov_b32 v{AC+e}, 0")
        for i in range(4):
            a(f"s_waitcnt vmcnt({11 - i if rho == 0 else 4 - i})")
            for w in range(4):
                a(f"v_dot2c_f32_bf16 v{AC+2*w}, v{48+16*rho+4*i+w}, v{28+i}")
                a(f"v_dot2c_f32_bf16 v{AC+2*w+1}, v{48+16*rho+4*i+w}, v{24+i}")
        a("s_nop 2")
        for e in range(4): a(f"v_permlane32_swap_b32 v{AC+e}, v{AC+4+e}")
        for e in range(4): a(f"v_add_f32 v{AC+e}, v{AC+e}, v{AC+4+e}")
        a("s_nop 0")
        a(f"v_permlane16_swap_b32 v{AC}, v{AC+2}")
        a(f"v_permlane16_swap_b32 v{AC+1}, v{AC+3}")
        a(f"v_add_f32 v{AC}, v{AC}, v{AC+2}")
        a(f"v_add_f32 v{AC+1}, v{AC+1}, v{AC+3}")
        a("s_nop 1")
        a(f"v_add_f32 v32, v{AC}, v{AC} row_ror:8 row_mask:0xf bank_mask:0x3")
        a(f"v_add_f32 v32, v{AC+1}, v{AC+1} row_ror:8 row_mask:0xf bank_mask:0xc")
        a("s_nop 1")
        a(f"v_add_f32 v32, v32, v32 row_shl:4 row_mask:0xf bank_mask:0x5")
        a("s_mov_b32 exec_lo, 0x0f0f0f0f")
        a("s_mov_b32 exec_hi, 0x0f0f0f0f")
        a(f"global_store_dwordx2 v{45+rho}, v[32:33], {P(sWS)} sc1")
        a("s_mov_b64 exec, -1")
        if rho == 0:
            a("s_setprio 0")
            stamp(a, 7)
    a.label("M_MODX")
    a("s_setprio 0")
    stamp(a, 3)
    def pf_waves(spec, tag, v0):
        for grp in filter(None, spec.split(";")):
            w, items = grp.split(":")
            l = a.newlabel("PF")
            a(f"s_cmp_lg_u32 s3, {w}"); a(f"s_cbranch_scc1 {l}")
            for it in items.split(","): pf_lines(a, it[:-1], int(it[-1]), v0)
            a.label(l)
    pf_waves(E("M_PFA", ""), "a", 100)
    spin(a, C_TAB + 4, int(E("M_W6N", "1")))
    a(f"global_load_dwordx4 {vr(XG+8,4)}, v{VXA}, {P(sWS)} offset:2048 sc1")
    a(f"global_load_ushort v{VD}, v{VD}, {P(sDSK)}")
    mp_issue(); xn_issue(2)
    a.label("M_CSET")
    jobs = {"A": Job([(0, JA, "A")]), "B": Job([(0, JB, "B")]), "C": Job([(0, JC, "C")]), "D": Job([(1, JD, "D"), (0, JD, "D")])}
    for k in range(4): jobs[f"K{k}"] = Job([(0, JCH(k), None)])
    a(f"""
    s_lshl_b32 s40, s3, 2
    s_lshr_b32 s40, 0x31242010, s40
    s_and_b32 s62, s40, 15
    s_and_b32 s40, s2, 3
    s_cmp_eq_u32 s62, 4
    s_cselect_b32 s40, s40, 0
    s_add_u32 s62, s62, s40
    """)
    def dispatch(pre):
        for i, nm in enumerate(list(jobs)[:-1]):
            a(f"s_cmp_eq_u32 s62, {i}")
            a(f"s_cbranch_scc1 {pre}{nm}")
        a(f"s_branch {pre}K3")
    spin(a, C_K, 2, 1)
    dispatch("M_PL")
    for nm, jb in jobs.items():
        a.label(f"M_PL{nm}")
        if nm == "D": spin(a, C_K + 4, 2)
        jb.preload(a)
        a("s_branch M_STG")
    a.label("M_STG")
    stamp(a, 8)
    a(f"""
    s_and_b32 s40, s3, 6
    s_cmp_eq_u32 s40, 4
    s_cbranch_scc1 M_HW
    M_TGS:
    ds_read_b64 v[16:17], v{VZ} offset:{L_CNT + C_LN}
    s_lshl_b32 s40, s63, 8
    s_add_u32 s40, s40, {L_HB + 480}
    s_mov_b32 m0, s40
    s_mov_b32 s41, {SPIN}
    v_mov_b32 v30, 0x3f80
    v_mov_b32 v31, 0x3f800000
    s_waitcnt lgkmcnt(0)
    v_readfirstlane_b32 s94, v16
    v_readfirstlane_b32 s{sTAG}, v17
    s_cmp_ge_u32 s94, 8
    s_cbranch_scc0 M_TGS
    M_MP:
    s_waitcnt vmcnt(2)
    v_xor_b32 v16, s{sTAG}, v{VMP+1}
    v_xor_b32 v17, s{sTAG}, v{VMP+3}
    v_xor_b32 v18, s{sTAG}, v{VMP+5}
    v_or3_b32 v16, v16, v17, v18
    v_cmp_ne_u32 vcc, 0, v16
    s_cbranch_vccz M_MPD
    """)
    mp_issue()
    a(f"""
    s_waitcnt vmcnt(0)
    s_sub_u32 s41, s41, 1
    s_cbranch_scc0 M_MP
    M_MPD:
    s_mov_b32 exec_lo, 0xfe00fe00
    s_mov_b32 exec_hi, 0xfe00fe00
    v_mov_b32 v{VMP}, 0
    v_mov_b32 v{VMP+2}, 0
    v_mov_b32 v{VMP+4}, 0
    s_mov_b64 exec, -1
    """)
    for sh in (1, 2, 4, 8):
        for r in (VMP, VMP+2, VMP+4): a(f"v_add_f32 v{r}, v{r}, v{r} row_shr:{sh} {DPP_ALL} bound_ctrl:0")
    a(f"""
    v_cvt_pk_bf16_f32 v17, v{VMP}, v{VMP+2}
    v_cvt_pk_bf16_f32 v18, v{VMP+4}, v{VMP+4}
    v_lshlrev_b32 v16, 16, v17         ; sa
    v_and_b32 v17, 0xffff0000, v17     ; ca
    v_add_f32 v17, 1.0, v17
    v_cvt_pk_bf16_f32 v17, v17, v17
    v_and_b32 v17, 0xffff0000, v17     ; c1
    v_mul_f32 v19, 0x42800000, v17
    v_add_f32 v19, abs(v19), abs(v16)
    v_frexp_exp_i32_f32 v19, v19
    v_sub_u32 v19, 15, v19
    v_ldexp_f32 v17, v17, v19
    v_ldexp_f32 v16, v16, v19
    v_readlane_b32 s67, v17, 31
    v_readlane_b32 s66, v17, 15
    v_readlane_b32 s69, v17, 47
    v_readlane_b32 s70, v16, 15
    v_readlane_b32 s71, v16, 31
    v_readlane_b32 s72, v16, 47
    s_lshr_b32 s66, s66, 16
    s_lshr_b32 s68, s69, 16
    s_cmp_lg_u32 s3, 7
    s_cbranch_scc1 M_XP
    v_sub_u32 v19, 0, v19
    v_lshlrev_b32 v{VD}, 16, v{VD}
    v_lshlrev_b32 v18, 16, v18
    v_ldexp_f32 v{VD}, v{VD}, v19
    v_lshrrev_b32 v20, 2, v2
    v_and_b32 v20, 12, v20
    s_mov_b32 exec_lo, 0x80008000
    s_mov_b32 exec_hi, 0x00008000
    ds_write_b32 v20, v{VD} offset:{L_PRM + 32}
    ds_write_b32 v20, v18 offset:{L_PRM + 48}
    ds_write_b32 v20, v19 offset:{L_PRM + 64}
    s_mov_b64 exec, -1
    M_XP:
    s_waitcnt vmcnt(0)
    v_xor_b32 v16, s{sTAG}, v{XG+3}
    v_xor_b32 v17, s{sTAG}, v{XG+7}
    v_xor_b32 v18, s{sTAG}, v{XG+11}
    s_cmp_lt_u32 s3, 2
    s_cselect_b32 s40, 0, -1
    v_and_b32 v18, s40, v18
    v_or3_b32 v16, v16, v17, v18
    v_cmp_ne_u32 vcc, 0, v16
    s_cbranch_vccz M_XD
    s_mov_b64 exec, vcc
    """)
    xn_issue()
    a(f"""
    s_mov_b64 exec, -1
    s_sub_u32 s41, s41, 1
    s_cbranch_scc0 M_XP
    M_XD:
    """)
    stamp(a, 9)
    def units(lst):
        Y = 32
        for n, u in enumerate(lst):
            g = XG + 4*u; y = Y + 6*n
            for k, (src, cs) in enumerate(((g, 66), (g+1, 66), (g, 67), (g+1, 67), (g+2, 68), (g+2, 69))):
                a(f"v_dot2_f32_bf16 v{y+k}, v{src}, s{cs}, 0")
        if len(lst) == 1: a("s_nop 0")
        prs = [Y + 2*i for i in range(3*len(lst))]
        for p in prs: a(f"v_cvt_pk_bf16_f32 v{p+1}, v{p}, v{p+1}")
        for i, p in enumerate(prs):
            a(f"v_dot2_f32_bf16 v{p}, v{p+1}, v30, s{70 + i%3}")
            a(f"v_dot2_f32_bf16 v{p+1}, v{p+1}, v31, s{70 + i%3}")
        a("s_nop 1")
        rnd_pairs(a, prs)
        for i, p in enumerate(prs): a(f"v_cvt_pk_f16_f32 v{16+i}, v{p}, v{p+1}")
        for i, p in enumerate(prs): a(f"ds_write_addtid_b32 v{16+i} offset:{(i%3)*HB_P + lst[i//3]*256}")
    a("""
    s_cmp_lt_u32 s3, 2
    s_cbranch_scc1 M_U2
    """)
    units([0, 1, 2])
    a("s_branch M_U3")
    a.label("M_U2")
    units([0, 1])
    a.label("M_U3")
    signal(a, C_H)
    RR = 160
    def red_issue():
        for s_ in range(8): a(f"global_load_dwordx2 {vr(RR+2*s_,2)}, v178, {P(sWS)} offset:{512*s_} sc1")
        a(f"global_load_dwordx2 {vr(RR+16,2)}, v179, {P(sWS)} sc1")
    def red_addr():
        a(f"""
        s_sub_u32 s40, s2, {229 - 27}
        s_mul_i32 s40, s40, {9*512}
        s_add_u32 s40, s40, {WS_MP}
        v_lshl_add_u32 v178, v2, 3, s40
        v_add_u32 v179, 4096, v178
        """)
    a(f"""
    s_cmp_lg_u32 s3, 1
    s_cbranch_scc1 M_HW
    s_cmp_lt_u32 s2, 229
    s_cbranch_scc1 M_HW
    """)
    red_addr(); red_issue()
    a(f"""
    M_HW:
    s_and_b32 s40, s2, 7
    s_mul_i32 s40, s40, 18
    s_lshr_b32 s41, s2, 3
    s_add_u32 s46, s40, s41            ; fs
    s_cmp_ge_u32 s2, 144
    s_cbranch_scc1 M_NODN
    s_cmp_ge_u32 s3, 4
    s_cbranch_scc1 M_NODN
    s_mul_i32 s40, s46, 36864
    s_mul_i32 s41, s3, 9216
    s_add_u32 s40, s40, s41
    s_add_u32 m0, s41, {L_DN}
    v_lshl_add_u32 v16, v2, 4, s40
    """)
    for i in range(9):
        a(f"global_load_lds_dwordx4 v16, {P(sWD)} offset:{1024*(i%3)} {E('F_DFL', '')}")
        if i % 3 == 2 and i < 8:
            a("s_add_u32 m0, m0, 3072")
            a("v_add_u32 v16, 3072, v16")
    a.label("M_NODN")
    pf_waves(E("M_PFR", "0:g0;7:g1;2:g2;3:u0;4:u1;5:u2"), "r", 16)
    spin(a, C_H, 8)
    stamp(a, 10)
    dispatch("M_RUN")
    for nm, jb in jobs.items():
        a.label(f"M_RUN{nm}")
        acc = jb.run(a)
        if nm[0] == "K":
            k = int(nm[1])
            a(f"""
            ds_read_b32 v40, v{VZ} offset:{L_PRM + 32 + 8}
            ds_read_b32 v41, v{VZ} offset:{L_PRM + 48 + 8}
            ds_read_b32 v42, v{VZ} offset:{L_PRM + 64 + 8}
            ds_read_b32 v43, v{VZ} offset:{L_PRM + 80 + 8}
            ds_read_b64 v[44:45], v3 offset:{2*HB_P + 512*k}
            ds_read_b64 v[46:47], v3 offset:{2*HB_P + 512*(7-k)}
            v_and_b32 v16, 15, v2
            v_mul_u32_u24 v16, 96, v16
            v_lshrrev_b32 v17, 5, v2
            v_mul_u32_u24 v17, 48, v17
            v_bfe_u32 v18, v2, 4, 1
            v_lshl_add_u32 v17, v18, 3, v17
            v_add_u32 v16, v16, v17
            v_add_u32 v16, {L_TAB + 32}, v16
            s_waitcnt lgkmcnt(0)
            v_ldexp_f32 v43, v43, v42
            """)
            c0, c1 = acc[(0, k)], acc[(0, 7-k)]
            assert c1 == c0 + 4
            epi_core(a, c0, 44, 48, "v43", "v40", "v41", 8)
            for i in range(4): a(f"v_cvt_pk_bf16_f32 v{48+i}, v{c0+2*i}, v{c0+2*i+1}")
            a(f"ds_write_b64 v16, v[48:49] offset:{1536*k}")
            a(f"ds_write_b64 v16, v[50:51] offset:{1536*(7-k)}")
        a("s_branch M_FIN")
    a.label("M_FIN")
    stamp(a, 11)
    a(f"""
    s_cmp_lg_u32 s3, 1
    s_cbranch_scc1 M_NRED
    s_cmp_lt_u32 s2, 229
    s_cbranch_scc1 M_NRED
    s_mov_b32 s41, {SPIN}
    """)
    red_addr()
    a(f"""
    M_RP:
    s_waitcnt vmcnt(0)
    v_xor_b32 v24, s{sTAG}, v{RR+17}
    """)
    for s_ in range(8):
        a(f"v_xor_b32 v25, s{sTAG}, v{RR+2*s_+1}")
        a("v_or_b32 v24, v24, v25")
    a(f"""
    v_cmp_ne_u32 vcc, 0, v24
    s_cbranch_vccz M_RD
    """)
    red_issue()
    a(f"""
    s_sub_u32 s41, s41, 1
    s_cbranch_scc0 M_RP
    M_RD:
    """)
    for s_ in range(8): a(f"v_add_f32 v{RR+16}, v{RR+16}, v{RR+2*s_}")
    a(f"""
    v_cvt_pk_bf16_f32 v24, v{RR+16}, v{RR+16}
    s_sub_u32 s40, s2, {229 + 9}
    s_cmp_lt_u32 s40, 9
    s_cbranch_scc0 M_RNC
    v_lshlrev_b32 v24, 16, v24
    v_add_f32 v24, 1.0, v24
    v_cvt_pk_bf16_f32 v24, v24, v24
    M_RNC:
    s_sub_u32 s40, s2, 229
    s_lshl_b32 s40, s40, 7
    s_add_u32 s41, s40, {WS_PT16}
    v_lshl_add_u32 v25, v2, 1, s41
    global_store_short v25, v24, {P(sWS)} sc1
    s_add_u32 s40, s40, {WS_PF}
    v_mov_b32 v25, s40
    v_mov_b32 v24, s{sTAG}
    s_waitcnt vmcnt(0)
    s_mov_b64 exec, 1
    global_store_dword v25, v24, {P(sWS)} sc1
    s_mov_b64 exec, -1
    M_NRED:
    """)
    a(f"""
    s_add_u32 s50, s3, 5               ; B[w]
    s_add_u32 s51, s3, -3              ; A
    s_add_u32 s52, s3, 7               ; C
    s_add_u32 s53, s3, 10              ; D
    s_cmp_ge_u32 s3, 5
    s_cselect_b32 s50, s53, s50
    s_lshl_b32 s50, s50, 10
    s_lshl_b32 s51, s51, 10
    s_lshl_b32 s52, s52, 10
    s_add_u32 s54, s51, 18432
    s_add_u32 s55, s52, 18432
    s_cmp_lt_u32 s3, 3
    s_cselect_b32 s51, {(L_ZERO - L_PART) & 0xffffffff}, s51
    s_cselect_b32 s52, {(L_ZERO - L_PART) & 0xffffffff}, s52
    s_cselect_b32 s54, {(L_ZERO - L_PART) & 0xffffffff}, s54
    s_cselect_b32 s55, {(L_ZERO - L_PART) & 0xffffffff}, s55
    v_lshlrev_b32 v16, 4, v2
    v_add_u32 v16, {L_PART}, v16
    v_add_u32 v17, s51, v16
    v_add_u32 v18, s52, v16
    v_add_u32 v19, s54, v16
    v_add_u32 v20, s55, v16
    v_add_u32 v16, s50, v16
    s_lshl_b32 s40, s3, 9
    v_add_u32 v3, s40, v3
    ds_read_b64 v[64:65], v{VZ} offset:{L_PRM + 32}
    ds_read_b64 v[66:67], v{VZ} offset:{L_PRM + 48}
    ds_read_b64 v[68:69], v{VZ} offset:{L_PRM + 64}
    ds_read_b64 v[70:71], v{VZ} offset:{L_PRM + 80}
    ds_read_b64 v[72:73], v3
    ds_read_b64 v[74:75], v3 offset:{HB_P}
    s_mul_i32 s40, s3, 1536
    s_add_u32 s40, s40, {L_TAB}
    v_and_b32 v4, 15, v2
    v_mul_u32_u24 v4, 96, v4
    v_lshrrev_b32 v5, 5, v2
    v_mul_u32_u24 v5, 48, v5
    v_and_b32 v6, 16, v2
    v_add3_u32 v4, v4, v5, v6
    v_add_u32 v4, s40, v4
    v_lshrrev_b32 v6, 2, v2
    v_mul_u32_u24 v5, 96, v6
    v_and_b32 v7, 3, v2
    v_mul_u32_u24 v8, 12, v7
    v_add3_u32 v5, v5, v8, s40
    v_lshlrev_b32 v6, 15, v6
    v_lshl_add_u32 v6, v7, 4, v6
    s_lshl_b32 s40, s3, 19
    s_lshl_b32 s41, s2, 6
    s_add_u32 s40, s40, s41
    s_add_u32 s40, s40, {WS_Z2}
    v_add_u32 v6, s40, v6
    v_add_u32 v7, 16384, v6
    v_mov_b32 v119, s{sTAG}
    v_mov_b32 v123, s{sTAG}
    s_waitcnt lgkmcnt(0)
    v_ldexp_f32 v70, v70, v68
    v_ldexp_f32 v71, v71, v69
    """)
    for e in range(4): a(f"v_fma_mix_f32 v{104+e}, v{72+e//2}, v64, 0 op_sel:[{e&1},0,0] op_sel_hi:[1,0,0]")
    for e in range(4): a(f"v_fma_mix_f32 v{108+e}, v{74+e//2}, v65, 0 op_sel:[{e&1},0,0] op_sel_hi:[1,0,0]")
    rnd_pairs(a, [104, 106, 108, 110])
    a(f"""
    s_barrier                          ; B6
    ds_read_b128 v[80:83], v16
    ds_read_b128 v[84:87], v17
    ds_read_b128 v[88:91], v18
    ds_read_b128 v[92:95], v16 offset:18432
    ds_read_b128 v[96:99], v19
    ds_read_b128 v[100:103], v20
    """)
    a("s_waitcnt lgkmcnt(3)")
    for e in range(4): a(f"v_add_f32 v{80+e}, v{80+e}, v{84+e}")
    for e in range(4): a(f"v_add_f32 v{80+e}, v{80+e}, v{88+e}")
    a("s_waitcnt lgkmcnt(0)")
    for e in range(4): a(f"v_add_f32 v{84+e}, v{92+e}, v{96+e}")
    for e in range(4): a(f"v_add_f32 v{84+e}, v{84+e}, v{100+e}")
    for e in range(8): a(f"v_mul_f32 v{80+e}, v{70+e//4}, v{80+e}")
    for i in range(4): a(f"v_cvt_pk_bf16_f32 v{88+i}, v{80+2*i}, v{81+2*i}")
    a("v_mov_b32 v62, 0x3f80")
    a("v_mov_b32 v63, 0x3f800000")
    for e in range(8): a(f"v_dot2_f32_bf16 v{80+e}, v{88+e//2}, v{62+(e&1)}, v{104+e}")
    rnd_pairs(a, [80, 82, 84, 86])
    for e in range(8): a(f"v_mul_f32 v{80+e}, v{66+e//4}, v{80+e}")
    for e in range(4): a(f"v_cvt_pk_bf16_f32 v{88+e}, v{80+e}, v{84+e}")
    a(f"""
    ds_write_b128 v4, v[88:91]
    ds_read2_b32 v[116:117], v5 offset0:0 offset1:1
    ds_read_b32 v118, v5 offset:8
    ds_read2_b32 v[120:121], v5 offset0:12 offset1:13
    ds_read_b32 v122, v5 offset:56
    s_waitcnt lgkmcnt(2)
    global_store_dwordx4 v6, v[116:119], {P(sWS)} sc1
    s_waitcnt lgkmcnt(0)
    global_store_dwordx4 v7, v[120:123], {P(sWS)} sc1
    """)
    stamp(a, 17)
    gen_tail(a)
    return ("ka_kernel", 256, 512, M_LDS, 256, 100, 256)

def reduce2(a, A, B):
    for m in [f"row_shr:1 {DPP_ALL} bound_ctrl:0", f"row_shr:2 {DPP_ALL} bound_ctrl:0", f"row_shr:4 {DPP_ALL} bound_ctrl:0", f"row_shr:8 {DPP_ALL} bound_ctrl:0",
              "row_bcast:15 row_mask:0xa bank_mask:0xf", "row_bcast:31 row_mask:0xc bank_mask:0xf"]:
        a(f"v_add_f32 v{A}, v{A}, v{A} {m}")
        if B is not None: a(f"v_add_f32 v{B}, v{B}, v{B} {m}")
        a("s_nop 0" if B is not None else "s_nop 1")

def gen_tail(a):
    XF, C1, SB, GB, WR = 16, 26, 36, 46, 56
    ONES, LO, HI, RC = 61, 62, 63, 15
    Z, X1, P1, T, H2, O = 64, 70, 80, 86, 96, 102
    WG_, WD_ = 136, 176
    ZG, ZA = 192, 208
    sel = lambda e: LO + (e & 1)
    sKEY, sOWN = 47, 48
    a(f"""
    s_barrier                          ; B7
    s_cmp_ge_u32 s3, 4
    s_cbranch_scc1 T_ZW
    """)
    a(f"""
    s_branch T_COM
    T_ZW:
    s_sub_u32 s40, s3, 4
    s_lshl_b32 s41, s40, 12
    s_lshl_b32 s50, s2, 14
    s_add_u32 s41, s41, s50
    s_add_u32 s41, s41, {WS_Z2}
    v_lshl_add_u32 v{ZA+3}, v2, 4, s41
    s_lshl_b32 s40, s40, 8             ; 4 * 64(w-4)
    v_lshrrev_b32 v64, 2, v2
    v_lshl_add_u32 v65, v64, 2, s40    ; 4p
    v_and_b32 v66, 3, v2               ; g
    v_mul_u32_u24 v67, {3*ZR_P}, v66
    v_add_u32 v{ZA}, v65, v67
    v_add_u32 v{ZA}, {L_ZR}, v{ZA}
    v_add_u32 v{ZA+1}, {ZR_P}, v{ZA}
    v_add_u32 v{ZA+2}, {2*ZR_P}, v{ZA}
    s_lshr_b32 s41, s2, 5
    s_sub_u32 s50, 7, s41
    s_min_u32 s41, s41, s50            ; owner k
    v_and_b32 v67, 3, v64
    v_and_b32 v65, -16, v65            ; (p>>2)*16
    v_add_u32 v65, {L_ZC}, v65
    v_mov_b32 v68, {L_ZC + 1024}
    v_cmp_eq_u32 vcc, s41, v67
    s_nop 1
    v_cndmask_b32 v65, v68, v65, vcc
    v_add_u32 v67, 4, v65
    v_add_u32 v68, 8, v65
    v_add_u32 v69, 12, v65
    v_cmp_eq_u32 vcc, 2, v66
    s_nop 1
    v_cndmask_b32 v{ZA+2}, v{ZA+2}, v65, vcc
    v_cmp_eq_u32 vcc, 3, v66
    s_nop 1
    v_cndmask_b32 v{ZA}, v{ZA}, v67, vcc
    v_cndmask_b32 v{ZA+1}, v{ZA+1}, v68, vcc
    v_cndmask_b32 v{ZA+2}, v{ZA+2}, v69, vcc
    s_cmp_lg_u32 s3, 5
    s_cbranch_scc1 T_COM
    ; wave 5: parameter tables
    s_mov_b32 s41, {SPIN}
    v_min_u32 v112, 26, v2
    v_lshlrev_b32 v112, 7, v112
    v_add_u32 v112, {WS_PF}, v112
    T_PF:
    global_load_dword v113, v112, {P(sWS)} sc1
    s_waitcnt vmcnt(0)
    v_cmp_ne_u32 vcc, s{sTAG}, v113
    s_cbranch_vccz T_PFD
    s_sub_u32 s41, s41, 1
    s_cbranch_scc0 T_PF
    T_PFD:
    v_lshlrev_b32 v64, 4, v2
    v_add_u32 v65, {WS_PT16}, v64
    s_mov_b32 m0, {L_PT}
    s_nop 0
    global_load_lds_dwordx4 v65, {P(sWS)} sc1
    global_load_lds_dwordx4 v65, {P(sWS)} offset:1024 sc1
    global_load_lds_dwordx4 v65, {P(sWS)} offset:2048 sc1
    s_mov_b64 exec, 0xffffff
    global_load_lds_dwordx4 v65, {P(sWS)} offset:3072 sc1
    s_mov_b64 exec, -1
    s_mov_b32 m0, {L_PT + 3456}
    s_nop 0
    global_load_lds_dwordx4 v64, {P(sWR)}
    s_mov_b64 exec, 0xff
    global_load_lds_dwordx4 v64, {P(sWR)} offset:1024
    s_waitcnt vmcnt(0)
    """)
    signal(a, C_P)
    a.label("T_COM")
    a(f"""
    v_mov_b32 v64, 0
    v_mov_b32 v65, 0
    v_mov_b32 v66, 0
    v_mov_b32 v67, 0
    v_lshlrev_b32 v68, 4, v0
    v_min_u32 v69, 15, v0
    v_lshlrev_b32 v69, 4, v69
    ds_write_b128 v68, v[64:67] offset:{L_LIST}
    ds_write_b128 v69, v[64:67] offset:{L_LIST + 8192}
    v_mov_b32 v{ONES}, 0x3f803f80
    v_mov_b32 v{RC}, {fbits(1.0/576)}
    """)
    for w in range(4): unpk(a, XF+2*w, XF+2*w+1, 10+w)
    a(f"""
    v_lshlrev_b32 v{XF+8}, 16, v14
    v_lshlrev_b32 v4, 4, v2
    v_add_u32 v4, {L_PT}, v4
    v_lshlrev_b32 v5, 1, v2
    v_add_u32 v5, {L_PT + 1024}, v5
    s_mul_i32 s40, s3, {ZR_P}
    s_add_u32 s40, s40, {L_ZR}
    v_lshl_add_u32 v6, v2, 4, s40
    s_lshl_b32 s40, s3, 1
    s_add_u32 s40, s40, {L_ZC}
    v_lshl_add_u32 v7, v2, 4, s40
    s_cmp_lt_u32 s3, 4
    s_cbranch_scc1 T_NZ
    s_waitcnt vmcnt(0)
    """)
    def z_issue():
        for n in range(4): a(f"global_load_dwordx4 {vr(ZG+4*n,4)}, v{ZA+3}, {P(sWS)} offset:{1024*n} sc1")
    z_issue()
    a.label("T_NZ")
    stamp(a, 18)
    spin(a, C_P, 1)
    for t, d in ((0, 112), (1, 118), (2, 124)):
        a(f"ds_read_b128 {vr(72+8*t, 4)}, v4 offset:{1152*t}")
        a(f"ds_read_u16 v{76+8*t}, v5 offset:{1152*t}")
    a(f"""
    ds_read_b128 {vr(WR,4)}, v4 offset:3456
    ds_read_u16 v{WR+4}, v5 offset:3456
    s_waitcnt lgkmcnt(4)
    """)
    for w in range(4): unpk(a, SB+2*w, SB+2*w+1, 72+w)
    a(f"v_lshlrev_b32 v{SB+8}, 16, v76")
    for w in range(4):
        a(f"v_and_b32 v{C1+2*w}, 0xffff, v{80+w}")
        a(f"v_and_b32 v{C1+2*w+1}, 0xffff0000, v{80+w}")
    a(f"v_mov_b32 v{C1+8}, v84")
    a("s_waitcnt lgkmcnt(2)")
    for w in range(4):
        a(f"v_and_b32 v{GB+2*w}, 0xffff, v{88+w}")
        a(f"v_and_b32 v{GB+2*w+1}, 0xffff0000, v{88+w}")
    a(f"""
    v_mov_b32 v{GB+8}, v92
    s_cmp_lt_u32 s3, 4
    s_cbranch_scc1 T_B9
    s_mov_b32 s41, {SPIN}
    T_ZP:
    s_waitcnt vmcnt(0)
    v_xor_b32 v64, s{sTAG}, v{ZG+3}
    v_xor_b32 v65, s{sTAG}, v{ZG+7}
    v_xor_b32 v66, s{sTAG}, v{ZG+11}
    v_xor_b32 v67, s{sTAG}, v{ZG+15}
    v_or3_b32 v64, v64, v65, v66
    v_or_b32 v64, v64, v67
    v_cmp_ne_u32 vcc, 0, v64
    s_cbranch_vccz T_ZD
    s_mov_b64 exec, vcc
    """)
    z_issue()
    a(f"""
    s_mov_b64 exec, -1
    s_sub_u32 s41, s41, 1
    s_cbranch_scc0 T_ZP
    T_ZD:
    """)
    stamp(a, 19)
    for n in range(4):
        for s_ in range(3): a(f"ds_write_b32 v{ZA+s_}, v{ZG+4*n+s_} offset:{64*n}")
    a(f"""
    T_B9:
    s_waitcnt lgkmcnt(0)
    s_barrier                          ; B9
    ds_read_b128 {vr(Z,4)}, v6
    ds_read_u16 v{Z+4}, v7
    s_waitcnt lgkmcnt(0)
    """)
    stamp(a, 20)
    def pack(dst, src):
        for i in range(4): a(f"v_cvt_pk_bf16_f32 v{dst+i}, v{src+2*i}, v{src+2*i+1}")
        a(f"v_cvt_pk_bf16_f32 v{dst+4}, v{src+8}, 0")
    def dots(dst, src, bf, cf):
        for e in (8, 0, 1, 2, 3, 4, 5, 6, 7): a(f"v_dot2_f32_bf16 v{dst+e}, v{src+e//2}, {bf(e)}, {cf(e)}")
    vsel = lambda e: f"v{sel(e)}"
    dots(X1, Z, vsel, lambda e: f"v{XF+e}")
    pack(P1, X1)
    for i in range(5):
        a(f"v_dot2_f32_bf16 v{T}, v{P1+i}, v{ONES}, {'0' if i == 0 else 'v%d' % T}")
        a(f"v_dot2_f32_bf16 v{T+2}, v{P1+i}, v{P1+i}, {'0' if i == 0 else 'v%d' % (T+2)}")
    a("s_nop 2")
    reduce2(a, T, T+2)
    a(f"""
    v_readlane_b32 s66, v{T}, 63
    v_readlane_b32 s67, v{T+2}, 63
    s_nop 0
    v_mul_f32 v{T}, s66, v{RC}
    v_mul_f32 v{T+1}, s67, v{RC}
    v_mul_f32 v{T+2}, v{T}, v{T}
    v_sub_f32 v{T+1}, v{T+1}, v{T+2}
    v_mul_f32 v{T+3}, 0x41800000, v{T+1}
    v_cmp_gt_f32 vcc, v{T+2}, v{T+3}
    s_cbranch_vccz T_FAST
    v_sub_f32 v{T+3}, 0, v{T}
    """)
    dots(X1, P1, vsel, lambda e: f"v{T+3}")
    a(f"v_mul_f32 v{T+2}, v{X1+8}, v{X1+8}")
    for e in range(8): a(f"v_fmac_f32 v{T+2}, v{X1+e}, v{X1+e}")
    a("s_nop 1")
    reduce2(a, T+2, None)
    a(f"""
    v_readlane_b32 s67, v{T+2}, 63
    s_nop 1
    v_mul_f32 v{T+1}, s67, v{RC}
    T_FAST:
    v_cvt_pk_bf16_f32 v{T+1}, -v{T}, v{T+1}
    v_lshlrev_b32 v{T}, 16, v{T+1}
    v_and_b32 v{T+1}, 0xffff0000, v{T+1}
    v_add_f32 v{T+1}, {fbits(1e-5)}, v{T+1}
    v_cvt_pk_bf16_f32 v{T+1}, v{T+1}, v{T+1}
    v_lshlrev_b32 v{T+1}, 16, v{T+1}
    v_sqrt_f32 v{T+1}, v{T+1}
    """)
    dots(X1, P1, vsel, lambda e: f"v{T}")
    a(f"""
    v_cvt_pk_bf16_f32 v{T+1}, v{T+1}, v{T+1}
    v_lshlrev_b32 v{T+1}, 16, v{T+1}
    v_rcp_f32 v{T+1}, v{T+1}
    """)
    rnd1(a, X1+8); rnd_pairs(a, [X1, X1+2, X1+4, X1+6])
    a(f"v_mul_f32 v{X1+8}, v{X1+8}, v{T+1}")
    for i in range(4): a(f"v_pk_mul_f32 {vr(X1+2*i,2)}, {vr(X1+2*i,2)}, {vr(T,2)} op_sel:[0,1] op_sel_hi:[1,1]")
    pack(Z, X1)
    dots(X1, Z, lambda e: f"v{C1+e}", lambda e: "0")
    pack(Z, X1)
    dots(X1, Z, vsel, lambda e: f"v{SB+e}")
    pack(H2, X1)
    for i in range(5): a(f"v_dot2_f32_bf16 v{T}, v{H2+i}, v{WR+i}, {'0' if i == 0 else 'v%d' % T}")
    a(f"""
    s_lshl_b32 s40, s2, 3
    s_add_u32 s40, s40, s3
    s_sub_u32 s40, 0xffff, s40
    """)
    reduce2(a, T, None)
    a(f"""
    v_cvt_pk_bf16_f32 v{T}, v{T}, v{T}
    s_lshl_b32 s41, s3, 3
    v_mov_b32 v{T+2}, s41
    v_readlane_b32 s{sKEY}, v{T}, 63
    v_mov_b32 v{T+1}, s{sTAG}
    s_and_b32 s{sKEY}, s{sKEY}, 0xffff0000
    s_ashr_i32 s41, s{sKEY}, 31
    s_or_b32 s41, s41, 0x80000000
    s_xor_b32 s{sKEY}, s{sKEY}, s41
    s_and_b32 s{sKEY}, s{sKEY}, 0xffff0000
    s_or_b32 s{sKEY}, s{sKEY}, s40
    v_mov_b32 v{T}, s{sKEY}
    s_mov_b64 exec, 1
    ds_write_b64 v{T+2}, {vr(T,2)} offset:{L_CNT + C_KEYS}
    ds_add_rtn_u32 v{T+3}, v{VZ}, v{VONE} offset:{L_CNT + C_KEY}
    s_mov_b64 exec, -1
    v_and_b32 v4, 3, v2
    v_lshlrev_b32 v4, 4, v4
    v_lshrrev_b32 v5, 2, v2
    v_lshlrev_b32 v5, 14, v5
    s_lshl_b32 s41, s2, 6
    s_add_u32 s41, s41, {WS_KEY}
    v_add3_u32 v5, v5, v4, s41
    s_waitcnt lgkmcnt(0)
    v_readfirstlane_b32 s41, v{T+3}
    s_cmp_lg_u32 s41, 7
    s_cbranch_scc1 T_NK
    ds_read_b128 v[108:111], v4 offset:{L_CNT + C_KEYS}
    {"s_mov_b32 exec_hi, 0" if NREP == 8 else ("" if NREP == 16 else "s_mov_b64 exec, %s" % hex((1 << (4*NREP)) - 1))}
    s_waitcnt lgkmcnt(0)
    global_store_dwordx4 v5, v[108:111], {P(sWS)} sc1
    s_mov_b64 exec, -1
    T_NK:
    """)
    stamp(a, 21)
    a(f"""
    s_cmp_ge_u32 s2, 144
    s_cbranch_scc1 T_NGU
    v_lshrrev_b32 v4, 2, v2
    s_and_b32 s40, s3, 3
    s_mul_i32 s40, s40, 144
    v_add_u32 v4, s40, v4
    v_mul_u32_u24 v4, 9216, v4
    v_and_b32 v5, 3, v2
    v_lshl_add_u32 v4, v5, 4, v4
    s_lshl_b32 s40, s46, 6
    v_add_u32 v4, s40, v4
    s_mul_i32 s40, s3, 9216
    s_add_u32 m0, s40, {L_GU}
    s_cmp_ge_u32 s3, 4
    s_cselect_b32 s50, s{sWU}, s{sWG}
    s_cselect_b32 s51, s{sWU+1}, s{sWG+1}
    s_mov_b32 s40, {16*9216}
    """)
    for i in range(9):
        a(f"global_load_lds_dwordx4 v4, s[50:51] {E('F_GFL', '')}")
        if i < 8:
            a("s_add_u32 m0, m0, 1024")
            a("v_add_u32 v4, s40, v4")
    a.label("T_NGU")
    dots(X1, H2, lambda e: f"v{GB+e}", lambda e: "0")
    for w in range(4): unpk(a, XF+2*w, XF+2*w+1, P1+w)
    a(f"v_lshlrev_b32 v{XF+8}, 16, v{P1+4}")
    pack(Z, X1)
    dots(X1, Z, vsel, lambda e: f"v{XF+e}")
    a(f"""
    s_and_b32 s40, s2, {NREP-1}
    s_lshl_b32 s40, s40, 14
    s_lshl_b32 s50, s3, 11
    s_add_u32 s40, s40, s50
    s_add_u32 s40, s40, {WS_KEY}
    v_lshl_add_u32 v6, v2, 4, s40
    """)
    pack(O, X1)
    a(f"""
    s_cmp_lg_u32 s41, 7
    s_cbranch_scc1 T_NK2
    s_cmp_lt_u32 s2, 144
    s_cbranch_scc1 T_NK3
    s_waitcnt vmcnt(0)
    T_NK3:
    s_waitcnt vmcnt(9)
    """)
    signal(a, C_KP)
    a(f"""
    T_NK2:
    """)
    KK = 108
    def k_issue():
        a(f"global_load_dwordx4 {vr(KK,4)}, v6, {P(sWS)} sc1")
        a(f"global_load_dwordx4 {vr(KK+4,4)}, v6, {P(sWS)} offset:1024 sc1")
    spin(a, C_KP, 1)
    k_issue()
    stamp(a, 22)
    a(f"""
    v_and_b32 v4, 3, v2
    v_lshlrev_b32 v4, 3, v4
    s_mov_b32 s41, {SPIN}
    T_KP:
    s_waitcnt vmcnt(0)
    v_xor_b32 v64, s{sTAG}, v{KK+1}
    v_xor_b32 v65, s{sTAG}, v{KK+3}
    v_xor_b32 v66, s{sTAG}, v{KK+5}
    v_xor_b32 v67, s{sTAG}, v{KK+7}
    v_or3_b32 v64, v64, v65, v66
    v_or_b32 v64, v64, v67
    v_cmp_ne_u32 vcc, 0, v64
    s_cbranch_vccz T_KD
    s_mov_b64 exec, vcc
    """)
    k_issue()
    a(f"""
    s_mov_b64 exec, -1
    s_sub_u32 s41, s41, 1
    s_cbranch_scc0 T_KP
    T_KD:
    """)
    stamp(a, 23)
    a(f"""
    v_max_u32 v64, v{KK}, v{KK+4}
    v_max_u32 v65, v{KK+2}, v{KK+6}
    s_nop 0
    v_max_u32 v64, v64, v64 row_shr:4 {DPP_ALL} bound_ctrl:0
    v_max_u32 v65, v65, v65 row_shr:4 {DPP_ALL} bound_ctrl:0
    s_nop 0
    v_max_u32 v64, v64, v64 row_shr:8 {DPP_ALL} bound_ctrl:0
    v_max_u32 v65, v65, v65 row_shr:8 {DPP_ALL} bound_ctrl:0
    s_mov_b32 exec_lo, 0xf000f000
    s_mov_b32 exec_hi, 0xf000f000
    ds_max_u32 v4, v64 offset:{L_CNT + C_MX}
    ds_max_u32 v4, v65 offset:{L_CNT + C_MX + 4}
    s_mov_b64 exec, -1
    s_waitcnt lgkmcnt(0)
    s_barrier                          ; B10
    ds_read_b128 v[64:67], v{VZ} offset:{L_CNT + C_MX}
    ds_read_b128 v[68:71], v{VZ} offset:{L_CNT + C_MX + 16}
    s_waitcnt lgkmcnt(0)
    v_min3_u32 v64, v64, v65, v66
    v_min3_u32 v68, v68, v69, v70
    v_min3_u32 v64, v64, v67, v71
    v_min_u32 v64, v64, v68            ; theta
    """)
    for i in range(4): a(f"v_cmp_ge_u32 s[{66+2*i}:{67+2*i}], v{KK+2*i}, v64")
    a(f"""
    s_bcnt1_i32_b64 s74, s[66:67]
    s_bcnt1_i32_b64 s75, s[68:69]
    s_bcnt1_i32_b64 s76, s[70:71]
    s_bcnt1_i32_b64 s77, s[72:73]
    s_add_u32 s75, s75, s74
    s_add_u32 s76, s76, s75
    s_add_u32 s77, s77, s76
    v_mov_b32 v65, s77
    s_mov_b64 exec, 1
    ds_add_rtn_u32 v66, v{VZ}, v65 offset:{L_CNT + C_N}
    s_mov_b64 exec, -1
    """)
    for i in range(4):
        a(f"v_mbcnt_lo_u32_b32 v{68+i}, s{66+2*i}, {0 if i == 0 else 's%d' % (73+i)}" if i == 0 else f"v_mov_b32 v{68+i}, s{73+i}")
        if i: a(f"v_mbcnt_lo_u32_b32 v{68+i}, s{66+2*i}, v{68+i}")
        a(f"v_mbcnt_hi_u32_b32 v{68+i}, s{67+2*i}, v{68+i}")
    a(f"""
    s_waitcnt lgkmcnt(0)
    v_readfirstlane_b32 s74, v66
    s_nop 1
    """)
    for i in range(4):
        a(f"v_add_lshl_u32 v{68+i}, v{68+i}, s74, 2")
    for i in range(4):
        a(f"s_mov_b64 exec, s[{66+2*i}:{67+2*i}]")
        a(f"ds_write_b32 v{68+i}, v{KK+2*i} offset:{L_LIST}")
    a(f"""
    s_mov_b64 exec, -1
    v_lshlrev_b32 v4, 2, v2
    s_mov_b32 s{sOWN}, 8
    s_mov_b32 s76, 0
    s_waitcnt lgkmcnt(0)
    s_barrier                          ; B11
    ds_read_b32 v65, v{VZ} offset:{L_CNT + C_N}
    T_OUT:
    ds_read_b32 v64, v4 offset:{L_LIST}
    """)
    NPRE = 6
    for i in range(NPRE): a(f"ds_read_b128 {vr(KK+4*i,4)}, v{VZ} offset:{L_LIST + 16*i}")
    a(f"""
    v_mov_b32 v66, 0
    v_mov_b32 v67, {16*NPRE}
    s_waitcnt lgkmcnt({NPRE})
    v_readfirstlane_b32 s74, v65       ; n
    """)
    for i in range(NPRE):
        a(f"s_waitcnt lgkmcnt({NPRE-1-i})")
        for e in range(4):
            a(f"v_cmp_gt_u32 vcc, v{KK+4*i+e}, v64")
            a(f"v_addc_co_u32 v66, vcc, 0, v66, vcc")
        if i in (2, 3, 4):
            a(f"s_cmp_le_u32 s74, {4*i+4}")
            a("s_cbranch_scc1 T_RK")
    a(f"""
    s_mov_b32 s75, {4*NPRE}
    T_IN:
    s_cmp_ge_u32 s75, s74
    s_cbranch_scc1 T_RK
    ds_read_b128 {vr(KK,4)}, v67 offset:{L_LIST}
    v_add_u32 v67, 16, v67
    s_add_u32 s75, s75, 4
    s_waitcnt lgkmcnt(0)
    """)
    for e in range(4):
        a(f"v_cmp_gt_u32 vcc, v{KK+e}, v64")
        a(f"v_addc_co_u32 v66, vcc, 0, v66, vcc")
    a(f"""
    s_branch T_IN
    T_RK:
    s_waitcnt lgkmcnt(0)
    v_cmp_eq_u32 vcc, s{sKEY}, v64
    v_min_u32 v66, 8, v66
    v_lshlrev_b32 v67, 2, v66
    s_ff1_i32_b64 s75, vcc
    ds_write_b32 v67, v64 offset:{L_CNT + C_SEL}
    s_cbranch_vccz T_NOWN
    v_readlane_b32 s{sOWN}, v66, s75
    T_NOWN:
    v_add_u32 v4, 256, v4
    s_add_u32 s76, s76, 64
    s_cmp_lt_u32 s76, s74
    s_cbranch_scc1 T_OUT
    """)
    stamp(a, 24)
    a(f"""
    s_lshl_b32 s40, s2, 3
    s_add_u32 s40, s40, s3
    s_mul_i32 s40, s40, 1152
    s_cmp_lt_u32 s{sOWN}, 8
    s_cbranch_scc0 T_STO
    s_mul_i32 s40, s{sOWN}, 3072
    s_add_u32 s40, s40, {WS_ROW}
    v_lshl_add_u32 v4, v2, 4, s40
    v_mov_b32 v64, v{H2+3}
    v_mov_b32 v65, v{P1+3}
    v_lshl_or_b32 v66, v{P1+4}, 16, v{H2+4}
    v_mov_b32 v67, s{sTAG}
    v_mov_b32 v{H2+3}, s{sTAG}
    v_mov_b32 v{P1+3}, s{sTAG}
    """)
    for r_ in range(RREP):
        a(f"global_store_dwordx4 v4, {vr(H2,4)}, {P(sWS)} sc1")
        a(f"global_store_dwordx4 v4, v[64:67], {P(sWS)} offset:1024 sc1")
        a(f"global_store_dwordx4 v4, {vr(P1,4)}, {P(sWS)} offset:2048 sc1")
        if r_ < RREP - 1: a("v_add_u32 v4, 24576, v4")
    a(f"""
    s_branch T_STD
    T_STO:
    v_lshl_add_u32 v4, v2, 4, s40
    v_lshl_add_u32 v5, v2, 1, s40
    global_store_dwordx4 v4, {vr(O,4)}, {P(sOUT)}
    global_store_short v5, v{O+4}, {P(sOUT)} offset:1024
    T_STD:
    s_cmp_ge_u32 s2, 144
    s_cbranch_scc1 T_END
    s_mul_i32 s40, s3, 3072
    s_lshr_b32 s41, s2, 3
    s_and_b32 s41, s41, {RREP-1}
    s_mul_i32 s41, s41, 24576
    s_add_u32 s40, s40, s41
    s_add_u32 s40, s40, {WS_ROW}
    v_lshl_add_u32 v4, v2, 4, s40
    s_mul_i32 s40, s3, {SR_P}
    s_add_u32 s40, s40, {L_SH}
    v_lshl_add_u32 v5, v2, 4, s40
    v_lshl_add_u32 v6, v2, 1, s40
    s_mov_b32 s41, {SPIN}
    """)
    a(f"""
    v_bfe_u32 v7, v2, 2, 2             ; r
    v_lshrrev_b32 v8, 4, v2            ; q
    v_lshl_add_u32 v7, v8, 3, v7       ; 8q + r
    v_and_b32 v8, 3, v2
    v_lshlrev_b32 v8, 3, v8            ; 8c
    v_mul_u32_u24 v9, 1152, v7
    v_add_u32 v9, v9, v8
    s_lshl_b32 s40, s3, 5
    s_add_u32 s40, s40, {L_DN}
    v_add_u32 v9, s40, v9
    v_lshl_add_u32 v7, v7, 6, v8
    s_lshr_b32 s40, s3, 1
    s_mul_i32 s50, s40, 5
    s_cmp_eq_u32 s40, 3
    s_cselect_b32 s50, 14, s50
    s_lshl_b32 s51, s50, 11
    s_and_b32 s40, s3, 1
    s_lshl_b32 s40, s40, 5
    s_add_u32 s40, s40, s51
    s_add_u32 s40, s40, {L_GU}
    v_add_u32 v7, s40, v7
    """)
    for i in range(5):
        a(f"ds_read_b64_tr_b16 {vr(WG_+8*i,2)}, v7 offset:{2048*i}")
        a(f"ds_read_b64_tr_b16 {vr(WG_+8*i+2,2)}, v7 offset:{2048*i + 256}")
        a(f"ds_read_b64_tr_b16 {vr(WG_+8*i+4,2)}, v7 offset:{36864 + 2048*i}")
        a(f"ds_read_b64_tr_b16 {vr(WG_+8*i+6,2)}, v7 offset:{36864 + 2048*i + 256}")
    for i in range(5):
        a(f"ds_read_b64_tr_b16 {vr(WD_+4*i,2)}, v9 offset:{256*i}")
        a(f"ds_read_b64_tr_b16 {vr(WD_+4*i+2,2)}, v9 offset:{256*i + 4608}")
    a(f"""
    T_RP:
    global_load_dwordx4 v[64:67], v4, {P(sWS)} sc1
    global_load_dwordx4 v[68:71], v4, {P(sWS)} offset:1024 sc1
    global_load_dwordx4 v[72:75], v4, {P(sWS)} offset:2048 sc1
    v_and_b32 v7, 7, v2
    v_mul_u32_u24 v17, 80, v7
    v_mul_u32_u24 v7, {SR_P}, v7
    v_and_b32 v8, 0x30, v2
    v_add_u32 v17, v17, v8
    s_lshl_b32 s40, s50, 6
    s_add_u32 s40, s40, {L_SH}
    v_add3_u32 v7, v7, v8, s40
    s_lshl_b32 s40, s3, 10
    s_add_u32 s40, s40, {L_GP}
    v_lshl_add_u32 v8, v2, 4, s40
    v_and_b32 v9, 1, v2
    v_lshlrev_b32 v9, 9, v9
    v_bfe_u32 v16, v2, 1, 4
    v_lshl_add_u32 v9, v16, 4, v9
    v_lshrrev_b32 v16, 5, v2
    v_lshl_add_u32 v9, v16, 10, v9
    s_lshr_b32 s40, s3, 2
    s_lshl_b32 s40, s40, 8
    s_and_b32 s51, s3, 3
    s_lshl_b32 s51, s51, 2
    s_add_u32 s40, s40, s51
    s_add_u32 s40, s40, {L_GP}
    v_add_u32 v9, s40, v9
    s_mul_i32 s40, s3, 80
    v_and_b32 v16, -2, v2
    v_add_u32 v16, s40, v16
    s_waitcnt vmcnt(0)
    v_xor_b32 v76, s{sTAG}, v67
    v_xor_b32 v77, s{sTAG}, v71
    v_xor_b32 v78, s{sTAG}, v75
    v_or3_b32 v76, v76, v77, v78
    v_cmp_ne_u32 vcc, 0, v76
    s_cbranch_vccz T_RD
    s_sub_u32 s41, s41, 1
    s_cbranch_scc0 T_RP
    T_RD:
    v_mov_b32 v67, v68
    v_mov_b32 v75, v69
    ds_write_b128 v5, v[64:67]
    ds_write_b16 v6, v70 offset:1024
    ds_write_b128 v5, v[72:75] offset:{L_SX - L_SH}
    ds_write_b16_d16_hi v6, v70 offset:{L_SX - L_SH + 1024}
    s_waitcnt lgkmcnt(2)
    """)
    stamp(a, 25)
    a("s_barrier                          ; B12")
    AF = 64; AG, AU = 84, 88
    for i in range(5): a(f"ds_read_b128 {vr(AF+4*i,4)}, v7 offset:{64*i}")
    for i in range(5):
        if i == 4: a("s_cmp_ge_u32 s3, 4"); a("s_cbranch_scc1 T_G4")
        a(f"s_waitcnt lgkmcnt({4-i})")
        a(f"v_mfma_f32_16x16x32_bf16 {vr(AG,4)}, {vr(AF+4*i,4)}, {vr(WG_+8*i,4)}, {'0' if i == 0 else vr(AG,4)}")
        a(f"v_mfma_f32_16x16x32_bf16 {vr(AU,4)}, {vr(AF+4*i,4)}, {vr(WG_+8*i+4,4)}, {'0' if i == 0 else vr(AU,4)}")
    a(f"""
    T_G4:
    v_lshrrev_b32 v18, 5, v2
    v_lshlrev_b32 v18, 5, v18
    v_bfe_u32 v19, v2, 3, 2
    v_add_u32 v18, v18, v19
    s_lshl_b32 s40, s3, 2
    v_add_u32 v18, s40, v18
    v_mul_u32_u24 v18, {144*128}, v18
    s_mov_b32 exec_hi, 0
    ds_write_b128 v8, {vr(AG,4)}
    ds_write_b128 v8, {vr(AU,4)} offset:512
    s_mov_b64 exec, -1
    v_and_b32 v19, 7, v2
    v_lshl_add_u32 v18, v19, 4, v18
    s_lshl_b32 s40, s2, 7
    s_add_u32 s40, s40, {WS_PT}
    v_add_u32 v18, s40, v18
    v_add_u32 v19, {64*144*128}, v18
    v_add_u32 v20, {128*144*128}, v18
    s_waitcnt lgkmcnt(0)
    s_barrier                          ; B13
    ds_read_b32 v64, v9
    ds_read_b32 v65, v9 offset:2048
    ds_read_b32 v66, v9 offset:4096
    ds_read_b32 v67, v9 offset:6144
    s_mov_b32 s52, 0x05030201
    s_mov_b32 s53, 0x06050302
    s_mov_b32 s54, 0x07060503
    v_mov_b32 v71, s{sTAG}
    v_mov_b32 v75, s{sTAG}
    v_mov_b32 v79, s{sTAG}
    s_waitcnt lgkmcnt(2)
    v_add_f32 v64, v64, v65
    s_waitcnt lgkmcnt(0)
    v_add_f32 v66, v66, v67
    v_add_f32 v64, v64, v66
    v_cvt_pk_bf16_f32 v64, v64, v64
    v_lshlrev_b32 v64, 16, v64
    v_mul_f32 v65, {fbits(-LOG2E)}, v64
    v_exp_f32 v65, v65
    s_nop 0
    v_add_f32 v65, 1.0, v65
    v_rcp_f32 v65, v65
    s_nop 0
    v_mul_f32 v65, v64, v65
    v_cvt_pk_bf16_f32 v65, v65, v65
    v_lshlrev_b32 v65, 16, v65
    s_nop 0
    v_mul_f32 v65, v64, v65 quad_perm:[1,1,3,3] {DPP_ALL}
    v_cvt_pk_bf16_f32 v65, v65, v65
    s_mov_b32 exec_lo, 0x55555555
    s_mov_b32 exec_hi, 0x55555555
    ds_write_b16 v16, v65 offset:{L_ACT}
    s_mov_b64 exec, -1
    s_waitcnt lgkmcnt(0)
    s_barrier                          ; B14
    ds_read_b128 v[64:67], v17 offset:{L_ACT}
    s_waitcnt lgkmcnt(0)
    """)
    stamp(a, 26)
    DA = 80
    for i in range(5): a(f"v_mfma_f32_16x16x32_bf16 {vr(DA+4*i,4)}, v[64:67], {vr(WD_+4*i,4)}, 0")
    a(f"""
    s_mul_i32 s40, s2, {144*128}
    s_add_u32 s40, s40, {WS_PT}
    v_lshl_add_u32 v4, v0, 4, s40
    v_add_u32 v5, 8192, v4
    v_add_u32 v6, 16384, v4
    s_nop 0
    """)
    def p24(d, s_):
        a(f"v_perm_b32 v{d}, v{s_+1}, v{s_}, s52")
        a(f"v_perm_b32 v{d+1}, v{s_+2}, v{s_+1}, s53")
        a(f"v_perm_b32 v{d+2}, v{s_+3}, v{s_+2}, s54")
    for r_ in range(4): a(f"v_permlane32_swap_b32 v{DA+r_}, v{DA+4+r_}")
    p24(68, DA)
    a(f"global_store_dwordx4 v18, v[68:71], {P(sWS)} sc1")
    for r_ in range(4): a(f"v_permlane32_swap_b32 v{DA+8+r_}, v{DA+12+r_}")
    p24(72, DA+8)
    a(f"global_store_dwordx4 v19, v[72:75], {P(sWS)} sc1")
    a("s_cmp_ge_u32 s3, 4")
    a("s_cbranch_scc1 T_NS3")
    p24(76, DA+16)
    a(f"""
    s_mov_b32 exec_hi, 0
    global_store_dwordx4 v20, v[76:79], {P(sWS)} sc1
    s_mov_b64 exec, -1
    T_NS3:
    """)
    stamp(a, 27)
    a(f"""
    s_cmp_lg_u32 s3, 7
    s_cbranch_scc1 T_NF
    s_lshr_b32 s40, s2, 2
    s_lshl_b32 s40, s40, 4
    s_and_b32 s41, s2, 1
    s_lshl_b32 s41, s41, 3
    s_add_u32 s40, s40, s41
    v_and_b32 v24, 7, v2
    v_add_u32 v24, s40, v24
    v_lshlrev_b32 v24, 1, v24          ; 2d
    v_bfe_u32 v25, v2, 3, 2
    s_and_b32 s41, s2, 2
    s_lshl_b32 s41, s41, 1
    v_add_u32 v25, s41, v25            ; row
    v_lshlrev_b32 v26, 2, v25
    v_mul_u32_u24 v25, {SR_P}, v25
    v_add_u32 v25, v25, v24
    v_add_u32 v27, {L_PT + 2304}, v24
    ds_read_b32 v28, v26 offset:{L_CNT + C_SEL}
    ds_read_u16 v29, v25 offset:{L_SH}
    ds_read_u16 v30, v25 offset:{L_SX}
    ds_read_u16 v31, v27
    s_waitcnt lgkmcnt(0)
    v_and_b32 v32, 0xffff, v28
    v_sub_u32 v32, 0xffff, v32
    v_min_u32 v32, 2047, v32
    v_mul_u32_u24 v32, 1152, v32
    v_add_u32 v32, v32, v24
    v_ashrrev_i32 v33, 31, v28
    v_not_b32 v33, v33
    v_or_b32 v33, 0x80000000, v33
    v_xor_b32 v33, v33, v28
    v_and_b32 v33, 0xffff0000, v33     ; r
    v_mul_f32 v33, {fbits(-LOG2E)}, v33
    v_exp_f32 v33, v33
    v_lshlrev_b32 v29, 16, v29
    v_add_f32 v33, 1.0, v33
    v_rcp_f32 v33, v33
    v_lshlrev_b32 v30, 16, v30
    v_cvt_pk_bf16_f32 v33, v33, v33
    v_lshlrev_b32 v33, 16, v33
    v_lshlrev_b32 v31, 16, v31
    s_cmp_lg_u32 s2, 0
    s_cbranch_scc1 T_NF
    v_mov_b32 v34, {WS_EPOCH}
    v_mov_b32 v35, s{sTAG}
    s_mov_b64 exec, 1
    global_store_dword v34, v35, {P(sWS)}
    s_mov_b64 exec, -1
    T_NF:
    s_mov_b32 s52, 0x0201000c
    s_mov_b32 s53, 0x0504030c
    s_mov_b32 s54, 0x0403020c
    s_mov_b32 s55, 0x0302010c
    v_mov_b32 v107, s{sTAG}
    v_mov_b32 v104, 0
    v_mov_b32 v105, 0
    v_mov_b32 v106, 0
    v_bfe_u32 v7, v2, 4, 2
    v_lshlrev_b32 v7, 5, v7
    v_and_b32 v8, 7, v2
    v_lshl_add_u32 v7, v8, 2, v7
    s_lshl_b32 s40, s3, 7
    v_add_u32 v7, s40, v7
    s_mov_b32 s41, {SPIN}
    s_waitcnt vmcnt(0)
    T_GP:
    global_load_dwordx4 v[96:99], v4, {P(sWS)} sc1
    global_load_dwordx4 v[100:103], v5, {P(sWS)} sc1
    s_cmp_ge_u32 s3, 2
    s_cbranch_scc1 T_G3
    global_load_dwordx4 v[104:107], v6, {P(sWS)} sc1
    T_G3:
    s_waitcnt vmcnt(0)
    s_mov_b64 exec, -1
    v_xor_b32 v64, s{sTAG}, v99
    v_xor_b32 v65, s{sTAG}, v103
    v_xor_b32 v66, s{sTAG}, v107
    v_or3_b32 v64, v64, v65, v66
    v_cmp_ne_u32 vcc, 0, v64
    s_cbranch_vccz T_GD
    s_mov_b64 exec, vcc
    s_sub_u32 s41, s41, 1
    s_cbranch_scc0 T_GP
    s_mov_b64 exec, -1
    T_GD:
    """)
    stamp(a, 28)
    for n in range(3):
        g = 96 + 4*n; d = 64 + 4*n
        a(f"v_perm_b32 v{d}, v{g}, v{g}, s52")
        a(f"v_perm_b32 v{d+1}, v{g+1}, v{g}, s53")
        a(f"v_perm_b32 v{d+2}, v{g+2}, v{g+1}, s54")
        a(f"v_perm_b32 v{d+3}, v{g+2}, v{g+2}, s55")
    for e in range(4): a(f"v_add_f32 v{64+e}, v{64+e}, v{68+e}")
    for e in range(4): a(f"v_add_f32 v{64+e}, v{64+e}, v{72+e}")
    a(f"""
    s_nop 1
    v_permlane32_swap_b32 v64, v66
    v_permlane32_swap_b32 v65, v67
    v_add_f32 v64, v64, v66
    v_add_f32 v65, v65, v67
    s_nop 1
    v_permlane16_swap_b32 v64, v65
    v_add_f32 v64, v64, v65
    s_nop 1
    v_add_f32 v64, v64, v64 row_shl:8 row_mask:0xf bank_mask:0x3
    s_mov_b32 exec_lo, 0x00ff00ff
    s_mov_b32 exec_hi, 0x00ff00ff
    ds_write_b32 v7, v64 offset:{L_RED}
    s_mov_b64 exec, -1
    v_lshlrev_b32 v8, 2, v2
    s_waitcnt lgkmcnt(0)
    s_barrier                          ; B15
    s_cmp_lg_u32 s3, 7
    s_cbranch_scc1 T_END
    """)
    for w in range(8): a(f"ds_read_b32 v{64+w}, v8 offset:{L_RED + 128*w}")
    a("s_waitcnt lgkmcnt(4)")
    a("v_add_f32 v64, v64, v65"); a("v_add_f32 v66, v66, v67")
    a("s_waitcnt lgkmcnt(0)")
    a("v_add_f32 v68, v68, v69"); a("v_add_f32 v70, v70, v71")
    a("v_add_f32 v64, v64, v66"); a("v_add_f32 v68, v68, v70"); a("v_add_f32 v64, v64, v68")
    rnd1(a, 64); a("v_mul_f32 v64, v64, v33")
    rnd1(a, 64); a("v_add_f32 v64, v64, v29")
    rnd1(a, 64); a("v_mul_f32 v64, v64, v31")
    rnd1(a, 64); a("v_add_f32 v64, v64, v30")
    a(f"""
    v_cvt_pk_bf16_f32 v64, v64, v64
    s_mov_b32 exec_hi, 0
    global_store_short v32, v64, {P(sOUT)}
    """)
    if int(E("F_DBG", "0")): a(f"""
    s_cmp_ge_u32 s2, 4
    s_cbranch_scc1 T_END
    v_lshlrev_b32 v26, 0, v26
    v_add_u32 v26, {WS_SEL}, v26
    global_store_dword v26, v28, {P(sWS)}
    """)
    a.label("T_END")
    diag_end(a)
    stamp_flush(a, 29, 0)
    a.label("M_END")
    a("s_endpgm")
```

```python
from nc import *
import re
KG_PITCH = 272
KG_STAGE = 16 * KG_PITCH
L_PRM = 0
L_ZERO = 512
L_STG = 1536
L_PART = 1536
L_LNR = L_STG + 25600
L_CB = L_LNR + 4 * 2592
KC_P = 4160
L_KC2 = L_CB + 1024
L_STG2 = L_KC2
L_HB = L_KC2 + 4 * KC_P
HB_P = 4608
L_TAB = 69120
TP = 2816
L_KC = L_TAB + 6 * TP
L_DN = L_KC + 8 * KC_P
L_PT = L_DN + 36864
M_LDS = L_PT + 4608
L_GU = L_DN - 73728
L_G, L_U, L_D2 = L_DN, L_GU, L_GU + 36864
assert L_KC % 64 == 0 and L_KC2 % 64 == 0 and L_HB + 3 * HB_P <= L_TAB
ZR_P = 1056
L_ZR = 1536
L_ZC = L_ZR + 8 * ZR_P
L_LIST = L_ZC + 1280
SR_P = 1168
L_SH = L_LIST + 8448
L_SX = L_SH + 8 * SR_P
L_GP = L_ZR
L_ACT = L_SX + 8 * SR_P
L_RED = L_ACT + 640
assert L_RED + 1024 <= L_GU
WS_Z2 = 0x600000; WS_KEY = 0x10000; WS_ROW = 0x60000; WS_PT16 = 0x70000; WS_PF = 0x72000; WS_PT = 0xA00000; WS_EPOCH = 0xD00000
DNAT = E("F_DN", "ln2")
LATE_DN = DNAT in ("nd", "b9s", "b7s", "dir", "kp")
NREP = int(E("F_NREP", "8")); RREP = int(E("F_RREP", "1"))
NT = E("M_NT", "nt")
PNT = E("M_PNT", "")
XNT = E("M_XNT", "nt")
ZST = E("M_ZST", "")
SPIN = 1 << 16
BETA = float(E('BETA', '1.25'))
KST = int(E('KST', '0'))
W2LATE = int(E('M_W2LATE', '1'))
CPL = int(E('M_CPL', '10'))
DIRECT = {1, 8, 128, 1024}
sTAG, sD, sHH, sKS = 38, 42, 43, 44
sDAB, sDC, sLD = 46, 47, 48

L_CNT = L_PRM + 192
C_LN, C_TAG, C_TAB, C_K, C_H = 0, 4, 16, 32, 48
C_P, C_KEY, C_N, C_KP, C_PR = 52, 56, 60, 64, 80
C_MX, C_KEYS, C_SEL = 96, 128, 192
L_TAG = L_CNT + C_TAG
VZ, VONE = 248, 249
def signal(a, off, vaddr=None):
    a("s_mov_b64 exec, 1")
    a(f"ds_add_u32 v{vaddr or VZ}, v{VONE} offset:{L_CNT + off}")
    a("s_mov_b64 exec, -1")
def spin(a, off, n, vaddr=None, vt=251, st=94):
    l = a.newlabel("SP")
    a(f"""
    {l}:
    ds_read_b32 v{vt}, v{vaddr or VZ} offset:{L_CNT + off}
    s_waitcnt lgkmcnt(0)
    v_readfirstlane_b32 s{st}, v{vt}
    s_cmp_ge_u32 s{st}, {n}
    s_cbranch_scc0 {l}
    """)

def ln_stats(a, X, T, sX0, vC):
    D = T + 4
    a(f"v_readfirstlane_b32 s{sX0}, v{X}")
    a("s_nop 1")
    a(f"v_subrev_f32 v{D+8}, s{sX0}, v{X+8}")
    a(f"s_mov_b32 s{sX0+1}, s{sX0}")
    for i in range(4): a(f"v_pk_add_f32 {vr(D+2*i,2)}, {vr(X+2*i,2)}, s[{sX0}:{sX0+1}] neg_lo:[0,1] neg_hi:[0,1]")
    a(f"v_pk_mul_f32 {vr(T+2,2)}, {vr(D,2)}, {vr(D,2)}")
    a(f"v_pk_add_f32 {vr(T,2)}, {vr(D,2)}, {vr(D+2,2)}")
    a(f"v_pk_fma_f32 {vr(T+2,2)}, {vr(D+2,2)}, {vr(D+2,2)}, {vr(T+2,2)}")
    a(f"v_pk_add_f32 {vr(D,2)}, {vr(D+4,2)}, {vr(D+6,2)}")
    a(f"v_pk_fma_f32 {vr(T+2,2)}, {vr(D+4,2)}, {vr(D+4,2)}, {vr(T+2,2)}")
    a(f"v_pk_add_f32 {vr(T,2)}, {vr(T,2)}, {vr(D,2)}")
    a(f"v_pk_fma_f32 {vr(T+2,2)}, {vr(D+6,2)}, {vr(D+6,2)}, {vr(T+2,2)}")
    a(f"v_add_f32 v{T}, v{T}, v{T+1}")
    a(f"v_fmac_f32 v{T+2}, v{D+8}, v{D+8}")
    a(f"v_add_f32 v{T}, v{T}, v{D+8}")
    a(f"v_add_f32 v{T+2}, v{T+2}, v{T+3}")
    a("s_nop 0")
    for m in [f"row_shr:1 {DPP_ALL} bound_ctrl:0", f"row_shr:2 {DPP_ALL} bound_ctrl:0", f"row_shr:4 {DPP_ALL} bound_ctrl:0", f"row_shr:8 {DPP_ALL} bound_ctrl:0",
              "row_bcast:15 row_mask:0xa bank_mask:0xf", "row_bcast:31 row_mask:0xc bank_mask:0xf"]:
        a(f"v_add_f32 v{T}, v{T}, v{T} {m}")
        a(f"v_add_f32 v{T+2}, v{T+2}, v{T+2} {m}")
        a("s_nop 0")
    a(f"""
    v_readlane_b32 s{sX0+2}, v{T}, 63
    v_readlane_b32 s{sX0+3}, v{T+2}, 63
    s_nop 0
    v_mul_f32 v{T}, s{sX0+2}, v{vC}
    v_mul_f32 v{T+1}, s{sX0+3}, v{vC}
    v_fma_f32 v{T+1}, -v{T}, v{T}, v{T+1}
    v_add_f32 v{T}, s{sX0}, v{T}
    v_max_f32 v{T+1}, 0, v{T+1}
    v_cvt_pk_bf16_f32 v{T+1}, v{T}, v{T+1}
    v_lshlrev_b32 v{T}, 16, v{T+1}
    v_and_b32 v{T+1}, 0xffff0000, v{T+1}
    v_add_f32 v{T+1}, {fbits(1e-5)}, v{T+1}
    v_cvt_pk_bf16_f32 v{T+1}, v{T+1}, v{T+1}
    v_lshlrev_b32 v{T+1}, 16, v{T+1}
    v_sqrt_f32 v{T+1}, v{T+1}
    """)
    a(f"v_sub_f32 v{D+8}, v{X+8}, v{T}")
    for i in range(4): a(f"v_pk_add_f32 {vr(D+2*i,2)}, {vr(X+2*i,2)}, {vr(T,2)} op_sel_hi:[1,0] neg_lo:[0,1] neg_hi:[0,1]")
    a(f"""
    v_cvt_pk_bf16_f32 v{T+1}, v{T+1}, v{T+1}
    v_lshlrev_b32 v{T+1}, 16, v{T+1}
    v_rcp_f32 v{T+1}, v{T+1}
    """)
    rnd_pairs(a, [D, D+2, D+4, D+6]); rnd1(a, D+8)
    for i in range(4): a(f"v_pk_mul_f32 {vr(D+2*i,2)}, {vr(D+2*i,2)}, {vr(T,2)} op_sel:[0,1] op_sel_hi:[1,1]")
    a(f"v_mul_f32 v{D+8}, v{D+8}, v{T+1}")
    return D


VFA, VT0, VT1, VT2 = 210, 211, 212, 213
VE0, VE1, VE2, VE3, VE4, VC0, VC1, VC2, VED = 200, 201, 202, 203, 204, 205, 206, 207, 208
XG = 224; VMP = 236; VD = 243; VMA = 244; VXA = 252
sSH = 48
def kgen_setup(a):
    a(f"""
    s_mul_i32 s50, s3, {KG_STAGE}
    s_add_u32 s51, s50, {L_STG2 - 4*KG_STAGE}
    s_add_u32 s50, s50, {L_STG}
    s_cmp_ge_u32 s3, 4
    s_cselect_b32 s50, s51, s50
    s_mov_b32 m0, s50
    v_mul_u32_u24 v{VFA}, {KG_PITCH}, v10
    v_lshl_add_u32 v{VFA}, v11, 4, v{VFA}
    v_add_u32 v{VFA}, s50, v{VFA}
    s_mul_i32 s61, s3, {TP}
    s_add_u32 s61, s61, {L_TAB}          ; own partial table
    v_lshrrev_b32 v12, 1, v11
    v_lshlrev_b32 v{VT0}, 9, v12
    v_and_b32 v13, 1, v11
    v_lshl_add_u32 v{VT0}, v13, 4, v{VT0}
    v_lshl_add_u32 v{VT0}, v10, 5, v{VT0}
    v_add_u32 v{VT0}, s61, v{VT0}
    ; tile1: idx = 256 + 64q + (q<2 ? 4j : 2j), second pair at +(q<2 ? 2 : 32)
    v_sub_u32 v13, 4, v12
    v_lshlrev_b32 v13, v13, v10
    v_lshl_add_u32 v13, v11, 8, v13
    v_add_u32 v13, s61, v13
    v_add_u32 v{VT1}, 1024, v13
    v_mul_u32_u24 v12, 120, v12
    v_add3_u32 v{VT1+3}, v{VT1}, v12, 8
    v_lshlrev_b32 v{VT2}, 8, v11
    v_lshl_add_u32 v{VT2}, v10, 2, v{VT2}
    v_add_u32 v{VT2}, s61, v{VT2}
    ; expansion
    s_mul_i32 s60, s41, {2*TP}
    s_add_u32 s60, s60, {L_TAB}          ; channel table pair
    v_mov_b32 v{VC0}, s60
    v_add_u32 v{VC1}, -4, v{VC0}
    v_add_u32 v{VC2}, -8, v{VC0}
    v_sub_u32 v12, 63, v2                ; L
    s_lshl_b32 s51, s{sHH}, 8
    s_sub_u32 s51, s60, s51
    s_add_u32 s51, s51, {4*576}
    v_lshl_add_u32 v{VE0}, v12, 2, s51
    v_add_u32 v{VE1}, 4, v{VE0}
    s_add_u32 s51, s60, {4*384}
    v_lshl_add_u32 v{VE2}, v12, 3, s51
    v_add_u32 v{VE3}, 4, v{VE2}
    v_add_u32 v{VE4}, 8, v{VE2}
    v_lshlrev_b32 v13, 5, v12
    v_lshlrev_b32 v12, 4, v12
    v_add_u32 v12, 512, v12
    v_min_u32 v12, v12, v13
    v_add_u32 v12, s60, v12
    s_cmp_eq_u32 s{sHH}, 0
    s_cselect_b64 vcc, -1, 0
    s_mul_i32 s51, s41, {4*KC_P}
    s_add_u32 s51, s51, {L_KC}
    s_cmp_eq_u32 s41, 2
    s_cselect_b32 s51, {L_KC2}, s51
    v_cndmask_b32 v{VE2}, v{VE2}, v12, vcc
    v_lshrrev_b32 v12, 1, v2
    v_mul_u32_u24 v12, {KC_P}, v12
    v_and_b32 v13, 1, v2
    v_lshl_add_u32 v12, v13, 4, v12
    v_add_u32 v{VT1+2}, s51, v12
    v_lshl_add_u32 v{VED}, v2, 4, s51
    s_lshl_b32 s51, s41, 2
    v_mov_b32 v{VED+1}, s51
    s_lshl_b32 s{sSH}, s{sHH}, 4
    s_sub_u32 s{sSH}, 16, s{sSH}
    s_mov_b32 s52, {fbits(L_HI)}
    s_mov_b32 s53, {fbits(L_LO)}
    s_mov_b32 s54, {fbits(LN2)}
    s_mov_b32 s55, {fbits(P_HI)}
    s_mov_b32 s56, {fbits(P_LO)}
    s_mov_b32 s58, {fbits(BETA)}
    """)

def gen_kgen(a, cp, hooks):
    R = Regs(56, 200)
    AR, BH, CR, CI, DT, T0, T1, BL, VE = 40, 41, 42, 43, 44, 45, 46, 47, 48
    if cp: a(f"""
    s_waitcnt vmcnt({cp})
    s_cmp_eq_u32 s3, 3
    s_cbranch_scc1 KG_W1
    """)
    if DNAT == "t0": a("s_waitcnt vmcnt(1)\ns_cmp_lt_u32 s3, 3\ns_cbranch_scc1 KG_W1")
    a(f"s_waitcnt vmcnt({max(cp-1, 0)})")
    a.label("KG_W1")
    stamp(a, 13)
    hooks.get("p", lambda: None)()
    a(f"v_lshlrev_b32 v{DT}, 16, v{DT}")
    a(f"v_lshlrev_b32 v{AR}, s{sSH}, v{AR}")
    a(f"v_lshlrev_b32 v{BH}, s{sSH}, v{BH}")
    exp_bf16(a, DT, DT, T0, T1, 52, 53, 54)
    a(f"v_and_b32 v{AR}, 0xffff0000, v{AR}")
    a(f"v_and_b32 v{BH}, 0xffff0000, v{BH}")
    exp_bf16(a, AR, AR, T0, T1, 52, 53, 54)
    a(f"""
    v_mul_f32 v{AR}, v{AR}, v{DT}
    v_mul_f32 v{T0}, v{BH}, v{DT}
    v_mul_f32 v{AR}, s52, v{AR}
    v_sub_f32 v{AR}, 0, v{AR}
    v_mul_f32 v{BH}, s55, v{T0}
    v_fma_f32 v{BL}, v{T0}, s55, -v{BH}
    v_fma_f32 v{BL}, v{T0}, s56, v{BL}
    v_and_b32 v{VE}, 0x7fff7fff, v{CR}
    v_and_b32 v{T1}, 0x7fff7fff, v{CI}
    v_pk_max_u16 v{VE}, v{VE}, v{T1}
    v_lshlrev_b32 v{T1}, 16, v{VE}
    v_max_u32 v{VE}, v{VE}, v{T1}
    """)
    def anchor(Pp):
        d = R.get(2); t = R.get(2)
        pc = fbits(float(Pp)) if Pp not in (1, 2, 4) else f"{Pp}.0"
        a(f"v_mul_f32 v{t}, {pc}, v{AR}")
        a(f"v_mul_f32 v{t+1}, {pc}, v{BH}")
        a(f"v_exp_f32 v{t}, v{t}")
        a(f"v_fract_f32 v{t+1}, v{t+1}")
        a(f"v_fmamk_f32 v{t+1}, v{BL}, {fbits(float(Pp))}, v{t+1}")
        a(f"v_cos_f32 v{d}, v{t+1}")
        a(f"v_sin_f32 v{d+1}, v{t+1}")
        a("s_nop 0")
        a(f"v_pk_mul_f32 {vr(d,2)}, {vr(d,2)}, {vr(t,2)} op_sel_hi:[1,0]")
        R.put(t, 2)
        return d
    def mul(x, y):
        d = R.get(2); cmul(a, d, x, y); return d
    def power(Pp, half):
        return anchor(Pp) if Pp in DIRECT else mul(half, half)
    NPK = 6
    PK = R.get(NPK, 2); pk = [0]
    Q = LdsQ(a); pending = []; rows_since = [0]; wq = []; late = []
    WB = int(E("KG_WB", "2"))
    def flush_w():
        while wq: Q.issue(wq.pop(0))
    def put_row(row, x, neg):
        t = PK + (pk[0] % NPK); pk[0] += 1
        rows_since[0] += 1
        if pending and rows_since[0] >= 4: flush_mfma(1)
        if late and rows_since[0] >= 11: Q.issue(late.pop(0))
        a(f"v_cvt_pk_f16_f32 v{t}, v{x}, {'-' if neg else ''}v{x+1}")
        if len(wq) >= WB: flush_w()
        wq.append(f"ds_write_addtid_b32 v{t} offset:{row*KG_PITCH}")
    def flush_mfma(k):
        while k > 0 and pending:
            op, txt = pending.pop(0)
            Q.need(op); a(txt); k -= 1
    F = {}
    a(f"v_mov_b32 v{PK}, 0x3c00")
    Q.issue(f"ds_write_addtid_b32 v{PK} offset:0"); pk[0] = 1
    F[1] = anchor(8); put_row(1, F[1], False)
    dpp = [f"row_shr:1 {DPP_ALL} bound_ctrl:0", f"row_shr:2 {DPP_ALL} bound_ctrl:0", f"row_shr:4 {DPP_ALL} bound_ctrl:0", f"row_shr:8 {DPP_ALL} bound_ctrl:0",
           "row_bcast:15 row_mask:0xa bank_mask:0xf", "row_bcast:31 row_mask:0xc bank_mask:0xf"]
    def dstep():
        if dpp: a(f"v_max_u32 v{VE}, v{VE}, v{VE} {dpp.pop(0)}")
    F[2] = power(16, F[1]); put_row(2, F[2], False); dstep()
    F[3] = mul(F[1], F[2]); put_row(3, F[3], False); dstep()
    F[4] = power(32, F[2]); put_row(4, F[4], False); dstep()
    for j in (5, 6, 7):
        F[j] = mul(F[4], F[j-4]); put_row(j, F[j], False); dstep()
    F[8] = power(64, F[4]); put_row(8, F[8], False)
    a(f"v_readlane_b32 s57, v{VE}, 63")
    for j in range(9, 16):
        t = mul(F[8], F[j-8]); put_row(j, t, False); R.put(t, 2)
    for j in range(1, 9): R.put(F[j], 2)
    BF = R.get(16, 4)
    flush_w()
    if KST: stamp(a, 14)
    for k in range(4): Q.issue(f"ds_read_b128 {vr(BF+4*k,4)}, v{VFA} offset:{64*k}")
    Ee = {}
    Ee[1] = anchor(1)
    a(f"""
    s_and_b32 s57, s57, 0xffff0000
    v_frexp_exp_i32_f32 v{VE}, s57
    v_lshlrev_b32 v{CR}, s{sSH}, v{CR}
    v_lshlrev_b32 v{CI}, s{sSH}, v{CI}
    v_sub_u32 v{VE}, 6, v{VE}
    v_and_b32 v{CR}, 0xffff0000, v{CR}
    v_and_b32 v{CI}, 0xffff0000, v{CI}
    v_ldexp_f32 v{T0}, s58, v{VE}
    v_mul_f32 v{DT}, {fbits(1.0/BETA)}, v{DT}
    v_mul_f32 v{CR}, v{CR}, v{T0}
    v_mul_f32 v{CI}, v{CI}, v{T0}
    v_sub_u32 v{VE}, 1, v{VE}
    v_ldexp_f32 v{DT}, v{DT}, v{VE}
    """)
    Q.issue(f"ds_write_b32 v{VED+1}, v{DT} offset:{L_PRM + 5*16}")
    G = {0: CR}
    Ee[2] = power(2, Ee[1]); Ee[4] = power(4, Ee[2])
    Ee[128] = anchor(128)
    ACC = R.get(12, 4); AFR = R.get(16, 4)
    def tile_mfma(tau):
        flush_w(); flush_mfma(100)
        while late: Q.issue(late.pop(0))
        c = vr(ACC+4*tau, 4)
        for k in range(4):
            oh = Q.issue(f"ds_read_b128 {vr(AFR+4*k,4)}, v{VFA} offset:{64*k}")
            pending.append((oh, f"v_mfma_f32_16x16x32_f16 {c}, {vr(AFR+4*k,4)}, {vr(BF+4*k,4)}, {'0' if k == 0 else c}"))
        rows_since[0] = 0
        if tau == 0: late.append(f"ds_write_b128 v{VT0}, {c}")
    put_row(0, G[0], True)
    G[1] = mul(G[0], Ee[1]); put_row(1, G[1], True)
    G[2] = mul(G[0], Ee[2]); put_row(2, G[2], True)
    G[3] = mul(G[1], Ee[2]); put_row(3, G[3], True)
    G[4] = mul(G[0], Ee[4]); put_row(4, G[4], True)
    for r in (5, 6, 7):
        G[r] = mul(G[r-4], Ee[4]); put_row(r, G[r], True)
    R.put(Ee[1], 2); R.put(Ee[2], 2); R.put(Ee[4], 2)
    for r in range(8):
        G[128+r] = mul(G[r], Ee[128]); put_row(8+r, G[128+r], True)
        if r & 1:
            R.put(G[r], 2); R.put(G[128+r], 2)
    Ee[256] = power(256, Ee[128]); R.put(Ee[128], 2)
    if KST: stamp(a, 15)
    tile_mfma(0)
    Ee[512] = power(512, Ee[256])
    hooks.get("t0", lambda: None)()
    gl = [0, 4, 128, 132]
    for kk in range(2):
        for r in range(4):
            g = 128*kk + 2*r
            t = mul(G[g], Ee[256]); put_row(4*kk + r, t, True)
            if g in gl: G[256+g] = t
            else: R.put(t, 2); R.put(G[g], 2)
    R.put(Ee[256], 2)
    for r, g in enumerate(gl):
        G[512+g] = mul(G[g], Ee[512]); put_row(8+r, G[512+g], True)
        if g & 4: R.put(G[512+g], 2); R.put(G[g], 2)
    for r, g in enumerate(gl):
        G[768+g] = mul(G[256+g], Ee[512]); put_row(12+r, G[768+g], True)
        if g & 4: R.put(G[768+g], 2); R.put(G[256+g], 2)
    R.put(Ee[512], 2)
    if KST: stamp(a, 16)
    tile_mfma(1)
    Ee[1024] = power(1024, None)
    hooks.get("t1", lambda: None)()
    for k in range(8):
        t = mul(G[128*k], Ee[1024]); put_row(k, t, True); R.put(t, 2)
    Ee[2048] = power(2048, Ee[1024])
    t = mul(G[0], Ee[2048]); put_row(8, t, True); R.put(t, 2)
    tile_mfma(2)
    hooks.get("t2", lambda: None)()
    Q.issue(f"ds_write_b64 v{VT1}, {vr(ACC+4,2)}")
    Q.issue(f"ds_write_b64 v{VT1+3}, {vr(ACC+6,2)}")
    flush_mfma(100)
    a(f"""
    s_mov_b32 exec_hi, 0xffff
    s_nop 6
    ds_write_b32 v{VT2}, v{ACC+8} offset:2048
    s_mov_b32 exec_hi, 0
    ds_write_b32 v{VT2}, v{ACC+9} offset:{2048+64}
    ds_write_b32 v{VT2}, v{ACC+10} offset:{2048+128}
    ds_write_b32 v{VT2}, v{ACC+11} offset:{2048+192}
    """)
    print("kgen vgpr hi", R.hi, file=sys.stderr)

def expand_emit(a, W, C4, C5, T, rho):
    o = 1024*rho
    a(f"""
    ds_write_b128 v{VED}, {vr(W,4)} offset:{3*KC_P + o}
    v_mov_b32 v{C4}, v{W} wave_shl:1 {DPP_ALL}
    v_mov_b32 v{C5}, v{W+1} wave_shl:1 {DPP_ALL}
    v_alignbit_b32 v{T}, v{W+1}, v{W}, 16
    v_alignbit_b32 v{T+1}, v{W+2}, v{W+1}, 16
    v_alignbit_b32 v{T+2}, v{W+3}, v{W+2}, 16
    v_alignbit_b32 v{T+3}, v{C4}, v{W+3}, 16
    v_mov_b32 v{T+4}, v{W+1}
    v_mov_b32 v{T+5}, v{W+2}
    ds_write_b128 v{VED}, {vr(T,4)} offset:{2*KC_P + o}
    v_mov_b32 v{T+6}, v{W+3}
    v_mov_b32 v{T+7}, v{C4}
    v_mov_b32 v{T+8}, v{T+1}
    v_mov_b32 v{T+9}, v{T+2}
    ds_write_b128 v{VED}, {vr(T+4,4)} offset:{KC_P + o}
    v_mov_b32 v{T+10}, v{T+3}
    v_alignbit_b32 v{T+11}, v{C5}, v{C4}, 16
    ds_write_b128 v{VED}, {vr(T+8,4)} offset:{o}
    """)

def expand(a, hh):
    r2 = lambda d, v, o: a(f"ds_read2st64_b32 {vr(d,2)}, v{v} offset0:{o} offset1:{o + TP//256}")
    r2(56, VE0, 0); r2(58, VE1, 0); r2(60, VC0, 9 - hh)
    if hh: r2(62, VC1, 8)
    if hh == 0:
        for i in range(2):
            a(f"ds_read_b128 {vr(64+4*i,4)}, v{VE2} offset:{16*i}")
            a(f"ds_read_b128 {vr(72+4*i,4)}, v{VE2} offset:{TP + 16*i}")
        n2 = 4
    else:
        r2(64, VE2, 0); r2(66, VE3, 0); r2(68, VE4, 0); r2(70, VC0, 6); r2(72, VC1, 6); r2(74, VC2, 6)
        n2 = 6
    a(f"""
    s_mov_b32 vcc_lo, 0x55555555
    s_mov_b32 vcc_hi, 0x55555555
    s_waitcnt lgkmcnt({n2})
    v_add_f32 v56, v56, v57
    v_add_f32 v58, v58, v59
    v_add_f32 v60, v60, v61
    """)
    if hh: a("v_add_f32 v62, v62, v63")
    a(f"""
    v_cndmask_b32 v57, v56, v58, vcc
    v_cvt_pk_f16_f32 v80, v58, v58
    v_cvt_pk_f16_f32 v82, v56, v56
    v_cvt_pk_f16_f32 v81, v58, v57
    v_cvt_pk_f16_f32 v84, v60, v60
    v_mov_b32 v83, v82
    v_cvt_pk_f16_f32 v85, v{62 if hh else 60}, v{62 if hh else 60}
    """)
    expand_emit(a, 80, 84, 85, 88, hh)
    a("s_waitcnt lgkmcnt(4)")
    if hh == 0:
        for i in range(8): a(f"v_add_f32 v{64+i}, v{64+i}, v{72+i}")
        a(f"""
        v_cvt_pk_f16_f32 v100, v71, v70
        v_cvt_pk_f16_f32 v101, v69, v68
        v_cvt_pk_f16_f32 v102, v67, v66
        v_cvt_pk_f16_f32 v103, v65, v64
        v_mov_b32 v104, 0
        v_mov_b32 v105, 0
        s_mov_b32 exec_hi, 0
        v_cvt_pk_f16_f32 v100, v68, v67
        v_cvt_pk_f16_f32 v101, v66, v66
        v_cvt_pk_f16_f32 v102, v66, v65
        v_cvt_pk_f16_f32 v103, v64, v64
        s_mov_b64 exec, -1
        """)
    else:
        for i in range(6): a(f"v_add_f32 v{64+2*i}, v{64+2*i}, v{65+2*i}")
        a(f"""
        v_cvt_pk_f16_f32 v100, v68, v68
        v_cvt_pk_f16_f32 v101, v66, v66
        v_cvt_pk_f16_f32 v102, v66, v64
        v_cvt_pk_f16_f32 v103, v64, v64
        v_cvt_pk_f16_f32 v104, v70, v72
        v_cvt_pk_f16_f32 v105, v74, v74
        """)
    expand_emit(a, 100, 104, 105, 108, 3 - hh)
    if hh == 0: a(f"""
    v_mov_b32 v104, 0
    v_mov_b32 v105, 0
    v_mov_b32 v106, 0
    v_mov_b32 v107, 0
    s_mov_b64 exec, 0xff
    ds_write_b128 v{VT1+2}, v[104:107] offset:4096
    """)

def pf_lines(a, mat, part, v0):
    A, B, C = v0, v0+1, v0+2
    a(f"""
    s_lshr_b32 s64, s2, 3
    s_mul_i32 s64, s64, 162
    s_add_u32 s64, s64, {54*part}
    s_and_b32 s65, s2, 7
    s_mul_i32 s65, s65, 9
    v_min_u32 v{A}, 53, v2
    v_add_u32 v{A}, s64, v{A}
    """)
    fl = E("M_PFFL", "")
    if mat == "d":
        a(f"""
        s_mul_i32 s65, s65, 576
        v_add_u32 v{B}, s65, v{A}
        v_lshlrev_b32 v{B}, 7, v{B}
        global_load_dword v250, v{B}, {P(sWD)} {fl}
        """)
    else:
        a(f"""
        v_mul_u32_u24 v{C}, 7282, v{A}
        v_lshrrev_b32 v{C}, 16, v{C}
        v_mul_u32_u24 v{B}, 9, v{C}
        v_sub_u32 v{B}, v{A}, v{B}
        v_add_u32 v{B}, s65, v{B}
        v_mul_u32_u24 v{C}, 9216, v{C}
        v_lshl_add_u32 v{C}, v{B}, 7, v{C}
        """)
        if v0 == 252:
            a(f"global_load_dword v250, v{C}, s[78:79] {fl}")
            return
        for m in mat:
            a(f"global_load_dword v250, v{C}, {P(sWG if m == 'g' else sWU)} {fl}")
            if int(E("M_PFH", "0")): a(f"global_load_dword v250, v{C}, {P(sWG if m == 'g' else sWU)} offset:64 {fl}")

JA = [(k, v) for v in (0, 1, 2) for k in range(3, 8) if k + v <= 7]
JB = [(k, v) for v in (0, 1, 2) for k in range(3)]
JC = [(k, v) for v in (3, 4) for k in range(5) if k + v <= 7]
JD = [(k, v) for v in (5, 6, 7) for k in range(3) if k + v <= 7]
POFF = {"A": (0, 3), "B": (5, 0), "C": (10, 3), "D": (15, 5)}
def JCH(k): return [(kb, g - kb) for g in (k, 7 - k) for kb in range(g + 1)]
VA = 64
VACC = 224
VB = 32
NB = 8
VAS = 16
NH = int(E("M_NH", "5"))
NPX = int(E("M_NPX", "8"))
VKA, VHA = 4, 6
VPW = 8

class Job:
    def __init__(self, parts):
        self.parts = parts
        use = {}
        for ci, bl, _ in parts:
            for kb, vb in bl: use[(ci, kb)] = use.get((ci, kb), 0) + 1
        order = sorted(use, key=lambda x: (-use[x], x))
        self.held = {g: i for i, g in enumerate(order[:NH])}
    def preload(self, a):
        for x in range(7, 7 - NPX, -1):
            for (ci, kb), i in self.held.items():
                kap = 8*kb + x; r = VA + 32*i + 4*x
                a(f"ds_read_b64 {vr(r,2)}, v{VKA+ci} offset:{64*(63-kap)}")
                a(f"ds_read_b64 {vr(r+2,2)}, v{VKA+ci} offset:{64*(63-kap)+8}")
    def run(self, a, fillers=None):
        Q = LdsQ(a)
        fillers = list(fillers or [])
        acc = {}; seq = []
        for ci, bl, tag in self.parts:
            vbs = sorted(set(v for _, v in bl))
            for vb in vbs:
                for y in range(8):
                    seq.append(((ci, 8*vb + y), [((ci, kb, 7 - y), (ci, kb + vb)) for kb, v in bl if v == vb]))
        for _, ms in seq:
            for _, tk in ms:
                if tk not in acc: acc[tk] = VACC + 4*len(acc)
        assert len(acc) <= 6
        mf = []
        for bi, (bk, ms) in enumerate(seq):
            for ak, tk in ms: mf.append((bi, ak, tk))
        if int(E("M_STAG", "1")) and self.parts[-1][2]:
            nl = len(seq) - 8
            body = [m for m in mf if m[0] < nl]; tail = [m for m in mf if m[0] >= nl]
            tks = sorted(set(m[2] for m in tail))
            if len(tks) > 1:
                tail = sorted(tail, key=lambda m: (max(tks.index(m[2]) - 1, 0), m[0], m[2]))
            mf = body + tail
        last = {}
        for n, (_, _, tk) in enumerate(mf): last[tk] = n
        loads = []; sa = 0; areg = {}
        firstuse = {}
        for n, (bi, ak, tk) in enumerate(mf):
            if ("b", bi) not in firstuse:
                firstuse[("b", bi)] = n
                ci, v = seq[bi][0]
                loads.append((n, ("b", bi), [f"ds_read_b128 {vr(VB + 4*(bi % NB),4)}, v{VHA+ci} offset:{64*v}"]))
            ci, kb, x = ak
            if (ci, kb) in self.held:
                r = VA + 32*self.held[(ci, kb)] + 4*x; areg[n] = r
                if x <= 7 - NPX and ("h", r) not in firstuse:
                    kap = 8*kb + x; firstuse[("h", r)] = n
                    loads.append((n, ("h", r), [f"ds_read_b64 {vr(r,2)}, v{VKA+ci} offset:{64*(63-kap)}", f"ds_read_b64 {vr(r+2,2)}, v{VKA+ci} offset:{64*(63-kap)+8}"]))
            else:
                r = VAS + 4*(sa % 4); kap = 8*kb + x
                loads.append((n, ("a", sa), [f"ds_read_b64 {vr(r,2)}, v{VKA+ci} offset:{64*(63-kap)}", f"ds_read_b64 {vr(r+2,2)}, v{VKA+ci} offset:{64*(63-kap)+8}"]))
                areg[n] = r; firstuse[("a", sa)] = n; sa += 1
        lastuse_b = {}
        for n, (bi, _, _) in enumerate(mf): lastuse_b[bi] = n
        opid = {}; li = 0; started = set(); pend = []
        LEAD = int(E("M_LEAD", "10")); LEADH = int(E("M_LEADH", "14"))
        def can_issue(key, n):
            if key[0] == "h": return True
            if key[0] == "b": return key[1] < NB or lastuse_b[key[1] - NB] < n
            return key[1] < 4 or firstuse[("a", key[1] - 4)] < n
        akey_of = {}
        for (n0, key, _) in loads:
            if key[0] in "ah": akey_of[n0] = key
        tagof = {ci: tag for ci, _, tag in self.parts}
        for n, (bi, ak, tk) in enumerate(mf):
            while li < len(loads) and loads[li][0] <= n + (LEADH if loads[li][1][0] == "h" else LEAD) and can_issue(loads[li][1], n):
                for t in loads[li][2]: opid[loads[li][1]] = Q.issue(t)
                li += 1
            need = opid[("b", bi)]
            if n in akey_of: need = max(need, opid[akey_of[n]])
            Q.need(need)
            c = acc[tk]
            a(f"v_mfma_f32_16x16x32_f16 {vr(c,4)}, {vr(areg[n],4)}, {vr(VB + 4*(bi % NB),4)}, {'0' if tk not in started else vr(c,4)}")
            started.add(tk)
            if fillers and n >= 2:
                for _ in range(2):
                    if fillers: a(fillers.pop(0))
            if last[tk] == n and tagof[tk[0]]: pend.append((n + 9, tk))
            while pend and pend[0][0] <= n:
                tk2 = pend.pop(0)[1]
                s0, g0 = POFF[tagof[tk2[0]]]
                Q.issue(f"ds_write_b128 v{VPW+tk2[0]}, {vr(acc[tk2],4)} offset:{(s0 + tk2[1] - g0)*1024}")
        a("s_nop 7")
        for _, tk2 in pend:
            s0, g0 = POFF[tagof[tk2[0]]]
            Q.issue(f"ds_write_b128 v{VPW+tk2[0]}, {vr(acc[tk2],4)} offset:{(s0 + tk2[1] - g0)*1024}")
        return acc

def epi_core(a, Y, H, T, ks, dd, ga, n):
    for e in range(n): a(f"v_mul_f32 v{Y+e}, {ks}, v{Y+e}")
    for e in range(n): a(f"v_fma_mix_f32 v{T+e}, v{H+e//2}, {dd}, 0 op_sel:[{e&1},0,0] op_sel_hi:[1,0,0]")
    rnd_pairs(a, [Y+2*i for i in range(n//2)] + [T+2*i for i in range(n//2)])
    for e in range(n): a(f"v_add_f32 v{Y+e}, v{Y+e}, v{T+e}")
    rnd_pairs(a, [Y+2*i for i in range(n//2)])
    for e in range(n): a(f"v_mul_f32 v{Y+e}, {ga}, v{Y+e}")

def pack9(a, dst, src):
    for i in range(4): a(f"v_cvt_pk_bf16_f32 v{dst+i}, v{src+2*i}, v{src+2*i+1}")
    a(f"v_cvt_pk_bf16_f32 v{dst+4}, v{src+8}, 0")
def dots9(a, dst, src, bf, cf):
    for e in (8, 0, 1, 2, 3, 4, 5, 6, 7): a(f"v_dot2_f32_bf16 v{dst+e}, v{src+e//2}, {bf(e)}, {cf(e)}")
def ln_core(a, P1, X1, T, ONES, LO, RC, lab):
    vsel = lambda e: f"v{LO + (e & 1)}"
    for i in range(5):
        a(f"v_dot2_f32_bf16 v{T}, v{P1+i}, v{ONES}, {'0' if i == 0 else 'v%d' % T}")
        a(f"v_dot2_f32_bf16 v{T+2}, v{P1+i}, v{P1+i}, {'0' if i == 0 else 'v%d' % (T+2)}")
    a("s_nop 1")
    reduce2(a, T, T+2)
    a(f"""
    v_readlane_b32 s66, v{T}, 63
    v_readlane_b32 s67, v{T+2}, 63
    s_nop 0
    v_mul_f32 v{T}, s66, v{RC}
    v_mul_f32 v{T+1}, s67, v{RC}
    v_mul_f32 v{T+2}, v{T}, v{T}
    v_fma_f32 v{T+1}, -v{T}, v{T}, v{T+1}
    v_mul_f32 v{T+3}, 0x41800000, v{T+1}
    v_cmp_gt_f32 vcc, v{T+2}, v{T+3}
    s_cbranch_vccz {lab}
    v_sub_f32 v{T+3}, 0, v{T}
    """)
    dots9(a, X1, P1, vsel, lambda e: f"v{T+3}")
    a(f"v_mul_f32 v{T+2}, v{X1+8}, v{X1+8}")
    for e in range(8): a(f"v_fmac_f32 v{T+2}, v{X1+e}, v{X1+e}")
    a("s_nop 1")
    reduce2(a, T+2, None)
    a(f"""
    v_readlane_b32 s67, v{T+2}, 63
    s_nop 1
    v_mul_f32 v{T+1}, s67, v{RC}
    {lab}:
    v_cvt_pk_bf16_f32 v{T+1}, -v{T}, v{T+1}
    v_lshlrev_b32 v{T}, 16, v{T+1}
    v_and_b32 v{T+1}, 0xffff0000, v{T+1}
    v_add_f32 v{T+1}, {fbits(1e-5)}, v{T+1}
    v_cvt_pk_bf16_f32 v{T+1}, v{T+1}, v{T+1}
    v_lshlrev_b32 v{T+1}, 16, v{T+1}
    v_sqrt_f32 v{T+1}, v{T+1}
    """)
    dots9(a, X1, P1, vsel, lambda e: f"v{T}")
    a(f"""
    v_cvt_pk_bf16_f32 v{T+1}, v{T+1}, v{T+1}
    v_lshlrev_b32 v{T+1}, 16, v{T+1}
    v_rcp_f32 v{T+1}, v{T+1}
    """)
    rnd1(a, X1+8); rnd_pairs(a, [X1, X1+2, X1+4, X1+6])
    a(f"v_mul_f32 v{X1+8}, v{X1+8}, v{T+1}")
    for i in range(4): a(f"v_pk_mul_f32 {vr(X1+2*i,2)}, {vr(X1+2*i,2)}, {vr(T,2)} op_sel:[0,1] op_sel_hi:[1,1]")

def gen_F(a):
    kernel_head(a, "ka_kernel")
    a(f"""
    s_cmp_ge_u32 s2, 256
    s_cbranch_scc1 M_END
    s_load_dwordx16 s[4:19], s[0:1], 0
    s_load_dwordx16 s[20:35], s[0:1], 64
    s_load_dwordx2 s[36:37], s[0:1], 128
    v_lshrrev_b32 v1, 6, v0
    v_and_b32 v2, 63, v0
    """)
    if ST: a(f"v_mov_b32 v{VST}, 0")
    a("v_readfirstlane_b32 s3, v1")
    stamp(a, 0)
    if CPL:
        a(f"""
        s_cmp_lg_u32 s3, 3
        s_cbranch_scc1 M_NCP
        s_getpc_b64 s[74:75]
        M_PC:
        s_sub_u32 s74, s74, M_PC - ka_kernel
        s_subb_u32 s75, s75, 0
        s_lshr_b32 s76, s2, 3
        s_mul_i32 s76, s76, {CPL}
        v_min_u32 v25, {CPL-1}, v2
        v_add_u32 v25, s76, v25
        v_lshlrev_b32 v25, 7, v25
        v_min_u32 v25, CODE_END - ka_kernel - 4, v25
        global_load_dword v250, v25, s[74:75]
        M_NCP:
        """)
    LL = 10; X = 16; T = 26
    a(f"""
    s_lshl_b32 s40, s2, 3
    s_add_u32 s40, s40, s3
    s_mul_i32 s40, s40, 1152
    v_lshl_add_u32 v3, v2, 4, s40
    v_lshl_add_u32 v4, v2, 1, s40
    v_mov_b32 v20, 0
    v_mov_b32 v21, 0
    v_mov_b32 v22, 0
    v_mov_b32 v23, 0
    v_mov_b32 v{VZ}, 0
    v_mov_b32 v{VONE}, 1
    v_lshlrev_b32 v24, 4, v2
    s_cmp_eq_u32 s3, 0
    s_cbranch_scc0 M_Z1
    s_mov_b64 exec, 0x3fffffff
    ds_write_b128 v24, v[20:23] offset:{L_HB}
    ds_write_b128 v24, v[20:23] offset:{L_HB + HB_P}
    ds_write_b128 v24, v[20:23] offset:{L_HB + 2*HB_P}
    M_Z1:
    s_cmp_eq_u32 s3, 2
    s_cbranch_scc0 M_Z3
    ds_write_b128 v24, v[20:23] offset:{L_ZERO}
    M_Z3:
    s_cmp_eq_u32 s3, 3
    s_cbranch_scc0 M_Z0
    s_mov_b64 exec, 0xfffff
    ds_write_b128 v24, v[20:23] offset:{L_CNT}
    M_Z0:
    s_mov_b64 exec, -1
    s_lshr_b32 s41, s3, 1
    s_lshl_b32 s{sD}, s2, 1
    s_add_u32 s{sD}, s{sD}, s41
    s_lshr_b32 s45, s2, 2
    s_add_u32 s45, s45, 512            ; channel c
    s_cmp_eq_u32 s41, 2
    s_cselect_b32 s{sD}, s45, s{sD}
    s_and_b32 s{sHH}, s3, 1
    ; mod item: cg = u % 27, ks = u / 27
    s_mul_i32 s{sKS}, s2, 2428
    s_lshr_b32 s{sKS}, s{sKS}, 16
    s_mul_i32 s40, s{sKS}, 27
    s_sub_u32 s49, s2, s40             ; cg
    v_lshrrev_b32 v25, 2, v2
    s_lshl_b32 s40, s{sKS}, 6
    v_add_u32 v25, s40, v25
    v_mul_u32_u24 v25, 6912, v25
    v_and_b32 v26, 3, v2
    v_lshl_add_u32 v25, v26, 4, v25
    v_add_u32 v39, s40, v2
    s_lshl_b32 s40, s49, 7
    s_lshl_b32 s50, s{sHH}, 6
    s_add_u32 s40, s40, s50
    v_add_u32 v216, s40, v25
    v_lshlrev_b32 v39, 1, v39
    s_lshl_b32 s40, s{sD}, 8
    v_lshl_add_u32 v5, v2, 2, s40
    s_lshl_b32 s40, s{sD}, 1
    v_mov_b32 v6, s40
    s_waitcnt lgkmcnt(0)
    global_load_dwordx4 {vr(LL,4)}, v3, {P(sX)} {XNT}
    global_load_ushort v{LL+4}, v4, {P(sX)} offset:1024 {XNT}
    s_mov_b32 s50, {16*6912}
    v_add_u32 v217, s50, v216
    v_add_u32 v218, s50, v217
    v_add_u32 v219, s50, v218
    v_mov_b32 v7, {WS_EPOCH}
    s_cmp_ge_u32 s3, 6
    s_cbranch_scc1 M_T0MOD
    s_barrier                          ; B0
    global_load_ushort v44, v6, {P(sLDT)}
    global_load_dword v40, v5, {P(sLAR)} {PNT}
    global_load_dword v41, v5, {P(sAIM)} {PNT}
    global_load_dword v42, v5, {P(sCR)} {PNT}
    global_load_dword v43, v5, {P(sCI)} {PNT}
    s_mov_b32 s62, 5
    """)
    if DNAT == "t0":
        k0_ = len(a.lines); dn_touch(a)
        for i in range(k0_, len(a.lines)): a.lines[i] = a.lines[i].replace("v252", "v247")
        a.lines.insert(len(a.lines) - 1, "  s_mov_b32 s62, 6")
    a(f"""
    s_branch M_T0J
    M_T0MOD:
    s_setprio 2
    s_barrier                          ; B0
    global_load_dword v47, v7, {P(sWS)}
    s_mov_b32 s62, 1
    s_cmp_ge_u32 s2, 243
    s_cbranch_scc1 M_T0J
    global_load_ushort v44, v39, {P(sC)}
    """)
    for i in range(4): a(f"global_load_dwordx4 {vr(48+4*i,4)}, v{216+i}, {P(sWMOD)} {NT}")
    a(f"""
    s_mov_b32 s62, 6
    M_T0J:
    """)
    UN = {2: 0, 3: 3, 6: 6, 7: 9, 0: 12, 1: 14, 4: 0, 5: 0}
    unib = sum(UN[w] << (4*w) for w in range(8))
    a(f"""
    s_lshl_b32 s40, s3, 2
    s_lshr_b32 s63, {hex(unib)}, s40
    s_and_b32 s63, s63, 15
    s_lshl_b32 s50, s63, 10
    s_lshl_b32 s51, s2, 14
    s_add_u32 s50, s50, s51
    s_add_u32 s50, s50, {WS_XN}
    v_lshl_add_u32 v{VXA}, v2, 4, s50
    v_lshrrev_b32 v21, 4, v2
    s_lshl_b32 s50, s2, 1
    v_add_u32 v20, s50, v21
    v_mov_b32 v22, s45
    v_cmp_gt_u32 vcc, 2, v21
    v_and_b32 v23, 15, v2
    v_min_u32 v23, 8, v23
    v_cndmask_b32 v20, v22, v20, vcc   ; channel
    v_lshlrev_b32 v23, 9, v23
    v_lshlrev_b32 v{VD}, 1, v20
    v_lshrrev_b32 v22, 6, v20
    v_mul_u32_u24 v22, {9*512}, v22
    v_and_b32 v20, 63, v20
    v_lshl_add_u32 v20, v20, 3, v22
    v_add_u32 v20, v20, v23
    v_add_u32 v{VMA}, {WS_MP}, v20
    v_add_u32 v{VMA+1}, {WS_MP + 9*9*512}, v20
    v_add_u32 v{VMA+2}, {WS_MP + 18*9*512}, v20
    v_and_b32 v20, 15, v2              ; i / j
    v_and_b32 v22, 3, v20
    v_mul_u32_u24 v22, {KC_P}, v22
    v_lshrrev_b32 v23, 2, v20
    v_lshlrev_b32 v23, 3, v23
    v_lshl_add_u32 v23, v21, 4, v23
    v_sub_u32 v22, v22, v23
    v_add_u32 v22, {L_KC + 72}, v22
    v_lshlrev_b32 v23, 5, v20
    v_lshlrev_b32 v24, 4, v21
    v_sub_u32 v24, v23, v24
    v_add_u32 v24, {L_HB + 48}, v24
    v_lshl_add_u32 v3, v21, 3, v23     ; 32j + 8q
    v_add_u32 v3, {L_HB + 480}, v3
    s_lshr_b32 s40, 0x01021100, s40
    s_and_b32 s40, s40, 15
    s_mul_i32 s50, s40, {4*KC_P}
    s_cmp_eq_u32 s40, 2
    s_cselect_b32 s50, {(L_KC2 - L_KC) & 0xffffffff}, s50
    v_add_u32 v{VKA}, s50, v22
    v_add_u32 v{VKA+1}, {4*KC_P}, v22
    s_mul_i32 s50, s40, {HB_P}
    v_add_u32 v{VHA}, s50, v24
    v_add_u32 v{VHA+1}, {HB_P}, v24
    s_mul_i32 s50, s40, 18432
    s_add_u32 s50, s50, {L_PART}
    v_lshl_add_u32 v{VPW}, v2, 4, s50
    v_lshlrev_b32 v{VPW+1}, 4, v2
    v_add_u32 v{VPW+1}, {L_PART + 18432}, v{VPW+1}
    s_lshl_b32 s40, s40, 2
    v_mov_b32 v1, s40
    """)
    k0 = len(a.lines)
    kgen_setup(a)
    for i in range(k0, len(a.lines)):
        for o, n in (("v10", "v20"), ("v11", "v21"), ("v12", "v22"), ("v13", "v23")):
            a.lines[i] = re.sub(rf"\b{o}\b", n, a.lines[i])
    a(f"""
    s_lshr_b32 s40, s3, 1
    s_mul_i32 s40, s40, 2592
    s_mul_i32 s50, s{sHH}, 1280
    s_add_u32 s40, s40, s50
    s_add_u32 s40, s40, {L_LNR}
    v_lshl_add_u32 v220, v2, 4, s40
    s_lshl_b32 s40, s3, 1
    s_add_u32 s40, s40, {L_CB}
    v_lshl_add_u32 v221, v2, 4, s40
    v_lshrrev_b32 v22, 2, v2
    s_and_b32 s40, s3, 3
    s_lshl_b32 s40, s40, 6
    v_add_u32 v22, s40, v22            ; u'
    v_and_b32 v23, 3, v2
    v_mul_u32_u24 v222, 2592, v23
    v_lshl_add_u32 v222, v22, 2, v222
    v_add_u32 v222, {L_LNR}, v222
    v_lshrrev_b32 v223, 2, v22
    v_lshlrev_b32 v223, 4, v223
    v_lshl_add_u32 v223, v23, 2, v223
    v_add_u32 v223, {L_CB}, v223
    v_lshlrev_b32 v22, 14, v22
    v_lshl_add_u32 v22, v23, 4, v22
    s_lshl_b32 s40, s2, 6
    s_add_u32 s40, s40, {WS_XN}
    v_add_u32 v253, s40, v22
    s_mul_i32 s40, s49, 9
    s_add_u32 s40, s40, s{sKS}
    s_lshl_b32 s40, s40, 9
    s_lshl_b32 s50, s{sHH}, 8
    s_add_u32 s40, s40, s50
    s_add_u32 s40, s40, {WS_MP}
    v_and_b32 v34, 3, v2
    v_lshlrev_b32 v34, 6, v34
    v_lshrrev_b32 v35, 3, v2
    v_lshl_add_u32 v34, v35, 3, v34
    v_add_u32 v34, s40, v34
    v_add_u32 v35, {27*9*512}, v34
    v_mov_b32 v15, {fbits(1.0/576)}
    v_mov_b32 v30, 0x3f803f80
    v_mov_b32 v32, 0x3f80
    v_mov_b32 v33, 0x3f800000
    s_cmp_eq_u32 s62, 6
    s_cbranch_scc1 M_W6
    s_cmp_eq_u32 s62, 5
    s_cbranch_scc1 M_W5
    s_waitcnt vmcnt(1)
    M_W5:
    s_waitcnt vmcnt(5)
    M_W6:
    s_waitcnt vmcnt(6)
    """)
    stamp(a, 1)
    ln_core(a, LL, X, T, 30, 32, 15, "M_FAST")
    pack9(a, T, X)
    a(f"""
    ds_write_b128 v220, {vr(T,4)}
    ds_write_b16 v221, v{T+4}
    s_cmp_lt_u32 s3, 6
    s_cbranch_scc1 M_NTAG
    s_cmp_eq_u32 s62, 6
    s_cbranch_scc1 M_TG5
    s_waitcnt vmcnt(0)
    M_TG5:
    s_waitcnt vmcnt(5)
    s_mov_b32 s40, 0x9E3779B1
    v_mul_lo_u32 v33, v47, s40
    v_add_u32 v33, 0x7F4A7C15, v33
    ds_write_b32 v{VZ}, v33 offset:{L_TAG}
    M_NTAG:
    """)
    signal(a, C_LN)
    AC = 112
    def mod_item(rho, w0):
        for e in range(8): a(f"v_mov_b32 v{AC+e}, 0")
        for i in range(4):
            a(f"s_waitcnt vmcnt({w0 - i})")
            for w in range(4):
                a(f"v_dot2c_f32_bf16 v{AC+2*w}, v{48+16*rho+4*i+w}, v{28+i}")
                a(f"v_dot2c_f32_bf16 v{AC+2*w+1}, v{48+16*rho+4*i+w}, v{24+i}")
        a("s_nop 2")
        for e in range(4): a(f"v_permlane32_swap_b32 v{AC+e}, v{AC+4+e}")
        for e in range(4): a(f"v_add_f32 v{AC+e}, v{AC+e}, v{AC+4+e}")
        a("s_nop 0")
        a(f"v_permlane16_swap_b32 v{AC}, v{AC+2}")
        a(f"v_permlane16_swap_b32 v{AC+1}, v{AC+3}")
        a(f"v_add_f32 v{AC}, v{AC}, v{AC+2}")
        a(f"v_add_f32 v{AC+1}, v{AC+1}, v{AC+3}")
        a("s_nop 1")
        a(f"v_add_f32 v32, v{AC}, v{AC} row_ror:8 row_mask:0xf bank_mask:0x3")
        a(f"v_add_f32 v32, v{AC+1}, v{AC+1} row_ror:8 row_mask:0xf bank_mask:0xc")
        a("s_nop 1")
        a(f"v_add_f32 v32, v32, v32 row_shl:4 row_mask:0xf bank_mask:0x5")
        a("s_mov_b32 exec_lo, 0x0f0f0f0f")
        a("s_mov_b32 exec_hi, 0x0f0f0f0f")
        a(f"global_store_dwordx2 v{34+rho}, v[32:33], {P(sWS)} sc1")
        a("s_mov_b64 exec, -1")
    MODF = int(E("M_MODF", "1"))
    a(f"""
    s_cmp_lt_u32 s3, 4
    s_cbranch_scc1 M_KG
    s_cmp_lt_u32 s3, 6
    s_cbranch_scc1 M_PACK
    s_cmp_ge_u32 s2, 243
    s_cbranch_scc1 M_PACK
    s_mov_b32 s40, {fbits(-LOG2E)}
    s_waitcnt vmcnt(4)
    v_lshlrev_b32 v44, 16, v44
    v_mul_f32 v45, s40, v44
    v_exp_f32 v45, v45
    v_lshrrev_b32 v46, 2, v2
    v_add_f32 v45, 1.0, v45
    v_rcp_f32 v45, v45
    v_lshlrev_b32 v46, 2, v46
    v_mul_f32 v44, v44, v45
    v_cvt_pk_bf16_f32 v44, v44, 0
    """)
    for i in range(4): a(f"ds_bpermute_b32 v{28+i}, v46, v44 offset:{64*i}")
    a(f"""
    s_waitcnt lgkmcnt(0)
    """)
    for i in range(4): a(f"v_lshlrev_b32 v{24+i}, 16, v{28+i}")
    if MODF:
        mod_item(0, 3)
        stamp(a, 7)
    a.label("M_PACK")
    G0 = 80
    for i in range(1, 4): a(f"v_add_u32 v{20+i}, {64*i}, v222")
    a(f"""
    s_mov_b32 s41, {16 << 14}
    M_SPL:
    ds_read_b64 v[96:97], v{VZ} offset:{L_CNT + C_LN}
    """)
    for i in range(4):
        a(f"ds_read2st64_b32 {vr(G0+4*i,2)}, v{222 if i == 0 else 20+i} offset0:0 offset1:5")
        a(f"ds_read_b32 v{G0+4*i+2}, v223 offset:{64*i}")
    a(f"""
    s_waitcnt lgkmcnt(8)
    v_readfirstlane_b32 s94, v96
    v_readfirstlane_b32 s{sTAG}, v97
    s_cmp_ge_u32 s94, 8
    s_cbranch_scc0 M_SPL
    """)
    for i in range(4):
        a(f"v_mov_b32 v{G0+4*i+3}, v97")
        a(f"s_waitcnt lgkmcnt({6-2*i})")
        a(f"global_store_dwordx4 v253, {vr(G0+4*i,4)}, {P(sWS)} sc1")
        if i < 3: a("v_add_u32 v253, s41, v253")
    stamp(a, 2)
    a(f"""
    {"s_setprio 0" if MODF else ""}
    s_cmp_ge_u32 s3, 6
    s_cbranch_scc1 M_MOD
    s_waitcnt vmcnt(4)
    """)
    signal(a, C_H)
    a("s_branch KG_W1")
    a.label("M_KG")
    stamp(a, 2)
    def mp_issue():
        for c in range(3): a(f"global_load_dwordx2 {vr(VMP+2*c,2)}, v{VMA+c}, {P(sWS)} sc1")
    def xn_issue(n=3):
        for i in range(n): a(f"global_load_dwordx4 {vr(XG+4*i,4)}, v{VXA}, {P(sWS)} offset:{1024*i} sc1")
    def first_issue(lo=0, hi=4):
        l = a.newlabel("NI")
        a(f"""
        s_sub_u32 s40, s3, {lo}
        s_cmp_ge_u32 s40, {hi - lo}
        s_cbranch_scc1 {l}
        s_cmp_lt_u32 s3, 2
        s_cbranch_scc1 {l}B
        global_load_dwordx4 {vr(XG+8,4)}, v{VXA}, {P(sWS)} offset:2048 sc1
        {l}B:
        """)
        xn_issue(2)
        a.label(l)
    XAT = E("M_XAT", "mix")
    hooks = {}
    if XAT not in ("tab", "exp", "pl", "mix"): hooks[XAT] = first_issue
    def chook(spec):
        def f_():
            l = a.newlabel("CH")
            a(f"""
            s_cmp_lt_u32 s3, 4
            s_cbranch_scc1 {l}
            s_mov_b32 s80, m0
            s_cmp_eq_u32 s3, 4
            s_cselect_b32 s78, s22, s24
            s_cselect_b32 s79, s23, s25
            """)
            for it in spec.split(","):
                if it[0] == "p": pf_lines(a, "g", int(it[1]), 252)
                else:
                    k = int(it[1])
                    a(f"""
                    s_cmp_ge_u32 s2, 144
                    s_cbranch_scc1 {l}_{k}
                    s_and_b32 s40, s2, 7
                    s_mul_i32 s40, s40, 18
                    s_lshr_b32 s64, s2, 3
                    s_add_u32 s40, s40, s64
                    s_mul_i32 s40, s40, 36864
                    s_mul_i32 s64, s{sHH}, 18432
                    s_add_u32 s64, s64, {6144*k}
                    s_add_u32 s40, s40, s64
                    s_add_u32 m0, s64, {L_DN}
                    v_lshl_add_u32 v252, v2, 4, s40
                    """)
                    for i in range(6):
                        if i == 3: a("s_add_u32 m0, m0, 3072\nv_add_u32 v252, 3072, v252")
                        a(f"global_load_lds_dwordx4 v252, {P(sWD)} offset:{1024*(i%3)}")
                    a(f"{l}_{k}:")
            a(f"s_mov_b32 m0, s80")
            a.label(l)
        return f_
    CH = dict(x.split(":") for x in E("M_CH", "").split(";") if x)
    for k_, v_ in CH.items(): hooks[k_] = chook(v_)
    if DNAT == "kg":
        def kt():
            k0_ = len(a.lines); dn_touch(a)
            for i in range(k0_, len(a.lines)): a.lines[i] = a.lines[i].replace("v252", "v247")
        hooks[E("F_DNH", "p")] = kt
    gen_kgen(a, 0, hooks)
    signal(a, C_TAB, VED+1)
    if XAT == "tab": first_issue()
    if XAT == "mix": first_issue(2, 4)
    stamp(a, 4)
    spin(a, C_TAB, 2, VED+1)
    stamp(a, 5)
    a(f"""
    s_cmp_eq_u32 s{sHH}, 0
    s_cbranch_scc0 M_EXB
    """)
    expand(a, 0)
    a("s_branch M_EXD")
    a.label("M_EXB")
    expand(a, 1)
    a.label("M_EXD")
    signal(a, C_K, VED+1)
    if XAT == "exp": first_issue()
    if XAT == "mix": first_issue(0, 2)
    stamp(a, 6)
    a("s_mov_b32 s73, 0")
    a("s_branch M_CSET")
    a.label("M_MOD")
    a(f"""
    s_cmp_ge_u32 s2, 243
    s_cbranch_scc1 M_MODX
    """)
    for i in range(4): a(f"global_load_dwordx4 {vr(64+4*i,4)}, v{216+i}, {P(sWMOD)} offset:3456 {NT}")
    if not MODF:
        mod_item(0, 11)
        a("s_setprio 0")
        stamp(a, 7)
        mod_item(1, 4)
    a.label("M_MODX")
    a("s_setprio 0")
    a(f"""
    s_cmp_lg_u32 s3, 6
    s_cbranch_scc1 M_W7X
    """)
    spin(a, C_TAB if MODF else C_K, int(E("M_MPN", "1")))
    a(f"global_load_ushort v{VD}, v{VD}, {P(sDSK)}")
    mp_issue()
    a(f"""
    s_mov_b32 s41, {SPIN}
    M_MP:
    s_waitcnt vmcnt(0)
    v_xor_b32 v16, s{sTAG}, v{VMP+1}
    v_xor_b32 v17, s{sTAG}, v{VMP+3}
    v_xor_b32 v18, s{sTAG}, v{VMP+5}
    v_or3_b32 v16, v16, v17, v18
    v_cmp_ne_u32 vcc, 0, v16
    s_cbranch_vccz M_MPD
    """)
    mp_issue()
    a(f"""
    s_waitcnt vmcnt(0)
    s_sub_u32 s41, s41, 1
    s_cbranch_scc0 M_MP
    M_MPD:
    s_mov_b32 exec_lo, 0xfe00fe00
    s_mov_b32 exec_hi, 0xfe00fe00
    v_mov_b32 v{VMP}, 0
    v_mov_b32 v{VMP+2}, 0
    v_mov_b32 v{VMP+4}, 0
    s_mov_b64 exec, -1
    """)
    for sh in (1, 2, 4, 8):
        for r in (VMP, VMP+2, VMP+4): a(f"v_add_f32 v{r}, v{r}, v{r} row_shr:{sh} {DPP_ALL} bound_ctrl:0")
    a(f"""
    v_cvt_pk_bf16_f32 v17, v{VMP}, v{VMP+2}
    v_cvt_pk_bf16_f32 v18, v{VMP+4}, v{VMP+4}
    v_lshlrev_b32 v16, 16, v17         ; sa
    v_and_b32 v17, 0xffff0000, v17     ; ca
    v_add_f32 v17, 1.0, v17
    v_cvt_pk_bf16_f32 v17, v17, v17
    v_and_b32 v17, 0xffff0000, v17     ; c1
    v_mul_f32 v19, 0x42800000, v17
    v_add_f32 v19, abs(v19), abs(v16)
    v_frexp_exp_i32_f32 v19, v19
    v_sub_u32 v19, 15, v19
    v_ldexp_f32 v17, v17, v19
    v_ldexp_f32 v16, v16, v19
    v_sub_u32 v19, 0, v19
    v_lshlrev_b32 v{VD}, 16, v{VD}
    v_lshlrev_b32 v18, 16, v18
    v_ldexp_f32 v{VD}, v{VD}, v19
    v_lshrrev_b32 v20, 2, v2
    v_and_b32 v20, 12, v20
    s_mov_b32 exec_lo, 0x80008000
    s_mov_b32 exec_hi, 0x00008000
    ds_write_b32 v20, v17 offset:{L_PRM}
    ds_write_b32 v20, v16 offset:{L_PRM + 16}
    ds_write_b32 v{VZ}, v33 offset:{L_CNT + C_PR + 4}
    ds_write_b32 v20, v{VD} offset:{L_PRM + 32}
    ds_write_b32 v20, v18 offset:{L_PRM + 48}
    ds_write_b32 v20, v19 offset:{L_PRM + 64}
    s_mov_b64 exec, -1
    """)
    signal(a, C_PR)
    stamp(a, 14)
    a("s_branch M_NI2")
    a.label("M_W7X")
    if MODF:
        a("s_cmp_ge_u32 s2, 243\ns_cbranch_scc1 M_NI2")
        mod_item(1, 3)
    a.label("M_NI2")
    stamp(a, 3)
    spin(a, C_K, int(E("M_W6N", "1")))
    xn_issue(3)
    a("s_mov_b32 s73, 0\ns_cmp_lg_u32 s3, 6\ns_cbranch_scc1 M_CSET\ns_cmp_ge_u32 s2, 243\ns_cbranch_scc1 M_CSET")
    mod_item(1, 6)
    a("s_mov_b32 s73, 1")
    def pf_waves(spec, tag, v0):
        for grp in filter(None, spec.split(";")):
            w, items = grp.split(":")
            l = a.newlabel("PF")
            a(f"s_cmp_lg_u32 s3, {w}"); a(f"s_cbranch_scc1 {l}")
            for it in items.split(","): pf_lines(a, it[:-1], int(it[-1]), v0)
            a.label(l)
    pf_waves(E("M_PFA", ""), "a", 100)
    a.label("M_CSET")
    jobs = {"A": Job([(0, JA, "A")]), "B": Job([(0, JB, "B")]), "C": Job([(0, JC, "C")]), "D": Job([(1, JD, "D"), (0, JD, "D")])}
    for k in range(4): jobs[f"K{k}"] = Job([(0, JCH(k), None)])
    a(f"""
    s_lshl_b32 s40, s3, 2
    s_lshr_b32 s40, 0x31242010, s40
    s_and_b32 s62, s40, 15
    s_and_b32 s40, s2, 3
    s_cmp_eq_u32 s62, 4
    s_cselect_b32 s40, s40, 0
    s_add_u32 s62, s62, s40
    """)
    def dispatch(pre):
        for i, nm in enumerate(list(jobs)[:-1]):
            a(f"s_cmp_eq_u32 s62, {i}")
            a(f"s_cbranch_scc1 {pre}{nm}")
        a(f"s_branch {pre}K3")
    SF = int(E("M_SF", "1"))
    if SF: a("s_cmp_ge_u32 s3, 6\ns_cbranch_scc1 M_TGS\nM_PL0:")
    spin(a, C_K, 2, 1)
    dispatch("M_PL")
    for nm, jb in jobs.items():
        a.label(f"M_PL{nm}")
        if nm == "D": spin(a, C_K + 4, 2)
        jb.preload(a)
        a("s_branch M_STG")
    a.label("M_STG")
    stamp(a, 8)
    a(f"""
    {"s_cmp_ge_u32 s3, 4" if SF else "s_and_b32 s40, s3, 6"}
    {"" if SF else "s_cmp_eq_u32 s40, 4"}
    s_cbranch_scc1 M_HW
    """)
    a(f"""
    M_TGS:
    ds_read_b64 v[16:17], v{VZ} offset:{L_CNT + C_PR}
    ds_read_b128 v[20:23], v{VZ} offset:{L_PRM}
    ds_read_b128 v[24:27], v{VZ} offset:{L_PRM + 16}
    s_lshl_b32 s40, s63, 8
    s_add_u32 s40, s40, {L_HB + 480}
    s_mov_b32 m0, s40
    s_mov_b32 s41, {SPIN}
    v_mov_b32 v30, 0x3f80
    v_mov_b32 v31, 0x3f800000
    s_waitcnt lgkmcnt(0)
    v_readfirstlane_b32 s94, v16
    v_readfirstlane_b32 s{sTAG}, v17
    v_readfirstlane_b32 s66, v20
    v_readfirstlane_b32 s69, v22
    v_readfirstlane_b32 s67, v21
    v_readfirstlane_b32 s70, v24
    v_readfirstlane_b32 s71, v25
    v_readfirstlane_b32 s72, v26
    s_lshr_b32 s66, s66, 16
    s_lshr_b32 s68, s69, 16
    s_cmp_ge_u32 s94, 1
    s_cbranch_scc0 M_TGS
    s_waitcnt vmcnt(1)
    s_cmp_eq_u32 s73, 1
    s_cbranch_scc1 M_XP1
    M_XP:
    s_waitcnt vmcnt(0)
    M_XP1:
    v_xor_b32 v16, s{sTAG}, v{XG+3}
    v_xor_b32 v17, s{sTAG}, v{XG+7}
    v_xor_b32 v18, s{sTAG}, v{XG+11}
    s_cmp_lt_u32 s3, 2
    s_cselect_b32 s40, 0, -1
    v_and_b32 v18, s40, v18
    v_or3_b32 v16, v16, v17, v18
    v_cmp_ne_u32 vcc, 0, v16
    s_cbranch_vccz M_XD
    s_mov_b64 exec, vcc
    """)
    xn_issue()
    a(f"""
    s_mov_b64 exec, -1
    s_sub_u32 s41, s41, 1
    s_cbranch_scc0 M_XP
    M_XD:
    """)
    stamp(a, 9)
    def units(lst):
        Y = 32
        for n, u in enumerate(lst):
            g = XG + 4*u; y = Y + 6*n
            for k, (src, cs) in enumerate(((g, 66), (g+1, 66), (g, 67), (g+1, 67), (g+2, 68), (g+2, 69))):
                a(f"v_dot2_f32_bf16 v{y+k}, v{src}, s{cs}, 0")
        if len(lst) == 1: a("s_nop 0")
        prs = [Y + 2*i for i in range(3*len(lst))]
        for p in prs: a(f"v_cvt_pk_bf16_f32 v{p+1}, v{p}, v{p+1}")
        for i, p in enumerate(prs):
            a(f"v_dot2_f32_bf16 v{p}, v{p+1}, v30, s{70 + i%3}")
            a(f"v_dot2_f32_bf16 v{p+1}, v{p+1}, v31, s{70 + i%3}")
        a("s_nop 1")
        rnd_pairs(a, prs)
        for i, p in enumerate(prs): a(f"v_cvt_pk_f16_f32 v{16+i}, v{p}, v{p+1}")
        for i, p in enumerate(prs): a(f"ds_write_addtid_b32 v{16+i} offset:{(i%3)*HB_P + lst[i//3]*256}")
    a("""
    s_cmp_lt_u32 s3, 2
    s_cbranch_scc1 M_U2
    """)
    units([0, 1, 2])
    a("s_branch M_U3")
    a.label("M_U2")
    units([0, 1])
    a.label("M_U3")
    signal(a, C_H)
    a("s_cmp_ge_u32 s3, 6\ns_cbranch_scc1 M_PL0")
    RR = 160
    def red_issue():
        for s_ in range(8): a(f"global_load_dwordx2 {vr(RR+2*s_,2)}, v178, {P(sWS)} offset:{512*s_} sc1")
        a(f"global_load_dwordx2 {vr(RR+16,2)}, v179, {P(sWS)} sc1")
    def red_addr():
        a(f"""
        s_sub_u32 s40, s2, {229 - 27}
        s_mul_i32 s40, s40, {9*512}
        s_add_u32 s40, s40, {WS_MP}
        v_lshl_add_u32 v178, v2, 3, s40
        v_add_u32 v179, 4096, v178
        """)
    a(f"""
    s_cmp_lg_u32 s3, 1
    s_cbranch_scc1 M_HW
    s_cmp_lt_u32 s2, 229
    s_cbranch_scc1 M_HW
    """)
    red_addr(); red_issue()
    a(f"""
    M_HW:
    ; f-slice of D workgroups, down weights -> LDS
    s_and_b32 s40, s2, 7
    s_mul_i32 s40, s40, 18
    s_lshr_b32 s41, s2, 3
    s_add_u32 s46, s40, s41            ; fs
    """)
    def dn_fill(tag):
        L = ["v_lshrrev_b32 v15, 2, v2", "s_mul_i32 s40, s3, 144", "v_add_u32 v15, s40, v15", "v_mul_u32_u24 v15, 9216, v15", "v_and_b32 v251, 3, v2",
             "v_lshl_add_u32 v15, v251, 4, v15", "s_lshl_b32 s40, s46, 6", "v_add_u32 v15, s40, v15", "s_mul_i32 s40, s3, 9216", f"s_add_u32 m0, s40, {L_G}", f"s_mov_b32 s40, {16*9216}"]
        for i in range(9):
            L.append(f"s_cmp_ge_u32 s2, s47\ns_cbranch_scc1 DN{tag}_{i}\nglobal_load_lds_dwordx4 v15, {P(sWG)} {E('F_GFL', '')}\nDN{tag}_{i}:")
            if i < 8: L += ["s_add_u32 m0, m0, 1024\nv_add_u32 v15, s40, v15"]
        return L
    def pf_fill(spec):
        b = Asm(); b.uid = a.uid + 1000
        for it in spec.split(","): pf_lines(b, it[:-1], int(it[-1]), 252)
        return [x.strip() for x in b.lines if x.strip()]
    a("""
    s_cmp_lt_u32 s3, 4
    s_cselect_b32 s47, 144, 0
    s_bitcmp1_b32 s3, 1
    s_cselect_b32 s78, s24, s22
    s_cselect_b32 s79, s25, s23
    """)
    pf_waves(E("M_PFR", ""), "r", 16)
    if int(E("M_PRIO4", "1")):
        a("s_cmp_lg_u32 s3, 4\ns_cbranch_scc1 M_NP4\ns_setprio 1\nM_NP4:")
    spin(a, C_H, 8)
    stamp(a, 10)
    PFJ = dict(x.split(":") for x in E("M_PFJ", "A:g0;B:g1;C:g2").split(";") if x)
    dispatch("M_RUN")
    for nm, jb in jobs.items():
        a.label(f"M_RUN{nm}")
        fl_ = []
        if nm in PFJ: fl_ += pf_fill(PFJ[nm])
        acc = jb.run(a, fl_)
        if nm[0] == "K":
            k = int(nm[1])
            a(f"""
            ds_read_b32 v40, v{VZ} offset:{L_PRM + 32 + 8}
            ds_read_b32 v41, v{VZ} offset:{L_PRM + 48 + 8}
            ds_read_b32 v42, v{VZ} offset:{L_PRM + 64 + 8}
            ds_read_b32 v43, v{VZ} offset:{L_PRM + 80 + 8}
            ds_read_b64 v[44:45], v3 offset:{2*HB_P + 512*k}
            ds_read_b64 v[46:47], v3 offset:{2*HB_P + 512*(7-k)}
            v_and_b32 v16, 15, v2
            v_mul_u32_u24 v16, 96, v16
            v_lshrrev_b32 v17, 5, v2
            v_mul_u32_u24 v17, 48, v17
            v_bfe_u32 v18, v2, 4, 1
            v_lshl_add_u32 v17, v18, 3, v17
            v_add_u32 v16, v16, v17
            v_add_u32 v16, {L_TAB + 32}, v16
            s_waitcnt lgkmcnt(0)
            v_ldexp_f32 v43, v43, v42
            """)
            c0, c1 = acc[(0, k)], acc[(0, 7-k)]
            assert c1 == c0 + 4
            epi_core(a, c0, 44, 48, "v43", "v40", "v41", 8)
            for i in range(4): a(f"v_cvt_pk_bf16_f32 v{48+i}, v{c0+2*i}, v{c0+2*i+1}")
            a(f"ds_write_b64 v16, v[48:49] offset:{1536*k}")
            a(f"ds_write_b64 v16, v[50:51] offset:{1536*(7-k)}")
        a("s_branch M_FIN")
    a.label("M_FIN")
    a("s_setprio 0")
    stamp(a, 11)
    a(f"""
    s_cmp_lg_u32 s3, 1
    s_cbranch_scc1 M_NRED
    s_cmp_lt_u32 s2, 229
    s_cbranch_scc1 M_NRED
    s_mov_b32 s41, {SPIN}
    """)
    red_addr()
    a(f"""
    s_waitcnt vmcnt({1 if "B" in PFJ else 0})
    M_RP:
    v_xor_b32 v24, s{sTAG}, v{RR+17}
    """)
    for s_ in range(8):
        a(f"v_xor_b32 v25, s{sTAG}, v{RR+2*s_+1}")
        a("v_or_b32 v24, v24, v25")
    a(f"""
    v_cmp_ne_u32 vcc, 0, v24
    s_cbranch_vccz M_RD
    """)
    red_issue()
    a(f"""
    s_waitcnt vmcnt(0)
    s_sub_u32 s41, s41, 1
    s_cbranch_scc0 M_RP
    M_RD:
    """)
    for s_ in range(8): a(f"v_add_f32 v{RR+16}, v{RR+16}, v{RR+2*s_}")
    a(f"""
    v_cvt_pk_bf16_f32 v24, v{RR+16}, v{RR+16}
    s_sub_u32 s40, s2, {229 + 9}
    s_cmp_lt_u32 s40, 9
    s_cbranch_scc0 M_RNC
    v_lshlrev_b32 v24, 16, v24
    v_add_f32 v24, 1.0, v24
    v_cvt_pk_bf16_f32 v24, v24, v24
    M_RNC:
    s_sub_u32 s40, s2, 229
    s_lshl_b32 s40, s40, 8
    s_add_u32 s40, s40, {WS_PT16}
    v_mov_b32 v26, v24 quad_perm:[1,1,3,3] {DPP_ALL}
    v_lshl_add_u32 v27, v2, 2, s40
    v_mov_b32 v25, s{sTAG}
    v_alignbit_b32 v24, v26, v24, 16
    s_mov_b32 exec_lo, 0x55555555
    s_mov_b32 exec_hi, 0x55555555
    global_store_dwordx2 v27, v[24:25], {P(sWS)} sc1
    s_mov_b64 exec, -1
    M_NRED:
    s_cmp_lg_u32 s3, 5
    s_cbranch_scc1 M_NWR
    v_lshlrev_b32 v24, 4, v2
    s_mov_b32 m0, {L_PT + 3456}
    s_nop 0
    global_load_lds_dwordx4 v24, {P(sWR)}
    s_mov_b64 exec, 0xff
    global_load_lds_dwordx4 v24, {P(sWR)} offset:1024
    s_mov_b64 exec, -1
    M_NWR:
    """)
    a(f"""
    s_add_u32 s50, s3, 5               ; B[w]
    s_add_u32 s51, s3, -3              ; A
    s_add_u32 s52, s3, 7               ; C
    s_add_u32 s53, s3, 10              ; D
    s_cmp_ge_u32 s3, 5
    s_cselect_b32 s50, s53, s50
    s_lshl_b32 s50, s50, 10
    s_lshl_b32 s51, s51, 10
    s_lshl_b32 s52, s52, 10
    s_add_u32 s54, s51, 18432
    s_add_u32 s55, s52, 18432
    s_cmp_lt_u32 s3, 3
    s_cselect_b32 s51, {(L_ZERO - L_PART) & 0xffffffff}, s51
    s_cselect_b32 s52, {(L_ZERO - L_PART) & 0xffffffff}, s52
    s_cselect_b32 s54, {(L_ZERO - L_PART) & 0xffffffff}, s54
    s_cselect_b32 s55, {(L_ZERO - L_PART) & 0xffffffff}, s55
    v_lshlrev_b32 v16, 4, v2
    v_add_u32 v16, {L_PART}, v16
    v_add_u32 v17, s51, v16
    v_add_u32 v18, s52, v16
    v_add_u32 v19, s54, v16
    v_add_u32 v20, s55, v16
    v_add_u32 v16, s50, v16
    s_lshl_b32 s40, s3, 9
    v_add_u32 v3, s40, v3
    ds_read_b64 v[64:65], v{VZ} offset:{L_PRM + 32}
    ds_read_b64 v[66:67], v{VZ} offset:{L_PRM + 48}
    ds_read_b64 v[68:69], v{VZ} offset:{L_PRM + 64}
    ds_read_b64 v[70:71], v{VZ} offset:{L_PRM + 80}
    ds_read_b64 v[72:73], v3
    ds_read_b64 v[74:75], v3 offset:{HB_P}
    s_mul_i32 s40, s3, 1536
    s_add_u32 s40, s40, {L_TAB}
    v_and_b32 v4, 15, v2
    v_mul_u32_u24 v4, 96, v4
    v_lshrrev_b32 v5, 5, v2
    v_mul_u32_u24 v5, 48, v5
    v_and_b32 v6, 16, v2
    v_add3_u32 v4, v4, v5, v6
    v_add_u32 v4, s40, v4
    v_lshrrev_b32 v6, 2, v2
    v_mul_u32_u24 v5, 96, v6
    v_and_b32 v7, 3, v2
    v_mul_u32_u24 v8, 12, v7
    v_add3_u32 v5, v5, v8, s40
    v_lshlrev_b32 v6, 15, v6
    v_lshl_add_u32 v6, v7, 4, v6
    s_lshl_b32 s40, s3, 19
    s_lshl_b32 s41, s2, 6
    s_add_u32 s40, s40, s41
    s_add_u32 s40, s40, {WS_Z2}
    v_add_u32 v6, s40, v6
    v_add_u32 v7, 16384, v6
    v_mov_b32 v119, s{sTAG}
    v_mov_b32 v123, s{sTAG}
    s_waitcnt lgkmcnt(0)
    v_ldexp_f32 v70, v70, v68
    v_ldexp_f32 v71, v71, v69
    """)
    for e in range(4): a(f"v_fma_mix_f32 v{104+e}, v{72+e//2}, v64, 0 op_sel:[{e&1},0,0] op_sel_hi:[1,0,0]")
    for e in range(4): a(f"v_fma_mix_f32 v{108+e}, v{74+e//2}, v65, 0 op_sel:[{e&1},0,0] op_sel_hi:[1,0,0]")
    rnd_pairs(a, [104, 106, 108, 110])
    a(f"""
    v_min_u32 v124, 175, v0
    v_lshlrev_b32 v125, 4, v0
    v_lshlrev_b32 v124, 4, v124
    v_add_u32 v126, {WS_PT16}, v125
    v_add_u32 v127, {WS_PT16 + 4096}, v124
    v_lshrrev_b32 v125, 1, v125
    v_lshrrev_b32 v124, 1, v124
    v_add_u32 v125, {L_PT}, v125
    v_add_u32 v124, {L_PT + 2048}, v124
    s_barrier                          ; B6
    ds_read_b128 v[80:83], v16
    ds_read_b128 v[84:87], v17
    ds_read_b128 v[88:91], v18
    ds_read_b128 v[92:95], v16 offset:18432
    ds_read_b128 v[96:99], v19
    ds_read_b128 v[100:103], v20
    s_cmp_ge_u32 s3, 4
    s_cbranch_scc1 M_NPL
    global_load_dwordx4 v[128:131], v126, {P(sWS)} sc1
    global_load_dwordx4 v[132:135], v127, {P(sWS)} sc1
    M_NPL:
    """)
    a("s_waitcnt lgkmcnt(3)")
    for e in range(4): a(f"v_add_f32 v{80+e}, v{80+e}, v{84+e}")
    for e in range(4): a(f"v_add_f32 v{80+e}, v{80+e}, v{88+e}")
    a("s_waitcnt lgkmcnt(0)")
    for e in range(4): a(f"v_add_f32 v{84+e}, v{92+e}, v{96+e}")
    for e in range(4): a(f"v_add_f32 v{84+e}, v{84+e}, v{100+e}")
    for e in range(8): a(f"v_mul_f32 v{80+e}, v{70+e//4}, v{80+e}")
    for i in range(4): a(f"v_cvt_pk_bf16_f32 v{88+i}, v{80+2*i}, v{81+2*i}")
    a("v_mov_b32 v62, 0x3f80")
    a("v_mov_b32 v63, 0x3f800000")
    for e in range(8): a(f"v_dot2_f32_bf16 v{80+e}, v{88+e//2}, v{62+(e&1)}, v{104+e}")
    rnd_pairs(a, [80, 82, 84, 86])
    for e in range(8): a(f"v_mul_f32 v{80+e}, v{66+e//4}, v{80+e}")
    for e in range(4): a(f"v_cvt_pk_bf16_f32 v{88+e}, v{80+e}, v{84+e}")
    a(f"""
    ds_write_b128 v4, v[88:91]
    ds_read2_b32 v[116:117], v5 offset0:0 offset1:1
    ds_read_b32 v118, v5 offset:8
    ds_read2_b32 v[120:121], v5 offset0:12 offset1:13
    ds_read_b32 v122, v5 offset:56
    s_waitcnt lgkmcnt(2)
    global_store_dwordx4 v6, v[116:119], {P(sWS)} sc1
    s_waitcnt lgkmcnt(0)
    global_store_dwordx4 v7, v[120:123], {P(sWS)} sc1
    """)
    stamp(a, 17)
    gen_tail(a)
    return ("ka_kernel", 256, 512, M_LDS, 256, 100, 256)

def dn_touch(a):
    a("s_cmp_ge_u32 s3, 3\ns_cbranch_scc1 T_NT")
    a("""
    s_lshr_b32 s64, s2, 3
    s_mul_i32 s64, s64, 162
    s_mul_i32 s65, s3, 54
    s_add_u32 s64, s64, s65
    s_and_b32 s65, s2, 7
    s_mul_i32 s65, s65, 5184
    s_add_u32 s64, s64, s65
    v_min_u32 v252, 53, v2
    v_add_u32 v252, s64, v252
    v_lshlrev_b32 v252, 7, v252
    """)
    a(f"global_load_dword v250, v252, {P(sWD)}")
    a.label("T_NT")

def reduce2(a, A, B):
    for m in [f"row_shr:1 {DPP_ALL} bound_ctrl:0", f"row_shr:2 {DPP_ALL} bound_ctrl:0", f"row_shr:4 {DPP_ALL} bound_ctrl:0", f"row_shr:8 {DPP_ALL} bound_ctrl:0",
              "row_bcast:15 row_mask:0xa bank_mask:0xf", "row_bcast:31 row_mask:0xc bank_mask:0xf"]:
        a(f"v_add_f32 v{A}, v{A}, v{A} {m}")
        if B is not None: a(f"v_add_f32 v{B}, v{B}, v{B} {m}")
        a("s_nop 0" if B is not None else "s_nop 1")

def gen_tail(a):
    XF, C1, SB, GB, WR = 16, 26, 36, 46, 56
    ONES, LO, HI, RC = 61, 62, 63, 15
    Z, X1, P1, T, H2, O = 64, 70, 80, 86, 96, 102
    WG_, WD_ = 136, 176
    ZG, ZA = 192, 208
    sel = lambda e: LO + (e & 1)
    sKEY, sOWN = 47, 48
    GUK = 1
    GUAT = E('F_GU', 'b7')
    PLAN = E("F_PLAN", "B")
    def w_dma(mats):
        a(f"""
        v_lshrrev_b32 v9, 2, v2
        s_mul_i32 s40, s3, 144
        v_add_u32 v9, s40, v9
        v_mul_u32_u24 v9, 9216, v9
        v_and_b32 v8, 3, v2
        v_lshl_add_u32 v9, v8, 4, v9
        s_lshl_b32 s40, s46, 6
        v_add_u32 v9, s40, v9
        s_mul_i32 s50, s3, 9216
        s_mov_b32 s40, {16*9216}
        """)
        for k, m in enumerate(mats):
            a(f"s_add_u32 m0, s50, {L_G if m == 'g' else L_U}")
            a(f"v_mov_b32 v8, v9")
            for i in range(9):
                a(f"global_load_lds_dwordx4 v8, {P(sWG if m == 'g' else sWU)}")
                if i < 8: a("s_add_u32 m0, m0, 1024\nv_add_u32 v8, s40, v8")
    def gu_dma():
        a("s_cmp_ge_u32 s2, 144\ns_cbranch_scc1 T_NGU")
        w_dma("gu" if PLAN == "A" else "g")
        a(f"s_waitcnt vmcnt({20 if PLAN == 'A' else 11})\ns_branch T_PP1")
        a.label("T_NGU")
    def dn_dma():
        a('s_cmp_ge_u32 s2, 144\ns_cbranch_scc1 T_NDN\ns_cmp_ge_u32 s3, 4\ns_cbranch_scc1 T_NDN')
        a(f"""
        s_mul_i32 s40, s46, 36864
        s_mul_i32 s51, s3, 9216
        s_add_u32 s40, s40, s51
        s_add_u32 m0, s51, {L_D2}
        v_lshl_add_u32 v9, v2, 4, s40
        """)
        for i in range(9):
            a(f"global_load_lds_dwordx4 v9, {P(sWD)} offset:{1024*(i%3)} {E('F_DFL', '')}")
            if i % 3 == 2 and i < 8: a("s_add_u32 m0, m0, 3072\nv_add_u32 v9, 3072, v9")
        a.label("T_NDN")
    a(f"""
    s_cmp_lg_u32 s3, 5
    s_cbranch_scc1 T_B7
    s_waitcnt vmcnt(2)
    T_B7:
    s_barrier                          ; B7
    s_cmp_ge_u32 s3, 4
    s_cbranch_scc1 T_ZW
    """)
    a(f"""
    s_mov_b32 s41, {SPIN}
    """)
    gu_dma()
    a(f"""
    s_waitcnt vmcnt(2)
    s_branch T_PP1
    T_PP:
    global_load_dwordx4 v[128:131], v126, {P(sWS)} sc1
    global_load_dwordx4 v[132:135], v127, {P(sWS)} sc1
    s_waitcnt vmcnt(0)
    T_PP1:
    v_xor_b32 v129, s{sTAG}, v129
    v_xor_b32 v131, s{sTAG}, v131
    v_xor_b32 v133, s{sTAG}, v133
    v_xor_b32 v135, s{sTAG}, v135
    v_or3_b32 v129, v129, v131, v133
    v_or_b32 v129, v129, v135
    v_cmp_ne_u32 vcc, 0, v129
    s_cbranch_vccz T_PD
    s_sub_u32 s41, s41, 1
    s_cbranch_scc0 T_PP
    T_PD:
    ds_write2_b32 v125, v128, v130 offset0:0 offset1:1
    ds_write2_b32 v124, v132, v134 offset0:0 offset1:1
    """)
    signal(a, C_P)
    a(f"""
    s_branch T_COM
    T_ZW:
    s_sub_u32 s40, s3, 4
    s_lshl_b32 s41, s40, 12
    s_lshl_b32 s50, s2, 14
    s_add_u32 s41, s41, s50
    s_add_u32 s41, s41, {WS_Z2}
    v_lshl_add_u32 v{ZA+3}, v2, 4, s41
    s_lshl_b32 s40, s40, 8             ; 4 * 64(w-4)
    v_lshrrev_b32 v64, 2, v2
    v_lshl_add_u32 v65, v64, 2, s40    ; 4p
    v_and_b32 v66, 3, v2               ; g
    v_mul_u32_u24 v67, {3*ZR_P}, v66
    v_add_u32 v{ZA}, v65, v67
    v_add_u32 v{ZA}, {L_ZR}, v{ZA}
    v_add_u32 v{ZA+1}, {ZR_P}, v{ZA}
    v_add_u32 v{ZA+2}, {2*ZR_P}, v{ZA}
    s_lshr_b32 s41, s2, 5
    s_sub_u32 s50, 7, s41
    s_min_u32 s41, s41, s50            ; owner k
    v_and_b32 v67, 3, v64
    v_and_b32 v65, -16, v65            ; (p>>2)*16
    v_add_u32 v65, {L_ZC}, v65
    v_mov_b32 v68, {L_ZC + 1024}
    v_cmp_eq_u32 vcc, s41, v67
    s_nop 1
    v_cndmask_b32 v65, v68, v65, vcc
    v_add_u32 v67, 4, v65
    v_add_u32 v68, 8, v65
    v_add_u32 v69, 12, v65
    v_cmp_eq_u32 vcc, 2, v66
    s_nop 1
    v_cndmask_b32 v{ZA+2}, v{ZA+2}, v65, vcc
    v_cmp_eq_u32 vcc, 3, v66
    s_nop 1
    v_cndmask_b32 v{ZA}, v{ZA}, v67, vcc
    v_cndmask_b32 v{ZA+1}, v{ZA+1}, v68, vcc
    v_cndmask_b32 v{ZA+2}, v{ZA+2}, v69, vcc
    """)
    a.label("T_COM")
    a(f"""
    v_mov_b32 v64, 0
    v_mov_b32 v65, 0
    v_mov_b32 v66, 0
    v_mov_b32 v67, 0
    v_lshlrev_b32 v68, 4, v0
    v_min_u32 v69, 15, v0
    v_lshlrev_b32 v69, 4, v69
    ds_write_b128 v68, v[64:67] offset:{L_LIST}
    ds_write_b128 v69, v[64:67] offset:{L_LIST + 8192}
    v_mov_b32 v{ONES}, 0x3f803f80
    v_mov_b32 v{RC}, {fbits(1.0/576)}
    """)
    for w in range(4): unpk(a, XF+2*w, XF+2*w+1, 10+w)
    a(f"""
    v_lshlrev_b32 v{XF+8}, 16, v14
    v_lshlrev_b32 v4, 4, v2
    v_add_u32 v4, {L_PT}, v4
    v_lshlrev_b32 v5, 1, v2
    v_add_u32 v5, {L_PT + 1024}, v5
    s_mul_i32 s40, s3, {ZR_P}
    s_add_u32 s40, s40, {L_ZR}
    v_lshl_add_u32 v6, v2, 4, s40
    s_lshl_b32 s40, s3, 1
    s_add_u32 s40, s40, {L_ZC}
    v_lshl_add_u32 v7, v2, 4, s40
    s_cmp_lt_u32 s3, 4
    s_cbranch_scc1 T_NZ
    s_waitcnt vmcnt(0)
    {"s_cmp_lt_u32 s2, 144" if E("SL_ZN") else ""}
    {"s_cbranch_scc1 T_NSL" if E("SL_ZN") else ""}
    {"s_sleep %s" % E("SL_Z") if E("SL_Z") else ""}
    T_NSL:
    """)
    def z_issue():
        for n in range(4): a(f"global_load_dwordx4 {vr(ZG+4*n,4)}, v{ZA+3}, {P(sWS)} offset:{1024*n} sc1")
    z_issue()
    a.label("T_NZ")
    stamp(a, 18)
    spin(a, C_P, 4)
    for t, d in ((0, 112), (1, 118), (2, 124)):
        a(f"ds_read_b128 {vr(72+8*t, 4)}, v4 offset:{1152*t}")
        a(f"ds_read_u16 v{76+8*t}, v5 offset:{1152*t}")
    a(f"""
    ds_read_b128 {vr(WR,4)}, v4 offset:3456
    ds_read_u16 v{WR+4}, v5 offset:3456
    s_waitcnt lgkmcnt(4)
    """)
    for w in range(4): unpk(a, SB+2*w, SB+2*w+1, 72+w)
    a(f"v_lshlrev_b32 v{SB+8}, 16, v76")
    for w in range(4):
        a(f"v_and_b32 v{C1+2*w}, 0xffff, v{80+w}")
        a(f"v_and_b32 v{C1+2*w+1}, 0xffff0000, v{80+w}")
    a(f"v_mov_b32 v{C1+8}, v84")
    a("s_waitcnt lgkmcnt(2)")
    for w in range(4):
        a(f"v_and_b32 v{GB+2*w}, 0xffff, v{88+w}")
        a(f"v_and_b32 v{GB+2*w+1}, 0xffff0000, v{88+w}")
    a(f"""
    v_mov_b32 v{GB+8}, v92
    s_cmp_lt_u32 s3, 4
    s_cbranch_scc1 T_B9
    s_mov_b32 s41, {SPIN}
    T_ZP:
    s_waitcnt vmcnt(0)
    v_xor_b32 v64, s{sTAG}, v{ZG+3}
    v_xor_b32 v65, s{sTAG}, v{ZG+7}
    v_xor_b32 v66, s{sTAG}, v{ZG+11}
    v_xor_b32 v67, s{sTAG}, v{ZG+15}
    v_or3_b32 v64, v64, v65, v66
    v_or_b32 v64, v64, v67
    v_cmp_ne_u32 vcc, 0, v64
    s_cbranch_vccz T_ZD
    s_mov_b64 exec, vcc
    """)
    z_issue()
    a(f"""
    s_mov_b64 exec, -1
    s_sub_u32 s41, s41, 1
    s_cbranch_scc0 T_ZP
    T_ZD:
    """)
    stamp(a, 19)
    for n in range(4):
        for s_ in range(3): a(f"ds_write_b32 v{ZA+s_}, v{ZG+4*n+s_} offset:{64*n}")
    a(f"""
    T_B9:
    s_waitcnt lgkmcnt(0)
    s_barrier                          ; B9
    ds_read_b128 {vr(Z,4)}, v6
    ds_read_u16 v{Z+4}, v7
    s_waitcnt lgkmcnt(0)
    """)
    stamp(a, 20)
    if PLAN == "A": dn_dma()
    else:
        a("s_cmp_ge_u32 s2, 144\ns_cbranch_scc1 T_NUP\ns_cmp_ge_u32 s3, 4\ns_cbranch_scc1 T_NUP")
        w_dma("u")
        a.label("T_NUP")
        dn_touch(a)
    def pack(dst, src):
        for i in range(4): a(f"v_cvt_pk_bf16_f32 v{dst+i}, v{src+2*i}, v{src+2*i+1}")
        a(f"v_cvt_pk_bf16_f32 v{dst+4}, v{src+8}, 0")
    def dots(dst, src, bf, cf):
        for e in (8, 0, 1, 2, 3, 4, 5, 6, 7): a(f"v_dot2_f32_bf16 v{dst+e}, v{src+e//2}, {bf(e)}, {cf(e)}")
    vsel = lambda e: f"v{sel(e)}"
    dots(X1, Z, vsel, lambda e: f"v{XF+e}")
    pack(P1, X1)
    ln_core(a, P1, X1, T, ONES, LO, RC, "T_FAST")
    pack(Z, X1)
    dots(X1, Z, lambda e: f"v{C1+e}", lambda e: "0")
    pack(Z, X1)
    dots(X1, Z, vsel, lambda e: f"v{SB+e}")
    pack(H2, X1)
    for i in range(5): a(f"v_dot2_f32_bf16 v{T}, v{H2+i}, v{WR+i}, {'0' if i == 0 else 'v%d' % T}")
    a(f"""
    s_lshl_b32 s40, s2, 3
    s_add_u32 s40, s40, s3
    s_sub_u32 s40, 0xffff, s40
    """)
    reduce2(a, T, None)
    a(f"""
    v_cvt_pk_bf16_f32 v{T}, v{T}, v{T}
    s_lshl_b32 s41, s3, 3
    v_mov_b32 v{T+2}, s41
    v_readlane_b32 s{sKEY}, v{T}, 63
    v_mov_b32 v{T+1}, s{sTAG}
    s_and_b32 s{sKEY}, s{sKEY}, 0xffff0000
    s_ashr_i32 s41, s{sKEY}, 31
    s_or_b32 s41, s41, 0x80000000
    s_xor_b32 s{sKEY}, s{sKEY}, s41
    s_and_b32 s{sKEY}, s{sKEY}, 0xffff0000
    s_or_b32 s{sKEY}, s{sKEY}, s40
    v_mov_b32 v{T}, s{sKEY}
    s_mov_b64 exec, 1
    ds_write_b64 v{T+2}, {vr(T,2)} offset:{L_CNT + C_KEYS}
    ds_add_u32 v{VZ}, v{VONE} offset:{L_CNT + C_KEY}
    s_mov_b64 exec, -1
    v_and_b32 v4, 3, v2
    v_lshlrev_b32 v4, 4, v4
    v_lshrrev_b32 v5, 2, v2
    v_lshlrev_b32 v5, 14, v5
    s_lshl_b32 s41, s2, 6
    s_add_u32 s41, s41, {WS_KEY}
    v_add3_u32 v5, v5, v4, s41
    s_mov_b32 s41, s3
    s_cmp_lg_u32 s3, 7
    s_cbranch_scc1 T_NK
    T_KS:
    ds_read_b32 v{T+3}, v{VZ} offset:{L_CNT + C_KEY}
    ds_read_b128 v[108:111], v4 offset:{L_CNT + C_KEYS}
    s_waitcnt lgkmcnt(0)
    v_readfirstlane_b32 s94, v{T+3}
    s_cmp_ge_u32 s94, 8
    s_cbranch_scc0 T_KS
    {"s_mov_b32 exec_hi, 0" if NREP == 8 else ("" if NREP == 16 else "s_mov_b64 exec, %s" % hex((1 << (4*NREP)) - 1))}
    s_waitcnt lgkmcnt(0)
    global_store_dwordx4 v5, v[108:111], {P(sWS)} sc1
    s_mov_b64 exec, -1
    T_NK:
    """)
    stamp(a, 21)
    if DNAT == "kp":
        k0_ = len(a.lines); dn_touch(a)
    dots(X1, H2, lambda e: f"v{GB+e}", lambda e: "0")
    for w in range(4): unpk(a, XF+2*w, XF+2*w+1, P1+w)
    a(f"v_lshlrev_b32 v{XF+8}, 16, v{P1+4}")
    pack(Z, X1)
    dots(X1, Z, vsel, lambda e: f"v{XF+e}")
    a(f"""
    s_and_b32 s40, s2, {NREP-1}
    s_lshl_b32 s40, s40, 14
    s_lshl_b32 s50, s3, 12
    s_add_u32 s40, s40, s50
    s_add_u32 s40, s40, {WS_KEY - 16384}
    v_lshl_add_u32 v6, v2, 4, s40
    """)
    pack(O, X1)
    a(f"""
    s_cmp_lg_u32 s41, 7
    s_cbranch_scc1 T_NK2
    s_waitcnt vmcnt(0)
    """)
    signal(a, C_KP)
    a(f"""
    T_NK2:
    """)
    KK = 108
    a(f"""
    s_cmp_ge_u32 s2, 144
    s_cbranch_scc1 T_NW
    s_cmp_ge_u32 s3, 4
    s_cbranch_scc1 T_W2
    s_waitcnt vmcnt({9 if PLAN == "A" else 0})
    """)
    signal(a, C_KP + 4)
    a(f"""
    T_W2:
    v_bfe_u32 v7, v2, 2, 2             ; r
    v_lshrrev_b32 v8, 4, v2            ; q
    v_lshl_add_u32 v7, v8, 3, v7       ; 8q + r
    v_and_b32 v8, 3, v2
    v_lshlrev_b32 v8, 3, v8            ; 8c
    v_mul_u32_u24 v21, 1152, v7
    v_add_u32 v21, v21, v8
    s_lshl_b32 s40, s3, 5
    s_add_u32 s40, s40, {L_D2}
    v_add_u32 v21, s40, v21
    v_lshl_add_u32 v7, v7, 6, v8
    s_lshr_b32 s40, s3, 1
    s_mul_i32 s50, s40, 5
    s_cmp_eq_u32 s40, 3
    s_cselect_b32 s50, 14, s50
    s_lshl_b32 s51, s50, 11
    s_and_b32 s40, s3, 1
    s_lshl_b32 s40, s40, 5
    s_add_u32 s40, s40, s51
    s_add_u32 s40, s40, {L_U}
    v_add_u32 v7, s40, v7
    v_add_u32 v8, {L_G - L_U}, v7
    """)
    spin(a, C_KP + 4, 4)
    stamp(a, 30)
    for i in range(5):
        a(f"ds_read_b64_tr_b16 {vr(WG_+8*i,2)}, v8 offset:{2048*i}")
        a(f"ds_read_b64_tr_b16 {vr(WG_+8*i+2,2)}, v8 offset:{2048*i + 256}")
        a(f"ds_read_b64_tr_b16 {vr(WG_+8*i+4,2)}, v7 offset:{2048*i}")
        a(f"ds_read_b64_tr_b16 {vr(WG_+8*i+6,2)}, v7 offset:{2048*i + 256}")
    a.label("T_NW")
    def dn_tr(v):
        for i in range(5):
            a(f"ds_read_b64_tr_b16 {vr(WD_+4*i,2)}, v{v} offset:{256*i}")
            a(f"ds_read_b64_tr_b16 {vr(WD_+4*i+2,2)}, v{v} offset:{256*i + 4608}")
    def nd_touch():
        a(f"""
        s_cmp_lt_u32 s2, 144
        s_cbranch_scc1 T_NT
        s_cmp_ge_u32 s3, 6
        s_cbranch_scc1 T_NT
        s_lshr_b32 s64, s2, 3
        s_sub_u32 s64, s64, 18
        s_mul_i32 s64, s64, 6
        s_add_u32 s64, s64, s3
        s_mul_i32 s64, s64, 62
        v_min_u32 v252, 61, v2
        v_add_u32 v252, s64, v252
        v_min_u32 v252, 5183, v252
        s_and_b32 s65, s2, 7
        s_mul_i32 s65, s65, 5184
        v_add_lshl_u32 v252, v252, s65, 7
        global_load_dword v250, v252, {P(sWD)}
        {"s_waitcnt vmcnt(1)" if E("F_NDAT", "k") == "k" else ""}
        {"s_branch T_KP1" if E("F_NDAT", "k") == "k" else ""}
        T_NT:
        """)
    def k_issue():
        for i in range(4): a(f"global_load_dwordx4 {vr(KK+4*i,4)}, v6, {P(sWS)} offset:{1024*i} sc1")
    a(f"""
    s_cmp_lt_u32 s3, 4
    s_cbranch_scc1 T_LOW
    v_and_b32 v4, 3, v2
    v_lshlrev_b32 v4, 3, v4
    s_mov_b32 s41, {SPIN}
    s_setprio 1
    """)
    spin(a, C_KP, 1)
    if E("SL_K"): a("s_sleep %s" % E("SL_K"))
    k_issue()
    stamp(a, 22)
    a(f"""
    T_KP:
    s_waitcnt vmcnt(0)
    """)
    for i in range(8): a(f"v_xor_b32 v{64+i}, s{sTAG}, v{KK+2*i+1}")
    a(f"""
    v_or3_b32 v64, v64, v65, v66
    v_or3_b32 v67, v67, v68, v69
    v_or3_b32 v64, v64, v70, v71
    v_or_b32 v64, v64, v67
    v_cmp_ne_u32 vcc, 0, v64
    s_cbranch_vccz T_KD
    s_mov_b64 exec, vcc
    """)
    k_issue()
    a(f"""
    s_mov_b64 exec, -1
    s_sub_u32 s41, s41, 1
    s_cbranch_scc0 T_KP
    T_KD:
    """)
    stamp(a, 23)
    a(f"""
    v_max3_u32 v64, v{KK}, v{KK+4}, v{KK+8}
    v_max3_u32 v65, v{KK+2}, v{KK+6}, v{KK+10}
    v_max_u32 v64, v64, v{KK+12}
    v_max_u32 v65, v65, v{KK+14}
    s_nop 0
    v_max_u32 v64, v64, v64 row_shr:4 {DPP_ALL} bound_ctrl:0
    v_max_u32 v65, v65, v65 row_shr:4 {DPP_ALL} bound_ctrl:0
    s_nop 0
    v_max_u32 v64, v64, v64 row_shr:8 {DPP_ALL} bound_ctrl:0
    v_max_u32 v65, v65, v65 row_shr:8 {DPP_ALL} bound_ctrl:0
    s_mov_b32 exec_lo, 0xf000f000
    s_mov_b32 exec_hi, 0xf000f000
    ds_max_u32 v4, v64 offset:{L_CNT + C_MX}
    ds_max_u32 v4, v65 offset:{L_CNT + C_MX + 4}
    """)
    signal(a, C_KP + 12)
    a(f"""
    T_MS:
    ds_read_b32 v72, v{VZ} offset:{L_CNT + C_KP + 12}
    ds_read_b128 v[64:67], v{VZ} offset:{L_CNT + C_MX}
    ds_read_b128 v[68:71], v{VZ} offset:{L_CNT + C_MX + 16}
    s_waitcnt lgkmcnt(0)
    v_readfirstlane_b32 s94, v72
    v_min3_u32 v64, v64, v65, v66
    v_min3_u32 v68, v68, v69, v70
    s_cmp_ge_u32 s94, 4
    s_cbranch_scc0 T_MS
    v_min3_u32 v64, v64, v67, v71
    v_min_u32 v64, v64, v68            ; theta
    """)
    SM = [66, 68, 70, 72, 80, 82, 84, 86]
    for i in range(8): a(f"v_cmp_ge_u32 s[{SM[i]}:{SM[i]+1}], v{KK+2*i}, v64")
    SC = [52, 53, 54, 55, 56, 57, 58, 59]
    for i in range(8): a(f"s_bcnt1_i32_b64 s{SC[i]}, s[{SM[i]}:{SM[i]+1}]")
    for i in range(1, 8): a(f"s_add_u32 s{SC[i]}, s{SC[i]}, s{SC[i-1]}")
    a(f"""
    v_mov_b32 v65, s{SC[7]}
    s_mov_b64 exec, 1
    ds_add_rtn_u32 v66, v{VZ}, v65 offset:{L_CNT + C_N}
    s_mov_b64 exec, -1
    """)
    for i in range(8):
        a(f"v_mbcnt_lo_u32_b32 v{68+i}, s{SM[i]}, 0")
        a(f"v_mbcnt_hi_u32_b32 v{68+i}, s{SM[i]+1}, v{68+i}")
    a(f"""
    s_waitcnt lgkmcnt(0)
    v_readfirstlane_b32 s74, v66
    """)
    for i in range(8):
        l = a.newlabel("CK")
        if i: a(f"s_add_u32 s75, s74, s{SC[i-1]}")
        a(f"""
        s_mov_b64 exec, s[{SM[i]}:{SM[i]+1}]
        s_cbranch_execz {l}
        v_add_lshl_u32 v{68+i}, v{68+i}, s{75 if i else 74}, 2
        ds_write_b32 v{68+i}, v{KK+2*i} offset:{L_LIST}
        {l}:
        """)
    a(f"""
    s_mov_b64 exec, -1
    s_setprio 0
    s_branch T_B10
    T_LOW:
    """)
    if PLAN == "B": dn_dma()
    a("s_waitcnt vmcnt(0)")
    a(f"""
    T_B10:
    v_lshlrev_b32 v4, 2, v2
    s_mov_b32 s{sOWN}, 8
    s_mov_b32 s76, 0
    s_waitcnt lgkmcnt(0)
    s_barrier                          ; B11
    ds_read_b32 v65, v{VZ} offset:{L_CNT + C_N}
    T_OUT:
    ds_read_b32 v64, v4 offset:{L_LIST}
    """)
    NPRE = 6
    for i in range(NPRE): a(f"ds_read_b128 {vr(KK+4*i,4)}, v{VZ} offset:{L_LIST + 16*i}")
    a(f"""
    v_mov_b32 v66, 0
    v_mov_b32 v67, {16*NPRE}
    s_waitcnt lgkmcnt({NPRE})
    v_readfirstlane_b32 s74, v65       ; n
    """)
    for i in range(NPRE):
        a(f"s_waitcnt lgkmcnt({NPRE-1-i})")
        for e in range(4):
            a(f"v_cmp_gt_u32 vcc, v{KK+4*i+e}, v64")
            a(f"v_addc_co_u32 v66, vcc, 0, v66, vcc")
        if i in (2, 3, 4):
            a(f"s_cmp_le_u32 s74, {4*i+4}")
            a("s_cbranch_scc1 T_RK")
    a(f"""
    s_mov_b32 s75, {4*NPRE}
    T_IN:
    s_cmp_ge_u32 s75, s74
    s_cbranch_scc1 T_RK
    ds_read_b128 {vr(KK,4)}, v67 offset:{L_LIST}
    v_add_u32 v67, 16, v67
    s_add_u32 s75, s75, 4
    s_waitcnt lgkmcnt(0)
    """)
    for e in range(4):
        a(f"v_cmp_gt_u32 vcc, v{KK+e}, v64")
        a(f"v_addc_co_u32 v66, vcc, 0, v66, vcc")
    a(f"""
    s_branch T_IN
    T_RK:
    s_waitcnt lgkmcnt(0)
    v_cmp_eq_u32 vcc, s{sKEY}, v64
    v_min_u32 v66, 8, v66
    v_lshlrev_b32 v67, 2, v66
    s_ff1_i32_b64 s75, vcc
    ds_write_b32 v67, v64 offset:{L_CNT + C_SEL}
    s_cbranch_vccz T_NOWN
    v_readlane_b32 s{sOWN}, v66, s75
    T_NOWN:
    v_add_u32 v4, 256, v4
    s_add_u32 s76, s76, 64
    s_cmp_lt_u32 s76, s74
    s_cbranch_scc1 T_OUT
    """)
    stamp(a, 24)
    a(f"""
    s_lshl_b32 s40, s2, 3
    s_add_u32 s40, s40, s3
    s_mul_i32 s40, s40, 1152
    s_cmp_lt_u32 s{sOWN}, 8
    s_cbranch_scc0 T_STO
    ; selected row: publish h2 and x1
    s_mul_i32 s40, s{sOWN}, 3072
    s_add_u32 s40, s40, {WS_ROW}
    v_lshl_add_u32 v4, v2, 4, s40
    v_mov_b32 v64, v{H2+3}
    v_mov_b32 v65, v{P1+3}
    v_lshl_or_b32 v66, v{P1+4}, 16, v{H2+4}
    v_mov_b32 v67, s{sTAG}
    v_mov_b32 v{H2+3}, s{sTAG}
    v_mov_b32 v{P1+3}, s{sTAG}
    """)
    for r_ in range(RREP):
        a(f"global_store_dwordx4 v4, {vr(H2,4)}, {P(sWS)} sc1")
        a(f"global_store_dwordx4 v4, v[64:67], {P(sWS)} offset:1024 sc1")
        a(f"global_store_dwordx4 v4, {vr(P1,4)}, {P(sWS)} offset:2048 sc1")
        if r_ < RREP - 1: a("v_add_u32 v4, 24576, v4")
    a(f"""
    s_branch T_STD
    T_STO:
    v_lshl_add_u32 v4, v2, 4, s40
    v_lshl_add_u32 v5, v2, 1, s40
    global_store_dwordx4 v4, {vr(O,4)}, {P(sOUT)} {E('F_OST', '')}
    global_store_short v5, v{O+4}, {P(sOUT)} offset:1024 {E('F_OST', '')}
    T_STD:
    s_cmp_ge_u32 s2, 144
    s_cbranch_scc1 T_END
    s_mul_i32 s40, s3, 3072
    s_lshr_b32 s41, s2, 3
    s_and_b32 s41, s41, {RREP-1}
    s_mul_i32 s41, s41, 24576
    s_add_u32 s40, s40, s41
    s_add_u32 s40, s40, {WS_ROW}
    v_lshl_add_u32 v4, v2, 4, s40
    s_mul_i32 s40, s3, {SR_P}
    s_add_u32 s40, s40, {L_SH}
    v_lshl_add_u32 v5, v2, 4, s40
    v_lshl_add_u32 v6, v2, 1, s40
    s_mov_b32 s41, {SPIN}
    """)
    if E("SL_R"): a("s_sleep %s" % E("SL_R"))
    a(f"""
    global_load_dwordx4 v[64:67], v4, {P(sWS)} sc1
    global_load_dwordx4 v[68:71], v4, {P(sWS)} offset:1024 sc1
    global_load_dwordx4 v[72:75], v4, {P(sWS)} offset:2048 sc1
    """)
    dn_tr(21)
    a(f"""
    v_and_b32 v7, 7, v2
    v_mul_u32_u24 v17, 80, v7
    v_mul_u32_u24 v7, {SR_P}, v7
    v_and_b32 v8, 0x30, v2
    v_add_u32 v17, v17, v8
    s_lshl_b32 s40, s50, 6
    s_add_u32 s40, s40, {L_SH}
    v_add3_u32 v7, v7, v8, s40
    s_lshl_b32 s40, s3, 10
    s_add_u32 s40, s40, {L_GP}
    v_lshl_add_u32 v8, v2, 4, s40
    v_and_b32 v9, 1, v2
    v_lshlrev_b32 v9, 9, v9
    v_bfe_u32 v16, v2, 1, 4
    v_lshl_add_u32 v9, v16, 4, v9
    v_lshrrev_b32 v16, 5, v2
    v_lshl_add_u32 v9, v16, 10, v9
    s_lshr_b32 s40, s3, 2
    s_lshl_b32 s40, s40, 8
    s_and_b32 s51, s3, 3
    s_lshl_b32 s51, s51, 2
    s_add_u32 s40, s40, s51
    s_add_u32 s40, s40, {L_GP}
    v_add_u32 v9, s40, v9
    s_mul_i32 s40, s3, 80
    v_and_b32 v16, -2, v2
    v_add_u32 v16, s40, v16
    s_waitcnt vmcnt(0)
    T_RP:
    v_xor_b32 v76, s{sTAG}, v67
    v_xor_b32 v77, s{sTAG}, v71
    v_xor_b32 v78, s{sTAG}, v75
    v_or3_b32 v76, v76, v77, v78
    v_cmp_ne_u32 vcc, 0, v76
    s_cbranch_vccz T_RD
    global_load_dwordx4 v[64:67], v4, {P(sWS)} sc1
    global_load_dwordx4 v[68:71], v4, {P(sWS)} offset:1024 sc1
    global_load_dwordx4 v[72:75], v4, {P(sWS)} offset:2048 sc1
    s_waitcnt vmcnt(0)
    s_sub_u32 s41, s41, 1
    s_cbranch_scc0 T_RP
    T_RD:
    v_mov_b32 v67, v68
    v_mov_b32 v75, v69
    ds_write_b128 v5, v[64:67]
    ds_write_b16 v6, v70 offset:1024
    ds_write_b128 v5, v[72:75] offset:{L_SX - L_SH}
    ds_write_b16_d16_hi v6, v70 offset:{L_SX - L_SH + 1024}
    s_waitcnt lgkmcnt(2)
    """)
    stamp(a, 25)
    a("s_barrier                          ; B12")
    AF = 64; AG, AU = 84, 88
    for i in range(5): a(f"ds_read_b128 {vr(AF+4*i,4)}, v7 offset:{64*i}")
    for i in range(5):
        if i == 4: a("s_cmp_ge_u32 s3, 4"); a("s_cbranch_scc1 T_G4")
        a(f"s_waitcnt lgkmcnt({4-i})")
        a(f"v_mfma_f32_16x16x32_bf16 {vr(AG,4)}, {vr(AF+4*i,4)}, {vr(WG_+8*i,4)}, {'0' if i == 0 else vr(AG,4)}")
        a(f"v_mfma_f32_16x16x32_bf16 {vr(AU,4)}, {vr(AF+4*i,4)}, {vr(WG_+8*i+4,4)}, {'0' if i == 0 else vr(AU,4)}")
    a(f"""
    T_G4:
    v_lshrrev_b32 v18, 5, v2
    v_lshlrev_b32 v18, 5, v18
    v_bfe_u32 v19, v2, 3, 2
    v_add_u32 v18, v18, v19
    s_lshl_b32 s40, s3, 2
    v_add_u32 v18, s40, v18
    v_mul_u32_u24 v18, {144*128}, v18
    s_mov_b32 exec_hi, 0
    ds_write_b128 v8, {vr(AG,4)}
    ds_write_b128 v8, {vr(AU,4)} offset:512
    s_mov_b64 exec, -1
    v_and_b32 v19, 7, v2
    v_lshl_add_u32 v18, v19, 4, v18
    s_lshl_b32 s40, s2, 7
    s_add_u32 s40, s40, {WS_PT}
    v_add_u32 v18, s40, v18
    v_add_u32 v19, {64*144*128}, v18
    v_add_u32 v20, {128*144*128}, v18
    s_waitcnt vmcnt(0) lgkmcnt(0)
    s_barrier                          ; B13
    ds_read_b32 v64, v9
    ds_read_b32 v65, v9 offset:2048
    ds_read_b32 v66, v9 offset:4096
    ds_read_b32 v67, v9 offset:6144
    """)
    NX = 0
    a(f"""
    s_mov_b32 s52, 0x05030201
    s_mov_b32 s53, 0x06050302
    s_mov_b32 s54, 0x07060503
    v_mov_b32 v71, s{sTAG}
    v_mov_b32 v75, s{sTAG}
    v_mov_b32 v79, s{sTAG}
    s_waitcnt lgkmcnt({2 + NX})
    v_add_f32 v64, v64, v65
    s_waitcnt lgkmcnt({NX})
    v_add_f32 v66, v66, v67
    v_add_f32 v64, v64, v66
    v_cvt_pk_bf16_f32 v64, v64, v64
    v_lshlrev_b32 v64, 16, v64
    v_mul_f32 v65, {fbits(-LOG2E)}, v64
    v_exp_f32 v65, v65
    s_nop 0
    v_add_f32 v65, 1.0, v65
    v_rcp_f32 v65, v65
    s_nop 0
    v_mul_f32 v65, v64, v65
    v_cvt_pk_bf16_f32 v65, v65, v65
    v_lshlrev_b32 v65, 16, v65
    s_nop 0
    v_mul_f32 v65, v64, v65 quad_perm:[1,1,3,3] {DPP_ALL}
    v_cvt_pk_bf16_f32 v65, v65, v65
    s_mov_b32 exec_lo, 0x55555555
    s_mov_b32 exec_hi, 0x55555555
    ds_write_b16 v16, v65 offset:{L_ACT}
    s_mov_b64 exec, -1
    s_waitcnt lgkmcnt(0)
    s_barrier                          ; B14
    ds_read_b128 v[64:67], v17 offset:{L_ACT}
    s_waitcnt lgkmcnt(0)
    """)
    stamp(a, 26)
    DA = 80
    for i in range(5): a(f"v_mfma_f32_16x16x32_bf16 {vr(DA+4*i,4)}, v[64:67], {vr(WD_+4*i,4)}, 0")
    a(f"""
    s_mul_i32 s40, s2, {144*128}
    s_add_u32 s40, s40, {WS_PT}
    v_lshl_add_u32 v4, v0, 4, s40
    v_add_u32 v5, 8192, v4
    v_add_u32 v6, 16384, v4
    s_nop 0
    """)
    def p24(d, s_):
        a(f"v_perm_b32 v{d}, v{s_+1}, v{s_}, s52")
        a(f"v_perm_b32 v{d+1}, v{s_+2}, v{s_+1}, s53")
        a(f"v_perm_b32 v{d+2}, v{s_+3}, v{s_+2}, s54")
    for r_ in range(4): a(f"v_permlane32_swap_b32 v{DA+r_}, v{DA+4+r_}")
    p24(68, DA)
    a(f"global_store_dwordx4 v18, v[68:71], {P(sWS)} sc1")
    for r_ in range(4): a(f"v_permlane32_swap_b32 v{DA+8+r_}, v{DA+12+r_}")
    p24(72, DA+8)
    a(f"global_store_dwordx4 v19, v[72:75], {P(sWS)} sc1")
    a("s_cmp_ge_u32 s3, 4")
    a("s_cbranch_scc1 T_NS3")
    p24(76, DA+16)
    a(f"""
    s_mov_b32 exec_hi, 0
    global_store_dwordx4 v20, v[76:79], {P(sWS)} sc1
    s_mov_b64 exec, -1
    T_NS3:
    """)
    stamp(a, 27)
    a(f"""
    s_cmp_lg_u32 s3, 7
    s_cbranch_scc1 T_NF
    s_lshr_b32 s40, s2, 2
    s_lshl_b32 s40, s40, 4
    s_and_b32 s41, s2, 1
    s_lshl_b32 s41, s41, 3
    s_add_u32 s40, s40, s41
    v_and_b32 v24, 7, v2
    v_add_u32 v24, s40, v24
    v_lshlrev_b32 v24, 1, v24          ; 2d
    v_bfe_u32 v25, v2, 3, 2
    s_and_b32 s41, s2, 2
    s_lshl_b32 s41, s41, 1
    v_add_u32 v25, s41, v25            ; row
    v_lshlrev_b32 v26, 2, v25
    v_mul_u32_u24 v25, {SR_P}, v25
    v_add_u32 v25, v25, v24
    v_add_u32 v27, {L_PT + 2304}, v24
    ds_read_b32 v28, v26 offset:{L_CNT + C_SEL}
    ds_read_u16 v29, v25 offset:{L_SH}
    ds_read_u16 v30, v25 offset:{L_SX}
    ds_read_u16 v31, v27
    s_waitcnt lgkmcnt(0)
    v_and_b32 v32, 0xffff, v28
    v_sub_u32 v32, 0xffff, v32
    v_min_u32 v32, 2047, v32
    v_mul_u32_u24 v32, 1152, v32
    v_add_u32 v32, v32, v24
    v_ashrrev_i32 v33, 31, v28
    v_not_b32 v33, v33
    v_or_b32 v33, 0x80000000, v33
    v_xor_b32 v33, v33, v28
    v_and_b32 v33, 0xffff0000, v33     ; r
    v_mul_f32 v33, {fbits(-LOG2E)}, v33
    v_exp_f32 v33, v33
    v_lshlrev_b32 v29, 16, v29
    v_add_f32 v33, 1.0, v33
    v_rcp_f32 v33, v33
    v_lshlrev_b32 v30, 16, v30
    v_cvt_pk_bf16_f32 v33, v33, v33
    v_lshlrev_b32 v33, 16, v33
    v_lshlrev_b32 v31, 16, v31
    s_cmp_lg_u32 s2, 0
    s_cbranch_scc1 T_NF
    ; epoch update: every workgroup read the epoch before its first publication, which this workgroup has consumed
    v_mov_b32 v34, {WS_EPOCH}
    v_mov_b32 v35, s{sTAG}
    s_mov_b64 exec, 1
    global_store_dword v34, v35, {P(sWS)}
    s_mov_b64 exec, -1
    T_NF:
    s_mov_b32 s52, 0x0201000c
    s_mov_b32 s53, 0x0504030c
    s_mov_b32 s54, 0x0403020c
    s_mov_b32 s55, 0x0302010c
    v_mov_b32 v107, s{sTAG}
    v_mov_b32 v104, 0
    v_mov_b32 v105, 0
    v_mov_b32 v106, 0
    v_bfe_u32 v7, v2, 4, 2
    v_lshlrev_b32 v7, 5, v7
    v_and_b32 v8, 7, v2
    v_lshl_add_u32 v7, v8, 2, v7
    s_lshl_b32 s40, s3, 7
    v_add_u32 v7, s40, v7
    s_mov_b32 s41, {SPIN}
    s_waitcnt vmcnt(0)
    {"s_sleep %s" % E("SL_G") if E("SL_G") else ""}
    T_GP:
    global_load_dwordx4 v[96:99], v4, {P(sWS)} sc1
    global_load_dwordx4 v[100:103], v5, {P(sWS)} sc1
    s_cmp_ge_u32 s3, 2
    s_cbranch_scc1 T_G3
    global_load_dwordx4 v[104:107], v6, {P(sWS)} sc1
    T_G3:
    s_waitcnt vmcnt(0)
    s_mov_b64 exec, -1
    v_xor_b32 v64, s{sTAG}, v99
    v_xor_b32 v65, s{sTAG}, v103
    v_xor_b32 v66, s{sTAG}, v107
    v_or3_b32 v64, v64, v65, v66
    v_cmp_ne_u32 vcc, 0, v64
    s_cbranch_vccz T_GD
    s_mov_b64 exec, vcc
    s_sub_u32 s41, s41, 1
    s_cbranch_scc0 T_GP
    s_mov_b64 exec, -1
    T_GD:
    """)
    stamp(a, 28)
    for n in range(3):
        g = 96 + 4*n; d = 64 + 4*n
        a(f"v_perm_b32 v{d}, v{g}, v{g}, s52")
        a(f"v_perm_b32 v{d+1}, v{g+1}, v{g}, s53")
        a(f"v_perm_b32 v{d+2}, v{g+2}, v{g+1}, s54")
        a(f"v_perm_b32 v{d+3}, v{g+2}, v{g+2}, s55")
    for e in range(4): a(f"v_add_f32 v{64+e}, v{64+e}, v{68+e}")
    for e in range(4): a(f"v_add_f32 v{64+e}, v{64+e}, v{72+e}")
    a(f"""
    s_nop 1
    v_permlane32_swap_b32 v64, v66
    v_permlane32_swap_b32 v65, v67
    v_add_f32 v64, v64, v66
    v_add_f32 v65, v65, v67
    s_nop 1
    v_permlane16_swap_b32 v64, v65
    v_add_f32 v64, v64, v65
    s_nop 1
    v_add_f32 v64, v64, v64 row_shl:8 row_mask:0xf bank_mask:0x3
    s_mov_b32 exec_lo, 0x00ff00ff
    s_mov_b32 exec_hi, 0x00ff00ff
    ds_write_b32 v7, v64 offset:{L_RED}
    s_mov_b64 exec, -1
    v_lshlrev_b32 v8, 2, v2
    s_waitcnt lgkmcnt(0)
    s_barrier                          ; B15
    s_cmp_lg_u32 s3, 7
    s_cbranch_scc1 T_END
    """)
    for w in range(8): a(f"ds_read_b32 v{64+w}, v8 offset:{L_RED + 128*w}")
    a("s_waitcnt lgkmcnt(4)")
    a("v_add_f32 v64, v64, v65"); a("v_add_f32 v66, v66, v67")
    a("s_waitcnt lgkmcnt(0)")
    a("v_add_f32 v68, v68, v69"); a("v_add_f32 v70, v70, v71")
    a("v_add_f32 v64, v64, v66"); a("v_add_f32 v68, v68, v70"); a("v_add_f32 v64, v64, v68")
    rnd1(a, 64); a("v_mul_f32 v64, v64, v33")
    rnd1(a, 64); a("v_add_f32 v64, v64, v29")
    rnd1(a, 64); a("v_mul_f32 v64, v64, v31")
    rnd1(a, 64); a("v_add_f32 v64, v64, v30")
    a(f"""
    v_cvt_pk_bf16_f32 v64, v64, v64
    s_mov_b32 exec_hi, 0
    global_store_short v32, v64, {P(sOUT)}
    """)
    if int(E("F_DBG", "0")): a(f"""
    s_cmp_ge_u32 s2, 4
    s_cbranch_scc1 T_END
    v_lshlrev_b32 v26, 0, v26
    v_add_u32 v26, {WS_SEL}, v26
    global_store_dword v26, v28, {P(sWS)}
    """)
    a.label("T_END")
    diag_end(a)
    stamp_flush(a, 29, 0)
    a.label("M_END")
    a("s_endpgm")
```

```python
import sys, os
sys.path.insert(0, os.path.dirname(os.path.abspath(__file__)))
from nc import *
import f
def main():
    body = Asm()
    n, g, b, l, v, s, acc = f.gen_F(body)
    a = Asm()
    a.raw(f"; @launch kernel={n} grid=({g},1,1) block=({b},1,1) lds={l}")
    a.raw('.amdgcn_target "amdgcn-amd-amdhsa--gfx950"')
    a.raw(".text")
    a.lines += body.lines
    a.raw("CODE_END:")
    a.raw('.section .rodata,"a"')
    kernel_desc(a, n, v, s, acc)
    if int(E("ALIGN", "0")):
        import align
        a.lines, nw, nn = align.align(a.lines, int(E("AL_MIN", "2")), int(E("AL_NOP", "6")))
        print("align: widened", nw, "nops", nn, file=sys.stderr)
    out = sys.argv[1] if len(sys.argv) > 1 else "adaLN_cond__ssm_conv_s4d__moe_arch_mod__prompt.s"
    open(out, "w").write(a.text())
main()
```

```python
from nc import *
import re
KG_PITCH = 272
KG_STAGE = 16 * KG_PITCH
L_PRM = 0
L_ZERO = 512
L_STG = 1536
L_PART = 1536
L_LNR = L_STG + 25600
L_CB = L_LNR + 4 * 2592
KC_P = 4160
L_KC2 = L_CB + 1024
L_STG2 = L_KC2
L_HB = L_KC2 + 4 * KC_P
HB_P = 4608
L_TAB = 69120
TP = 2816
L_KC = L_TAB + 6 * TP
L_DN = L_KC + 8 * KC_P
L_PT = L_DN + 36864
M_LDS = L_PT + 4608
L_GU = L_DN - 73728
L_G, L_U, L_D2 = L_DN, L_GU, L_GU + 36864
assert L_KC % 64 == 0 and L_KC2 % 64 == 0 and L_HB + 3 * HB_P <= L_TAB
ZR_P = 1056
L_ZR = 1536
L_ZC = L_ZR + 8 * ZR_P
L_LIST = L_ZC + 1280
SR_P = 1168
L_SH = L_LIST + 8448
L_SX = L_SH + 8 * SR_P
L_GP = L_ZR
L_ACT = L_SX + 8 * SR_P
L_RED = L_ACT + 640
assert L_RED + 1024 <= L_GU
WS_Z2 = 0x600000; WS_KEY = 0x10000; WS_ROW = 0x60000; WS_PT16 = 0x70000; WS_PF = 0x72000; WS_PT = 0xA00000; WS_EPOCH = 0xD00000
DNAT = E("F_DN", "ln2")
LATE_DN = DNAT in ("nd", "b9s", "b7s", "dir", "kp")
BO_Z, BO_K, BO_R, BO_G = [int(x) for x in E("BO", "10,14,5,1").split(",")]
NREP = int(E("F_NREP", "8")); RREP = int(E("F_RREP", "1"))
NT = E("M_NT", "nt")
PNT = E("M_PNT", "")
XNT = E("M_XNT", "nt")
ZST = E("M_ZST", "")
SPIN = 1 << 16
BETA = float(E('BETA', '1.25'))
KST = int(E('KST', '0'))
W2LATE = int(E('M_W2LATE', '1'))
CPL = int(E('M_CPL', '10'))
DIRECT = {1, 8, 128, 1024}
sTAG, sD, sHH, sKS = 38, 42, 43, 44
sDAB, sDC, sLD = 46, 47, 48

L_CNT = L_PRM + 192
C_LN, C_TAG, C_TAB, C_K, C_H = 0, 4, 16, 32, 48
C_P, C_KEY, C_N, C_KP, C_PR = 52, 56, 60, 64, 80
C_MX, C_KEYS, C_SEL = 96, 128, 192
L_TAG = L_CNT + C_TAG
VZ, VONE = 248, 249
def signal(a, off, vaddr=None):
    a("s_mov_b64 exec, 1")
    a(f"ds_add_u32 v{vaddr or VZ}, v{VONE} offset:{L_CNT + off}")
    a("s_mov_b64 exec, -1")
def spin(a, off, n, vaddr=None, vt=251, st=94):
    l = a.newlabel("SP")
    a(f"""
    {l}:
    ds_read_b32 v{vt}, v{vaddr or VZ} offset:{L_CNT + off}
    s_waitcnt lgkmcnt(0)
    v_readfirstlane_b32 s{st}, v{vt}
    s_cmp_ge_u32 s{st}, {n}
    s_cbranch_scc0 {l}
    """)

def ln_stats(a, X, T, sX0, vC):
    D = T + 4
    a(f"v_readfirstlane_b32 s{sX0}, v{X}")
    a("s_nop 1")
    a(f"v_subrev_f32 v{D+8}, s{sX0}, v{X+8}")
    a(f"s_mov_b32 s{sX0+1}, s{sX0}")
    for i in range(4): a(f"v_pk_add_f32 {vr(D+2*i,2)}, {vr(X+2*i,2)}, s[{sX0}:{sX0+1}] neg_lo:[0,1] neg_hi:[0,1]")
    a(f"v_pk_mul_f32 {vr(T+2,2)}, {vr(D,2)}, {vr(D,2)}")
    a(f"v_pk_add_f32 {vr(T,2)}, {vr(D,2)}, {vr(D+2,2)}")
    a(f"v_pk_fma_f32 {vr(T+2,2)}, {vr(D+2,2)}, {vr(D+2,2)}, {vr(T+2,2)}")
    a(f"v_pk_add_f32 {vr(D,2)}, {vr(D+4,2)}, {vr(D+6,2)}")
    a(f"v_pk_fma_f32 {vr(T+2,2)}, {vr(D+4,2)}, {vr(D+4,2)}, {vr(T+2,2)}")
    a(f"v_pk_add_f32 {vr(T,2)}, {vr(T,2)}, {vr(D,2)}")
    a(f"v_pk_fma_f32 {vr(T+2,2)}, {vr(D+6,2)}, {vr(D+6,2)}, {vr(T+2,2)}")
    a(f"v_add_f32 v{T}, v{T}, v{T+1}")
    a(f"v_fmac_f32 v{T+2}, v{D+8}, v{D+8}")
    a(f"v_add_f32 v{T}, v{T}, v{D+8}")
    a(f"v_add_f32 v{T+2}, v{T+2}, v{T+3}")
    a("s_nop 0")
    for m in [f"row_shr:1 {DPP_ALL} bound_ctrl:0", f"row_shr:2 {DPP_ALL} bound_ctrl:0", f"row_shr:4 {DPP_ALL} bound_ctrl:0", f"row_shr:8 {DPP_ALL} bound_ctrl:0",
              "row_bcast:15 row_mask:0xa bank_mask:0xf", "row_bcast:31 row_mask:0xc bank_mask:0xf"]:
        a(f"v_add_f32 v{T}, v{T}, v{T} {m}")
        a(f"v_add_f32 v{T+2}, v{T+2}, v{T+2} {m}")
        a("s_nop 0")
    a(f"""
    v_readlane_b32 s{sX0+2}, v{T}, 63
    v_readlane_b32 s{sX0+3}, v{T+2}, 63
    s_nop 0
    v_mul_f32 v{T}, s{sX0+2}, v{vC}
    v_mul_f32 v{T+1}, s{sX0+3}, v{vC}
    v_fma_f32 v{T+1}, -v{T}, v{T}, v{T+1}
    v_add_f32 v{T}, s{sX0}, v{T}
    v_max_f32 v{T+1}, 0, v{T+1}
    v_cvt_pk_bf16_f32 v{T+1}, v{T}, v{T+1}
    v_lshlrev_b32 v{T}, 16, v{T+1}
    v_and_b32 v{T+1}, 0xffff0000, v{T+1}
    v_add_f32 v{T+1}, {fbits(1e-5)}, v{T+1}
    v_cvt_pk_bf16_f32 v{T+1}, v{T+1}, v{T+1}
    v_lshlrev_b32 v{T+1}, 16, v{T+1}
    v_sqrt_f32 v{T+1}, v{T+1}
    """)
    a(f"v_sub_f32 v{D+8}, v{X+8}, v{T}")
    for i in range(4): a(f"v_pk_add_f32 {vr(D+2*i,2)}, {vr(X+2*i,2)}, {vr(T,2)} op_sel_hi:[1,0] neg_lo:[0,1] neg_hi:[0,1]")
    a(f"""
    v_cvt_pk_bf16_f32 v{T+1}, v{T+1}, v{T+1}
    v_lshlrev_b32 v{T+1}, 16, v{T+1}
    v_rcp_f32 v{T+1}, v{T+1}
    """)
    rnd_pairs(a, [D, D+2, D+4, D+6]); rnd1(a, D+8)
    for i in range(4): a(f"v_pk_mul_f32 {vr(D+2*i,2)}, {vr(D+2*i,2)}, {vr(T,2)} op_sel:[0,1] op_sel_hi:[1,1]")
    a(f"v_mul_f32 v{D+8}, v{D+8}, v{T+1}")
    return D


VFA, VT0, VT1, VT2 = 210, 211, 212, 213
VE0, VE1, VE2, VE3, VE4, VC0, VC1, VC2, VED = 200, 201, 202, 203, 204, 205, 206, 207, 208
XG = 224; VMP = 100; VD = 243; VMA = 244; VXA = 252
sSH = 48
def kgen_setup(a):
    a(f"""
    s_mul_i32 s50, s3, {KG_STAGE}
    s_add_u32 s51, s50, {L_STG2 - 4*KG_STAGE}
    s_add_u32 s50, s50, {L_STG}
    s_cmp_ge_u32 s3, 4
    s_cselect_b32 s50, s51, s50
    s_mov_b32 m0, s50
    v_mul_u32_u24 v{VFA}, {KG_PITCH}, v10
    v_lshl_add_u32 v{VFA}, v11, 4, v{VFA}
    v_add_u32 v{VFA}, s50, v{VFA}
    s_mul_i32 s61, s3, {TP}
    s_add_u32 s61, s61, {L_TAB}          ; own partial table
    v_lshrrev_b32 v12, 1, v11
    v_lshlrev_b32 v{VT0}, 9, v12
    v_and_b32 v13, 1, v11
    v_lshl_add_u32 v{VT0}, v13, 4, v{VT0}
    v_lshl_add_u32 v{VT0}, v10, 5, v{VT0}
    v_add_u32 v{VT0}, s61, v{VT0}
    ; tile1: idx = 256 + 64q + (q<2 ? 4j : 2j), second pair at +(q<2 ? 2 : 32)
    v_sub_u32 v13, 4, v12
    v_lshlrev_b32 v13, v13, v10
    v_lshl_add_u32 v13, v11, 8, v13
    v_add_u32 v13, s61, v13
    v_add_u32 v{VT1}, 1024, v13
    v_mul_u32_u24 v12, 120, v12
    v_add3_u32 v{VT1+3}, v{VT1}, v12, 8
    v_lshlrev_b32 v{VT2}, 8, v11
    v_lshl_add_u32 v{VT2}, v10, 2, v{VT2}
    v_add_u32 v{VT2}, s61, v{VT2}
    ; expansion
    s_mul_i32 s60, s41, {2*TP}
    s_add_u32 s60, s60, {L_TAB}          ; channel table pair
    v_mov_b32 v{VC0}, s60
    v_add_u32 v{VC1}, -4, v{VC0}
    v_add_u32 v{VC2}, -8, v{VC0}
    v_sub_u32 v12, 63, v2                ; L
    s_lshl_b32 s51, s{sHH}, 8
    s_sub_u32 s51, s60, s51
    s_add_u32 s51, s51, {4*576}
    v_lshl_add_u32 v{VE0}, v12, 2, s51
    v_add_u32 v{VE1}, 4, v{VE0}
    s_add_u32 s51, s60, {4*384}
    v_lshl_add_u32 v{VE2}, v12, 3, s51
    v_add_u32 v{VE3}, 4, v{VE2}
    v_add_u32 v{VE4}, 8, v{VE2}
    v_lshlrev_b32 v13, 5, v12
    v_lshlrev_b32 v12, 4, v12
    v_add_u32 v12, 512, v12
    v_min_u32 v12, v12, v13
    v_add_u32 v12, s60, v12
    s_cmp_eq_u32 s{sHH}, 0
    s_cselect_b64 vcc, -1, 0
    s_mul_i32 s51, s41, {4*KC_P}
    s_add_u32 s51, s51, {L_KC}
    s_cmp_eq_u32 s41, 2
    s_cselect_b32 s51, {L_KC2}, s51
    v_cndmask_b32 v{VE2}, v{VE2}, v12, vcc
    v_lshrrev_b32 v12, 1, v2
    v_mul_u32_u24 v12, {KC_P}, v12
    v_and_b32 v13, 1, v2
    v_lshl_add_u32 v12, v13, 4, v12
    v_add_u32 v{VT1+2}, s51, v12
    v_lshl_add_u32 v{VED}, v2, 4, s51
    s_lshl_b32 s51, s41, 2
    v_mov_b32 v{VED+1}, s51
    s_lshl_b32 s{sSH}, s{sHH}, 4
    s_sub_u32 s{sSH}, 16, s{sSH}
    s_mov_b32 s52, {fbits(L_HI)}
    s_mov_b32 s53, {fbits(L_LO)}
    s_mov_b32 s54, {fbits(LN2)}
    s_mov_b32 s55, {fbits(P_HI)}
    s_mov_b32 s56, {fbits(P_LO)}
    s_mov_b32 s58, {fbits(BETA)}
    """)

def gen_kgen(a, cp, hooks):
    R = Regs(56, 200)
    AR, BH, CR, CI, DT, T0, T1, BL, VE = 40, 41, 42, 43, 44, 45, 46, 47, 48
    if cp: a(f"""
    s_waitcnt vmcnt({cp})
    s_cmp_eq_u32 s3, 3
    s_cbranch_scc1 KG_W1
    """)
    if DNAT == "t0": a("s_waitcnt vmcnt(1)\ns_cmp_lt_u32 s3, 3\ns_cbranch_scc1 KG_W1")
    a(f"s_waitcnt vmcnt({max(cp-1, 0)})")
    a.label("KG_W1")
    stamp(a, 13)
    hooks.get("p", lambda: None)()
    a(f"v_lshlrev_b32 v{DT}, 16, v{DT}")
    a(f"v_lshlrev_b32 v{AR}, s{sSH}, v{AR}")
    a(f"v_lshlrev_b32 v{BH}, s{sSH}, v{BH}")
    exp_bf16(a, DT, DT, T0, T1, 52, 53, 54)
    a(f"v_and_b32 v{AR}, 0xffff0000, v{AR}")
    a(f"v_and_b32 v{BH}, 0xffff0000, v{BH}")
    exp_bf16(a, AR, AR, T0, T1, 52, 53, 54)
    a(f"""
    v_mul_f32 v{AR}, v{AR}, v{DT}
    v_mul_f32 v{T0}, v{BH}, v{DT}
    v_mul_f32 v{AR}, s52, v{AR}
    v_sub_f32 v{AR}, 0, v{AR}
    v_mul_f32 v{BH}, s55, v{T0}
    v_fma_f32 v{BL}, v{T0}, s55, -v{BH}
    v_fma_f32 v{BL}, v{T0}, s56, v{BL}
    v_and_b32 v{VE}, 0x7fff7fff, v{CR}
    v_and_b32 v{T1}, 0x7fff7fff, v{CI}
    v_pk_max_u16 v{VE}, v{VE}, v{T1}
    v_lshlrev_b32 v{T1}, 16, v{VE}
    v_max_u32 v{VE}, v{VE}, v{T1}
    """)
    def anchor(Pp):
        d = R.get(2); t = R.get(2)
        pc = fbits(float(Pp)) if Pp not in (1, 2, 4) else f"{Pp}.0"
        a(f"v_mul_f32 v{t}, {pc}, v{AR}")
        a(f"v_mul_f32 v{t+1}, {pc}, v{BH}")
        a(f"v_exp_f32 v{t}, v{t}")
        a(f"v_fract_f32 v{t+1}, v{t+1}")
        a(f"v_fmamk_f32 v{t+1}, v{BL}, {fbits(float(Pp))}, v{t+1}")
        a(f"v_cos_f32 v{d}, v{t+1}")
        a(f"v_sin_f32 v{d+1}, v{t+1}")
        a("s_nop 0")
        a(f"v_pk_mul_f32 {vr(d,2)}, {vr(d,2)}, {vr(t,2)} op_sel_hi:[1,0]")
        R.put(t, 2)
        return d
    def mul(x, y):
        d = R.get(2); cmul(a, d, x, y); return d
    def power(Pp, half):
        return anchor(Pp) if Pp in DIRECT else mul(half, half)
    NPK = 6
    PK = R.get(NPK, 2); pk = [0]
    Q = LdsQ(a); pending = []; rows_since = [0]; wq = []; late = []
    WB = int(E("KG_WB", "2"))
    def flush_w():
        while wq: Q.issue(wq.pop(0))
    def put_row(row, x, neg):
        t = PK + (pk[0] % NPK); pk[0] += 1
        rows_since[0] += 1
        if pending and rows_since[0] >= 4: flush_mfma(1)
        if late and rows_since[0] >= 11: Q.issue(late.pop(0))
        a(f"v_cvt_pk_f16_f32 v{t}, v{x}, {'-' if neg else ''}v{x+1}")
        if len(wq) >= WB: flush_w()
        wq.append(f"ds_write_addtid_b32 v{t} offset:{row*KG_PITCH}")
    def flush_mfma(k):
        while k > 0 and pending:
            op, txt = pending.pop(0)
            Q.need(op); a(txt); k -= 1
    F = {}
    a(f"v_mov_b32 v{PK}, 0x3c00")
    Q.issue(f"ds_write_addtid_b32 v{PK} offset:0"); pk[0] = 1
    F[1] = anchor(8); put_row(1, F[1], False)
    dpp = [f"row_shr:1 {DPP_ALL} bound_ctrl:0", f"row_shr:2 {DPP_ALL} bound_ctrl:0", f"row_shr:4 {DPP_ALL} bound_ctrl:0", f"row_shr:8 {DPP_ALL} bound_ctrl:0",
           "row_bcast:15 row_mask:0xa bank_mask:0xf", "row_bcast:31 row_mask:0xc bank_mask:0xf"]
    def dstep():
        if dpp: a(f"v_max_u32 v{VE}, v{VE}, v{VE} {dpp.pop(0)}")
    F[2] = power(16, F[1]); put_row(2, F[2], False); dstep()
    F[3] = mul(F[1], F[2]); put_row(3, F[3], False); dstep()
    F[4] = power(32, F[2]); put_row(4, F[4], False); dstep()
    for j in (5, 6, 7):
        F[j] = mul(F[4], F[j-4]); put_row(j, F[j], False); dstep()
    F[8] = power(64, F[4]); put_row(8, F[8], False)
    a(f"v_readlane_b32 s57, v{VE}, 63")
    for j in range(9, 16):
        t = mul(F[8], F[j-8]); put_row(j, t, False); R.put(t, 2)
    for j in range(1, 9): R.put(F[j], 2)
    BF = R.get(16, 4)
    flush_w()
    if KST: stamp(a, 14)
    for k in range(4): Q.issue(f"ds_read_b128 {vr(BF+4*k,4)}, v{VFA} offset:{64*k}")
    Ee = {}
    Ee[1] = anchor(1)
    a(f"""
    s_and_b32 s57, s57, 0xffff0000
    v_frexp_exp_i32_f32 v{VE}, s57
    v_lshlrev_b32 v{CR}, s{sSH}, v{CR}
    v_lshlrev_b32 v{CI}, s{sSH}, v{CI}
    v_sub_u32 v{VE}, 6, v{VE}
    v_and_b32 v{CR}, 0xffff0000, v{CR}
    v_and_b32 v{CI}, 0xffff0000, v{CI}
    v_ldexp_f32 v{T0}, s58, v{VE}
    v_mul_f32 v{DT}, {fbits(1.0/BETA)}, v{DT}
    v_mul_f32 v{CR}, v{CR}, v{T0}
    v_mul_f32 v{CI}, v{CI}, v{T0}
    v_sub_u32 v{VE}, 1, v{VE}
    v_ldexp_f32 v{DT}, v{DT}, v{VE}
    """)
    Q.issue(f"ds_write_b32 v{VED+1}, v{DT} offset:{L_PRM + 5*16}")
    G = {0: CR}
    Ee[2] = power(2, Ee[1]); Ee[4] = power(4, Ee[2])
    Ee[128] = anchor(128)
    ACC = R.get(12, 4); AFR = R.get(16, 4)
    def tile_mfma(tau):
        flush_w(); flush_mfma(100)
        while late: Q.issue(late.pop(0))
        c = vr(ACC+4*tau, 4)
        for k in range(4):
            oh = Q.issue(f"ds_read_b128 {vr(AFR+4*k,4)}, v{VFA} offset:{64*k}")
            pending.append((oh, f"v_mfma_f32_16x16x32_f16 {c}, {vr(AFR+4*k,4)}, {vr(BF+4*k,4)}, {'0' if k == 0 else c}"))
        rows_since[0] = 0
        if tau == 0: late.append(f"ds_write_b128 v{VT0}, {c}")
    put_row(0, G[0], True)
    G[1] = mul(G[0], Ee[1]); put_row(1, G[1], True)
    G[2] = mul(G[0], Ee[2]); put_row(2, G[2], True)
    G[3] = mul(G[1], Ee[2]); put_row(3, G[3], True)
    G[4] = mul(G[0], Ee[4]); put_row(4, G[4], True)
    for r in (5, 6, 7):
        G[r] = mul(G[r-4], Ee[4]); put_row(r, G[r], True)
    R.put(Ee[1], 2); R.put(Ee[2], 2); R.put(Ee[4], 2)
    for r in range(8):
        G[128+r] = mul(G[r], Ee[128]); put_row(8+r, G[128+r], True)
        if r & 1:
            R.put(G[r], 2); R.put(G[128+r], 2)
    Ee[256] = power(256, Ee[128]); R.put(Ee[128], 2)
    if KST: stamp(a, 15)
    tile_mfma(0)
    Ee[512] = power(512, Ee[256])
    hooks.get("t0", lambda: None)()
    gl = [0, 4, 128, 132]
    for kk in range(2):
        for r in range(4):
            g = 128*kk + 2*r
            t = mul(G[g], Ee[256]); put_row(4*kk + r, t, True)
            if g in gl: G[256+g] = t
            else: R.put(t, 2); R.put(G[g], 2)
    R.put(Ee[256], 2)
    for r, g in enumerate(gl):
        G[512+g] = mul(G[g], Ee[512]); put_row(8+r, G[512+g], True)
        if g & 4: R.put(G[512+g], 2); R.put(G[g], 2)
    for r, g in enumerate(gl):
        G[768+g] = mul(G[256+g], Ee[512]); put_row(12+r, G[768+g], True)
        if g & 4: R.put(G[768+g], 2); R.put(G[256+g], 2)
    R.put(Ee[512], 2)
    if KST: stamp(a, 16)
    tile_mfma(1)
    Ee[1024] = power(1024, None)
    hooks.get("t1", lambda: None)()
    for k in range(8):
        t = mul(G[128*k], Ee[1024]); put_row(k, t, True); R.put(t, 2)
    Ee[2048] = power(2048, Ee[1024])
    t = mul(G[0], Ee[2048]); put_row(8, t, True); R.put(t, 2)
    tile_mfma(2)
    hooks.get("t2", lambda: None)()
    Q.issue(f"ds_write_b64 v{VT1}, {vr(ACC+4,2)}")
    Q.issue(f"ds_write_b64 v{VT1+3}, {vr(ACC+6,2)}")
    flush_mfma(100)
    a(f"""
    s_mov_b32 exec_hi, 0xffff
    s_nop 6
    ds_write_b32 v{VT2}, v{ACC+8} offset:2048
    s_mov_b32 exec_hi, 0
    ds_write_b32 v{VT2}, v{ACC+9} offset:{2048+64}
    ds_write_b32 v{VT2}, v{ACC+10} offset:{2048+128}
    ds_write_b32 v{VT2}, v{ACC+11} offset:{2048+192}
    """)
    print("kgen vgpr hi", R.hi, file=sys.stderr)

def expand_emit(a, W, C4, C5, T, rho):
    o = 1024*rho
    a(f"""
    ds_write_b128 v{VED}, {vr(W,4)} offset:{3*KC_P + o}
    v_mov_b32 v{C4}, v{W} wave_shl:1 {DPP_ALL}
    v_mov_b32 v{C5}, v{W+1} wave_shl:1 {DPP_ALL}
    v_alignbit_b32 v{T}, v{W+1}, v{W}, 16
    v_alignbit_b32 v{T+1}, v{W+2}, v{W+1}, 16
    v_alignbit_b32 v{T+2}, v{W+3}, v{W+2}, 16
    v_alignbit_b32 v{T+3}, v{C4}, v{W+3}, 16
    v_mov_b32 v{T+4}, v{W+1}
    v_mov_b32 v{T+5}, v{W+2}
    ds_write_b128 v{VED}, {vr(T,4)} offset:{2*KC_P + o}
    v_mov_b32 v{T+6}, v{W+3}
    v_mov_b32 v{T+7}, v{C4}
    v_mov_b32 v{T+8}, v{T+1}
    v_mov_b32 v{T+9}, v{T+2}
    ds_write_b128 v{VED}, {vr(T+4,4)} offset:{KC_P + o}
    v_mov_b32 v{T+10}, v{T+3}
    v_alignbit_b32 v{T+11}, v{C5}, v{C4}, 16
    ds_write_b128 v{VED}, {vr(T+8,4)} offset:{o}
    """)

def expand(a, hh):
    r2 = lambda d, v, o: a(f"ds_read2st64_b32 {vr(d,2)}, v{v} offset0:{o} offset1:{o + TP//256}")
    r2(56, VE0, 0); r2(58, VE1, 0); r2(60, VC0, 9 - hh)
    if hh: r2(62, VC1, 8)
    if hh == 0:
        for i in range(2):
            a(f"ds_read_b128 {vr(64+4*i,4)}, v{VE2} offset:{16*i}")
            a(f"ds_read_b128 {vr(72+4*i,4)}, v{VE2} offset:{TP + 16*i}")
        n2 = 4
    else:
        r2(64, VE2, 0); r2(66, VE3, 0); r2(68, VE4, 0); r2(70, VC0, 6); r2(72, VC1, 6); r2(74, VC2, 6)
        n2 = 6
    a(f"""
    s_mov_b32 vcc_lo, 0x55555555
    s_mov_b32 vcc_hi, 0x55555555
    s_waitcnt lgkmcnt({n2})
    v_add_f32 v56, v56, v57
    v_add_f32 v58, v58, v59
    v_add_f32 v60, v60, v61
    """)
    if hh: a("v_add_f32 v62, v62, v63")
    a(f"""
    v_cndmask_b32 v57, v56, v58, vcc
    v_cvt_pk_f16_f32 v80, v58, v58
    v_cvt_pk_f16_f32 v82, v56, v56
    v_cvt_pk_f16_f32 v81, v58, v57
    v_cvt_pk_f16_f32 v84, v60, v60
    v_mov_b32 v83, v82
    v_cvt_pk_f16_f32 v85, v{62 if hh else 60}, v{62 if hh else 60}
    """)
    expand_emit(a, 80, 84, 85, 88, hh)
    a("s_waitcnt lgkmcnt(4)")
    if hh == 0:
        for i in range(8): a(f"v_add_f32 v{64+i}, v{64+i}, v{72+i}")
        a(f"""
        v_cvt_pk_f16_f32 v100, v71, v70
        v_cvt_pk_f16_f32 v101, v69, v68
        v_cvt_pk_f16_f32 v102, v67, v66
        v_cvt_pk_f16_f32 v103, v65, v64
        v_mov_b32 v104, 0
        v_mov_b32 v105, 0
        s_mov_b32 exec_hi, 0
        v_cvt_pk_f16_f32 v100, v68, v67
        v_cvt_pk_f16_f32 v101, v66, v66
        v_cvt_pk_f16_f32 v102, v66, v65
        v_cvt_pk_f16_f32 v103, v64, v64
        s_mov_b64 exec, -1
        """)
    else:
        for i in range(6): a(f"v_add_f32 v{64+2*i}, v{64+2*i}, v{65+2*i}")
        a(f"""
        v_cvt_pk_f16_f32 v100, v68, v68
        v_cvt_pk_f16_f32 v101, v66, v66
        v_cvt_pk_f16_f32 v102, v66, v64
        v_cvt_pk_f16_f32 v103, v64, v64
        v_cvt_pk_f16_f32 v104, v70, v72
        v_cvt_pk_f16_f32 v105, v74, v74
        """)
    expand_emit(a, 100, 104, 105, 108, 3 - hh)
    if hh == 0: a(f"""
    v_mov_b32 v104, 0
    v_mov_b32 v105, 0
    v_mov_b32 v106, 0
    v_mov_b32 v107, 0
    s_mov_b64 exec, 0xff
    ds_write_b128 v{VT1+2}, v[104:107] offset:4096
    """)

def pf_lines(a, mat, part, v0):
    A, B, C = v0, v0+1, v0+2
    a(f"""
    s_lshr_b32 s64, s2, 3
    s_mul_i32 s64, s64, 162
    s_add_u32 s64, s64, {54*part}
    s_and_b32 s65, s2, 7
    s_mul_i32 s65, s65, 9
    v_min_u32 v{A}, 53, v2
    v_add_u32 v{A}, s64, v{A}
    """)
    fl = E("M_PFFL", "")
    if mat == "d":
        a(f"""
        s_mul_i32 s65, s65, 576
        v_add_u32 v{B}, s65, v{A}
        v_lshlrev_b32 v{B}, 7, v{B}
        global_load_dword v250, v{B}, {P(sWD)} {fl}
        """)
    else:
        a(f"""
        v_mul_u32_u24 v{C}, 7282, v{A}
        v_lshrrev_b32 v{C}, 16, v{C}
        v_mul_u32_u24 v{B}, 9, v{C}
        v_sub_u32 v{B}, v{A}, v{B}
        v_add_u32 v{B}, s65, v{B}
        v_mul_u32_u24 v{C}, 9216, v{C}
        v_lshl_add_u32 v{C}, v{B}, 7, v{C}
        """)
        if v0 == 252:
            a(f"global_load_dword v250, v{C}, s[78:79] {fl}")
            return
        for m in mat:
            a(f"global_load_dword v250, v{C}, {P(sWG if m == 'g' else sWU)} {fl}")
            if int(E("M_PFH", "0")): a(f"global_load_dword v250, v{C}, {P(sWG if m == 'g' else sWU)} offset:64 {fl}")

JA = [(k, v) for v in (0, 1, 2) for k in range(3, 8) if k + v <= 7]
JB = [(k, v) for v in (0, 1, 2) for k in range(3)]
JC = [(k, v) for v in (3, 4) for k in range(5) if k + v <= 7]
JD = [(k, v) for v in (5, 6, 7) for k in range(3) if k + v <= 7]
POFF = {"A": (0, 3), "B": (5, 0), "C": (10, 3), "D": (15, 5)}
def JCH(k): return [(kb, g - kb) for g in (k, 7 - k) for kb in range(g + 1)]
VA = 64
VACC = 224
VB = 32
NB = 8
VAS = 16
NH = int(E("M_NH", "5"))
NPX = int(E("M_NPX", "8"))
VKA, VHA = 4, 6
VPW = 8

def aread(r, va, kap, two):
    o = 64*(63-kap)
    if two: return [f"ds_read2_b64 {vr(r,4)}, v{two + (o >> 11)} offset0:{(o & 2047) >> 3} offset1:{((o & 2047) >> 3) + 1}"]
    return [f"ds_read_b64 {vr(r,2)}, v{va} offset:{o}", f"ds_read_b64 {vr(r+2,2)}, v{va} offset:{o+8}"]
class Job:
    def __init__(self, parts, npx=None):
        self.parts = parts
        self.npx = NPX if npx is None else npx
        self.two = VKA if (parts[0][2] is None and int(E("K_TWO", "1"))) else 0
        use = {}
        for ci, bl, _ in parts:
            for kb, vb in bl: use[(ci, kb)] = use.get((ci, kb), 0) + 1
        order = sorted(use, key=lambda x: (-use[x], x))
        self.held = {g: i for i, g in enumerate(order[:NH])}
    def preload(self, a):
        if self.two: a(f"v_add_u32 v{VKA+1}, 2048, v{VKA}")
        for x in range(7, 7 - self.npx, -1):
            for (ci, kb), i in self.held.items():
                kap = 8*kb + x; r = VA + 32*i + 4*x
                for t in aread(r, VKA+ci, kap, self.two): a(t)
    def run(self, a, fillers=None):
        Q = LdsQ(a)
        fillers = list(fillers or [])
        acc = {}; seq = []
        for ci, bl, tag in self.parts:
            vbs = sorted(set(v for _, v in bl), reverse=(tag is None and int(E("K_REV", "0")) == 1))
            for vb in vbs:
                for y in range(8):
                    seq.append(((ci, 8*vb + y), [((ci, kb, 7 - y), (ci, kb + vb)) for kb, v in bl if v == vb]))
        for _, ms in seq:
            for _, tk in ms:
                if tk not in acc: acc[tk] = VACC + 4*len(acc)
        assert len(acc) <= 6
        mf = []
        for bi, (bk, ms) in enumerate(seq):
            for ak, tk in ms: mf.append((bi, ak, tk))
        if int(E("M_STAG", "1")) and self.parts[-1][2]:
            nl = len(seq) - 8
            body = [m for m in mf if m[0] < nl]; tail = [m for m in mf if m[0] >= nl]
            tks = sorted(set(m[2] for m in tail))
            if len(tks) > 1:
                tail = sorted(tail, key=lambda m: (max(tks.index(m[2]) - 1, 0), m[0], m[2]))
            mf = body + tail
        last = {}
        for n, (_, _, tk) in enumerate(mf): last[tk] = n
        loads = []; sa = 0; areg = {}
        ring = [VAS + 4*i for i in range(4)] + ([232 + 4*i for i in range(4)] if len(acc) <= 2 else [])
        firstuse = {}
        for n, (bi, ak, tk) in enumerate(mf):
            if ("b", bi) not in firstuse:
                firstuse[("b", bi)] = n
                ci, v = seq[bi][0]
                loads.append((n, ("b", bi), [f"ds_read_b128 {vr(VB + 4*(bi % NB),4)}, v{VHA+ci} offset:{64*v}"]))
            ci, kb, x = ak
            if (ci, kb) in self.held:
                r = VA + 32*self.held[(ci, kb)] + 4*x; areg[n] = r
                if x <= 7 - self.npx and ("h", r) not in firstuse:
                    kap = 8*kb + x; firstuse[("h", r)] = n
                    loads.append((n, ("h", r), aread(r, VKA+ci, kap, self.two)))
            else:
                r = ring[sa % len(ring)]; kap = 8*kb + x
                loads.append((n, ("a", sa), aread(r, VKA+ci, kap, self.two)))
                areg[n] = r; firstuse[("a", sa)] = n; sa += 1
        lastuse_b = {}
        for n, (bi, _, _) in enumerate(mf): lastuse_b[bi] = n
        opid = {}; li = 0; started = set(); pend = []
        LEAD = int(E("M_LEAD", "10")); LEADH = int(E("M_LEADH", "14"))
        def can_issue(key, n):
            if key[0] == "h": return True
            if key[0] == "b": return key[1] < NB or lastuse_b[key[1] - NB] < n
            return key[1] < len(ring) or firstuse[("a", key[1] - len(ring))] < n
        akey_of = {}
        for (n0, key, _) in loads:
            if key[0] in "ah": akey_of[n0] = key
        tagof = {ci: tag for ci, _, tag in self.parts}
        for n, (bi, ak, tk) in enumerate(mf):
            while li < len(loads) and loads[li][0] <= n + (LEADH if loads[li][1][0] == "h" else LEAD) and can_issue(loads[li][1], n):
                for t in loads[li][2]: opid[loads[li][1]] = Q.issue(t)
                li += 1
            need = opid[("b", bi)]
            if n in akey_of: need = max(need, opid[akey_of[n]])
            Q.need(need)
            c = acc[tk]
            a(f"v_mfma_f32_16x16x32_f16 {vr(c,4)}, {vr(areg[n],4)}, {vr(VB + 4*(bi % NB),4)}, {'0' if tk not in started else vr(c,4)}")
            started.add(tk)
            if fillers and n >= 2:
                for _ in range(2):
                    if fillers:
                        t_ = fillers.pop(0)
                        if t_: a(t_)
            if last[tk] == n and tagof[tk[0]]: pend.append((n + 9, tk))
            while pend and pend[0][0] <= n:
                tk2 = pend.pop(0)[1]
                s0, g0 = POFF[tagof[tk2[0]]]
                Q.issue(f"ds_write_b128 v{VPW+tk2[0]}, {vr(acc[tk2],4)} offset:{(s0 + tk2[1] - g0)*1024}")
        a("s_nop 7")
        for _, tk2 in pend:
            s0, g0 = POFF[tagof[tk2[0]]]
            Q.issue(f"ds_write_b128 v{VPW+tk2[0]}, {vr(acc[tk2],4)} offset:{(s0 + tk2[1] - g0)*1024}")
        return acc

def epi_core(a, Y, H, T, ks, dd, ga, n):
    for e in range(n): a(f"v_mul_f32 v{Y+e}, {ks}, v{Y+e}")
    for e in range(n): a(f"v_fma_mix_f32 v{T+e}, v{H+e//2}, {dd}, 0 op_sel:[{e&1},0,0] op_sel_hi:[1,0,0]")
    rnd_pairs(a, [Y+2*i for i in range(n//2)] + [T+2*i for i in range(n//2)])
    for e in range(n): a(f"v_add_f32 v{Y+e}, v{Y+e}, v{T+e}")
    rnd_pairs(a, [Y+2*i for i in range(n//2)])
    for e in range(n): a(f"v_mul_f32 v{Y+e}, {ga}, v{Y+e}")

def pack9(a, dst, src):
    for i in range(4): a(f"v_cvt_pk_bf16_f32 v{dst+i}, v{src+2*i}, v{src+2*i+1}")
    a(f"v_cvt_pk_bf16_f32 v{dst+4}, v{src+8}, 0")
def dots9(a, dst, src, bf, cf):
    for e in (8, 0, 1, 2, 3, 4, 5, 6, 7): a(f"v_dot2_f32_bf16 v{dst+e}, v{src+e//2}, {bf(e)}, {cf(e)}")
def ln_core(a, P1, X1, T, ONES, LO, RC, lab):
    vsel = lambda e: f"v{LO + (e & 1)}"
    for i in range(5):
        a(f"v_dot2_f32_bf16 v{T}, v{P1+i}, v{ONES}, {'0' if i == 0 else 'v%d' % T}")
        a(f"v_dot2_f32_bf16 v{T+2}, v{P1+i}, v{P1+i}, {'0' if i == 0 else 'v%d' % (T+2)}")
    a("s_nop 1")
    reduce2(a, T, T+2)
    a(f"""
    v_readlane_b32 s66, v{T}, 63
    v_readlane_b32 s67, v{T+2}, 63
    s_nop 0
    v_mul_f32 v{T}, s66, v{RC}
    v_mul_f32 v{T+1}, s67, v{RC}
    v_mul_f32 v{T+2}, v{T}, v{T}
    v_fma_f32 v{T+1}, -v{T}, v{T}, v{T+1}
    v_mul_f32 v{T+3}, 0x41800000, v{T+1}
    v_cmp_gt_f32 vcc, v{T+2}, v{T+3}
    s_cbranch_vccz {lab}
    v_sub_f32 v{T+3}, 0, v{T}
    """)
    dots9(a, X1, P1, vsel, lambda e: f"v{T+3}")
    a(f"v_mul_f32 v{T+2}, v{X1+8}, v{X1+8}")
    for e in range(8): a(f"v_fmac_f32 v{T+2}, v{X1+e}, v{X1+e}")
    a("s_nop 1")
    reduce2(a, T+2, None)
    a(f"""
    v_readlane_b32 s67, v{T+2}, 63
    s_nop 1
    v_mul_f32 v{T+1}, s67, v{RC}
    {lab}:
    v_cvt_pk_bf16_f32 v{T+1}, -v{T}, v{T+1}
    v_lshlrev_b32 v{T}, 16, v{T+1}
    v_and_b32 v{T+1}, 0xffff0000, v{T+1}
    v_add_f32 v{T+1}, {fbits(1e-5)}, v{T+1}
    v_cvt_pk_bf16_f32 v{T+1}, v{T+1}, v{T+1}
    v_lshlrev_b32 v{T+1}, 16, v{T+1}
    v_sqrt_f32 v{T+1}, v{T+1}
    """)
    dots9(a, X1, P1, vsel, lambda e: f"v{T}")
    a(f"""
    v_cvt_pk_bf16_f32 v{T+1}, v{T+1}, v{T+1}
    v_lshlrev_b32 v{T+1}, 16, v{T+1}
    v_rcp_f32 v{T+1}, v{T+1}
    """)
    rnd1(a, X1+8); rnd_pairs(a, [X1, X1+2, X1+4, X1+6])
    a(f"v_mul_f32 v{X1+8}, v{X1+8}, v{T+1}")
    for i in range(4): a(f"v_pk_mul_f32 {vr(X1+2*i,2)}, {vr(X1+2*i,2)}, {vr(T,2)} op_sel:[0,1] op_sel_hi:[1,1]")

def gen_F(a):
    kernel_head(a, "ka_kernel")
    a(f"""
    s_cmp_ge_u32 s2, 256
    s_cbranch_scc1 M_END
    s_load_dwordx16 s[4:19], s[0:1], 0
    s_load_dwordx16 s[20:35], s[0:1], 64
    s_load_dwordx2 s[36:37], s[0:1], 128
    v_lshrrev_b32 v1, 6, v0
    v_and_b32 v2, 63, v0
    """)
    if ST: a(f"v_mov_b32 v{VST}, 0")
    a("v_readfirstlane_b32 s3, v1")
    stamp(a, 0)
    if CPL:
        a(f"""
        s_cmp_lg_u32 s3, 3
        s_cbranch_scc1 M_NCP
        s_getpc_b64 s[74:75]
        M_PC:
        s_sub_u32 s74, s74, M_PC - ka_kernel
        s_subb_u32 s75, s75, 0
        s_lshr_b32 s76, s2, 3
        s_mul_i32 s76, s76, {CPL}
        v_min_u32 v25, {CPL-1}, v2
        v_add_u32 v25, s76, v25
        v_lshlrev_b32 v25, 7, v25
        v_min_u32 v25, CODE_END - ka_kernel - 4, v25
        global_load_dword v250, v25, s[74:75]
        M_NCP:
        """)
    LL = 10; X = 16; T = 26
    a(f"""
    s_lshl_b32 s40, s2, 3
    s_add_u32 s40, s40, s3
    s_mul_i32 s40, s40, 1152
    v_lshl_add_u32 v3, v2, 4, s40
    v_lshl_add_u32 v4, v2, 1, s40
    v_mov_b32 v20, 0
    v_mov_b32 v21, 0
    v_mov_b32 v22, 0
    v_mov_b32 v23, 0
    v_mov_b32 v{VZ}, 0
    v_mov_b32 v{VONE}, 1
    v_lshlrev_b32 v24, 4, v2
    s_cmp_eq_u32 s3, 0
    s_cbranch_scc0 M_Z1
    s_mov_b64 exec, 0x3fffffff
    ds_write_b128 v24, v[20:23] offset:{L_HB}
    ds_write_b128 v24, v[20:23] offset:{L_HB + HB_P}
    ds_write_b128 v24, v[20:23] offset:{L_HB + 2*HB_P}
    M_Z1:
    s_cmp_eq_u32 s3, 2
    s_cbranch_scc0 M_Z3
    ds_write_b128 v24, v[20:23] offset:{L_ZERO}
    M_Z3:
    s_cmp_eq_u32 s3, 3
    s_cbranch_scc0 M_Z0
    s_mov_b64 exec, 0xfffff
    ds_write_b128 v24, v[20:23] offset:{L_CNT}
    M_Z0:
    s_mov_b64 exec, -1
    s_lshr_b32 s41, s3, 1
    s_lshl_b32 s{sD}, s2, 1
    s_add_u32 s{sD}, s{sD}, s41
    s_lshr_b32 s45, s2, 2
    s_add_u32 s45, s45, 512            ; channel c
    s_cmp_eq_u32 s41, 2
    s_cselect_b32 s{sD}, s45, s{sD}
    s_and_b32 s{sHH}, s3, 1
    ; mod item: cg = u % 27, ks = u / 27
    s_mul_i32 s{sKS}, s2, 2428
    s_lshr_b32 s{sKS}, s{sKS}, 16
    s_mul_i32 s40, s{sKS}, 27
    s_sub_u32 s49, s2, s40             ; cg
    v_lshrrev_b32 v25, 2, v2
    s_lshl_b32 s40, s{sKS}, 6
    v_add_u32 v25, s40, v25
    v_mul_u32_u24 v25, 6912, v25
    v_and_b32 v26, 3, v2
    v_lshl_add_u32 v25, v26, 4, v25
    v_add_u32 v39, s40, v2
    s_lshl_b32 s40, s49, 7
    s_lshl_b32 s50, s{sHH}, 6
    s_add_u32 s40, s40, s50
    v_add_u32 v216, s40, v25
    v_lshlrev_b32 v39, 1, v39
    s_lshl_b32 s40, s{sD}, 8
    v_lshl_add_u32 v5, v2, 2, s40
    s_lshl_b32 s40, s{sD}, 1
    v_mov_b32 v6, s40
    s_waitcnt lgkmcnt(0)
    global_load_dwordx4 {vr(LL,4)}, v3, {P(sX)} {XNT}
    global_load_ushort v{LL+4}, v4, {P(sX)} offset:1024 {XNT}
    s_mov_b32 s50, {16*6912}
    v_add_u32 v217, s50, v216
    v_add_u32 v218, s50, v217
    v_add_u32 v219, s50, v218
    v_mov_b32 v7, {WS_EPOCH}
    s_cmp_ge_u32 s3, 6
    s_cbranch_scc1 M_T0MOD
    s_barrier                          ; B0
    global_load_ushort v44, v6, {P(sLDT)}
    global_load_dword v40, v5, {P(sLAR)} {PNT}
    global_load_dword v41, v5, {P(sAIM)} {PNT}
    global_load_dword v42, v5, {P(sCR)} {PNT}
    global_load_dword v43, v5, {P(sCI)} {PNT}
    s_mov_b32 s62, 5
    """)
    if DNAT == "t0":
        k0_ = len(a.lines); dn_touch(a)
        for i in range(k0_, len(a.lines)): a.lines[i] = a.lines[i].replace("v252", "v247")
        a.lines.insert(len(a.lines) - 1, "  s_mov_b32 s62, 6")
    a(f"""
    s_branch M_T0J
    M_T0MOD:
    s_setprio 2
    s_barrier                          ; B0
    global_load_dword v47, v7, {P(sWS)}
    s_mov_b32 s62, 1
    s_cmp_ge_u32 s2, 243
    s_cbranch_scc1 M_T0J
    global_load_ushort v44, v39, {P(sC)}
    """)
    for i in range(4): a(f"global_load_dwordx4 {vr(48+4*i,4)}, v{216+i}, {P(sWMOD)} {NT}")
    a(f"""
    s_mov_b32 s62, 6
    M_T0J:
    """)
    S4 = int(E("M_S4", "1"))
    UN = {0: 0, 1: 4, 6: 8, 7: 12, 2: 0, 3: 0, 4: 0, 5: 0} if S4 else {2: 0, 3: 3, 6: 6, 7: 9, 0: 12, 1: 14, 4: 0, 5: 0}
    unib = sum(UN[w] << (4*w) for w in range(8))
    a(f"""
    s_lshl_b32 s40, s3, 2
    s_lshr_b32 s63, {hex(unib)}, s40
    s_and_b32 s63, s63, 15
    s_lshl_b32 s50, s63, 10
    s_lshl_b32 s51, s2, 14
    s_add_u32 s50, s50, s51
    s_add_u32 s50, s50, {WS_XN}
    v_lshl_add_u32 v{VXA}, v2, 4, s50
    v_lshrrev_b32 v21, 4, v2
    s_lshl_b32 s50, s2, 1
    v_add_u32 v20, s50, v21
    v_mov_b32 v22, s45
    v_cmp_gt_u32 vcc, 2, v21
    v_and_b32 v23, 15, v2
    v_min_u32 v23, 8, v23
    v_cndmask_b32 v20, v22, v20, vcc   ; channel
    v_lshlrev_b32 v23, 9, v23
    v_lshlrev_b32 v{VD}, 1, v20
    v_lshrrev_b32 v22, 6, v20
    v_mul_u32_u24 v22, {9*512}, v22
    v_and_b32 v20, 63, v20
    v_lshl_add_u32 v20, v20, 3, v22
    v_add_u32 v20, v20, v23
    v_add_u32 v{VMA}, {WS_MP}, v20
    v_add_u32 v{VMA+1}, {WS_MP + 9*9*512}, v20
    v_add_u32 v{VMA+2}, {WS_MP + 18*9*512}, v20
    v_and_b32 v20, 15, v2              ; i / j
    v_and_b32 v22, 3, v20
    v_mul_u32_u24 v22, {KC_P}, v22
    v_lshrrev_b32 v23, 2, v20
    v_lshlrev_b32 v23, 3, v23
    v_lshl_add_u32 v23, v21, 4, v23
    v_sub_u32 v22, v22, v23
    v_add_u32 v22, {L_KC + 72}, v22
    v_lshlrev_b32 v23, 5, v20
    v_lshlrev_b32 v24, 4, v21
    v_sub_u32 v24, v23, v24
    v_add_u32 v24, {L_HB + 48}, v24
    v_lshl_add_u32 v3, v21, 3, v23     ; 32j + 8q
    v_add_u32 v3, {L_HB + 480}, v3
    s_lshr_b32 s40, 0x01021100, s40
    s_and_b32 s40, s40, 15
    s_mul_i32 s50, s40, {4*KC_P}
    s_cmp_eq_u32 s40, 2
    s_cselect_b32 s50, {(L_KC2 - L_KC) & 0xffffffff}, s50
    v_add_u32 v{VKA}, s50, v22
    v_add_u32 v{VKA+1}, {4*KC_P}, v22
    s_mul_i32 s50, s40, {HB_P}
    v_add_u32 v{VHA}, s50, v24
    v_add_u32 v{VHA+1}, {HB_P}, v24
    s_mul_i32 s50, s40, 18432
    s_add_u32 s50, s50, {L_PART}
    v_lshl_add_u32 v{VPW}, v2, 4, s50
    v_lshlrev_b32 v{VPW+1}, 4, v2
    v_add_u32 v{VPW+1}, {L_PART + 18432}, v{VPW+1}
    s_lshl_b32 s40, s40, 2
    v_mov_b32 v1, s40
    """)
    k0 = len(a.lines)
    kgen_setup(a)
    for i in range(k0, len(a.lines)):
        for o, n in (("v10", "v20"), ("v11", "v21"), ("v12", "v22"), ("v13", "v23")):
            a.lines[i] = re.sub(rf"\b{o}\b", n, a.lines[i])
    a(f"""
    s_lshr_b32 s40, s3, 1
    s_mul_i32 s40, s40, 2592
    s_mul_i32 s50, s{sHH}, 1280
    s_add_u32 s40, s40, s50
    s_add_u32 s40, s40, {L_LNR}
    v_lshl_add_u32 v220, v2, 4, s40
    s_lshl_b32 s40, s3, 1
    s_add_u32 s40, s40, {L_CB}
    v_lshl_add_u32 v221, v2, 4, s40
    v_lshrrev_b32 v22, 2, v2
    s_and_b32 s40, s3, 3
    s_lshl_b32 s40, s40, 6
    v_add_u32 v22, s40, v22            ; u'
    v_and_b32 v23, 3, v2
    v_mul_u32_u24 v222, 2592, v23
    v_lshl_add_u32 v222, v22, 2, v222
    v_add_u32 v222, {L_LNR}, v222
    v_lshrrev_b32 v223, 2, v22
    v_lshlrev_b32 v223, 4, v223
    v_lshl_add_u32 v223, v23, 2, v223
    v_add_u32 v223, {L_CB}, v223
    v_lshlrev_b32 v22, 14, v22
    v_lshl_add_u32 v22, v23, 4, v22
    s_lshl_b32 s40, s2, 6
    s_add_u32 s40, s40, {WS_XN}
    v_add_u32 v253, s40, v22
    s_mul_i32 s40, s49, 9
    s_add_u32 s40, s40, s{sKS}
    s_lshl_b32 s40, s40, 9
    s_lshl_b32 s50, s{sHH}, 8
    s_add_u32 s40, s40, s50
    s_add_u32 s40, s40, {WS_MP}
    v_and_b32 v34, 3, v2
    v_lshlrev_b32 v34, 6, v34
    v_lshrrev_b32 v35, 3, v2
    v_lshl_add_u32 v34, v35, 3, v34
    v_add_u32 v34, s40, v34
    v_add_u32 v35, {27*9*512}, v34
    v_mov_b32 v15, {fbits(1.0/576)}
    v_mov_b32 v30, 0x3f803f80
    v_mov_b32 v32, 0x3f80
    v_mov_b32 v33, 0x3f800000
    s_cmp_eq_u32 s62, 6
    s_cbranch_scc1 M_W6
    s_cmp_eq_u32 s62, 5
    s_cbranch_scc1 M_W5
    s_waitcnt vmcnt(1)
    M_W5:
    s_waitcnt vmcnt(5)
    M_W6:
    s_waitcnt vmcnt(6)
    """)
    stamp(a, 1)
    ln_core(a, LL, X, T, 30, 32, 15, "M_FAST")
    pack9(a, T, X)
    a(f"""
    ds_write_b128 v220, {vr(T,4)}
    ds_write_b16 v221, v{T+4}
    s_cmp_lt_u32 s3, 6
    s_cbranch_scc1 M_NTAG
    s_cmp_eq_u32 s62, 6
    s_cbranch_scc1 M_TG5
    s_waitcnt vmcnt(0)
    M_TG5:
    s_waitcnt vmcnt(5)
    s_mov_b32 s40, 0x9E3779B1
    v_mul_lo_u32 v33, v47, s40
    v_add_u32 v33, 0x7F4A7C15, v33
    ds_write_b32 v{VZ}, v33 offset:{L_TAG}
    M_NTAG:
    """)
    signal(a, C_LN)
    AC = 112
    def mod_item(rho, w0):
        for e in range(8): a(f"v_mov_b32 v{AC+e}, 0")
        for i in range(4):
            a(f"s_waitcnt vmcnt({w0 - i})")
            for w in range(4):
                a(f"v_dot2c_f32_bf16 v{AC+2*w}, v{48+16*rho+4*i+w}, v{28+i}")
                a(f"v_dot2c_f32_bf16 v{AC+2*w+1}, v{48+16*rho+4*i+w}, v{24+i}")
        a("s_nop 2")
        for e in range(4): a(f"v_permlane32_swap_b32 v{AC+e}, v{AC+4+e}")
        for e in range(4): a(f"v_add_f32 v{AC+e}, v{AC+e}, v{AC+4+e}")
        a("s_nop 0")
        a(f"v_permlane16_swap_b32 v{AC}, v{AC+2}")
        a(f"v_permlane16_swap_b32 v{AC+1}, v{AC+3}")
        a(f"v_add_f32 v{AC}, v{AC}, v{AC+2}")
        a(f"v_add_f32 v{AC+1}, v{AC+1}, v{AC+3}")
        a("s_nop 1")
        a(f"v_add_f32 v32, v{AC}, v{AC} row_ror:8 row_mask:0xf bank_mask:0x3")
        a(f"v_add_f32 v32, v{AC+1}, v{AC+1} row_ror:8 row_mask:0xf bank_mask:0xc")
        a("s_nop 1")
        a(f"v_add_f32 v32, v32, v32 row_shl:4 row_mask:0xf bank_mask:0x5")
        a("s_mov_b32 exec_lo, 0x0f0f0f0f")
        a("s_mov_b32 exec_hi, 0x0f0f0f0f")
        a(f"global_store_dwordx2 v{34+rho}, v[32:33], {P(sWS)} sc1")
        a("s_mov_b64 exec, -1")
    MODF = int(E("M_MODF", "1"))
    a(f"""
    s_cmp_lt_u32 s3, 4
    s_cbranch_scc1 M_KG
    s_cmp_lt_u32 s3, 6
    s_cbranch_scc1 M_PACK
    s_cmp_ge_u32 s2, 243
    s_cbranch_scc1 M_PACK
    s_mov_b32 s40, {fbits(-LOG2E)}
    s_waitcnt vmcnt(4)
    v_lshlrev_b32 v44, 16, v44
    v_mul_f32 v45, s40, v44
    v_exp_f32 v45, v45
    v_lshrrev_b32 v46, 2, v2
    v_add_f32 v45, 1.0, v45
    v_rcp_f32 v45, v45
    v_lshlrev_b32 v46, 2, v46
    v_mul_f32 v44, v44, v45
    v_cvt_pk_bf16_f32 v44, v44, 0
    """)
    for i in range(4): a(f"ds_bpermute_b32 v{28+i}, v46, v44 offset:{64*i}")
    a(f"""
    s_waitcnt lgkmcnt(0)
    """)
    for i in range(4): a(f"v_lshlrev_b32 v{24+i}, 16, v{28+i}")
    if MODF:
        mod_item(0, 3)
        stamp(a, 7)
    a.label("M_PACK")
    G0 = 80
    for i in range(1, 4): a(f"v_add_u32 v{20+i}, {64*i}, v222")
    a(f"""
    s_mov_b32 s41, {16 << 14}
    M_SPL:
    ds_read_b64 v[96:97], v{VZ} offset:{L_CNT + C_LN}
    """)
    for i in range(4):
        a(f"ds_read2st64_b32 {vr(G0+4*i,2)}, v{222 if i == 0 else 20+i} offset0:0 offset1:5")
        a(f"ds_read_b32 v{G0+4*i+2}, v223 offset:{64*i}")
    a(f"""
    s_waitcnt lgkmcnt(8)
    v_readfirstlane_b32 s94, v96
    v_readfirstlane_b32 s{sTAG}, v97
    s_cmp_ge_u32 s94, 8
    s_cbranch_scc0 M_SPL
    """)
    for i in range(4):
        a(f"v_mov_b32 v{G0+4*i+3}, v97")
        a(f"s_waitcnt lgkmcnt({6-2*i})")
        a(f"global_store_dwordx4 v253, {vr(G0+4*i,4)}, {P(sWS)} sc1")
        if i < 3: a("v_add_u32 v253, s41, v253")
    stamp(a, 2)
    a(f"""
    {"s_setprio 0" if MODF else ""}
    s_cmp_ge_u32 s3, 6
    s_cbranch_scc1 M_MOD
    s_waitcnt vmcnt(4)
    """)
    signal(a, C_H)
    if E("C_PRIO"): a("s_setprio 1")
    a("s_branch KG_W1")
    a.label("M_KG")
    stamp(a, 2)
    def mp_issue():
        for c in range(3): a(f"global_load_dwordx2 {vr(VMP+2*c,2)}, v{VMA+c}, {P(sWS)} sc1")
    def xn_issue(n=3):
        for i in range(n): a(f"global_load_dwordx4 {vr(XG+4*i,4)}, v{VXA}, {P(sWS)} offset:{1024*i} sc1")
    def first_issue(lo=0, hi=4):
        l = a.newlabel("NI")
        if S4:
            if lo == 0:
                a(f"s_cmp_ge_u32 s3, 2\ns_cbranch_scc1 {l}"); xn_issue(4); a.label(l)
            return
        a(f"""
        s_sub_u32 s40, s3, {lo}
        s_cmp_ge_u32 s40, {hi - lo}
        s_cbranch_scc1 {l}
        s_cmp_lt_u32 s3, 2
        s_cbranch_scc1 {l}B
        global_load_dwordx4 {vr(XG+8,4)}, v{VXA}, {P(sWS)} offset:2048 sc1
        {l}B:
        """)
        xn_issue(2)
        a.label(l)
    XAT = E("M_XAT", "mix")
    hooks = {}
    if XAT not in ("tab", "exp", "pl", "mix"): hooks[XAT] = first_issue
    def chook(spec):
        def f_():
            l = a.newlabel("CH")
            a(f"""
            s_cmp_lt_u32 s3, 4
            s_cbranch_scc1 {l}
            s_mov_b32 s80, m0
            s_cmp_eq_u32 s3, 4
            s_cselect_b32 s78, s22, s24
            s_cselect_b32 s79, s23, s25
            """)
            for it in spec.split(","):
                if it[0] == "p": pf_lines(a, "g", int(it[1]), 252)
                else:
                    k = int(it[1])
                    a(f"""
                    s_cmp_ge_u32 s2, 144
                    s_cbranch_scc1 {l}_{k}
                    s_and_b32 s40, s2, 7
                    s_mul_i32 s40, s40, 18
                    s_lshr_b32 s64, s2, 3
                    s_add_u32 s40, s40, s64
                    s_mul_i32 s40, s40, 36864
                    s_mul_i32 s64, s{sHH}, 18432
                    s_add_u32 s64, s64, {6144*k}
                    s_add_u32 s40, s40, s64
                    s_add_u32 m0, s64, {L_DN}
                    v_lshl_add_u32 v252, v2, 4, s40
                    """)
                    for i in range(6):
                        if i == 3: a("s_add_u32 m0, m0, 3072\nv_add_u32 v252, 3072, v252")
                        a(f"global_load_lds_dwordx4 v252, {P(sWD)} offset:{1024*(i%3)}")
                    a(f"{l}_{k}:")
            a(f"s_mov_b32 m0, s80")
            a.label(l)
        return f_
    if E("C_PRIO"): hooks[E("C_PRIO")] = lambda: a("s_setprio 0")
    CH = dict(x.split(":") for x in E("M_CH", "").split(";") if x)
    for k_, v_ in CH.items(): hooks[k_] = chook(v_)
    if DNAT == "kg":
        def kt():
            k0_ = len(a.lines); dn_touch(a)
            for i in range(k0_, len(a.lines)): a.lines[i] = a.lines[i].replace("v252", "v247")
        hooks[E("F_DNH", "p")] = kt
    gen_kgen(a, 0, hooks)
    signal(a, C_TAB, VED+1)
    if XAT == "tab": first_issue()
    if XAT == "mix": first_issue(2, 4)
    stamp(a, 4)
    spin(a, C_TAB, 2, VED+1)
    stamp(a, 5)
    a(f"""
    s_cmp_eq_u32 s{sHH}, 0
    s_cbranch_scc0 M_EXB
    """)
    expand(a, 0)
    a("s_branch M_EXD")
    a.label("M_EXB")
    expand(a, 1)
    a.label("M_EXD")
    signal(a, C_K, VED+1)
    if XAT == "exp": first_issue()
    if XAT == "mix": first_issue(0, 2)
    stamp(a, 6)
    a("s_mov_b32 s73, 0")
    a("s_branch M_CSET")
    a.label("M_MOD")
    a(f"""
    s_cmp_ge_u32 s2, 243
    s_cbranch_scc1 M_MODX
    """)
    for i in range(4): a(f"global_load_dwordx4 {vr(64+4*i,4)}, v{216+i}, {P(sWMOD)} offset:3456 {NT}")
    if not MODF:
        mod_item(0, 11)
        a("s_setprio 0")
        stamp(a, 7)
        mod_item(1, 4)
    a.label("M_MODX")
    a("s_setprio 0")
    a(f"""
    s_cmp_lg_u32 s3, 6
    s_cbranch_scc1 M_W7X
    """)
    spin(a, C_TAB if MODF else C_K, int(E("M_MPN", "1")))
    a(f"global_load_ushort v{VD}, v{VD}, {P(sDSK)}")
    mp_issue()
    a(f"""
    s_mov_b32 s41, {SPIN}
    M_MP:
    s_waitcnt vmcnt(0)
    v_xor_b32 v16, s{sTAG}, v{VMP+1}
    v_xor_b32 v17, s{sTAG}, v{VMP+3}
    v_xor_b32 v18, s{sTAG}, v{VMP+5}
    v_or3_b32 v16, v16, v17, v18
    v_cmp_ne_u32 vcc, 0, v16
    s_cbranch_vccz M_MPD
    """)
    mp_issue()
    a(f"""
    s_waitcnt vmcnt(0)
    s_sub_u32 s41, s41, 1
    s_cbranch_scc0 M_MP
    M_MPD:
    s_mov_b32 exec_lo, 0xfe00fe00
    s_mov_b32 exec_hi, 0xfe00fe00
    v_mov_b32 v{VMP}, 0
    v_mov_b32 v{VMP+2}, 0
    v_mov_b32 v{VMP+4}, 0
    s_mov_b64 exec, -1
    """)
    for sh in (1, 2, 4, 8):
        for r in (VMP, VMP+2, VMP+4): a(f"v_add_f32 v{r}, v{r}, v{r} row_shr:{sh} {DPP_ALL} bound_ctrl:0")
    a(f"""
    v_cvt_pk_bf16_f32 v17, v{VMP}, v{VMP+2}
    v_cvt_pk_bf16_f32 v18, v{VMP+4}, v{VMP+4}
    v_lshlrev_b32 v16, 16, v17         ; sa
    v_and_b32 v17, 0xffff0000, v17     ; ca
    v_add_f32 v17, 1.0, v17
    v_cvt_pk_bf16_f32 v17, v17, v17
    v_and_b32 v17, 0xffff0000, v17     ; c1
    v_mul_f32 v19, 0x42800000, v17
    v_add_f32 v19, abs(v19), abs(v16)
    v_frexp_exp_i32_f32 v19, v19
    v_sub_u32 v19, 15, v19
    v_ldexp_f32 v17, v17, v19
    v_ldexp_f32 v16, v16, v19
    v_sub_u32 v19, 0, v19
    v_lshlrev_b32 v{VD}, 16, v{VD}
    v_lshlrev_b32 v18, 16, v18
    v_ldexp_f32 v{VD}, v{VD}, v19
    v_lshrrev_b32 v20, 2, v2
    v_and_b32 v20, 12, v20
    s_mov_b32 exec_lo, 0x80008000
    s_mov_b32 exec_hi, 0x00008000
    ds_write_b32 v20, v17 offset:{L_PRM}
    ds_write_b32 v20, v16 offset:{L_PRM + 16}
    ds_write_b32 v{VZ}, v33 offset:{L_CNT + C_PR + 4}
    ds_write_b32 v20, v{VD} offset:{L_PRM + 32}
    ds_write_b32 v20, v18 offset:{L_PRM + 48}
    ds_write_b32 v20, v19 offset:{L_PRM + 64}
    s_mov_b64 exec, -1
    """)
    signal(a, C_PR)
    stamp(a, 14)
    a("s_branch M_NI2")
    a.label("M_W7X")
    if MODF:
        a("s_cmp_ge_u32 s2, 243\ns_cbranch_scc1 M_NI2")
        mod_item(1, 3)
    a.label("M_NI2")
    stamp(a, 3)
    spin(a, C_K, int(E("M_W6N", "1")))
    xn_issue(4 if S4 else 3)
    a("s_mov_b32 s73, 0\ns_cmp_lg_u32 s3, 6\ns_cbranch_scc1 M_CSET\ns_cmp_ge_u32 s2, 243\ns_cbranch_scc1 M_CSET")
    mod_item(1, 7 if S4 else 6)
    a("s_mov_b32 s73, 1")
    def pf_waves(spec, tag, v0):
        for grp in filter(None, spec.split(";")):
            w, items = grp.split(":")
            l = a.newlabel("PF")
            a(f"s_cmp_lg_u32 s3, {w}"); a(f"s_cbranch_scc1 {l}")
            for it in items.split(","): pf_lines(a, it[:-1], int(it[-1]), v0)
            a.label(l)
    pf_waves(E("M_PFA", ""), "a", 100)
    a.label("M_CSET")
    jobs = {"A": Job([(0, JA, "A")]), "B": Job([(0, JB, "B")]), "C": Job([(0, JC, "C")]), "D": Job([(1, JD, "D"), (0, JD, "D")])}
    for k in range(4): jobs[f"K{k}"] = Job([(0, JCH(k), None)], int(E("M_NPXK", "2")))
    a(f"""
    s_lshl_b32 s40, s3, 2
    s_lshr_b32 s40, {E('M_JOBS', '0x31242010')}, s40
    s_and_b32 s62, s40, 15
    s_and_b32 s40, s2, 3
    s_cmp_eq_u32 s62, 4
    s_cselect_b32 s40, s40, 0
    s_add_u32 s62, s62, s40
    """)
    def dispatch(pre):
        for i, nm in enumerate(list(jobs)[:-1]):
            a(f"s_cmp_eq_u32 s62, {i}")
            a(f"s_cbranch_scc1 {pre}{nm}")
        a(f"s_branch {pre}K3")
    SF = int(E("M_SF", "1"))
    if SF: a("s_cmp_ge_u32 s3, 6\ns_cbranch_scc1 M_TGS\nM_PL0:")
    spin(a, C_K, 2, 1)
    dispatch("M_PL")
    for nm, jb in jobs.items():
        a.label(f"M_PL{nm}")
        if nm == "D": spin(a, C_K + 4, 2)
        jb.preload(a)
        a("s_branch M_STG")
    a.label("M_STG")
    stamp(a, 8)
    a(f"""
    s_cmp_ge_u32 s3, 4
    s_cbranch_scc1 M_HW
    {"s_cmp_ge_u32 s3, 2" if S4 else ""}
    {"s_cbranch_scc1 M_U3" if S4 else ""}
    """)
    a(f"""
    M_TGS:
    ds_read_b64 v[16:17], v{VZ} offset:{L_CNT + C_PR}
    ds_read_b128 v[20:23], v{VZ} offset:{L_PRM}
    ds_read_b128 v[24:27], v{VZ} offset:{L_PRM + 16}
    s_lshl_b32 s40, s63, 8
    s_add_u32 s40, s40, {L_HB + 480}
    s_mov_b32 m0, s40
    s_mov_b32 s41, {SPIN}
    v_mov_b32 v30, 0x3f80
    v_mov_b32 v31, 0x3f800000
    s_waitcnt lgkmcnt(0)
    v_readfirstlane_b32 s94, v16
    v_readfirstlane_b32 s{sTAG}, v17
    v_readfirstlane_b32 s66, v20
    v_readfirstlane_b32 s69, v22
    v_readfirstlane_b32 s67, v21
    v_readfirstlane_b32 s70, v24
    v_readfirstlane_b32 s71, v25
    v_readfirstlane_b32 s72, v26
    s_lshr_b32 s66, s66, 16
    s_lshr_b32 s68, s69, 16
    s_cmp_ge_u32 s94, 1
    s_cbranch_scc0 M_TGS
    s_waitcnt vmcnt(1)
    s_cmp_eq_u32 s73, 1
    s_cbranch_scc1 M_XP1
    M_XP:
    s_waitcnt vmcnt(0)
    M_XP1:
    v_xor_b32 v16, s{sTAG}, v{XG+3}
    v_xor_b32 v17, s{sTAG}, v{XG+7}
    v_xor_b32 v18, s{sTAG}, v{XG+11}
    {"v_xor_b32 v19, s%d, v%d" % (sTAG, XG+15) if S4 else "s_cmp_lt_u32 s3, 2"}
    {"v_or_b32 v18, v18, v19" if S4 else "s_cselect_b32 s40, 0, -1"}
    {"" if S4 else "v_and_b32 v18, s40, v18"}
    v_or3_b32 v16, v16, v17, v18
    v_cmp_ne_u32 vcc, 0, v16
    s_cbranch_vccz M_XD
    s_mov_b64 exec, vcc
    """)
    xn_issue(4 if S4 else 3)
    a(f"""
    s_mov_b64 exec, -1
    s_sub_u32 s41, s41, 1
    s_cbranch_scc0 M_XP
    M_XD:
    """)
    stamp(a, 9)
    def units(lst, FO=16):
        Y = 32
        for n, u in enumerate(lst):
            g = XG + 4*u; y = Y + 6*n
            for k, (src, cs) in enumerate(((g, 66), (g+1, 66), (g, 67), (g+1, 67), (g+2, 68), (g+2, 69))):
                a(f"v_dot2_f32_bf16 v{y+k}, v{src}, s{cs}, 0")
        if len(lst) == 1: a("s_nop 0")
        prs = [Y + 2*i for i in range(3*len(lst))]
        for p in prs: a(f"v_cvt_pk_bf16_f32 v{p+1}, v{p}, v{p+1}")
        for i, p in enumerate(prs):
            a(f"v_dot2_f32_bf16 v{p}, v{p+1}, v30, s{70 + i%3}")
            a(f"v_dot2_f32_bf16 v{p+1}, v{p+1}, v31, s{70 + i%3}")
        a("s_nop 1")
        rnd_pairs(a, prs)
        for i, p in enumerate(prs): a(f"v_cvt_pk_f16_f32 v{FO+i}, v{p}, v{p+1}")
        for i, p in enumerate(prs): a(f"ds_write_addtid_b32 v{FO+i} offset:{(i%3)*HB_P + lst[i//3]*256}")
    if S4:
        units([0, 1]); units([2, 3], 22)
    else:
        a("""
        s_cmp_lt_u32 s3, 2
        s_cbranch_scc1 M_U2
        """)
        units([0, 1, 2])
        a("s_branch M_U3")
        a.label("M_U2")
        units([0, 1])
    a.label("M_U3")
    signal(a, C_H)
    a("s_cmp_ge_u32 s3, 6\ns_cbranch_scc1 M_PL0")
    RR = 160
    def red_issue():
        for s_ in range(8): a(f"global_load_dwordx2 {vr(RR+2*s_,2)}, v178, {P(sWS)} offset:{512*s_} sc1")
        a(f"global_load_dwordx2 {vr(RR+16,2)}, v179, {P(sWS)} sc1")
    def red_addr():
        a(f"""
        s_sub_u32 s40, s2, {229 - 27}
        s_mul_i32 s40, s40, {9*512}
        s_add_u32 s40, s40, {WS_MP}
        v_lshl_add_u32 v178, v2, 3, s40
        v_add_u32 v179, 4096, v178
        """)
    a(f"""
    M_HW:
    ; f-slice of D workgroups, down weights -> LDS
    s_and_b32 s40, s2, 7
    s_mul_i32 s40, s40, 18
    s_lshr_b32 s41, s2, 3
    s_add_u32 s46, s40, s41            ; fs
    """)
    def dn_fill(tag):
        L = ["v_lshrrev_b32 v15, 2, v2", "s_mul_i32 s40, s3, 144", "v_add_u32 v15, s40, v15", "v_mul_u32_u24 v15, 9216, v15", "v_and_b32 v251, 3, v2",
             "v_lshl_add_u32 v15, v251, 4, v15", "s_lshl_b32 s40, s46, 6", "v_add_u32 v15, s40, v15", "s_mul_i32 s40, s3, 9216", f"s_add_u32 m0, s40, {L_G}", f"s_mov_b32 s40, {16*9216}"]
        for i in range(9):
            L.append(f"s_cmp_ge_u32 s2, s47\ns_cbranch_scc1 DN{tag}_{i}\nglobal_load_lds_dwordx4 v15, {P(sWG)} {E('F_GFL', '')}\nDN{tag}_{i}:")
            if i < 8: L += ["s_add_u32 m0, m0, 1024\nv_add_u32 v15, s40, v15"]
        return L
    def pf_fill(spec):
        b = Asm(); b.uid = a.uid + 1000
        for it in spec.split(","): pf_lines(b, it[:-1], int(it[-1]), 252)
        return [x.strip() for x in b.lines if x.strip()]
    a("""
    s_cmp_lt_u32 s3, 4
    s_cselect_b32 s47, 144, 0
    s_bitcmp1_b32 s3, 1
    s_cselect_b32 s78, s24, s22
    s_cselect_b32 s79, s25, s23
    """)
    pf_waves(E("M_PFR", ""), "r", 16)
    if int(E("M_PRIO4", "1")):
        a("s_cmp_lg_u32 s3, 4\ns_cbranch_scc1 M_NP4\ns_setprio 1\nM_NP4:")
    a(f"""
    M_HS:
    ds_read_b32 v251, v{VZ} offset:{L_CNT + C_H}
    ds_read_b32 v15, v{VZ} offset:{L_TAG}
    s_waitcnt lgkmcnt(0)
    v_readfirstlane_b32 s94, v251
    v_readfirstlane_b32 s{sTAG}, v15
    s_cmp_ge_u32 s94, 8
    s_cbranch_scc0 M_HS
    """)
    stamp(a, 10)
    PFJ = dict(x.split(":") for x in E("M_PFJ", "A:g0;B:g1;C:g2").split(";") if x)
    dispatch("M_RUN")
    for nm, jb in jobs.items():
        a.label(f"M_RUN{nm}")
        fl_ = []
        if nm in PFJ: fl_ += pf_fill(PFJ[nm])
        if nm == "B":
            b_ = Asm(); sv = a.lines; a.lines = b_.lines
            a("s_cmp_lg_u32 s3, 1\ns_cbranch_scc1 M_NRI\ns_cmp_lt_u32 s2, 229\ns_cbranch_scc1 M_NRI"); red_addr(); red_issue(); a.label("M_NRI")
            a.lines = sv
            fl_ = fl_ + [""] * (2*int(E("M_RAT", "30")) - len(fl_)) + ["\n".join(b_.lines)]
        acc = jb.run(a, fl_)
        if nm[0] == "K":
            k = int(nm[1])
            c0_, c1_ = acc[(0, k)], acc[(0, 7-k)]
            t0_, t1_ = (k, 7-k) if c0_ < c1_ else (7-k, k)
            a(f"""
            ds_read_b32 v40, v{VZ} offset:{L_PRM + 32 + 8}
            ds_read_b32 v41, v{VZ} offset:{L_PRM + 48 + 8}
            ds_read_b32 v42, v{VZ} offset:{L_PRM + 64 + 8}
            ds_read_b32 v43, v{VZ} offset:{L_PRM + 80 + 8}
            ds_read_b64 v[44:45], v3 offset:{2*HB_P + 512*t0_}
            ds_read_b64 v[46:47], v3 offset:{2*HB_P + 512*t1_}
            v_and_b32 v16, 15, v2
            v_mul_u32_u24 v16, 96, v16
            v_lshrrev_b32 v17, 5, v2
            v_mul_u32_u24 v17, 48, v17
            v_bfe_u32 v18, v2, 4, 1
            v_lshl_add_u32 v17, v18, 3, v17
            v_add_u32 v16, v16, v17
            v_add_u32 v16, {L_TAB + 32}, v16
            s_waitcnt lgkmcnt(0)
            v_ldexp_f32 v43, v43, v42
            """)
            c0 = min(c0_, c1_)
            epi_core(a, c0, 44, 48, "v43", "v40", "v41", 8)
            for i in range(4): a(f"v_cvt_pk_bf16_f32 v{48+i}, v{c0+2*i}, v{c0+2*i+1}")
            a(f"ds_write_b64 v16, v[48:49] offset:{1536*t0_}")
            a(f"ds_write_b64 v16, v[50:51] offset:{1536*t1_}")
        a("s_branch M_FIN")
    a.label("M_FIN")
    a("s_setprio 0")
    stamp(a, 11)
    a(f"""
    s_cmp_lg_u32 s3, 1
    s_cbranch_scc1 M_NRED
    s_cmp_lt_u32 s2, 229
    s_cbranch_scc1 M_NRED
    s_mov_b32 s41, {SPIN}
    """)
    red_addr()
    a(f"""
    s_waitcnt vmcnt(0)
    M_RP:
    v_xor_b32 v24, s{sTAG}, v{RR+17}
    """)
    for s_ in range(8):
        a(f"v_xor_b32 v25, s{sTAG}, v{RR+2*s_+1}")
        a("v_or_b32 v24, v24, v25")
    a(f"""
    v_cmp_ne_u32 vcc, 0, v24
    s_cbranch_vccz M_RD
    """)
    red_issue()
    a(f"""
    s_waitcnt vmcnt(0)
    s_sub_u32 s41, s41, 1
    s_cbranch_scc0 M_RP
    M_RD:
    """)
    for s_ in range(8): a(f"v_add_f32 v{RR+16}, v{RR+16}, v{RR+2*s_}")
    a(f"""
    v_cvt_pk_bf16_f32 v24, v{RR+16}, v{RR+16}
    s_sub_u32 s40, s2, {229 + 9}
    s_cmp_lt_u32 s40, 9
    s_cbranch_scc0 M_RNC
    v_lshlrev_b32 v24, 16, v24
    v_add_f32 v24, 1.0, v24
    v_cvt_pk_bf16_f32 v24, v24, v24
    M_RNC:
    s_sub_u32 s40, s2, 229
    s_lshl_b32 s40, s40, 8
    s_add_u32 s40, s40, {WS_PT16}
    v_mov_b32 v26, v24 quad_perm:[1,1,3,3] {DPP_ALL}
    v_lshl_add_u32 v27, v2, 2, s40
    v_mov_b32 v25, s{sTAG}
    v_alignbit_b32 v24, v26, v24, 16
    s_mov_b32 exec_lo, 0x55555555
    s_mov_b32 exec_hi, 0x55555555
    global_store_dwordx2 v27, v[24:25], {P(sWS)} sc1
    s_mov_b64 exec, -1
    M_NRED:
    s_cmp_lg_u32 s3, 5
    s_cbranch_scc1 M_NWR
    v_lshlrev_b32 v24, 4, v2
    s_mov_b32 m0, {L_PT + 3456}
    s_nop 0
    global_load_lds_dwordx4 v24, {P(sWR)}
    s_mov_b64 exec, 0xff
    global_load_lds_dwordx4 v24, {P(sWR)} offset:1024
    s_mov_b64 exec, -1
    M_NWR:
    """)
    a(f"""
    s_add_u32 s50, s3, 5               ; B[w]
    s_add_u32 s51, s3, -3              ; A
    s_add_u32 s52, s3, 7               ; C
    s_add_u32 s53, s3, 10              ; D
    s_cmp_ge_u32 s3, 5
    s_cselect_b32 s50, s53, s50
    s_lshl_b32 s50, s50, 10
    s_lshl_b32 s51, s51, 10
    s_lshl_b32 s52, s52, 10
    s_add_u32 s54, s51, 18432
    s_add_u32 s55, s52, 18432
    s_cmp_lt_u32 s3, 3
    s_cselect_b32 s51, {(L_ZERO - L_PART) & 0xffffffff}, s51
    s_cselect_b32 s52, {(L_ZERO - L_PART) & 0xffffffff}, s52
    s_cselect_b32 s54, {(L_ZERO - L_PART) & 0xffffffff}, s54
    s_cselect_b32 s55, {(L_ZERO - L_PART) & 0xffffffff}, s55
    v_lshlrev_b32 v16, 4, v2
    v_add_u32 v16, {L_PART}, v16
    v_add_u32 v17, s51, v16
    v_add_u32 v18, s52, v16
    v_add_u32 v19, s54, v16
    v_add_u32 v20, s55, v16
    v_add_u32 v16, s50, v16
    s_lshl_b32 s40, s3, 9
    v_add_u32 v3, s40, v3
    ds_read_b64 v[64:65], v{VZ} offset:{L_PRM + 32}
    ds_read_b64 v[66:67], v{VZ} offset:{L_PRM + 48}
    ds_read_b64 v[68:69], v{VZ} offset:{L_PRM + 64}
    ds_read_b64 v[70:71], v{VZ} offset:{L_PRM + 80}
    ds_read_b64 v[72:73], v3
    ds_read_b64 v[74:75], v3 offset:{HB_P}
    s_mul_i32 s40, s3, 1536
    s_add_u32 s40, s40, {L_TAB}
    v_and_b32 v4, 15, v2
    v_mul_u32_u24 v4, 96, v4
    v_lshrrev_b32 v5, 5, v2
    v_mul_u32_u24 v5, 48, v5
    v_and_b32 v6, 16, v2
    v_add3_u32 v4, v4, v5, v6
    v_add_u32 v4, s40, v4
    v_lshrrev_b32 v6, 2, v2
    v_mul_u32_u24 v5, 96, v6
    v_and_b32 v7, 3, v2
    v_mul_u32_u24 v8, 12, v7
    v_add3_u32 v5, v5, v8, s40
    v_lshlrev_b32 v6, 15, v6
    v_lshl_add_u32 v6, v7, 4, v6
    s_lshl_b32 s40, s3, 19
    s_lshl_b32 s41, s2, 6
    s_add_u32 s40, s40, s41
    s_add_u32 s40, s40, {WS_Z2}
    v_add_u32 v6, s40, v6
    v_add_u32 v7, 16384, v6
    v_mov_b32 v119, s{sTAG}
    v_mov_b32 v123, s{sTAG}
    s_waitcnt lgkmcnt(0)
    v_ldexp_f32 v70, v70, v68
    v_ldexp_f32 v71, v71, v69
    """)
    for e in range(4): a(f"v_fma_mix_f32 v{104+e}, v{72+e//2}, v64, 0 op_sel:[{e&1},0,0] op_sel_hi:[1,0,0]")
    for e in range(4): a(f"v_fma_mix_f32 v{108+e}, v{74+e//2}, v65, 0 op_sel:[{e&1},0,0] op_sel_hi:[1,0,0]")
    rnd_pairs(a, [104, 106, 108, 110])
    a(f"""
    v_min_u32 v124, 175, v0
    v_lshlrev_b32 v125, 4, v0
    v_lshlrev_b32 v124, 4, v124
    v_add_u32 v126, {WS_PT16}, v125
    v_add_u32 v127, {WS_PT16 + 4096}, v124
    v_lshrrev_b32 v125, 1, v125
    v_lshrrev_b32 v124, 1, v124
    v_add_u32 v125, {L_PT}, v125
    v_add_u32 v124, {L_PT + 2048}, v124
    s_barrier                          ; B6
    ds_read_b128 v[80:83], v16
    ds_read_b128 v[84:87], v17
    ds_read_b128 v[88:91], v18
    ds_read_b128 v[92:95], v16 offset:18432
    ds_read_b128 v[96:99], v19
    ds_read_b128 v[100:103], v20
    s_cmp_ge_u32 s3, 4
    s_cbranch_scc1 M_NPL
    global_load_dwordx4 v[128:131], v126, {P(sWS)} sc1
    global_load_dwordx4 v[132:135], v127, {P(sWS)} sc1
    M_NPL:
    """)
    a("s_waitcnt lgkmcnt(3)")
    for e in range(4): a(f"v_add_f32 v{80+e}, v{80+e}, v{84+e}")
    for e in range(4): a(f"v_add_f32 v{80+e}, v{80+e}, v{88+e}")
    a("s_waitcnt lgkmcnt(0)")
    for e in range(4): a(f"v_add_f32 v{84+e}, v{92+e}, v{96+e}")
    for e in range(4): a(f"v_add_f32 v{84+e}, v{84+e}, v{100+e}")
    for e in range(8): a(f"v_mul_f32 v{80+e}, v{70+e//4}, v{80+e}")
    for i in range(4): a(f"v_cvt_pk_bf16_f32 v{88+i}, v{80+2*i}, v{81+2*i}")
    a("v_mov_b32 v62, 0x3f80")
    a("v_mov_b32 v63, 0x3f800000")
    for e in range(8): a(f"v_dot2_f32_bf16 v{80+e}, v{88+e//2}, v{62+(e&1)}, v{104+e}")
    rnd_pairs(a, [80, 82, 84, 86])
    for e in range(8): a(f"v_mul_f32 v{80+e}, v{66+e//4}, v{80+e}")
    for e in range(4): a(f"v_cvt_pk_bf16_f32 v{88+e}, v{80+e}, v{84+e}")
    a(f"""
    ds_write_b128 v4, v[88:91]
    ds_read2_b32 v[116:117], v5 offset0:0 offset1:1
    ds_read_b32 v118, v5 offset:8
    ds_read2_b32 v[120:121], v5 offset0:12 offset1:13
    ds_read_b32 v122, v5 offset:56
    s_waitcnt lgkmcnt(2)
    global_store_dwordx4 v6, v[116:119], {P(sWS)} sc1
    s_waitcnt lgkmcnt(0)
    global_store_dwordx4 v7, v[120:123], {P(sWS)} sc1
    """)
    stamp(a, 17)
    gen_tail(a)
    return ("ka_kernel", 256, 512, M_LDS, 256, 100, 256)

def dn_touch(a):
    a("s_cmp_ge_u32 s3, 3\ns_cbranch_scc1 T_NT")
    a("""
    s_lshr_b32 s64, s2, 3
    s_mul_i32 s64, s64, 162
    s_mul_i32 s65, s3, 54
    s_add_u32 s64, s64, s65
    s_and_b32 s65, s2, 7
    s_mul_i32 s65, s65, 5184
    s_add_u32 s64, s64, s65
    v_min_u32 v252, 53, v2
    v_add_u32 v252, s64, v252
    v_lshlrev_b32 v252, 7, v252
    """)
    a(f"global_load_dword v250, v252, {P(sWD)}")
    a.label("T_NT")

def reduce2(a, A, B):
    for m in [f"row_shr:1 {DPP_ALL} bound_ctrl:0", f"row_shr:2 {DPP_ALL} bound_ctrl:0", f"row_shr:4 {DPP_ALL} bound_ctrl:0", f"row_shr:8 {DPP_ALL} bound_ctrl:0",
              "row_bcast:15 row_mask:0xa bank_mask:0xf", "row_bcast:31 row_mask:0xc bank_mask:0xf"]:
        a(f"v_add_f32 v{A}, v{A}, v{A} {m}")
        if B is not None: a(f"v_add_f32 v{B}, v{B}, v{B} {m}")
        a("s_nop 0" if B is not None else "s_nop 1")

def gen_tail(a):
    XF, C1, SB, GB, WR = 16, 26, 36, 46, 56
    ONES, LO, HI, RC = 61, 62, 63, 15
    Z, X1, P1, T, H2, O = 64, 70, 80, 86, 96, 102
    WG_, WD_ = 136, 176
    ZG, ZA = 192, 208
    sel = lambda e: LO + (e & 1)
    sKEY, sOWN = 47, 48
    GUK = 1
    GUAT = E('F_GU', 'b7')
    PFIRST = int(E('F_PFIRST', '1'))
    PLAN = E("F_PLAN", "B")
    def w_dma(mats):
        a(f"""
        v_lshrrev_b32 v9, 2, v2
        s_mul_i32 s40, s3, 144
        v_add_u32 v9, s40, v9
        v_mul_u32_u24 v9, 9216, v9
        v_and_b32 v8, 3, v2
        v_lshl_add_u32 v9, v8, 4, v9
        s_lshl_b32 s40, s46, 6
        v_add_u32 v9, s40, v9
        s_mul_i32 s50, s3, 9216
        s_mov_b32 s40, {16*9216}
        """)
        for k, m in enumerate(mats):
            a(f"s_add_u32 m0, s50, {L_G if m == 'g' else L_U}")
            a(f"v_mov_b32 v8, v9")
            for i in range(9):
                a(f"global_load_lds_dwordx4 v8, {P(sWG if m == 'g' else sWU)}")
                if i < 8: a("s_add_u32 m0, m0, 1024\nv_add_u32 v8, s40, v8")
    def gu_dma():
        a("s_cmp_ge_u32 s2, 144\ns_cbranch_scc1 T_NGU")
        w_dma("gu" if PLAN == "A" else "g")
        if not PFIRST: a(f"s_waitcnt vmcnt({20 if PLAN == 'A' else 11})\ns_branch T_PP1")
        a.label("T_NGU")
    def dn_dma():
        a('s_cmp_ge_u32 s2, 144\ns_cbranch_scc1 T_NDN\ns_cmp_ge_u32 s3, 4\ns_cbranch_scc1 T_NDN')
        a(f"""
        s_mul_i32 s40, s46, 36864
        s_mul_i32 s51, s3, 9216
        s_add_u32 s40, s40, s51
        s_add_u32 m0, s51, {L_D2}
        v_lshl_add_u32 v9, v2, 4, s40
        """)
        for i in range(9):
            a(f"global_load_lds_dwordx4 v9, {P(sWD)} offset:{1024*(i%3)} {E('F_DFL', '')}")
            if i % 3 == 2 and i < 8: a("s_add_u32 m0, m0, 3072\nv_add_u32 v9, 3072, v9")
        a.label("T_NDN")
    a(f"""
    s_cmp_lg_u32 s3, 5
    s_cbranch_scc1 T_B7
    s_waitcnt vmcnt(2)
    T_B7:
    s_barrier                          ; B7
    s_cmp_ge_u32 s3, 4
    s_cbranch_scc1 T_ZW
    """)
    a(f"""
    s_mov_b32 s41, {SPIN}
    """)
    if not PFIRST: gu_dma()
    a(f"""
    s_waitcnt vmcnt(2)
    s_branch T_PP1
    T_PP:
    global_load_dwordx4 v[128:131], v126, {P(sWS)} sc1
    global_load_dwordx4 v[132:135], v127, {P(sWS)} sc1
    s_waitcnt vmcnt(0)
    T_PP1:
    v_xor_b32 v129, s{sTAG}, v129
    v_xor_b32 v131, s{sTAG}, v131
    v_xor_b32 v133, s{sTAG}, v133
    v_xor_b32 v135, s{sTAG}, v135
    v_or3_b32 v129, v129, v131, v133
    v_or_b32 v129, v129, v135
    v_cmp_ne_u32 vcc, 0, v129
    s_cbranch_vccz T_PD
    s_sub_u32 s41, s41, 1
    s_cbranch_scc0 T_PP
    T_PD:
    ds_write2_b32 v125, v128, v130 offset0:0 offset1:1
    ds_write2_b32 v124, v132, v134 offset0:0 offset1:1
    """)
    signal(a, C_P)
    if PFIRST: gu_dma()
    a(f"""
    s_branch T_COM
    T_ZW:
    s_sub_u32 s40, s3, 4
    s_lshl_b32 s41, s40, 12
    s_lshl_b32 s50, s2, 14
    s_add_u32 s41, s41, s50
    s_add_u32 s41, s41, {WS_Z2}
    v_lshl_add_u32 v{ZA+3}, v2, 4, s41
    s_lshl_b32 s40, s40, 8             ; 4 * 64(w-4)
    v_lshrrev_b32 v64, 2, v2
    v_lshl_add_u32 v65, v64, 2, s40    ; 4p
    v_and_b32 v66, 3, v2               ; g
    v_mul_u32_u24 v67, {3*ZR_P}, v66
    v_add_u32 v{ZA}, v65, v67
    v_add_u32 v{ZA}, {L_ZR}, v{ZA}
    v_add_u32 v{ZA+1}, {ZR_P}, v{ZA}
    v_add_u32 v{ZA+2}, {2*ZR_P}, v{ZA}
    s_lshr_b32 s41, s2, 5
    s_sub_u32 s50, 7, s41
    s_min_u32 s41, s41, s50            ; owner k
    v_and_b32 v67, 3, v64
    v_and_b32 v65, -16, v65            ; (p>>2)*16
    v_add_u32 v65, {L_ZC}, v65
    v_mov_b32 v68, {L_ZC + 1024}
    v_cmp_eq_u32 vcc, s41, v67
    s_nop 1
    v_cndmask_b32 v65, v68, v65, vcc
    v_add_u32 v67, 4, v65
    v_add_u32 v68, 8, v65
    v_add_u32 v69, 12, v65
    v_cmp_eq_u32 vcc, 2, v66
    s_nop 1
    v_cndmask_b32 v{ZA+2}, v{ZA+2}, v65, vcc
    v_cmp_eq_u32 vcc, 3, v66
    s_nop 1
    v_cndmask_b32 v{ZA}, v{ZA}, v67, vcc
    v_cndmask_b32 v{ZA+1}, v{ZA+1}, v68, vcc
    v_cndmask_b32 v{ZA+2}, v{ZA+2}, v69, vcc
    """)
    a.label("T_COM")
    a(f"""
    v_mov_b32 v64, 0
    v_mov_b32 v65, 0
    v_mov_b32 v66, 0
    v_mov_b32 v67, 0
    v_lshlrev_b32 v68, 4, v0
    v_min_u32 v69, 15, v0
    v_lshlrev_b32 v69, 4, v69
    ds_write_b128 v68, v[64:67] offset:{L_LIST}
    ds_write_b128 v69, v[64:67] offset:{L_LIST + 8192}
    v_mov_b32 v{ONES}, 0x3f803f80
    v_mov_b32 v{RC}, {fbits(1.0/576)}
    """)
    for w in range(4): unpk(a, XF+2*w, XF+2*w+1, 10+w)
    a(f"""
    v_lshlrev_b32 v{XF+8}, 16, v14
    v_lshlrev_b32 v4, 4, v2
    v_add_u32 v4, {L_PT}, v4
    v_lshlrev_b32 v5, 1, v2
    v_add_u32 v5, {L_PT + 1024}, v5
    s_mul_i32 s40, s3, {ZR_P}
    s_add_u32 s40, s40, {L_ZR}
    v_lshl_add_u32 v6, v2, 4, s40
    s_lshl_b32 s40, s3, 1
    s_add_u32 s40, s40, {L_ZC}
    v_lshl_add_u32 v7, v2, 4, s40
    """)
    def z_issue():
        for n in range(4): a(f"global_load_dwordx4 {vr(ZG+4*n,4)}, v{ZA+3}, {P(sWS)} offset:{1024*n} sc1")
    stamp(a, 18)
    spin(a, C_P, 4)
    for t, d in ((0, 112), (1, 118), (2, 124)):
        a(f"ds_read_b128 {vr(72+8*t, 4)}, v4 offset:{1152*t}")
        a(f"ds_read_u16 v{76+8*t}, v5 offset:{1152*t}")
    a(f"""
    ds_read_b128 {vr(WR,4)}, v4 offset:3456
    ds_read_u16 v{WR+4}, v5 offset:3456
    s_waitcnt lgkmcnt(4)
    """)
    for w in range(4): unpk(a, SB+2*w, SB+2*w+1, 72+w)
    a(f"v_lshlrev_b32 v{SB+8}, 16, v76")
    for w in range(4):
        a(f"v_and_b32 v{C1+2*w}, 0xffff, v{80+w}")
        a(f"v_and_b32 v{C1+2*w+1}, 0xffff0000, v{80+w}")
    a(f"v_mov_b32 v{C1+8}, v84")
    a("s_waitcnt lgkmcnt(2)")
    for w in range(4):
        a(f"v_and_b32 v{GB+2*w}, 0xffff, v{88+w}")
        a(f"v_and_b32 v{GB+2*w+1}, 0xffff0000, v{88+w}")
    a(f"""
    v_mov_b32 v{GB+8}, v92
    s_cmp_lt_u32 s3, 4
    s_cbranch_scc1 T_B9
    s_mov_b32 s41, {SPIN}
    s_waitcnt vmcnt(0)
    T_ZP:
    s_sleep {BO_Z}
    """)
    z_issue()
    a(f"""
    s_waitcnt vmcnt(0)
    s_mov_b64 exec, -1
    v_xor_b32 v64, s{sTAG}, v{ZG+3}
    v_xor_b32 v65, s{sTAG}, v{ZG+7}
    v_xor_b32 v66, s{sTAG}, v{ZG+11}
    v_xor_b32 v67, s{sTAG}, v{ZG+15}
    v_or3_b32 v64, v64, v65, v66
    v_or_b32 v64, v64, v67
    v_cmp_ne_u32 vcc, 0, v64
    s_cbranch_vccz T_ZD
    s_mov_b64 exec, vcc
    s_sub_u32 s41, s41, 1
    s_cbranch_scc0 T_ZP
    s_mov_b64 exec, -1
    T_ZD:
    """)
    stamp(a, 19)
    for n in (0, 2):
        for s_ in range(3): a(f"ds_write2_b32 v{ZA+s_}, v{ZG+4*n+s_}, v{ZG+4*n+4+s_} offset0:{16*n} offset1:{16*n+16}")
    a(f"""
    T_B9:
    s_waitcnt lgkmcnt(0)
    s_barrier                          ; B9
    ds_read_b128 {vr(Z,4)}, v6
    ds_read_u16 v{Z+4}, v7
    s_waitcnt lgkmcnt(0)
    """)
    stamp(a, 20)
    if PLAN == "A": dn_dma()
    else:
        a("s_cmp_ge_u32 s2, 144\ns_cbranch_scc1 T_NUP\ns_cmp_ge_u32 s3, 4\ns_cbranch_scc1 T_NUP")
        w_dma("u")
        a.label("T_NUP")
        dn_touch(a)
    def pack(dst, src):
        for i in range(4): a(f"v_cvt_pk_bf16_f32 v{dst+i}, v{src+2*i}, v{src+2*i+1}")
        a(f"v_cvt_pk_bf16_f32 v{dst+4}, v{src+8}, 0")
    def dots(dst, src, bf, cf):
        for e in (8, 0, 1, 2, 3, 4, 5, 6, 7): a(f"v_dot2_f32_bf16 v{dst+e}, v{src+e//2}, {bf(e)}, {cf(e)}")
    vsel = lambda e: f"v{sel(e)}"
    dots(X1, Z, vsel, lambda e: f"v{XF+e}")
    pack(P1, X1)
    ln_core(a, P1, X1, T, ONES, LO, RC, "T_FAST")
    pack(Z, X1)
    dots(X1, Z, lambda e: f"v{C1+e}", lambda e: "0")
    pack(Z, X1)
    dots(X1, Z, vsel, lambda e: f"v{SB+e}")
    pack(H2, X1)
    for i in range(5): a(f"v_dot2_f32_bf16 v{T}, v{H2+i}, v{WR+i}, {'0' if i == 0 else 'v%d' % T}")
    a(f"""
    s_lshl_b32 s40, s2, 3
    s_add_u32 s40, s40, s3
    s_sub_u32 s40, 0xffff, s40
    """)
    reduce2(a, T, None)
    a(f"""
    v_cvt_pk_bf16_f32 v{T}, v{T}, v{T}
    s_lshl_b32 s41, s3, 3
    v_mov_b32 v{T+2}, s41
    v_readlane_b32 s{sKEY}, v{T}, 63
    v_mov_b32 v{T+1}, s{sTAG}
    s_and_b32 s{sKEY}, s{sKEY}, 0xffff0000
    s_ashr_i32 s41, s{sKEY}, 31
    s_or_b32 s41, s41, 0x80000000
    s_xor_b32 s{sKEY}, s{sKEY}, s41
    s_and_b32 s{sKEY}, s{sKEY}, 0xffff0000
    s_or_b32 s{sKEY}, s{sKEY}, s40
    v_mov_b32 v{T}, s{sKEY}
    s_mov_b64 exec, 1
    ds_write_b64 v{T+2}, {vr(T,2)} offset:{L_CNT + C_KEYS}
    ds_add_u32 v{VZ}, v{VONE} offset:{L_CNT + C_KEY}
    s_mov_b64 exec, -1
    v_and_b32 v4, 3, v2
    v_lshlrev_b32 v4, 4, v4
    v_lshrrev_b32 v5, 2, v2
    v_lshlrev_b32 v5, 14, v5
    s_lshl_b32 s41, s2, 6
    s_add_u32 s41, s41, {WS_KEY}
    v_add3_u32 v5, v5, v4, s41
    s_mov_b32 s41, s3
    s_cmp_lg_u32 s3, 7
    s_cbranch_scc1 T_NK
    T_KS:
    ds_read_b32 v{T+3}, v{VZ} offset:{L_CNT + C_KEY}
    ds_read_b128 v[108:111], v4 offset:{L_CNT + C_KEYS}
    s_waitcnt lgkmcnt(0)
    v_readfirstlane_b32 s94, v{T+3}
    s_cmp_ge_u32 s94, 8
    s_cbranch_scc0 T_KS
    {"s_mov_b32 exec_hi, 0" if NREP == 8 else ("" if NREP == 16 else "s_mov_b64 exec, %s" % hex((1 << (4*NREP)) - 1))}
    s_waitcnt lgkmcnt(0)
    global_store_dwordx4 v5, v[108:111], {P(sWS)} sc1
    s_mov_b64 exec, -1
    T_NK:
    """)
    stamp(a, 21)
    if DNAT == "kp":
        k0_ = len(a.lines); dn_touch(a)
    dots(X1, H2, lambda e: f"v{GB+e}", lambda e: "0")
    for w in range(4): unpk(a, XF+2*w, XF+2*w+1, P1+w)
    a(f"v_lshlrev_b32 v{XF+8}, 16, v{P1+4}")
    pack(Z, X1)
    dots(X1, Z, vsel, lambda e: f"v{XF+e}")
    a(f"""
    s_and_b32 s40, s2, {NREP-1}
    s_lshl_b32 s40, s40, 14
    s_lshl_b32 s50, s3, 11
    s_add_u32 s40, s40, s50
    s_add_u32 s40, s40, {WS_KEY}
    v_lshl_add_u32 v6, v2, 4, s40
    """)
    pack(O, X1)
    a(f"""
    s_cmp_lg_u32 s41, 7
    s_cbranch_scc1 T_NK2
    s_waitcnt vmcnt(0)
    """)
    signal(a, C_KP)
    a(f"""
    T_NK2:
    """)
    KK = 108
    OLATE = int(E('F_OLATE', '0'))
    DNP = E("F_DNP", "k")
    a(f"""
    s_cmp_ge_u32 s2, 144
    s_cbranch_scc1 T_NW
    s_cmp_ge_u32 s3, 4
    s_cbranch_scc1 T_W2
    s_waitcnt vmcnt({9 if PLAN == "A" else 0})
    """)
    signal(a, C_KP + 4)
    a(f"""
    T_W2:
    v_bfe_u32 v7, v2, 2, 2             ; r
    v_lshrrev_b32 v8, 4, v2            ; q
    v_lshl_add_u32 v7, v8, 3, v7       ; 8q + r
    v_and_b32 v8, 3, v2
    v_lshlrev_b32 v8, 3, v8            ; 8c
    v_mul_u32_u24 v21, 1152, v7
    v_add_u32 v21, v21, v8
    s_lshl_b32 s40, s3, 5
    s_add_u32 s40, s40, {L_D2}
    v_add_u32 v21, s40, v21
    v_lshl_add_u32 v7, v7, 6, v8
    s_lshr_b32 s40, s3, 1
    s_mul_i32 s50, s40, 5
    s_cmp_eq_u32 s40, 3
    s_cselect_b32 s50, 14, s50
    s_lshl_b32 s51, s50, 11
    s_and_b32 s40, s3, 1
    s_lshl_b32 s40, s40, 5
    s_add_u32 s40, s40, s51
    s_add_u32 s40, s40, {L_U}
    v_add_u32 v7, s40, v7
    v_add_u32 v8, {L_G - L_U}, v7
    """)
    spin(a, C_KP + 4, 4)
    stamp(a, 30)
    for i in range(5):
        a(f"ds_read_b64_tr_b16 {vr(WG_+8*i,2)}, v8 offset:{2048*i}")
        a(f"ds_read_b64_tr_b16 {vr(WG_+8*i+2,2)}, v8 offset:{2048*i + 256}")
        a(f"ds_read_b64_tr_b16 {vr(WG_+8*i+4,2)}, v7 offset:{2048*i}")
        a(f"ds_read_b64_tr_b16 {vr(WG_+8*i+6,2)}, v7 offset:{2048*i + 256}")
    if DNP == "k": dn_dma()
    a.label("T_NW")
    def dn_tr(v):
        for i in range(5):
            a(f"ds_read_b64_tr_b16 {vr(WD_+4*i,2)}, v{v} offset:{256*i}")
            a(f"ds_read_b64_tr_b16 {vr(WD_+4*i+2,2)}, v{v} offset:{256*i + 4608}")
    def k_issue():
        for i in range(2): a(f"global_load_dwordx4 {vr(KK+4*i,4)}, v6, {P(sWS)} offset:{1024*i} sc1")
    a(f"""
    v_and_b32 v4, 3, v2
    v_lshlrev_b32 v4, 3, v4
    s_lshl_b32 s77, s3, 2
    s_add_u32 s77, s77, {L_LIST}
    v_lshlrev_b32 v5, 5, v2
    s_mov_b32 s41, {SPIN}
    """)
    spin(a, C_KP, 1)
    stamp(a, 22)
    if int(E("F_DSK", "1")): a("s_cmp_lt_u32 s2, 144\ns_cbranch_scc1 T_KP1")
    a(f"T_KP:\ns_sleep {BO_K}\nT_KP1:")
    k_issue()
    a(f"""
    s_waitcnt vmcnt(0)
    s_mov_b64 exec, -1
    v_xor_b32 v64, s{sTAG}, v{KK+1}
    v_xor_b32 v65, s{sTAG}, v{KK+3}
    v_xor_b32 v66, s{sTAG}, v{KK+5}
    v_xor_b32 v67, s{sTAG}, v{KK+7}
    v_or3_b32 v64, v64, v65, v66
    v_or_b32 v64, v64, v67
    v_cmp_ne_u32 vcc, 0, v64
    s_cbranch_vccz T_KD
    s_mov_b64 exec, vcc
    s_sub_u32 s41, s41, 1
    s_cbranch_scc0 T_KP
    s_mov_b64 exec, -1
    T_KD:
    """)
    stamp(a, 23)
    a(f"""
    v_max_u32 v64, v{KK}, v{KK+4}
    v_max_u32 v65, v{KK+2}, v{KK+6}
    s_nop 0
    v_max_u32 v64, v64, v64 row_shr:4 {DPP_ALL} bound_ctrl:0
    v_max_u32 v65, v65, v65 row_shr:4 {DPP_ALL} bound_ctrl:0
    s_nop 0
    v_max_u32 v64, v64, v64 row_shr:8 {DPP_ALL} bound_ctrl:0
    v_max_u32 v65, v65, v65 row_shr:8 {DPP_ALL} bound_ctrl:0
    s_mov_b32 exec_lo, 0xf000f000
    s_mov_b32 exec_hi, 0xf000f000
    ds_max_u32 v4, v64 offset:{L_CNT + C_MX}
    ds_max_u32 v4, v65 offset:{L_CNT + C_MX + 4}
    s_mov_b64 exec, -1
    s_waitcnt lgkmcnt(0)
    s_barrier                          ; B10
    ds_read_b128 v[64:67], v{VZ} offset:{L_CNT + C_MX}
    ds_read_b128 v[68:71], v{VZ} offset:{L_CNT + C_MX + 16}
    s_waitcnt lgkmcnt(0)
    v_min3_u32 v64, v64, v65, v66
    v_min3_u32 v68, v68, v69, v70
    v_min3_u32 v64, v64, v67, v71
    v_min_u32 v64, v64, v68
    s_mov_b32 s74, 0
    """)
    for i in range(4): a(f"v_cmp_ge_u32 s[{66+2*i}:{67+2*i}], v{KK+2*i}, v64")
    for i in range(4):
        l = a.newlabel("CK")
        a(f"""
        s_mov_b64 exec, s[{66+2*i}:{67+2*i}]
        s_cbranch_execz {l}
        v_mov_b32 v68, s74
        v_mbcnt_lo_u32_b32 v68, s{66+2*i}, v68
        v_mbcnt_hi_u32_b32 v68, s{67+2*i}, v68
        s_bcnt1_i32_b64 s75, exec
        v_lshl_add_u32 v68, v68, 5, s77
        s_add_u32 s74, s74, s75
        ds_write_b32 v68, v{KK+2*i}
        {l}:
        """)
    a(f"""
    s_mov_b64 exec, 1
    v_mov_b32 v65, s74
    ds_max_u32 v{VZ}, v65 offset:{L_CNT + C_N}
    s_mov_b64 exec, -1
    s_mov_b32 s{sOWN}, 0
    s_mov_b32 s76, 0
    s_waitcnt lgkmcnt(0)
    s_barrier                          ; B11
    ds_read_b32 v72, v{VZ} offset:{L_CNT + C_N}
    T_OUT:
    ds_read_b128 v[64:67], v5 offset:{L_LIST}
    ds_read_b128 v[68:71], v5 offset:{L_LIST + 16}
    v_add_u32 v5, 2048, v5
    s_add_u32 s76, s76, 64
    s_waitcnt lgkmcnt(1)
    v_readfirstlane_b32 s74, v72
    """)
    for i in range(4): a(f"v_cmp_lt_u32 s[{66+2*i}:{67+2*i}], s{sKEY}, v{64+i}")
    a("s_waitcnt lgkmcnt(0)")
    for i in range(4): a(f"v_cmp_lt_u32 s[{80+2*i}:{81+2*i}], s{sKEY}, v{68+i}")
    for i, r in enumerate((66, 68, 70, 72, 80, 82, 84, 86)):
        a(f"s_bcnt1_i32_b64 s75, s[{r}:{r+1}]")
        a(f"s_add_u32 s{sOWN}, s{sOWN}, s75")
    a(f"""
    s_min_u32 s74, s74, 256
    s_cmp_lt_u32 s76, s74
    s_cbranch_scc1 T_OUT
    """)
    stamp(a, 24)
    a(f"""
    s_lshl_b32 s40, s2, 3
    s_add_u32 s40, s40, s3
    s_mul_i32 s40, s40, 1152
    v_mov_b32 v18, 0
    v_mov_b32 v19, 0
    s_cmp_lt_u32 s{sOWN}, 8
    s_cbranch_scc0 T_STO
    ; selected row: publish h2 and x1
    s_mul_i32 s40, s{sOWN}, 3200
    s_add_u32 s40, s40, {WS_ROW}
    v_lshl_add_u32 v4, v2, 4, s40
    v_mov_b32 v64, v{H2+3}
    v_mov_b32 v65, v{P1+3}
    v_lshl_or_b32 v66, v{P1+4}, 16, v{H2+4}
    v_mov_b32 v67, s{sTAG}
    v_mov_b32 v{H2+3}, s{sTAG}
    v_mov_b32 v{P1+3}, s{sTAG}
    v_mov_b32 v68, s{sKEY}
    v_mov_b32 v69, s{sTAG}
    v_mov_b32 v70, s{sKEY}
    v_mov_b32 v71, s{sTAG}
    """)
    for r_ in range(RREP):
        a(f"global_store_dwordx4 v4, {vr(H2,4)}, {P(sWS)} sc1")
        a(f"global_store_dwordx4 v4, v[64:67], {P(sWS)} offset:1024 sc1")
        a(f"global_store_dwordx4 v4, {vr(P1,4)}, {P(sWS)} offset:2048 sc1")
        a(f"s_mov_b64 exec, 0xff\nglobal_store_dwordx4 v4, v[68:71], {P(sWS)} offset:3072 sc1\ns_mov_b64 exec, -1")
        if r_ < RREP - 1: a("v_add_u32 v4, 25600, v4")
    a(f"""
    s_branch T_STD
    T_STO:
    v_lshl_add_u32 v18, v2, 4, s40
    v_lshl_add_u32 v19, v2, 1, s40
    {"s_cmp_lt_u32 s2, 144" if OLATE else ""}
    {"s_cbranch_scc1 T_STD" if OLATE else ""}
    global_store_dwordx4 v18, {vr(O,4)}, {P(sOUT)} {E('F_OST', '')}
    global_store_short v19, v{O+4}, {P(sOUT)} offset:1024 {E('F_OST', '')}
    T_STD:
    s_cmp_ge_u32 s2, 144
    s_cbranch_scc1 T_END
    s_mul_i32 s40, s3, 3200
    s_lshr_b32 s41, s2, 3
    s_and_b32 s41, s41, {RREP-1}
    s_mul_i32 s41, s41, 25600
    s_add_u32 s40, s40, s41
    s_add_u32 s40, s40, {WS_ROW}
    v_lshl_add_u32 v4, v2, 4, s40
    v_mov_b32 v22, s40
    s_lshl_b32 s40, s3, 2
    v_mov_b32 v23, s40
    s_mul_i32 s40, s3, {SR_P}
    s_add_u32 s40, s40, {L_SH}
    v_lshl_add_u32 v5, v2, 4, s40
    v_lshl_add_u32 v6, v2, 1, s40
    s_mov_b32 s41, {SPIN}
    """)
    if DNP == "r": dn_dma()
    a(f"""
    v_and_b32 v7, 7, v2
    v_mul_u32_u24 v17, 80, v7
    v_mul_u32_u24 v7, {SR_P}, v7
    v_and_b32 v8, 0x30, v2
    v_add_u32 v17, v17, v8
    s_lshl_b32 s40, s50, 6
    s_add_u32 s40, s40, {L_SH}
    v_add3_u32 v7, v7, v8, s40
    s_lshl_b32 s40, s3, 10
    s_add_u32 s40, s40, {L_GP}
    v_lshl_add_u32 v8, v2, 4, s40
    v_and_b32 v9, 1, v2
    v_lshlrev_b32 v9, 9, v9
    v_bfe_u32 v16, v2, 1, 4
    v_lshl_add_u32 v9, v16, 4, v9
    v_lshrrev_b32 v16, 5, v2
    v_lshl_add_u32 v9, v16, 10, v9
    s_lshr_b32 s40, s3, 2
    s_lshl_b32 s40, s40, 8
    s_and_b32 s51, s3, 3
    s_lshl_b32 s51, s51, 2
    s_add_u32 s40, s40, s51
    s_add_u32 s40, s40, {L_GP}
    v_add_u32 v9, s40, v9
    s_mul_i32 s40, s3, 80
    v_and_b32 v16, -2, v2
    v_add_u32 v16, s40, v16
    T_RP:
    s_sleep {BO_R}
    global_load_dwordx4 v[64:67], v4, {P(sWS)} sc1
    global_load_dwordx4 v[68:71], v4, {P(sWS)} offset:1024 sc1
    global_load_dwordx4 v[72:75], v4, {P(sWS)} offset:2048 sc1
    global_load_dwordx2 v[80:81], v22, {P(sWS)} offset:3072 sc1
    s_waitcnt vmcnt(0)
    v_xor_b32 v76, s{sTAG}, v67
    v_xor_b32 v77, s{sTAG}, v71
    v_xor_b32 v78, s{sTAG}, v75
    v_xor_b32 v79, s{sTAG}, v81
    v_or3_b32 v76, v76, v77, v78
    v_or_b32 v76, v76, v79
    v_cmp_ne_u32 vcc, 0, v76
    s_cbranch_vccz T_RD
    s_sub_u32 s41, s41, 1
    s_cbranch_scc0 T_RP
    T_RD:
    v_mov_b32 v67, v68
    v_mov_b32 v75, v69
    ds_write_b128 v5, v[64:67]
    ds_write_b16 v6, v70 offset:1024
    ds_write_b128 v5, v[72:75] offset:{L_SX - L_SH}
    ds_write_b16_d16_hi v6, v70 offset:{L_SX - L_SH + 1024}
    ds_write_b32 v23, v80 offset:{L_CNT + C_SEL}
    s_waitcnt lgkmcnt(3)
    """)
    stamp(a, 25)
    if OLATE: a(f"""
    s_cmp_lt_u32 s{sOWN}, 8
    s_cbranch_scc1 T_NO2
    global_store_dwordx4 v18, {vr(O,4)}, {P(sOUT)} {E('F_OST', '')}
    global_store_short v19, v{O+4}, {P(sOUT)} offset:1024 {E('F_OST', '')}
    T_NO2:
    """)
    a("s_barrier                          ; B12")
    AF = 64; AG, AU = 84, 88
    for i in range(5): a(f"ds_read_b128 {vr(AF+4*i,4)}, v7 offset:{64*i}")
    for i in range(5):
        if i == 4: a("s_cmp_ge_u32 s3, 4"); a("s_cbranch_scc1 T_G4")
        a(f"s_waitcnt lgkmcnt({4-i})")
        a(f"v_mfma_f32_16x16x32_bf16 {vr(AG,4)}, {vr(AF+4*i,4)}, {vr(WG_+8*i,4)}, {'0' if i == 0 else vr(AG,4)}")
        a(f"v_mfma_f32_16x16x32_bf16 {vr(AU,4)}, {vr(AF+4*i,4)}, {vr(WG_+8*i+4,4)}, {'0' if i == 0 else vr(AU,4)}")
    a(f"""
    T_G4:
    v_lshrrev_b32 v18, 5, v2
    v_lshlrev_b32 v18, 5, v18
    v_bfe_u32 v19, v2, 3, 2
    v_add_u32 v18, v18, v19
    s_lshl_b32 s40, s3, 2
    v_add_u32 v18, s40, v18
    v_mul_u32_u24 v18, {144*128}, v18
    s_mov_b32 exec_hi, 0
    ds_write_b128 v8, {vr(AG,4)}
    ds_write_b128 v8, {vr(AU,4)} offset:512
    s_mov_b64 exec, -1
    """)
    dn_tr(21)
    a(f"""
    v_and_b32 v19, 7, v2
    v_lshl_add_u32 v18, v19, 4, v18
    s_lshl_b32 s40, s2, 7
    s_add_u32 s40, s40, {WS_PT}
    v_add_u32 v18, s40, v18
    v_add_u32 v19, {64*144*128}, v18
    v_add_u32 v20, {128*144*128}, v18
    s_waitcnt lgkmcnt(10)
    s_barrier                          ; B13
    ds_read_b32 v64, v9
    ds_read_b32 v65, v9 offset:2048
    ds_read_b32 v66, v9 offset:4096
    ds_read_b32 v67, v9 offset:6144
    """)
    NX = 0
    a(f"""
    s_mov_b32 s52, 0x05030201
    s_mov_b32 s53, 0x06050302
    s_mov_b32 s54, 0x07060503
    v_mov_b32 v71, s{sTAG}
    v_mov_b32 v75, s{sTAG}
    v_mov_b32 v79, s{sTAG}
    s_waitcnt lgkmcnt({2 + NX})
    v_add_f32 v64, v64, v65
    s_waitcnt lgkmcnt({NX})
    v_add_f32 v66, v66, v67
    v_add_f32 v64, v64, v66
    v_cvt_pk_bf16_f32 v64, v64, v64
    v_lshlrev_b32 v64, 16, v64
    v_mul_f32 v65, {fbits(-LOG2E)}, v64
    v_exp_f32 v65, v65
    s_nop 0
    v_add_f32 v65, 1.0, v65
    v_rcp_f32 v65, v65
    s_nop 0
    v_mul_f32 v65, v64, v65
    v_cvt_pk_bf16_f32 v65, v65, v65
    v_lshlrev_b32 v65, 16, v65
    s_nop 0
    v_mul_f32 v65, v64, v65 quad_perm:[1,1,3,3] {DPP_ALL}
    v_cvt_pk_bf16_f32 v65, v65, v65
    s_mov_b32 exec_lo, 0x55555555
    s_mov_b32 exec_hi, 0x55555555
    ds_write_b16 v16, v65 offset:{L_ACT}
    s_mov_b64 exec, -1
    s_waitcnt lgkmcnt(0)
    s_barrier                          ; B14
    ds_read_b128 v[64:67], v17 offset:{L_ACT}
    s_waitcnt lgkmcnt(0)
    """)
    stamp(a, 26)
    DA = 80
    for i in range(5): a(f"v_mfma_f32_16x16x32_bf16 {vr(DA+4*i,4)}, v[64:67], {vr(WD_+4*i,4)}, 0")
    a(f"""
    s_mul_i32 s40, s2, {144*128}
    s_add_u32 s40, s40, {WS_PT}
    v_lshl_add_u32 v4, v0, 4, s40
    v_add_u32 v5, 8192, v4
    v_add_u32 v6, 16384, v4
    s_nop 0
    """)
    def p24(d, s_):
        a(f"v_perm_b32 v{d}, v{s_+1}, v{s_}, s52")
        a(f"v_perm_b32 v{d+1}, v{s_+2}, v{s_+1}, s53")
        a(f"v_perm_b32 v{d+2}, v{s_+3}, v{s_+2}, s54")
    for r_ in range(4): a(f"v_permlane32_swap_b32 v{DA+r_}, v{DA+4+r_}")
    p24(68, DA)
    a(f"global_store_dwordx4 v18, v[68:71], {P(sWS)} sc1")
    for r_ in range(4): a(f"v_permlane32_swap_b32 v{DA+8+r_}, v{DA+12+r_}")
    p24(72, DA+8)
    a(f"global_store_dwordx4 v19, v[72:75], {P(sWS)} sc1")
    a("s_cmp_ge_u32 s3, 4")
    a("s_cbranch_scc1 T_NS3")
    p24(76, DA+16)
    a(f"""
    s_mov_b32 exec_hi, 0
    global_store_dwordx4 v20, v[76:79], {P(sWS)} sc1
    s_mov_b64 exec, -1
    T_NS3:
    """)
    stamp(a, 27)
    a(f"""
    s_cmp_lg_u32 s3, 7
    s_cbranch_scc1 T_NF
    s_lshr_b32 s40, s2, 2
    s_lshl_b32 s40, s40, 4
    s_and_b32 s41, s2, 1
    s_lshl_b32 s41, s41, 3
    s_add_u32 s40, s40, s41
    v_and_b32 v24, 7, v2
    v_add_u32 v24, s40, v24
    v_lshlrev_b32 v24, 1, v24          ; 2d
    v_bfe_u32 v25, v2, 3, 2
    s_and_b32 s41, s2, 2
    s_lshl_b32 s41, s41, 1
    v_add_u32 v25, s41, v25            ; row
    v_lshlrev_b32 v26, 2, v25
    v_mul_u32_u24 v25, {SR_P}, v25
    v_add_u32 v25, v25, v24
    v_add_u32 v27, {L_PT + 2304}, v24
    ds_read_b32 v28, v26 offset:{L_CNT + C_SEL}
    ds_read_u16 v29, v25 offset:{L_SH}
    ds_read_u16 v30, v25 offset:{L_SX}
    ds_read_u16 v31, v27
    s_waitcnt lgkmcnt(0)
    v_and_b32 v32, 0xffff, v28
    v_sub_u32 v32, 0xffff, v32
    v_min_u32 v32, 2047, v32
    v_mul_u32_u24 v32, 1152, v32
    v_add_u32 v32, v32, v24
    v_ashrrev_i32 v33, 31, v28
    v_not_b32 v33, v33
    v_or_b32 v33, 0x80000000, v33
    v_xor_b32 v33, v33, v28
    v_and_b32 v33, 0xffff0000, v33     ; r
    v_mul_f32 v33, {fbits(-LOG2E)}, v33
    v_exp_f32 v33, v33
    v_lshlrev_b32 v29, 16, v29
    v_add_f32 v33, 1.0, v33
    v_rcp_f32 v33, v33
    v_lshlrev_b32 v30, 16, v30
    v_cvt_pk_bf16_f32 v33, v33, v33
    v_lshlrev_b32 v33, 16, v33
    v_lshlrev_b32 v31, 16, v31
    s_cmp_lg_u32 s2, 0
    s_cbranch_scc1 T_NF
    ; epoch update: every workgroup read the epoch before its first publication, which this workgroup has consumed
    v_mov_b32 v34, {WS_EPOCH}
    v_mov_b32 v35, s{sTAG}
    s_mov_b64 exec, 1
    global_store_dword v34, v35, {P(sWS)}
    s_mov_b64 exec, -1
    T_NF:
    s_mov_b32 s52, 0x0201000c
    s_mov_b32 s53, 0x0504030c
    s_mov_b32 s54, 0x0403020c
    s_mov_b32 s55, 0x0302010c
    v_mov_b32 v107, s{sTAG}
    v_mov_b32 v104, 0
    v_mov_b32 v105, 0
    v_mov_b32 v106, 0
    v_bfe_u32 v7, v2, 4, 2
    v_lshlrev_b32 v7, 5, v7
    v_and_b32 v8, 7, v2
    v_lshl_add_u32 v7, v8, 2, v7
    s_lshl_b32 s40, s3, 7
    v_add_u32 v7, s40, v7
    s_mov_b32 s41, {SPIN}
    s_waitcnt vmcnt(0)
    T_GP:
    s_sleep {BO_G}
    global_load_dwordx4 v[96:99], v4, {P(sWS)} sc1
    global_load_dwordx4 v[100:103], v5, {P(sWS)} sc1
    s_cmp_ge_u32 s3, 2
    s_cbranch_scc1 T_G3
    global_load_dwordx4 v[104:107], v6, {P(sWS)} sc1
    T_G3:
    s_waitcnt vmcnt(0)
    s_mov_b64 exec, -1
    v_xor_b32 v64, s{sTAG}, v99
    v_xor_b32 v65, s{sTAG}, v103
    v_xor_b32 v66, s{sTAG}, v107
    v_or3_b32 v64, v64, v65, v66
    v_cmp_ne_u32 vcc, 0, v64
    s_cbranch_vccz T_GD
    s_mov_b64 exec, vcc
    s_sub_u32 s41, s41, 1
    s_cbranch_scc0 T_GP
    s_mov_b64 exec, -1
    T_GD:
    """)
    stamp(a, 28)
    for n in range(3):
        g = 96 + 4*n; d = 64 + 4*n
        a(f"v_perm_b32 v{d}, v{g}, v{g}, s52")
        a(f"v_perm_b32 v{d+1}, v{g+1}, v{g}, s53")
        a(f"v_perm_b32 v{d+2}, v{g+2}, v{g+1}, s54")
        a(f"v_perm_b32 v{d+3}, v{g+2}, v{g+2}, s55")
    for e in range(4): a(f"v_add_f32 v{64+e}, v{64+e}, v{68+e}")
    for e in range(4): a(f"v_add_f32 v{64+e}, v{64+e}, v{72+e}")
    a(f"""
    s_nop 1
    v_permlane32_swap_b32 v64, v66
    v_permlane32_swap_b32 v65, v67
    v_add_f32 v64, v64, v66
    v_add_f32 v65, v65, v67
    s_nop 1
    v_permlane16_swap_b32 v64, v65
    v_add_f32 v64, v64, v65
    s_nop 1
    v_add_f32 v64, v64, v64 row_shl:8 row_mask:0xf bank_mask:0x3
    s_mov_b32 exec_lo, 0x00ff00ff
    s_mov_b32 exec_hi, 0x00ff00ff
    ds_write_b32 v7, v64 offset:{L_RED}
    s_mov_b64 exec, -1
    v_lshlrev_b32 v8, 2, v2
    s_waitcnt lgkmcnt(0)
    s_barrier                          ; B15
    s_cmp_lg_u32 s3, 7
    s_cbranch_scc1 T_END
    """)
    for w in range(8): a(f"ds_read_b32 v{64+w}, v8 offset:{L_RED + 128*w}")
    a("s_waitcnt lgkmcnt(4)")
    a("v_add_f32 v64, v64, v65"); a("v_add_f32 v66, v66, v67")
    a("s_waitcnt lgkmcnt(0)")
    a("v_add_f32 v68, v68, v69"); a("v_add_f32 v70, v70, v71")
    a("v_add_f32 v64, v64, v66"); a("v_add_f32 v68, v68, v70"); a("v_add_f32 v64, v64, v68")
    rnd1(a, 64); a("v_mul_f32 v64, v64, v33")
    rnd1(a, 64); a("v_add_f32 v64, v64, v29")
    rnd1(a, 64); a("v_mul_f32 v64, v64, v31")
    rnd1(a, 64); a("v_add_f32 v64, v64, v30")
    a(f"""
    v_cvt_pk_bf16_f32 v64, v64, v64
    s_mov_b32 exec_hi, 0
    global_store_short v32, v64, {P(sOUT)}
    """)
    if int(E("F_DBG", "0")): a(f"""
    s_cmp_ge_u32 s2, 4
    s_cbranch_scc1 T_END
    v_lshlrev_b32 v26, 0, v26
    v_add_u32 v26, {WS_SEL}, v26
    global_store_dword v26, v28, {P(sWS)}
    """)
    a.label("T_END")
    diag_end(a)
    stamp_flush(a, 29, 0)
    a.label("M_END")
    a("s_endpgm")
```

```python
import sys, os
sys.path.insert(0, os.path.join(os.path.dirname(os.path.abspath(__file__)), "..", "gen"))
from asmlib import *
import numpy as np
E = os.environ.get
KA_X, KA_LAR, KA_AIM, KA_CR, KA_CI, KA_LDT, KA_DSK, KA_BX, KA_WR, KA_WG, KA_WU, KA_WD, KA_C, KA_WMOD, KA_OUT, KA_DBG, KA_WS = [8*i for i in range(17)]
sX, sLAR, sAIM, sCR, sCI, sLDT, sDSK = 4, 6, 8, 10, 12, 14, 16
sWR, sWG, sWU, sWD, sC, sWMOD, sOUT, sDBG, sWS = 20, 22, 24, 26, 28, 30, 32, 34, 36
def P(s): return f"s[{s}:{s+1}]"
LOG2E = 1.4426950408889634
L_HI = float(np.float32(LOG2E)); L_LO = float(np.float32(LOG2E - L_HI))
LN2 = 0.6931471805599453
INV2PI = 0.15915494309189535
P_HI = float(np.float32(INV2PI)); P_LO = float(np.float32(INV2PI - P_HI))
WS_P4 = 0x2000; WS_OD = 0x5400; WS_SEL = 0xC000; WS_KL = 0x20000
WS_MP = 0x80000; WS_XN = 0x100000; WS_EPOCH = 0x500000
WS_Z = 0x900000; WS_H2 = 0xC00000; WS_PART = 0xF00000
WS_ST = 0x1400000
WS_DUMP = 0x1800000

class Regs:
    def __init__(self, lo, hi):
        self.free = set(range(lo, hi)); self.hi = lo
    def get(self, n=1, align=None):
        align = align or (1 if n == 1 else 2)
        for b in sorted(self.free):
            if b % align == 0 and all((b + i) in self.free for i in range(n)):
                for i in range(n): self.free.discard(b + i)
                self.hi = max(self.hi, b + n)
                return b
        raise RuntimeError("out of regs")
    def put(self, b, n=1):
        for i in range(n):
            assert (b + i) not in self.free
            self.free.add(b + i)

class LdsQ:
    def __init__(self, a):
        self.a = a; self.issued = 0; self.done = 0
    def issue(self, text):
        self.a(text); self.issued += 1
        return self.issued - 1
    def need(self, op):
        if op < self.done: return False
        n = self.issued - op - 1
        self.a(f"s_waitcnt lgkmcnt({min(n, 15)})")
        self.done = op + 1 if n <= 15 else self.issued - 15
        return True
    def drain(self):
        if self.done < self.issued:
            self.a("s_waitcnt lgkmcnt(0)"); self.done = self.issued

def cmul(a, d, x, y):
    a(f"v_pk_mul_f32 {vr(d,2)}, {vr(x,2)}, {vr(y,2)} op_sel_hi:[1,0]")
    a(f"v_pk_fma_f32 {vr(d,2)}, {vr(x,2)}, {vr(y,2)}, {vr(d,2)} op_sel:[1,1,0] op_sel_hi:[0,1,1] neg_lo:[1,0,0]")

def exp_bf16(a, dst, x, t0, t1, sL, sLlo, sLn2):
    a(f"v_mul_f32 v{t0}, s{sL}, v{x}")
    a(f"v_fma_f32 v{t1}, v{x}, s{sL}, -v{t0}")
    a(f"v_fma_f32 v{t1}, v{x}, s{sLlo}, v{t1}")
    a(f"v_exp_f32 v{t0}, v{t0}")
    a(f"v_mul_f32 v{t1}, s{sLn2}, v{t1}")
    a(f"v_fma_f32 v{t0}, v{t0}, v{t1}, v{t0}")
    a(f"v_cvt_pk_bf16_f32 v{t0}, v{t0}, v{t0}")
    a(f"v_lshlrev_b32 v{dst}, 16, v{t0}")

def wave_max_u32_to_sgpr(a, v, s):
    for sh in (1, 2, 4, 8):
        a("s_nop 1")
        a(f"v_max_u32 v{v}, v{v}, v{v} row_shr:{sh} {DPP_ALL} bound_ctrl:0")
    a("s_nop 1")
    a(f"v_max_u32 v{v}, v{v}, v{v} row_bcast:15 row_mask:0xa bank_mask:0xf")
    a("s_nop 1")
    a(f"v_max_u32 v{v}, v{v}, v{v} row_bcast:31 row_mask:0xc bank_mask:0xf")
    a("s_nop 1")
    a(f"v_readlane_b32 s{s}, v{v}, 63")

def unpk(a, lo, hi, src):
    a(f"v_lshlrev_b32 v{lo}, 16, v{src}")
    a(f"v_and_b32 v{hi}, 0xffff0000, v{src}")
def rnd_pairs(a, Pp):
    for p in Pp: a(f"v_cvt_pk_bf16_f32 v{p+1}, v{p}, v{p+1}")
    for p in Pp: unpk(a, p, p+1, p+1)
def rnd1(a, v):
    a(f"v_cvt_pk_bf16_f32 v{v}, v{v}, v{v}")
    a(f"v_lshlrev_b32 v{v}, 16, v{v}")

ST = int(E("ST", "0"))
VST = 255
DIAG = int(E("DIAG", "-1"))
def diag_end(a):
    if DIAG < 0: return
    a("""
    s_cmp_lg_u32 s2, 0
    s_cbranch_scc1 DG_E
    s_cmp_lg_u32 s3, 7
    s_cbranch_scc1 DG_E
    DG_L:
    s_memrealtime s[92:93]
    s_waitcnt lgkmcnt(0)
    s_sub_u32 s92, s92, s90
    s_cmp_lt_u32 s92, 3000
    s_cbranch_scc1 DG_L
    DG_E:
    """)
def stamp(a, n):
    if n == DIAG:
        a("s_waitcnt lgkmcnt(0)")
        a("s_memrealtime s[90:91]")
        a("s_waitcnt lgkmcnt(0)")
    if not ST: return
    if E("STL") and n not in [0, 29] + [int(x) for x in E("STL").split(",")]: return
    a("s_waitcnt lgkmcnt(0)")
    a("s_memrealtime s[98:99]")
    a("s_waitcnt lgkmcnt(0)")
    a(f"v_writelane_b32 v{VST}, s98, {n}")
    if not E("STC"): return
    a("s_memtime s[98:99]")
    a("s_waitcnt lgkmcnt(0)")
    a(f"v_writelane_b32 v{VST}, s98, {32 + n}")
ST_LAST = [-1]
def stamp_flush(a, n, kid=0):
    if not ST: return
    a("s_waitcnt vmcnt(0)")
    ST_LAST[0] = n
    stamp(a, n)
    a(f"""
    s_load_dwordx2 s[96:97], s[0:1], {KA_WS}
    s_mov_b64 exec, -1
    s_lshl_b32 s95, s2, 4
    s_add_u32 s95, s95, s3
    s_lshl_b32 s95, s95, 8
    s_add_u32 s95, s95, {WS_ST + kid*0x100000}
    v_and_b32 v254, 63, v0
    v_lshl_add_u32 v254, v254, 2, s95
    s_waitcnt lgkmcnt(0)
    global_store_dword v254, v{VST}, s[96:97]
    """)
```

```python
from nc import *
import re
KG_PITCH = 272
KG_STAGE = 16 * KG_PITCH
L_PRM = 0
L_ZERO = 512
L_STG = 1536
L_PART = 1536
L_LNR = L_STG + 25600
L_CB = L_LNR + 4 * 2592
KC_P = 4160
L_KC2 = L_CB + 1024
L_STG2 = L_KC2
L_HB = L_KC2 + 4 * KC_P
HB_P = 4608
L_TAB = 69120
TP = 2816
L_KC = L_TAB + 6 * TP
L_DN = L_KC + 8 * KC_P
L_PT = L_DN + 36864
M_LDS = L_PT + 4608
L_GU = L_DN - 73728
L_G, L_U, L_D2 = L_DN, L_GU, L_GU + 36864
assert L_KC % 64 == 0 and L_KC2 % 64 == 0 and L_HB + 3 * HB_P <= L_TAB
ZR_P = 1056
L_ZR = 1536
L_ZC = L_ZR + 8 * ZR_P
L_LIST = L_ZC + 1280
SR_P = 1168
L_SH = L_LIST + 8448
L_SX = L_SH + 8 * SR_P
L_GP = L_ZR
L_ACT = L_SX + 8 * SR_P
L_RED = L_ACT + 640
assert L_RED + 1024 <= L_GU
WS_Z2 = 0x600000; WS_KEY = 0x10000; WS_ROW = 0x60000; WS_PT16 = 0x70000; WS_PF = 0x72000; WS_PT = 0xA00000; WS_CNT = 0xC90000; WS_EPOCH = 0xD00000
DNAT = E("F_DN", "ln2")
LATE_DN = DNAT in ("nd", "b9s", "b7s", "dir", "kp")
BO_Z, BO_K, BO_R, BO_G = [int(x) for x in E("BO", "10,14,14,1").split(",")]
HINT = E("HINT", "")
NREP = int(E("F_NREP", "8")); RREP = int(E("F_RREP", "1"))
NT = E("M_NT", "nt")
PNT = E("M_PNT", "")
XNT = E("M_XNT", "nt")
ZST = E("M_ZST", "")
SPIN = 1 << 16
BETA = float(E('BETA', '1.25'))
KST = int(E('KST', '0'))
W2LATE = int(E('M_W2LATE', '1'))
CPL = int(E('M_CPL', '10'))
DIRECT = {1, 8, 128, 1024}
sTAG, sD, sHH, sKS = 38, 42, 43, 44
sDAB, sDC, sLD = 46, 47, 48

L_CNT = L_PRM + 192
C_LN, C_TAG, C_TAB, C_K, C_H = 0, 4, 16, 32, 48
C_P, C_KEY, C_N, C_KP, C_PR = 52, 56, 60, 64, 80
C_MX, C_KEYS, C_SEL = 96, 128, 192
L_TAG = L_CNT + C_TAG
VZ, VONE = 248, 249
def signal(a, off, vaddr=None):
    a("s_mov_b64 exec, 1")
    a(f"ds_add_u32 v{vaddr or VZ}, v{VONE} offset:{L_CNT + off}")
    a("s_mov_b64 exec, -1")
def spin(a, off, n, vaddr=None, vt=251, st=94):
    l = a.newlabel("SP")
    a(f"""
    {l}:
    ds_read_b32 v{vt}, v{vaddr or VZ} offset:{L_CNT + off}
    s_waitcnt lgkmcnt(0)
    v_readfirstlane_b32 s{st}, v{vt}
    s_cmp_ge_u32 s{st}, {n}
    s_cbranch_scc0 {l}
    """)

def ln_stats(a, X, T, sX0, vC):
    D = T + 4
    a(f"v_readfirstlane_b32 s{sX0}, v{X}")
    a("s_nop 1")
    a(f"v_subrev_f32 v{D+8}, s{sX0}, v{X+8}")
    a(f"s_mov_b32 s{sX0+1}, s{sX0}")
    for i in range(4): a(f"v_pk_add_f32 {vr(D+2*i,2)}, {vr(X+2*i,2)}, s[{sX0}:{sX0+1}] neg_lo:[0,1] neg_hi:[0,1]")
    a(f"v_pk_mul_f32 {vr(T+2,2)}, {vr(D,2)}, {vr(D,2)}")
    a(f"v_pk_add_f32 {vr(T,2)}, {vr(D,2)}, {vr(D+2,2)}")
    a(f"v_pk_fma_f32 {vr(T+2,2)}, {vr(D+2,2)}, {vr(D+2,2)}, {vr(T+2,2)}")
    a(f"v_pk_add_f32 {vr(D,2)}, {vr(D+4,2)}, {vr(D+6,2)}")
    a(f"v_pk_fma_f32 {vr(T+2,2)}, {vr(D+4,2)}, {vr(D+4,2)}, {vr(T+2,2)}")
    a(f"v_pk_add_f32 {vr(T,2)}, {vr(T,2)}, {vr(D,2)}")
    a(f"v_pk_fma_f32 {vr(T+2,2)}, {vr(D+6,2)}, {vr(D+6,2)}, {vr(T+2,2)}")
    a(f"v_add_f32 v{T}, v{T}, v{T+1}")
    a(f"v_fmac_f32 v{T+2}, v{D+8}, v{D+8}")
    a(f"v_add_f32 v{T}, v{T}, v{D+8}")
    a(f"v_add_f32 v{T+2}, v{T+2}, v{T+3}")
    a("s_nop 0")
    for m in [f"row_shr:1 {DPP_ALL} bound_ctrl:0", f"row_shr:2 {DPP_ALL} bound_ctrl:0", f"row_shr:4 {DPP_ALL} bound_ctrl:0", f"row_shr:8 {DPP_ALL} bound_ctrl:0",
              "row_bcast:15 row_mask:0xa bank_mask:0xf", "row_bcast:31 row_mask:0xc bank_mask:0xf"]:
        a(f"v_add_f32 v{T}, v{T}, v{T} {m}")
        a(f"v_add_f32 v{T+2}, v{T+2}, v{T+2} {m}")
        a("s_nop 0")
    a(f"""
    v_readlane_b32 s{sX0+2}, v{T}, 63
    v_readlane_b32 s{sX0+3}, v{T+2}, 63
    s_nop 0
    v_mul_f32 v{T}, s{sX0+2}, v{vC}
    v_mul_f32 v{T+1}, s{sX0+3}, v{vC}
    v_fma_f32 v{T+1}, -v{T}, v{T}, v{T+1}
    v_add_f32 v{T}, s{sX0}, v{T}
    v_max_f32 v{T+1}, 0, v{T+1}
    v_cvt_pk_bf16_f32 v{T+1}, v{T}, v{T+1}
    v_lshlrev_b32 v{T}, 16, v{T+1}
    v_and_b32 v{T+1}, 0xffff0000, v{T+1}
    v_add_f32 v{T+1}, {fbits(1e-5)}, v{T+1}
    v_cvt_pk_bf16_f32 v{T+1}, v{T+1}, v{T+1}
    v_lshlrev_b32 v{T+1}, 16, v{T+1}
    v_sqrt_f32 v{T+1}, v{T+1}
    """)
    a(f"v_sub_f32 v{D+8}, v{X+8}, v{T}")
    for i in range(4): a(f"v_pk_add_f32 {vr(D+2*i,2)}, {vr(X+2*i,2)}, {vr(T,2)} op_sel_hi:[1,0] neg_lo:[0,1] neg_hi:[0,1]")
    a(f"""
    v_cvt_pk_bf16_f32 v{T+1}, v{T+1}, v{T+1}
    v_lshlrev_b32 v{T+1}, 16, v{T+1}
    v_rcp_f32 v{T+1}, v{T+1}
    """)
    rnd_pairs(a, [D, D+2, D+4, D+6]); rnd1(a, D+8)
    for i in range(4): a(f"v_pk_mul_f32 {vr(D+2*i,2)}, {vr(D+2*i,2)}, {vr(T,2)} op_sel:[0,1] op_sel_hi:[1,1]")
    a(f"v_mul_f32 v{D+8}, v{D+8}, v{T+1}")
    return D


VFA, VT0, VT1, VT2 = 210, 211, 212, 213
VE0, VE1, VE2, VE3, VE4, VC0, VC1, VC2, VED = 200, 201, 202, 203, 204, 205, 206, 207, 208
XG = 224; VMP = 100; VD = 243; VMA = 240; VXA = 252
sSH = 48
def kgen_setup(a):
    a(f"""
    s_mul_i32 s50, s3, {KG_STAGE}
    s_add_u32 s51, s50, {L_STG2 - 4*KG_STAGE}
    s_add_u32 s50, s50, {L_STG}
    s_cmp_ge_u32 s3, 4
    s_cselect_b32 s50, s51, s50
    s_mov_b32 m0, s50
    v_mul_u32_u24 v{VFA}, {KG_PITCH}, v10
    v_lshl_add_u32 v{VFA}, v11, 4, v{VFA}
    v_add_u32 v{VFA}, s50, v{VFA}
    s_mul_i32 s61, s3, {TP}
    s_add_u32 s61, s61, {L_TAB}          ; own partial table
    v_lshrrev_b32 v12, 1, v11
    v_lshlrev_b32 v{VT0}, 9, v12
    v_and_b32 v13, 1, v11
    v_lshl_add_u32 v{VT0}, v13, 4, v{VT0}
    v_lshl_add_u32 v{VT0}, v10, 5, v{VT0}
    v_add_u32 v{VT0}, s61, v{VT0}
    ; tile1: idx = 256 + 64q + (q<2 ? 4j : 2j), second pair at +(q<2 ? 2 : 32)
    v_sub_u32 v13, 4, v12
    v_lshlrev_b32 v13, v13, v10
    v_lshl_add_u32 v13, v11, 8, v13
    v_add_u32 v13, s61, v13
    v_add_u32 v{VT1}, 1024, v13
    v_mul_u32_u24 v12, 120, v12
    v_add3_u32 v{VT1+3}, v{VT1}, v12, 8
    v_lshlrev_b32 v{VT2}, 8, v11
    v_lshl_add_u32 v{VT2}, v10, 2, v{VT2}
    v_add_u32 v{VT2}, s61, v{VT2}
    ; expansion
    s_mul_i32 s60, s41, {2*TP}
    s_add_u32 s60, s60, {L_TAB}          ; channel table pair
    v_mov_b32 v{VC0}, s60
    v_add_u32 v{VC1}, -4, v{VC0}
    v_add_u32 v{VC2}, -8, v{VC0}
    v_sub_u32 v12, 63, v2                ; L
    s_lshl_b32 s51, s{sHH}, 8
    s_sub_u32 s51, s60, s51
    s_add_u32 s51, s51, {4*576}
    v_lshl_add_u32 v{VE0}, v12, 2, s51
    v_add_u32 v{VE1}, 4, v{VE0}
    s_add_u32 s51, s60, {4*384}
    v_lshl_add_u32 v{VE2}, v12, 3, s51
    v_add_u32 v{VE3}, 4, v{VE2}
    v_add_u32 v{VE4}, 8, v{VE2}
    v_lshlrev_b32 v13, 5, v12
    v_lshlrev_b32 v12, 4, v12
    v_add_u32 v12, 512, v12
    v_min_u32 v12, v12, v13
    v_add_u32 v12, s60, v12
    s_cmp_eq_u32 s{sHH}, 0
    s_cselect_b64 vcc, -1, 0
    s_mul_i32 s51, s41, {4*KC_P}
    s_add_u32 s51, s51, {L_KC}
    s_cmp_eq_u32 s41, 2
    s_cselect_b32 s51, {L_KC2}, s51
    v_cndmask_b32 v{VE2}, v{VE2}, v12, vcc
    v_lshrrev_b32 v12, 1, v2
    v_mul_u32_u24 v12, {KC_P}, v12
    v_and_b32 v13, 1, v2
    v_lshl_add_u32 v12, v13, 4, v12
    v_add_u32 v{VT1+2}, s51, v12
    v_lshl_add_u32 v{VED}, v2, 4, s51
    s_lshl_b32 s51, s41, 2
    v_mov_b32 v{VED+1}, s51
    s_lshl_b32 s{sSH}, s{sHH}, 4
    s_sub_u32 s{sSH}, 16, s{sSH}
    s_mov_b32 s52, {fbits(L_HI)}
    s_mov_b32 s53, {fbits(L_LO)}
    s_mov_b32 s54, {fbits(LN2)}
    s_mov_b32 s55, {fbits(P_HI)}
    s_mov_b32 s56, {fbits(P_LO)}
    s_mov_b32 s58, {fbits(BETA)}
    """)

def gen_kgen(a, cp, hooks):
    R = Regs(56, 200)
    AR, BH, CR, CI, DT, T0, T1, BL, VE = 40, 41, 42, 43, 44, 45, 46, 47, 48
    if cp: a(f"""
    s_waitcnt vmcnt({cp})
    s_cmp_eq_u32 s3, 3
    s_cbranch_scc1 KG_W1
    """)
    if DNAT == "t0": a("s_waitcnt vmcnt(1)\ns_cmp_lt_u32 s3, 3\ns_cbranch_scc1 KG_W1")
    a(f"s_waitcnt vmcnt({max(cp-1, 0)})")
    a.label("KG_W1")
    stamp(a, 13)
    hooks.get("p", lambda: None)()
    a(f"v_lshlrev_b32 v{DT}, 16, v{DT}")
    a(f"v_lshlrev_b32 v{AR}, s{sSH}, v{AR}")
    a(f"v_lshlrev_b32 v{BH}, s{sSH}, v{BH}")
    exp_bf16(a, DT, DT, T0, T1, 52, 53, 54)
    a(f"v_and_b32 v{AR}, 0xffff0000, v{AR}")
    a(f"v_and_b32 v{BH}, 0xffff0000, v{BH}")
    exp_bf16(a, AR, AR, T0, T1, 52, 53, 54)
    a(f"""
    v_mul_f32 v{AR}, v{AR}, v{DT}
    v_mul_f32 v{T0}, v{BH}, v{DT}
    v_mul_f32 v{AR}, s52, v{AR}
    v_sub_f32 v{AR}, 0, v{AR}
    v_mul_f32 v{BH}, s55, v{T0}
    v_fma_f32 v{BL}, v{T0}, s55, -v{BH}
    v_fma_f32 v{BL}, v{T0}, s56, v{BL}
    v_and_b32 v{VE}, 0x7fff7fff, v{CR}
    v_and_b32 v{T1}, 0x7fff7fff, v{CI}
    v_pk_max_u16 v{VE}, v{VE}, v{T1}
    v_lshlrev_b32 v{T1}, 16, v{VE}
    v_max_u32 v{VE}, v{VE}, v{T1}
    """)
    def anchor(Pp):
        d = R.get(2); t = R.get(2)
        pc = fbits(float(Pp)) if Pp not in (1, 2, 4) else f"{Pp}.0"
        a(f"v_mul_f32 v{t}, {pc}, v{AR}")
        a(f"v_mul_f32 v{t+1}, {pc}, v{BH}")
        a(f"v_exp_f32 v{t}, v{t}")
        a(f"v_fract_f32 v{t+1}, v{t+1}")
        a(f"v_fmamk_f32 v{t+1}, v{BL}, {fbits(float(Pp))}, v{t+1}")
        a(f"v_cos_f32 v{d}, v{t+1}")
        a(f"v_sin_f32 v{d+1}, v{t+1}")
        a("s_nop 0")
        a(f"v_pk_mul_f32 {vr(d,2)}, {vr(d,2)}, {vr(t,2)} op_sel_hi:[1,0]")
        R.put(t, 2)
        return d
    def mul(x, y):
        d = R.get(2); cmul(a, d, x, y); return d
    def power(Pp, half):
        return anchor(Pp) if Pp in DIRECT else mul(half, half)
    NPK = 6
    PK = R.get(NPK, 2); pk = [0]
    Q = LdsQ(a); pending = []; rows_since = [0]; wq = []; late = []
    WB = int(E("KG_WB", "2"))
    def flush_w():
        while wq: Q.issue(wq.pop(0))
    def put_row(row, x, neg):
        t = PK + (pk[0] % NPK); pk[0] += 1
        rows_since[0] += 1
        if pending and rows_since[0] >= 4: flush_mfma(1)
        if late and rows_since[0] >= 11: Q.issue(late.pop(0))
        a(f"v_cvt_pk_f16_f32 v{t}, v{x}, {'-' if neg else ''}v{x+1}")
        if len(wq) >= WB: flush_w()
        wq.append(f"ds_write_addtid_b32 v{t} offset:{row*KG_PITCH}")
    def flush_mfma(k):
        while k > 0 and pending:
            op, txt = pending.pop(0)
            Q.need(op); a(txt); k -= 1
    F = {}
    a(f"v_mov_b32 v{PK}, 0x3c00")
    Q.issue(f"ds_write_addtid_b32 v{PK} offset:0"); pk[0] = 1
    F[1] = anchor(8); put_row(1, F[1], False)
    dpp = [f"row_shr:1 {DPP_ALL} bound_ctrl:0", f"row_shr:2 {DPP_ALL} bound_ctrl:0", f"row_shr:4 {DPP_ALL} bound_ctrl:0", f"row_shr:8 {DPP_ALL} bound_ctrl:0",
           "row_bcast:15 row_mask:0xa bank_mask:0xf", "row_bcast:31 row_mask:0xc bank_mask:0xf"]
    def dstep():
        if dpp: a(f"v_max_u32 v{VE}, v{VE}, v{VE} {dpp.pop(0)}")
    F[2] = power(16, F[1]); put_row(2, F[2], False); dstep()
    F[3] = mul(F[1], F[2]); put_row(3, F[3], False); dstep()
    F[4] = power(32, F[2]); put_row(4, F[4], False); dstep()
    for j in (5, 6, 7):
        F[j] = mul(F[4], F[j-4]); put_row(j, F[j], False); dstep()
    F[8] = power(64, F[4]); put_row(8, F[8], False)
    a(f"v_readlane_b32 s57, v{VE}, 63")
    for j in range(9, 16):
        t = mul(F[8], F[j-8]); put_row(j, t, False); R.put(t, 2)
    for j in range(1, 9): R.put(F[j], 2)
    BF = R.get(16, 4)
    flush_w()
    if KST: stamp(a, 14)
    for k in range(4): Q.issue(f"ds_read_b128 {vr(BF+4*k,4)}, v{VFA} offset:{64*k}")
    Ee = {}
    Ee[1] = anchor(1)
    a(f"""
    s_and_b32 s57, s57, 0xffff0000
    v_frexp_exp_i32_f32 v{VE}, s57
    v_lshlrev_b32 v{CR}, s{sSH}, v{CR}
    v_lshlrev_b32 v{CI}, s{sSH}, v{CI}
    v_sub_u32 v{VE}, 6, v{VE}
    v_and_b32 v{CR}, 0xffff0000, v{CR}
    v_and_b32 v{CI}, 0xffff0000, v{CI}
    v_ldexp_f32 v{T0}, s58, v{VE}
    v_mul_f32 v{DT}, {fbits(1.0/BETA)}, v{DT}
    v_mul_f32 v{CR}, v{CR}, v{T0}
    v_mul_f32 v{CI}, v{CI}, v{T0}
    v_sub_u32 v{VE}, 1, v{VE}
    v_ldexp_f32 v{DT}, v{DT}, v{VE}
    """)
    Q.issue(f"ds_write_b32 v{VED+1}, v{DT} offset:{L_PRM + 5*16}")
    G = {0: CR}
    Ee[2] = power(2, Ee[1]); Ee[4] = power(4, Ee[2])
    Ee[128] = anchor(128)
    ACC = R.get(12, 4); AFR = R.get(16, 4)
    def tile_mfma(tau):
        flush_w(); flush_mfma(100)
        while late: Q.issue(late.pop(0))
        c = vr(ACC+4*tau, 4)
        for k in range(4):
            oh = Q.issue(f"ds_read_b128 {vr(AFR+4*k,4)}, v{VFA} offset:{64*k}")
            pending.append((oh, f"v_mfma_f32_16x16x32_f16 {c}, {vr(AFR+4*k,4)}, {vr(BF+4*k,4)}, {'0' if k == 0 else c}"))
        rows_since[0] = 0
        if tau == 0: late.append(f"ds_write_b128 v{VT0}, {c}")
    put_row(0, G[0], True)
    G[1] = mul(G[0], Ee[1]); put_row(1, G[1], True)
    G[2] = mul(G[0], Ee[2]); put_row(2, G[2], True)
    G[3] = mul(G[1], Ee[2]); put_row(3, G[3], True)
    G[4] = mul(G[0], Ee[4]); put_row(4, G[4], True)
    for r in (5, 6, 7):
        G[r] = mul(G[r-4], Ee[4]); put_row(r, G[r], True)
    R.put(Ee[1], 2); R.put(Ee[2], 2); R.put(Ee[4], 2)
    for r in range(8):
        G[128+r] = mul(G[r], Ee[128]); put_row(8+r, G[128+r], True)
        if r & 1:
            R.put(G[r], 2); R.put(G[128+r], 2)
    Ee[256] = power(256, Ee[128]); R.put(Ee[128], 2)
    if KST: stamp(a, 15)
    tile_mfma(0)
    Ee[512] = power(512, Ee[256])
    hooks.get("t0", lambda: None)()
    gl = [0, 4, 128, 132]
    for kk in range(2):
        for r in range(4):
            g = 128*kk + 2*r
            t = mul(G[g], Ee[256]); put_row(4*kk + r, t, True)
            if g in gl: G[256+g] = t
            else: R.put(t, 2); R.put(G[g], 2)
    R.put(Ee[256], 2)
    for r, g in enumerate(gl):
        G[512+g] = mul(G[g], Ee[512]); put_row(8+r, G[512+g], True)
        if g & 4: R.put(G[512+g], 2); R.put(G[g], 2)
    for r, g in enumerate(gl):
        G[768+g] = mul(G[256+g], Ee[512]); put_row(12+r, G[768+g], True)
        if g & 4: R.put(G[768+g], 2); R.put(G[256+g], 2)
    R.put(Ee[512], 2)
    if KST: stamp(a, 16)
    tile_mfma(1)
    Ee[1024] = power(1024, None)
    hooks.get("t1", lambda: None)()
    for k in range(8):
        t = mul(G[128*k], Ee[1024]); put_row(k, t, True); R.put(t, 2)
    Ee[2048] = power(2048, Ee[1024])
    t = mul(G[0], Ee[2048]); put_row(8, t, True); R.put(t, 2)
    tile_mfma(2)
    hooks.get("t2", lambda: None)()
    Q.issue(f"ds_write_b64 v{VT1}, {vr(ACC+4,2)}")
    Q.issue(f"ds_write_b64 v{VT1+3}, {vr(ACC+6,2)}")
    flush_mfma(100)
    a(f"""
    s_mov_b32 exec_hi, 0xffff
    s_nop 6
    ds_write_b32 v{VT2}, v{ACC+8} offset:2048
    s_mov_b32 exec_hi, 0
    ds_write_b32 v{VT2}, v{ACC+9} offset:{2048+64}
    ds_write_b32 v{VT2}, v{ACC+10} offset:{2048+128}
    ds_write_b32 v{VT2}, v{ACC+11} offset:{2048+192}
    """)
    print("kgen vgpr hi", R.hi, file=sys.stderr)

def expand_emit(a, W, C4, C5, T, rho):
    o = 1024*rho
    a(f"""
    ds_write_b128 v{VED}, {vr(W,4)} offset:{3*KC_P + o}
    v_mov_b32 v{C4}, v{W} wave_shl:1 {DPP_ALL}
    v_mov_b32 v{C5}, v{W+1} wave_shl:1 {DPP_ALL}
    v_alignbit_b32 v{T}, v{W+1}, v{W}, 16
    v_alignbit_b32 v{T+1}, v{W+2}, v{W+1}, 16
    v_alignbit_b32 v{T+2}, v{W+3}, v{W+2}, 16
    v_alignbit_b32 v{T+3}, v{C4}, v{W+3}, 16
    v_mov_b32 v{T+4}, v{W+1}
    v_mov_b32 v{T+5}, v{W+2}
    ds_write_b128 v{VED}, {vr(T,4)} offset:{2*KC_P + o}
    v_mov_b32 v{T+6}, v{W+3}
    v_mov_b32 v{T+7}, v{C4}
    v_mov_b32 v{T+8}, v{T+1}
    v_mov_b32 v{T+9}, v{T+2}
    ds_write_b128 v{VED}, {vr(T+4,4)} offset:{KC_P + o}
    v_mov_b32 v{T+10}, v{T+3}
    v_alignbit_b32 v{T+11}, v{C5}, v{C4}, 16
    ds_write_b128 v{VED}, {vr(T+8,4)} offset:{o}
    """)

def expand(a, hh):
    r2 = lambda d, v, o: a(f"ds_read2st64_b32 {vr(d,2)}, v{v} offset0:{o} offset1:{o + TP//256}")
    r2(56, VE0, 0); r2(58, VE1, 0); r2(60, VC0, 9 - hh)
    if hh: r2(62, VC1, 8)
    if hh == 0:
        for i in range(2):
            a(f"ds_read_b128 {vr(64+4*i,4)}, v{VE2} offset:{16*i}")
            a(f"ds_read_b128 {vr(72+4*i,4)}, v{VE2} offset:{TP + 16*i}")
        n2 = 4
    else:
        r2(64, VE2, 0); r2(66, VE3, 0); r2(68, VE4, 0); r2(70, VC0, 6); r2(72, VC1, 6); r2(74, VC2, 6)
        n2 = 6
    a(f"""
    s_mov_b32 vcc_lo, 0x55555555
    s_mov_b32 vcc_hi, 0x55555555
    s_waitcnt lgkmcnt({n2})
    v_add_f32 v56, v56, v57
    v_add_f32 v58, v58, v59
    v_add_f32 v60, v60, v61
    """)
    if hh: a("v_add_f32 v62, v62, v63")
    a(f"""
    v_cndmask_b32 v57, v56, v58, vcc
    v_cvt_pk_f16_f32 v80, v58, v58
    v_cvt_pk_f16_f32 v82, v56, v56
    v_cvt_pk_f16_f32 v81, v58, v57
    v_cvt_pk_f16_f32 v84, v60, v60
    v_mov_b32 v83, v82
    v_cvt_pk_f16_f32 v85, v{62 if hh else 60}, v{62 if hh else 60}
    """)
    expand_emit(a, 80, 84, 85, 88, hh)
    a("s_waitcnt lgkmcnt(4)")
    if hh == 0:
        for i in range(8): a(f"v_add_f32 v{64+i}, v{64+i}, v{72+i}")
        a(f"""
        v_cvt_pk_f16_f32 v100, v71, v70
        v_cvt_pk_f16_f32 v101, v69, v68
        v_cvt_pk_f16_f32 v102, v67, v66
        v_cvt_pk_f16_f32 v103, v65, v64
        v_mov_b32 v104, 0
        v_mov_b32 v105, 0
        s_mov_b32 exec_hi, 0
        v_cvt_pk_f16_f32 v100, v68, v67
        v_cvt_pk_f16_f32 v101, v66, v66
        v_cvt_pk_f16_f32 v102, v66, v65
        v_cvt_pk_f16_f32 v103, v64, v64
        s_mov_b64 exec, -1
        """)
    else:
        for i in range(6): a(f"v_add_f32 v{64+2*i}, v{64+2*i}, v{65+2*i}")
        a(f"""
        v_cvt_pk_f16_f32 v100, v68, v68
        v_cvt_pk_f16_f32 v101, v66, v66
        v_cvt_pk_f16_f32 v102, v66, v64
        v_cvt_pk_f16_f32 v103, v64, v64
        v_cvt_pk_f16_f32 v104, v70, v72
        v_cvt_pk_f16_f32 v105, v74, v74
        """)
    expand_emit(a, 100, 104, 105, 108, 3 - hh)
    if hh == 0: a(f"""
    v_mov_b32 v104, 0
    v_mov_b32 v105, 0
    v_mov_b32 v106, 0
    v_mov_b32 v107, 0
    s_mov_b64 exec, 0xff
    ds_write_b128 v{VT1+2}, v[104:107] offset:4096
    """)

def pf_lines(a, mat, part, v0):
    A, B, C = v0, v0+1, v0+2
    a(f"""
    s_lshr_b32 s64, s2, 3
    s_mul_i32 s64, s64, 162
    s_add_u32 s64, s64, {54*part}
    s_and_b32 s65, s2, 7
    s_mul_i32 s65, s65, 9
    v_min_u32 v{A}, 53, v2
    v_add_u32 v{A}, s64, v{A}
    """)
    fl = E("M_PFFL", "")
    if mat == "d":
        a(f"""
        s_mul_i32 s65, s65, 576
        v_add_u32 v{B}, s65, v{A}
        v_lshlrev_b32 v{B}, 7, v{B}
        global_load_dword v250, v{B}, {P(sWD)} {fl}
        """)
    else:
        a(f"""
        v_mul_u32_u24 v{C}, 7282, v{A}
        v_lshrrev_b32 v{C}, 16, v{C}
        v_mul_u32_u24 v{B}, 9, v{C}
        v_sub_u32 v{B}, v{A}, v{B}
        v_add_u32 v{B}, s65, v{B}
        v_mul_u32_u24 v{C}, 9216, v{C}
        v_lshl_add_u32 v{C}, v{B}, 7, v{C}
        """)
        if v0 == 252:
            a(f"global_load_dword v250, v{C}, s[78:79] {fl}")
            return
        for m in mat:
            a(f"global_load_dword v250, v{C}, {P(sWG if m == 'g' else sWU)} {fl}")
            if int(E("M_PFH", "0")): a(f"global_load_dword v250, v{C}, {P(sWG if m == 'g' else sWU)} offset:64 {fl}")

JA = [(k, v) for v in (0, 1, 2) for k in range(3, 8) if k + v <= 7]
JB = [(k, v) for v in (0, 1, 2) for k in range(3)]
JC = [(k, v) for v in (3, 4) for k in range(5) if k + v <= 7]
JD = [(k, v) for v in (5, 6, 7) for k in range(3) if k + v <= 7]
POFF = {"A": (0, 3), "B": (5, 0), "C": (10, 3), "D": (15, 5)}
def JCH(k): return [(kb, g - kb) for g in (k, 7 - k) for kb in range(g + 1)]
VA = 64
VACC = 224
VB = 32
NB = 8
VAS = 16
NH = int(E("M_NH", "5"))
NPX = int(E("M_NPX", "8"))
VKA, VHA = 4, 6
VPW = 8

def aread(r, va, kap, two):
    o = 64*(63-kap)
    if two: return [f"ds_read2_b64 {vr(r,4)}, v{two + (o >> 11)} offset0:{(o & 2047) >> 3} offset1:{((o & 2047) >> 3) + 1}"]
    return [f"ds_read_b64 {vr(r,2)}, v{va} offset:{o}", f"ds_read_b64 {vr(r+2,2)}, v{va} offset:{o+8}"]
class Job:
    def __init__(self, parts, npx=None):
        self.parts = parts
        self.npx = NPX if npx is None else npx
        self.two = VKA if (parts[0][2] is None and int(E("K_TWO", "1"))) else 0
        use = {}
        for ci, bl, _ in parts:
            for kb, vb in bl: use[(ci, kb)] = use.get((ci, kb), 0) + 1
        order = sorted(use, key=lambda x: (-use[x], x))
        self.held = {g: i for i, g in enumerate(order[:NH])}
    def preload(self, a):
        if self.two: a(f"v_add_u32 v{VKA+1}, 2048, v{VKA}")
        for x in range(7, 7 - self.npx, -1):
            for (ci, kb), i in self.held.items():
                kap = 8*kb + x; r = VA + 32*i + 4*x
                for t in aread(r, VKA+ci, kap, self.two): a(t)
    def run(self, a, fillers=None):
        Q = LdsQ(a)
        fillers = list(fillers or [])
        acc = {}; seq = []
        for ci, bl, tag in self.parts:
            vbs = sorted(set(v for _, v in bl), reverse=(tag is None and int(E("K_REV", "0")) == 1))
            for vb in vbs:
                for y in range(8):
                    seq.append(((ci, 8*vb + y), [((ci, kb, 7 - y), (ci, kb + vb)) for kb, v in bl if v == vb]))
        for _, ms in seq:
            for _, tk in ms:
                if tk not in acc: acc[tk] = VACC + 4*len(acc)
        assert len(acc) <= 6
        mf = []
        for bi, (bk, ms) in enumerate(seq):
            for ak, tk in ms: mf.append((bi, ak, tk))
        if int(E("M_STAG", "1")) and self.parts[-1][2]:
            nl = len(seq) - 8
            body = [m for m in mf if m[0] < nl]; tail = [m for m in mf if m[0] >= nl]
            tks = sorted(set(m[2] for m in tail))
            if len(tks) > 1:
                tail = sorted(tail, key=lambda m: (max(tks.index(m[2]) - 1, 0), m[0], m[2]))
            mf = body + tail
        last = {}
        for n, (_, _, tk) in enumerate(mf): last[tk] = n
        loads = []; sa = 0; areg = {}
        ring = [VAS + 4*i for i in range(4)] + ([232 + 4*i for i in range(4)] if len(acc) <= 2 else [])
        firstuse = {}
        for n, (bi, ak, tk) in enumerate(mf):
            if ("b", bi) not in firstuse:
                firstuse[("b", bi)] = n
                ci, v = seq[bi][0]
                loads.append((n, ("b", bi), [f"ds_read_b128 {vr(VB + 4*(bi % NB),4)}, v{VHA+ci} offset:{64*v}"]))
            ci, kb, x = ak
            if (ci, kb) in self.held:
                r = VA + 32*self.held[(ci, kb)] + 4*x; areg[n] = r
                if x <= 7 - self.npx and ("h", r) not in firstuse:
                    kap = 8*kb + x; firstuse[("h", r)] = n
                    loads.append((n, ("h", r), aread(r, VKA+ci, kap, self.two)))
            else:
                r = ring[sa % len(ring)]; kap = 8*kb + x
                loads.append((n, ("a", sa), aread(r, VKA+ci, kap, self.two)))
                areg[n] = r; firstuse[("a", sa)] = n; sa += 1
        lastuse_b = {}
        for n, (bi, _, _) in enumerate(mf): lastuse_b[bi] = n
        opid = {}; li = 0; started = set(); pend = []
        LEAD = int(E("M_LEAD", "10")); LEADH = int(E("M_LEADH", "14"))
        def can_issue(key, n):
            if key[0] == "h": return True
            if key[0] == "b": return key[1] < NB or lastuse_b[key[1] - NB] < n
            return key[1] < len(ring) or firstuse[("a", key[1] - len(ring))] < n
        akey_of = {}
        for (n0, key, _) in loads:
            if key[0] in "ah": akey_of[n0] = key
        tagof = {ci: tag for ci, _, tag in self.parts}
        for n, (bi, ak, tk) in enumerate(mf):
            while li < len(loads) and loads[li][0] <= n + (LEADH if loads[li][1][0] == "h" else LEAD) and can_issue(loads[li][1], n):
                for t in loads[li][2]: opid[loads[li][1]] = Q.issue(t)
                li += 1
            need = opid[("b", bi)]
            if n in akey_of: need = max(need, opid[akey_of[n]])
            Q.need(need)
            c = acc[tk]
            a(f"v_mfma_f32_16x16x32_f16 {vr(c,4)}, {vr(areg[n],4)}, {vr(VB + 4*(bi % NB),4)}, {'0' if tk not in started else vr(c,4)}")
            started.add(tk)
            if fillers and n >= 2:
                for _ in range(2):
                    if fillers:
                        t_ = fillers.pop(0)
                        if t_: a(t_)
            if last[tk] == n and tagof[tk[0]]: pend.append((n + 9, tk))
            while pend and pend[0][0] <= n:
                tk2 = pend.pop(0)[1]
                s0, g0 = POFF[tagof[tk2[0]]]
                Q.issue(f"ds_write_b128 v{VPW+tk2[0]}, {vr(acc[tk2],4)} offset:{(s0 + tk2[1] - g0)*1024}")
        a("s_nop 7")
        for _, tk2 in pend:
            s0, g0 = POFF[tagof[tk2[0]]]
            Q.issue(f"ds_write_b128 v{VPW+tk2[0]}, {vr(acc[tk2],4)} offset:{(s0 + tk2[1] - g0)*1024}")
        return acc

def epi_core(a, Y, H, T, ks, dd, ga, n):
    for e in range(n): a(f"v_mul_f32 v{Y+e}, {ks}, v{Y+e}")
    for e in range(n): a(f"v_fma_mix_f32 v{T+e}, v{H+e//2}, {dd}, 0 op_sel:[{e&1},0,0] op_sel_hi:[1,0,0]")
    rnd_pairs(a, [Y+2*i for i in range(n//2)] + [T+2*i for i in range(n//2)])
    for e in range(n): a(f"v_add_f32 v{Y+e}, v{Y+e}, v{T+e}")
    rnd_pairs(a, [Y+2*i for i in range(n//2)])
    for e in range(n): a(f"v_mul_f32 v{Y+e}, {ga}, v{Y+e}")

def pack9(a, dst, src):
    for i in range(4): a(f"v_cvt_pk_bf16_f32 v{dst+i}, v{src+2*i}, v{src+2*i+1}")
    a(f"v_cvt_pk_bf16_f32 v{dst+4}, v{src+8}, 0")
def dots9(a, dst, src, bf, cf):
    for e in (8, 0, 1, 2, 3, 4, 5, 6, 7): a(f"v_dot2_f32_bf16 v{dst+e}, v{src+e//2}, {bf(e)}, {cf(e)}")
def ln_core(a, P1, X1, T, ONES, LO, RC, lab):
    vsel = lambda e: f"v{LO + (e & 1)}"
    for i in range(5):
        a(f"v_dot2_f32_bf16 v{T}, v{P1+i}, v{ONES}, {'0' if i == 0 else 'v%d' % T}")
        a(f"v_dot2_f32_bf16 v{T+2}, v{P1+i}, v{P1+i}, {'0' if i == 0 else 'v%d' % (T+2)}")
    a("s_nop 1")
    reduce2(a, T, T+2)
    a(f"""
    v_readlane_b32 s66, v{T}, 63
    v_readlane_b32 s67, v{T+2}, 63
    s_nop 0
    v_mul_f32 v{T}, s66, v{RC}
    v_mul_f32 v{T+1}, s67, v{RC}
    v_mul_f32 v{T+2}, v{T}, v{T}
    v_fma_f32 v{T+1}, -v{T}, v{T}, v{T+1}
    v_mul_f32 v{T+3}, 0x41800000, v{T+1}
    v_cmp_gt_f32 vcc, v{T+2}, v{T+3}
    s_cbranch_vccz {lab}
    v_sub_f32 v{T+3}, 0, v{T}
    """)
    dots9(a, X1, P1, vsel, lambda e: f"v{T+3}")
    a(f"v_mul_f32 v{T+2}, v{X1+8}, v{X1+8}")
    for e in range(8): a(f"v_fmac_f32 v{T+2}, v{X1+e}, v{X1+e}")
    a("s_nop 1")
    reduce2(a, T+2, None)
    a(f"""
    v_readlane_b32 s67, v{T+2}, 63
    s_nop 1
    v_mul_f32 v{T+1}, s67, v{RC}
    {lab}:
    v_cvt_pk_bf16_f32 v{T+1}, -v{T}, v{T+1}
    v_lshlrev_b32 v{T}, 16, v{T+1}
    v_and_b32 v{T+1}, 0xffff0000, v{T+1}
    v_add_f32 v{T+1}, {fbits(1e-5)}, v{T+1}
    v_cvt_pk_bf16_f32 v{T+1}, v{T+1}, v{T+1}
    v_lshlrev_b32 v{T+1}, 16, v{T+1}
    v_sqrt_f32 v{T+1}, v{T+1}
    """)
    dots9(a, X1, P1, vsel, lambda e: f"v{T}")
    a(f"""
    v_cvt_pk_bf16_f32 v{T+1}, v{T+1}, v{T+1}
    v_lshlrev_b32 v{T+1}, 16, v{T+1}
    v_rcp_f32 v{T+1}, v{T+1}
    """)
    rnd1(a, X1+8); rnd_pairs(a, [X1, X1+2, X1+4, X1+6])
    a(f"v_mul_f32 v{X1+8}, v{X1+8}, v{T+1}")
    for i in range(4): a(f"v_pk_mul_f32 {vr(X1+2*i,2)}, {vr(X1+2*i,2)}, {vr(T,2)} op_sel:[0,1] op_sel_hi:[1,1]")

def gen_F(a):
    kernel_head(a, "ka_kernel")
    if DIAG == 31: a("s_memrealtime s[90:91]")
    a(f"""
    s_cmp_ge_u32 s2, 256
    s_cbranch_scc1 M_END
    s_load_dwordx16 s[4:19], s[0:1], 0
    s_load_dwordx16 s[20:35], s[0:1], 64
    s_load_dwordx2 s[36:37], s[0:1], 128
    v_lshrrev_b32 v1, 6, v0
    v_and_b32 v2, 63, v0
    """)
    if ST: a(f"v_mov_b32 v{VST}, 0")
    a("v_readfirstlane_b32 s3, v1")
    stamp(a, 0)
    if CPL:
        a(f"""
        s_cmp_lg_u32 s3, 3
        s_cbranch_scc1 M_NCP
        s_getpc_b64 s[74:75]
        M_PC:
        s_sub_u32 s74, s74, M_PC - ka_kernel
        s_subb_u32 s75, s75, 0
        s_lshr_b32 s76, s2, 3
        s_mul_i32 s76, s76, {CPL}
        v_min_u32 v25, {CPL-1}, v2
        v_add_u32 v25, s76, v25
        v_lshlrev_b32 v25, 7, v25
        v_min_u32 v25, CODE_END - ka_kernel - 4, v25
        global_load_dword v250, v25, s[74:75]
        M_NCP:
        """)
    LL = 10; X = 16; T = 26
    a(f"""
    s_lshl_b32 s40, s2, 3
    s_add_u32 s40, s40, s3
    s_mul_i32 s40, s40, 1152
    v_lshl_add_u32 v3, v2, 4, s40
    v_lshl_add_u32 v4, v2, 1, s40
    v_mov_b32 v20, 0
    v_mov_b32 v21, 0
    v_mov_b32 v22, 0
    v_mov_b32 v23, 0
    v_mov_b32 v{VZ}, 0
    v_mov_b32 v{VONE}, 1
    v_lshlrev_b32 v24, 4, v2
    s_cmp_eq_u32 s3, 0
    s_cbranch_scc0 M_Z1
    s_mov_b64 exec, 0x3fffffff
    ds_write_b128 v24, v[20:23] offset:{L_HB}
    ds_write_b128 v24, v[20:23] offset:{L_HB + HB_P}
    ds_write_b128 v24, v[20:23] offset:{L_HB + 2*HB_P}
    M_Z1:
    s_cmp_eq_u32 s3, 2
    s_cbranch_scc0 M_Z3
    ds_write_b128 v24, v[20:23] offset:{L_ZERO}
    M_Z3:
    s_cmp_eq_u32 s3, 3
    s_cbranch_scc0 M_Z0
    s_mov_b64 exec, 0xfffff
    ds_write_b128 v24, v[20:23] offset:{L_CNT}
    M_Z0:
    s_mov_b64 exec, -1
    s_lshr_b32 s41, s3, 1
    s_lshl_b32 s{sD}, s2, 1
    s_add_u32 s{sD}, s{sD}, s41
    s_lshr_b32 s45, s2, 2
    s_add_u32 s45, s45, 512            ; channel c
    s_cmp_eq_u32 s41, 2
    s_cselect_b32 s{sD}, s45, s{sD}
    s_and_b32 s{sHH}, s3, 1
    ; mod item: cg = u % 27, ks = u / 27
    s_mul_i32 s{sKS}, s2, 2428
    s_lshr_b32 s{sKS}, s{sKS}, 16
    s_mul_i32 s40, s{sKS}, 27
    s_sub_u32 s49, s2, s40             ; cg
    v_lshrrev_b32 v25, 2, v2
    s_lshl_b32 s40, s{sKS}, 6
    v_add_u32 v25, s40, v25
    v_mul_u32_u24 v25, 6912, v25
    v_and_b32 v26, 3, v2
    v_lshl_add_u32 v25, v26, 4, v25
    v_add_u32 v39, s40, v2
    s_lshl_b32 s40, s49, 7
    s_lshl_b32 s50, s{sHH}, 6
    s_add_u32 s40, s40, s50
    v_add_u32 v216, s40, v25
    v_lshlrev_b32 v39, 1, v39
    s_lshl_b32 s40, s{sD}, 8
    v_lshl_add_u32 v5, v2, 2, s40
    s_lshl_b32 s40, s{sD}, 1
    v_mov_b32 v6, s40
    s_waitcnt lgkmcnt(0)
    global_load_dwordx4 {vr(LL,4)}, v3, {P(sX)} {XNT}
    global_load_ushort v{LL+4}, v4, {P(sX)} offset:1024 {XNT}
    s_mov_b32 s50, {16*6912}
    v_add_u32 v217, s50, v216
    v_add_u32 v218, s50, v217
    v_add_u32 v219, s50, v218
    v_mov_b32 v7, {WS_EPOCH}
    """)
    if HINT: a(f"""
    v_lshrrev_b32 v246, 5, v2
    v_lshlrev_b32 v246, 15, v246
    v_and_b32 v247, 31, v2
    v_lshl_add_u32 v246, v247, 7, v246
    s_and_b32 s50, s2, 7
    s_lshl_b32 s50, s50, 12
    s_add_u32 s50, s50, {WS_CNT}
    v_add_u32 v246, s50, v246
    """)
    a(f"""
    s_cmp_ge_u32 s3, 6
    s_cbranch_scc1 M_T0MOD
    s_barrier                          ; B0
    global_load_ushort v44, v6, {P(sLDT)}
    global_load_dword v40, v5, {P(sLAR)} {PNT}
    global_load_dword v41, v5, {P(sAIM)} {PNT}
    global_load_dword v42, v5, {P(sCR)} {PNT}
    global_load_dword v43, v5, {P(sCI)} {PNT}
    s_mov_b32 s62, 5
    """)
    if DNAT == "t0":
        k0_ = len(a.lines); dn_touch(a)
        for i in range(k0_, len(a.lines)): a.lines[i] = a.lines[i].replace("v252", "v247")
        a.lines.insert(len(a.lines) - 1, "  s_mov_b32 s62, 6")
    a(f"""
    s_branch M_T0J
    M_T0MOD:
    s_setprio {E("P67", "2")}
    s_barrier                          ; B0
    {"global_load_dword v247, v246, %s sc1" % P(sWS) if HINT else ""}
    global_load_dword v47, v7, {P(sWS)}
    s_mov_b32 s62, 2
    s_cmp_ge_u32 s2, 243
    s_cbranch_scc1 M_T0J
    global_load_ushort v44, v39, {P(sC)}
    """)
    for i in range(4): a(f"global_load_dwordx4 {vr(48+4*i,4)}, v{216+i}, {P(sWMOD)} {NT}")
    a(f"""
    s_mov_b32 s62, 7
    M_T0J:
    """)
    S4 = int(E("M_S4", "1"))
    UN = {0: 0, 1: 4, 6: 8, 7: 12, 2: 0, 3: 0, 4: 0, 5: 0} if S4 else {2: 0, 3: 3, 6: 6, 7: 9, 0: 12, 1: 14, 4: 0, 5: 0}
    unib = sum(UN[w] << (4*w) for w in range(8))
    a(f"""
    s_lshl_b32 s40, s3, 2
    s_lshr_b32 s63, {hex(unib)}, s40
    s_and_b32 s63, s63, 15
    s_lshl_b32 s50, s63, 10
    s_lshl_b32 s51, s2, 14
    s_add_u32 s50, s50, s51
    s_add_u32 s50, s50, {WS_XN}
    v_lshl_add_u32 v{VXA}, v2, 4, s50
    v_lshrrev_b32 v21, 4, v2
    s_lshl_b32 s50, s2, 1
    v_add_u32 v20, s50, v21
    v_mov_b32 v22, s45
    v_cmp_gt_u32 vcc, 2, v21
    v_and_b32 v23, 15, v2
    v_min_u32 v23, 8, v23
    v_cndmask_b32 v20, v22, v20, vcc   ; channel
    v_lshlrev_b32 v23, 9, v23
    v_lshlrev_b32 v{VD}, 1, v20
    v_lshrrev_b32 v22, 6, v20
    v_mul_u32_u24 v22, {9*512}, v22
    v_and_b32 v20, 63, v20
    v_lshl_add_u32 v20, v20, 3, v22
    v_add_u32 v20, v20, v23
    v_add_u32 v{VMA}, {WS_MP}, v20
    v_add_u32 v{VMA+1}, {WS_MP + 9*9*512}, v20
    v_add_u32 v{VMA+2}, {WS_MP + 18*9*512}, v20
    v_and_b32 v20, 15, v2              ; i / j
    v_and_b32 v22, 3, v20
    v_mul_u32_u24 v22, {KC_P}, v22
    v_lshrrev_b32 v23, 2, v20
    v_lshlrev_b32 v23, 3, v23
    v_lshl_add_u32 v23, v21, 4, v23
    v_sub_u32 v22, v22, v23
    v_add_u32 v22, {L_KC + 72}, v22
    v_lshlrev_b32 v23, 5, v20
    v_lshlrev_b32 v24, 4, v21
    v_sub_u32 v24, v23, v24
    v_add_u32 v24, {L_HB + 48}, v24
    v_lshl_add_u32 v3, v21, 3, v23     ; 32j + 8q
    v_add_u32 v3, {L_HB + 480}, v3
    s_lshr_b32 s40, 0x01021100, s40
    s_and_b32 s40, s40, 15
    s_mul_i32 s50, s40, {4*KC_P}
    s_cmp_eq_u32 s40, 2
    s_cselect_b32 s50, {(L_KC2 - L_KC) & 0xffffffff}, s50
    v_add_u32 v{VKA}, s50, v22
    v_add_u32 v{VKA+1}, {4*KC_P}, v22
    s_mul_i32 s50, s40, {HB_P}
    v_add_u32 v{VHA}, s50, v24
    v_add_u32 v{VHA+1}, {HB_P}, v24
    s_mul_i32 s50, s40, 18432
    s_add_u32 s50, s50, {L_PART}
    v_lshl_add_u32 v{VPW}, v2, 4, s50
    v_lshlrev_b32 v{VPW+1}, 4, v2
    v_add_u32 v{VPW+1}, {L_PART + 18432}, v{VPW+1}
    s_lshl_b32 s40, s40, 2
    v_mov_b32 v1, s40
    """)
    k0 = len(a.lines)
    kgen_setup(a)
    for i in range(k0, len(a.lines)):
        for o, n in (("v10", "v20"), ("v11", "v21"), ("v12", "v22"), ("v13", "v23")):
            a.lines[i] = re.sub(rf"\b{o}\b", n, a.lines[i])
    a(f"""
    s_lshr_b32 s40, s3, 1
    s_mul_i32 s40, s40, 2592
    s_mul_i32 s50, s{sHH}, 1280
    s_add_u32 s40, s40, s50
    s_add_u32 s40, s40, {L_LNR}
    v_lshl_add_u32 v220, v2, 4, s40
    s_lshl_b32 s40, s3, 1
    s_add_u32 s40, s40, {L_CB}
    v_lshl_add_u32 v221, v2, 4, s40
    v_lshrrev_b32 v22, 2, v2
    s_and_b32 s40, s3, 3
    s_lshl_b32 s40, s40, 6
    v_add_u32 v22, s40, v22            ; u'
    v_and_b32 v23, 3, v2
    v_mul_u32_u24 v222, 2592, v23
    v_lshl_add_u32 v222, v22, 2, v222
    v_add_u32 v222, {L_LNR}, v222
    v_lshrrev_b32 v223, 2, v22
    v_lshlrev_b32 v223, 4, v223
    v_lshl_add_u32 v223, v23, 2, v223
    v_add_u32 v223, {L_CB}, v223
    v_lshlrev_b32 v22, 14, v22
    v_lshl_add_u32 v22, v23, 4, v22
    s_lshl_b32 s40, s2, 6
    s_add_u32 s40, s40, {WS_XN}
    v_add_u32 v253, s40, v22
    s_mul_i32 s40, s49, 9
    s_add_u32 s40, s40, s{sKS}
    s_lshl_b32 s40, s40, 9
    s_lshl_b32 s50, s{sHH}, 8
    s_add_u32 s40, s40, s50
    s_add_u32 s40, s40, {WS_MP}
    v_and_b32 v34, 3, v2
    v_lshlrev_b32 v34, 6, v34
    v_lshrrev_b32 v35, 3, v2
    v_lshl_add_u32 v34, v35, 3, v34
    v_add_u32 v34, s40, v34
    v_add_u32 v35, {27*9*512}, v34
    v_mov_b32 v15, {fbits(1.0/576)}
    v_mov_b32 v30, 0x3f803f80
    v_mov_b32 v32, 0x3f80
    v_mov_b32 v33, 0x3f800000
    s_cmp_eq_u32 s62, 7
    s_cbranch_scc1 M_W6
    s_cmp_eq_u32 s62, 5
    s_cbranch_scc1 M_W5
    s_waitcnt vmcnt({2 if HINT else 1})
    M_W5:
    s_waitcnt vmcnt(5)
    M_W6:
    s_waitcnt vmcnt({7 if HINT else 6})
    """)
    stamp(a, 1)
    ln_core(a, LL, X, T, 30, 32, 15, "M_FAST")
    pack9(a, T, X)
    a(f"""
    ds_write_b128 v220, {vr(T,4)}
    ds_write_b16 v221, v{T+4}
    s_cmp_lt_u32 s3, 6
    s_cbranch_scc1 M_NTAG
    s_cmp_eq_u32 s62, 7
    s_cbranch_scc1 M_TG5
    s_waitcnt vmcnt(0)
    M_TG5:
    s_waitcnt vmcnt(5)
    s_mov_b32 s40, 0x9E3779B1
    v_mul_lo_u32 v33, v47, s40
    v_add_u32 v33, 0x7F4A7C15, v33
    ds_write_b32 v{VZ}, v33 offset:{L_TAG}
    M_NTAG:
    """)
    signal(a, C_LN)
    AC = 112
    def mod_item(rho, w0):
        for e in range(8): a(f"v_mov_b32 v{AC+e}, 0")
        for i in range(4):
            a(f"s_waitcnt vmcnt({w0 - i})")
            for w in range(4):
                a(f"v_dot2c_f32_bf16 v{AC+2*w}, v{48+16*rho+4*i+w}, v{28+i}")
                a(f"v_dot2c_f32_bf16 v{AC+2*w+1}, v{48+16*rho+4*i+w}, v{24+i}")
        a("s_nop 2")
        for e in range(4): a(f"v_permlane32_swap_b32 v{AC+e}, v{AC+4+e}")
        for e in range(4): a(f"v_add_f32 v{AC+e}, v{AC+e}, v{AC+4+e}")
        a("s_nop 0")
        a(f"v_permlane16_swap_b32 v{AC}, v{AC+2}")
        a(f"v_permlane16_swap_b32 v{AC+1}, v{AC+3}")
        a(f"v_add_f32 v{AC}, v{AC}, v{AC+2}")
        a(f"v_add_f32 v{AC+1}, v{AC+1}, v{AC+3}")
        a("s_nop 1")
        a(f"v_add_f32 v32, v{AC}, v{AC} row_ror:8 row_mask:0xf bank_mask:0x3")
        a(f"v_add_f32 v32, v{AC+1}, v{AC+1} row_ror:8 row_mask:0xf bank_mask:0xc")
        a("s_nop 1")
        a(f"v_add_f32 v32, v32, v32 row_shl:4 row_mask:0xf bank_mask:0x5")
        a("s_mov_b32 exec_lo, 0x0f0f0f0f")
        a("s_mov_b32 exec_hi, 0x0f0f0f0f")
        a(f"global_store_dwordx2 v{34+rho}, v[32:33], {P(sWS)} sc1")
        a("s_mov_b64 exec, -1")
    MODF = int(E("M_MODF", "1"))
    a(f"""
    s_cmp_lt_u32 s3, 4
    s_cbranch_scc1 M_KG
    s_cmp_lt_u32 s3, 6
    s_cbranch_scc1 M_PACK
    s_cmp_ge_u32 s2, 243
    s_cbranch_scc1 M_PACK
    s_mov_b32 s40, {fbits(-LOG2E)}
    s_waitcnt vmcnt(4)
    v_lshlrev_b32 v44, 16, v44
    v_mul_f32 v45, s40, v44
    v_exp_f32 v45, v45
    v_lshrrev_b32 v46, 2, v2
    v_add_f32 v45, 1.0, v45
    v_rcp_f32 v45, v45
    v_lshlrev_b32 v46, 2, v46
    v_mul_f32 v44, v44, v45
    v_cvt_pk_bf16_f32 v44, v44, 0
    """)
    for i in range(4): a(f"ds_bpermute_b32 v{28+i}, v46, v44 offset:{64*i}")
    a(f"""
    s_waitcnt lgkmcnt(0)
    """)
    for i in range(4): a(f"v_lshlrev_b32 v{24+i}, 16, v{28+i}")
    if MODF:
        mod_item(0, 3)
        stamp(a, 7)
    a.label("M_PACK")
    G0 = 80
    for i in range(1, 4): a(f"v_add_u32 v{20+i}, {64*i}, v222")
    a(f"""
    s_mov_b32 s41, {16 << 14}
    M_SPL:
    ds_read_b64 v[96:97], v{VZ} offset:{L_CNT + C_LN}
    """)
    for i in range(4):
        a(f"ds_read2st64_b32 {vr(G0+4*i,2)}, v{222 if i == 0 else 20+i} offset0:0 offset1:5")
        a(f"ds_read_b32 v{G0+4*i+2}, v223 offset:{64*i}")
    a(f"""
    s_waitcnt lgkmcnt(8)
    v_readfirstlane_b32 s94, v96
    v_readfirstlane_b32 s{sTAG}, v97
    s_cmp_ge_u32 s94, 8
    s_cbranch_scc0 M_SPL
    """)
    for i in range(4):
        a(f"v_mov_b32 v{G0+4*i+3}, v97")
        a(f"s_waitcnt lgkmcnt({6-2*i})")
        a(f"global_store_dwordx4 v253, {vr(G0+4*i,4)}, {P(sWS)} sc1")
        if i < 3: a("v_add_u32 v253, s41, v253")
    stamp(a, 2)
    a(f"""
    {"s_setprio 0" if MODF else ""}
    s_cmp_ge_u32 s3, 6
    s_cbranch_scc1 M_MOD
    s_waitcnt vmcnt(4)
    """)
    signal(a, C_H)
    if E("C_PRIO"): a("s_setprio 1")
    a("s_branch KG_W1")
    a.label("M_KG")
    stamp(a, 2)
    def mp_issue():
        for c in range(3): a(f"global_load_dwordx2 {vr(VMP+2*c,2)}, v{VMA+c}, {P(sWS)} sc1")
    def xn_issue(n=3):
        for i in range(n): a(f"global_load_dwordx4 {vr(XG+4*i,4)}, v{VXA}, {P(sWS)} offset:{1024*i} sc1")
    def first_issue(lo=0, hi=4):
        l = a.newlabel("NI")
        if S4:
            if lo == 0:
                a(f"s_cmp_ge_u32 s3, 2\ns_cbranch_scc1 {l}"); xn_issue(4); a.label(l)
            return
        a(f"""
        s_sub_u32 s40, s3, {lo}
        s_cmp_ge_u32 s40, {hi - lo}
        s_cbranch_scc1 {l}
        s_cmp_lt_u32 s3, 2
        s_cbranch_scc1 {l}B
        global_load_dwordx4 {vr(XG+8,4)}, v{VXA}, {P(sWS)} offset:2048 sc1
        {l}B:
        """)
        xn_issue(2)
        a.label(l)
    XAT = E("M_XAT", "mix")
    hooks = {}
    if XAT not in ("tab", "exp", "pl", "mix"): hooks[XAT] = first_issue
    def chook(spec):
        def f_():
            l = a.newlabel("CH")
            a(f"""
            s_cmp_lt_u32 s3, 4
            s_cbranch_scc1 {l}
            s_mov_b32 s80, m0
            s_cmp_eq_u32 s3, 4
            s_cselect_b32 s78, s22, s24
            s_cselect_b32 s79, s23, s25
            """)
            for it in spec.split(","):
                if it[0] == "p": pf_lines(a, "g", int(it[1]), 252)
                else:
                    k = int(it[1])
                    a(f"""
                    s_cmp_ge_u32 s2, 144
                    s_cbranch_scc1 {l}_{k}
                    s_and_b32 s40, s2, 7
                    s_mul_i32 s40, s40, 18
                    s_lshr_b32 s64, s2, 3
                    s_add_u32 s40, s40, s64
                    s_mul_i32 s40, s40, 36864
                    s_mul_i32 s64, s{sHH}, 18432
                    s_add_u32 s64, s64, {6144*k}
                    s_add_u32 s40, s40, s64
                    s_add_u32 m0, s64, {L_DN}
                    v_lshl_add_u32 v252, v2, 4, s40
                    """)
                    for i in range(6):
                        if i == 3: a("s_add_u32 m0, m0, 3072\nv_add_u32 v252, 3072, v252")
                        a(f"global_load_lds_dwordx4 v252, {P(sWD)} offset:{1024*(i%3)}")
                    a(f"{l}_{k}:")
            a(f"s_mov_b32 m0, s80")
            a.label(l)
        return f_
    if E("C_PRIO"): hooks[E("C_PRIO")] = lambda: a("s_setprio 0")
    CH = dict(x.split(":") for x in E("M_CH", "").split(";") if x)
    for k_, v_ in CH.items(): hooks[k_] = chook(v_)
    if DNAT == "kg":
        def kt():
            k0_ = len(a.lines); dn_touch(a)
            for i in range(k0_, len(a.lines)): a.lines[i] = a.lines[i].replace("v252", "v247")
        hooks[E("F_DNH", "p")] = kt
    gen_kgen(a, 0, hooks)
    signal(a, C_TAB, VED+1)
    if XAT == "tab": first_issue()
    if XAT == "mix": first_issue(2, 4)
    stamp(a, 4)
    spin(a, C_TAB, 2, VED+1)
    stamp(a, 5)
    a(f"""
    s_cmp_eq_u32 s{sHH}, 0
    s_cbranch_scc0 M_EXB
    """)
    expand(a, 0)
    a("s_branch M_EXD")
    a.label("M_EXB")
    expand(a, 1)
    a.label("M_EXD")
    signal(a, C_K, VED+1)
    if XAT == "exp": first_issue()
    if XAT == "mix": first_issue(0, 2)
    stamp(a, 6)
    a("s_mov_b32 s73, 0")
    a("s_branch M_CSET")
    a.label("M_MOD")
    a(f"""
    s_cmp_ge_u32 s2, 243
    s_cbranch_scc1 M_MODX
    """)
    for i in range(4): a(f"global_load_dwordx4 {vr(64+4*i,4)}, v{216+i}, {P(sWMOD)} offset:3456 {NT}")
    if not MODF:
        mod_item(0, 11)
        a("s_setprio 0")
        stamp(a, 7)
        mod_item(1, 4)
    a.label("M_MODX")
    if HINT: a("v_add_u32 v250, 8, v247\nv_mov_b32 v253, v246")
    a("s_setprio 0")
    a(f"""
    s_cmp_lg_u32 s3, 6
    s_cbranch_scc1 M_W7X
    """)
    spin(a, C_TAB if MODF else C_K, int(E("M_MPN", "1")))
    a(f"global_load_ushort v{VD}, v{VD}, {P(sDSK)}")
    mp_issue()
    a(f"""
    s_mov_b32 s41, {SPIN}
    M_MP:
    s_waitcnt vmcnt(0)
    v_xor_b32 v16, s{sTAG}, v{VMP+1}
    v_xor_b32 v17, s{sTAG}, v{VMP+3}
    v_xor_b32 v18, s{sTAG}, v{VMP+5}
    v_or3_b32 v16, v16, v17, v18
    v_cmp_ne_u32 vcc, 0, v16
    s_cbranch_vccz M_MPD
    """)
    mp_issue()
    a(f"""
    s_waitcnt vmcnt(0)
    s_sub_u32 s41, s41, 1
    s_cbranch_scc0 M_MP
    M_MPD:
    s_mov_b32 exec_lo, 0xfe00fe00
    s_mov_b32 exec_hi, 0xfe00fe00
    v_mov_b32 v{VMP}, 0
    v_mov_b32 v{VMP+2}, 0
    v_mov_b32 v{VMP+4}, 0
    s_mov_b64 exec, -1
    """)
    for sh in (1, 2, 4, 8):
        for r in (VMP, VMP+2, VMP+4): a(f"v_add_f32 v{r}, v{r}, v{r} row_shr:{sh} {DPP_ALL} bound_ctrl:0")
    a(f"""
    v_cvt_pk_bf16_f32 v17, v{VMP}, v{VMP+2}
    v_cvt_pk_bf16_f32 v18, v{VMP+4}, v{VMP+4}
    v_lshlrev_b32 v16, 16, v17         ; sa
    v_and_b32 v17, 0xffff0000, v17     ; ca
    v_add_f32 v17, 1.0, v17
    v_cvt_pk_bf16_f32 v17, v17, v17
    v_and_b32 v17, 0xffff0000, v17     ; c1
    v_mul_f32 v19, 0x42800000, v17
    v_add_f32 v19, abs(v19), abs(v16)
    v_frexp_exp_i32_f32 v19, v19
    v_sub_u32 v19, 15, v19
    v_ldexp_f32 v17, v17, v19
    v_ldexp_f32 v16, v16, v19
    v_sub_u32 v19, 0, v19
    v_lshlrev_b32 v{VD}, 16, v{VD}
    v_lshlrev_b32 v18, 16, v18
    v_ldexp_f32 v{VD}, v{VD}, v19
    v_lshrrev_b32 v20, 2, v2
    v_and_b32 v20, 12, v20
    s_mov_b32 exec_lo, 0x80008000
    s_mov_b32 exec_hi, 0x00008000
    ds_write_b32 v20, v17 offset:{L_PRM}
    ds_write_b32 v20, v16 offset:{L_PRM + 16}
    ds_write_b32 v{VZ}, v33 offset:{L_CNT + C_PR + 4}
    ds_write_b32 v20, v{VD} offset:{L_PRM + 32}
    ds_write_b32 v20, v18 offset:{L_PRM + 48}
    ds_write_b32 v20, v19 offset:{L_PRM + 64}
    s_mov_b64 exec, -1
    """)
    signal(a, C_PR)
    stamp(a, 14)
    a("s_branch M_NI2")
    a.label("M_W7X")
    if MODF:
        a("s_cmp_ge_u32 s2, 243\ns_cbranch_scc1 M_NI2")
        mod_item(1, 3)
    a.label("M_NI2")
    stamp(a, 3)
    spin(a, C_K, int(E("M_W6N", "1")))
    xn_issue(4 if S4 else 3)
    a("s_mov_b32 s73, 0\ns_cmp_lg_u32 s3, 6\ns_cbranch_scc1 M_CSET\ns_cmp_ge_u32 s2, 243\ns_cbranch_scc1 M_CSET")
    mod_item(1, 7 if S4 else 6)
    a("s_mov_b32 s73, 1")
    def pf_waves(spec, tag, v0):
        for grp in filter(None, spec.split(";")):
            w, items = grp.split(":")
            l = a.newlabel("PF")
            a(f"s_cmp_lg_u32 s3, {w}"); a(f"s_cbranch_scc1 {l}")
            for it in items.split(","): pf_lines(a, it[:-1], int(it[-1]), v0)
            a.label(l)
    pf_waves(E("M_PFA", ""), "a", 100)
    a.label("M_CSET")
    jobs = {"A": Job([(0, JA, "A")]), "B": Job([(0, JB, "B")]), "C": Job([(0, JC, "C")]), "D": Job([(1, JD, "D"), (0, JD, "D")])}
    for k in range(4): jobs[f"K{k}"] = Job([(0, JCH(k), None)], int(E("M_NPXK", "2")))
    a(f"""
    s_lshl_b32 s40, s3, 2
    s_lshr_b32 s40, {E('M_JOBS', '0x31242010')}, s40
    s_and_b32 s62, s40, 15
    s_and_b32 s40, s2, 3
    s_cmp_eq_u32 s62, 4
    s_cselect_b32 s40, s40, 0
    s_add_u32 s62, s62, s40
    """)
    def dispatch(pre):
        for i, nm in enumerate(list(jobs)[:-1]):
            a(f"s_cmp_eq_u32 s62, {i}")
            a(f"s_cbranch_scc1 {pre}{nm}")
        a(f"s_branch {pre}K3")
    SF = int(E("M_SF", "1"))
    if SF: a("s_cmp_ge_u32 s3, 6\ns_cbranch_scc1 M_TGS\nM_PL0:")
    spin(a, C_K, 2, 1)
    dispatch("M_PL")
    for nm, jb in jobs.items():
        a.label(f"M_PL{nm}")
        if nm == "D": spin(a, C_K + 4, 2)
        jb.preload(a)
        a("s_branch M_STG")
    a.label("M_STG")
    stamp(a, 8)
    a(f"""
    s_cmp_ge_u32 s3, 4
    s_cbranch_scc1 M_HW
    {"s_cmp_ge_u32 s3, 2" if S4 else ""}
    {"s_cbranch_scc1 M_U3" if S4 else ""}
    """)
    a(f"""
    M_TGS:
    ds_read_b64 v[16:17], v{VZ} offset:{L_CNT + C_PR}
    ds_read_b128 v[20:23], v{VZ} offset:{L_PRM}
    ds_read_b128 v[24:27], v{VZ} offset:{L_PRM + 16}
    s_lshl_b32 s40, s63, 8
    s_add_u32 s40, s40, {L_HB + 480}
    s_mov_b32 m0, s40
    s_mov_b32 s41, {SPIN}
    v_mov_b32 v30, 0x3f80
    v_mov_b32 v31, 0x3f800000
    s_waitcnt lgkmcnt(0)
    v_readfirstlane_b32 s94, v16
    v_readfirstlane_b32 s{sTAG}, v17
    v_readfirstlane_b32 s66, v20
    v_readfirstlane_b32 s69, v22
    v_readfirstlane_b32 s67, v21
    v_readfirstlane_b32 s70, v24
    v_readfirstlane_b32 s71, v25
    v_readfirstlane_b32 s72, v26
    s_lshr_b32 s66, s66, 16
    s_lshr_b32 s68, s69, 16
    s_cmp_ge_u32 s94, 1
    s_cbranch_scc0 M_TGS
    s_waitcnt vmcnt(1)
    s_cmp_eq_u32 s73, 1
    s_cbranch_scc1 M_XP1
    M_XP:
    s_waitcnt vmcnt(0)
    M_XP1:
    v_xor_b32 v16, s{sTAG}, v{XG+3}
    v_xor_b32 v17, s{sTAG}, v{XG+7}
    v_xor_b32 v18, s{sTAG}, v{XG+11}
    {"v_xor_b32 v19, s%d, v%d" % (sTAG, XG+15) if S4 else "s_cmp_lt_u32 s3, 2"}
    {"v_or_b32 v18, v18, v19" if S4 else "s_cselect_b32 s40, 0, -1"}
    {"" if S4 else "v_and_b32 v18, s40, v18"}
    v_or3_b32 v16, v16, v17, v18
    v_cmp_ne_u32 vcc, 0, v16
    s_cbranch_vccz M_XD
    s_mov_b64 exec, vcc
    """)
    xn_issue(4 if S4 else 3)
    a(f"""
    s_mov_b64 exec, -1
    s_sub_u32 s41, s41, 1
    s_cbranch_scc0 M_XP
    M_XD:
    """)
    stamp(a, 9)
    def units(lst, FO=16):
        Y = 32
        for n, u in enumerate(lst):
            g = XG + 4*u; y = Y + 6*n
            for k, (src, cs) in enumerate(((g, 66), (g+1, 66), (g, 67), (g+1, 67), (g+2, 68), (g+2, 69))):
                a(f"v_dot2_f32_bf16 v{y+k}, v{src}, s{cs}, 0")
        if len(lst) == 1: a("s_nop 0")
        prs = [Y + 2*i for i in range(3*len(lst))]
        for p in prs: a(f"v_cvt_pk_bf16_f32 v{p+1}, v{p}, v{p+1}")
        for i, p in enumerate(prs):
            a(f"v_dot2_f32_bf16 v{p}, v{p+1}, v30, s{70 + i%3}")
            a(f"v_dot2_f32_bf16 v{p+1}, v{p+1}, v31, s{70 + i%3}")
        a("s_nop 1")
        rnd_pairs(a, prs)
        for i, p in enumerate(prs): a(f"v_cvt_pk_f16_f32 v{FO+i}, v{p}, v{p+1}")
        for i, p in enumerate(prs): a(f"ds_write_addtid_b32 v{FO+i} offset:{(i%3)*HB_P + lst[i//3]*256}")
    if S4:
        units([0, 1]); units([2, 3], 22)
    else:
        a("""
        s_cmp_lt_u32 s3, 2
        s_cbranch_scc1 M_U2
        """)
        units([0, 1, 2])
        a("s_branch M_U3")
        a.label("M_U2")
        units([0, 1])
    a.label("M_U3")
    signal(a, C_H)
    a("s_cmp_ge_u32 s3, 6\ns_cbranch_scc1 M_PL0")
    RR = 160
    def red_issue():
        for s_ in range(8): a(f"global_load_dwordx2 {vr(RR+2*s_,2)}, v178, {P(sWS)} offset:{512*s_} sc1")
        a(f"global_load_dwordx2 {vr(RR+16,2)}, v179, {P(sWS)} sc1")
    def red_addr():
        a(f"""
        s_sub_u32 s40, s2, {229 - 27}
        s_mul_i32 s40, s40, {9*512}
        s_add_u32 s40, s40, {WS_MP}
        v_lshl_add_u32 v178, v2, 3, s40
        v_add_u32 v179, 4096, v178
        """)
    a(f"""
    M_HW:
    ; f-slice of D workgroups, down weights -> LDS
    s_and_b32 s40, s2, 7
    s_mul_i32 s40, s40, 18
    s_lshr_b32 s41, s2, 3
    s_add_u32 s46, s40, s41            ; fs
    """)
    def dn_fill(tag):
        L = ["v_lshrrev_b32 v15, 2, v2", "s_mul_i32 s40, s3, 144", "v_add_u32 v15, s40, v15", "v_mul_u32_u24 v15, 9216, v15", "v_and_b32 v251, 3, v2",
             "v_lshl_add_u32 v15, v251, 4, v15", "s_lshl_b32 s40, s46, 6", "v_add_u32 v15, s40, v15", "s_mul_i32 s40, s3, 9216", f"s_add_u32 m0, s40, {L_G}", f"s_mov_b32 s40, {16*9216}"]
        for i in range(9):
            L.append(f"s_cmp_ge_u32 s2, s47\ns_cbranch_scc1 DN{tag}_{i}\nglobal_load_lds_dwordx4 v15, {P(sWG)} {E('F_GFL', '')}\nDN{tag}_{i}:")
            if i < 8: L += ["s_add_u32 m0, m0, 1024\nv_add_u32 v15, s40, v15"]
        return L
    def pf_fill(spec):
        b = Asm(); b.uid = a.uid + 1000
        for it in spec.split(","): pf_lines(b, it[:-1], int(it[-1]), 252)
        return [x.strip() for x in b.lines if x.strip()]
    a("""
    s_cmp_lt_u32 s3, 4
    s_cselect_b32 s47, 144, 0
    s_bitcmp1_b32 s3, 1
    s_cselect_b32 s78, s24, s22
    s_cselect_b32 s79, s25, s23
    """)
    pf_waves(E("M_PFR", ""), "r", 16)
    if int(E("M_PRIO4", "1")):
        a("s_cmp_lg_u32 s3, 4\ns_cbranch_scc1 M_NP4\ns_setprio 1\nM_NP4:")
    a(f"""
    M_HS:
    ds_read_b32 v251, v{VZ} offset:{L_CNT + C_H}
    ds_read_b32 v15, v{VZ} offset:{L_TAG}
    s_waitcnt lgkmcnt(0)
    v_readfirstlane_b32 s94, v251
    v_readfirstlane_b32 s{sTAG}, v15
    s_cmp_ge_u32 s94, 8
    s_cbranch_scc0 M_HS
    """)
    stamp(a, 10)
    PFJ = dict(x.split(":") for x in E("M_PFJ", "A:g0;B:g1;C:g2").split(";") if x)
    dispatch("M_RUN")
    for nm, jb in jobs.items():
        a.label(f"M_RUN{nm}")
        fl_ = []
        if nm in PFJ: fl_ += pf_fill(PFJ[nm])
        if nm == "B":
            b_ = Asm(); sv = a.lines; a.lines = b_.lines
            a("s_cmp_lg_u32 s3, 1\ns_cbranch_scc1 M_NRI\ns_cmp_lt_u32 s2, 229\ns_cbranch_scc1 M_NRI"); red_addr(); red_issue(); a.label("M_NRI")
            a.lines = sv
            fl_ = fl_ + [""] * (2*int(E("M_RAT", "30")) - len(fl_)) + ["\n".join(b_.lines)]
        acc = jb.run(a, fl_)
        if nm[0] == "K":
            k = int(nm[1])
            c0_, c1_ = acc[(0, k)], acc[(0, 7-k)]
            t0_, t1_ = (k, 7-k) if c0_ < c1_ else (7-k, k)
            a(f"""
            ds_read_b32 v40, v{VZ} offset:{L_PRM + 32 + 8}
            ds_read_b32 v41, v{VZ} offset:{L_PRM + 48 + 8}
            ds_read_b32 v42, v{VZ} offset:{L_PRM + 64 + 8}
            ds_read_b32 v43, v{VZ} offset:{L_PRM + 80 + 8}
            ds_read_b64 v[44:45], v3 offset:{2*HB_P + 512*t0_}
            ds_read_b64 v[46:47], v3 offset:{2*HB_P + 512*t1_}
            v_and_b32 v16, 15, v2
            v_mul_u32_u24 v16, 96, v16
            v_lshrrev_b32 v17, 5, v2
            v_mul_u32_u24 v17, 48, v17
            v_bfe_u32 v18, v2, 4, 1
            v_lshl_add_u32 v17, v18, 3, v17
            v_add_u32 v16, v16, v17
            v_add_u32 v16, {L_TAB + 32}, v16
            s_waitcnt lgkmcnt(0)
            v_ldexp_f32 v43, v43, v42
            """)
            c0 = min(c0_, c1_)
            epi_core(a, c0, 44, 48, "v43", "v40", "v41", 8)
            for i in range(4): a(f"v_cvt_pk_bf16_f32 v{48+i}, v{c0+2*i}, v{c0+2*i+1}")
            a(f"ds_write_b64 v16, v[48:49] offset:{1536*t0_}")
            a(f"ds_write_b64 v16, v[50:51] offset:{1536*t1_}")
        a("s_branch M_FIN")
    a.label("M_FIN")
    a("s_setprio 0")
    stamp(a, 11)
    a(f"""
    s_cmp_lg_u32 s3, 1
    s_cbranch_scc1 M_NRED
    s_cmp_lt_u32 s2, 229
    s_cbranch_scc1 M_NRED
    s_mov_b32 s41, {SPIN}
    """)
    red_addr()
    a(f"""
    s_waitcnt vmcnt(0)
    M_RP:
    v_xor_b32 v24, s{sTAG}, v{RR+17}
    """)
    for s_ in range(8):
        a(f"v_xor_b32 v25, s{sTAG}, v{RR+2*s_+1}")
        a("v_or_b32 v24, v24, v25")
    a(f"""
    v_cmp_ne_u32 vcc, 0, v24
    s_cbranch_vccz M_RD
    """)
    red_issue()
    a(f"""
    s_waitcnt vmcnt(0)
    s_sub_u32 s41, s41, 1
    s_cbranch_scc0 M_RP
    M_RD:
    """)
    for s_ in range(8): a(f"v_add_f32 v{RR+16}, v{RR+16}, v{RR+2*s_}")
    a(f"""
    v_cvt_pk_bf16_f32 v24, v{RR+16}, v{RR+16}
    s_sub_u32 s40, s2, {229 + 9}
    s_cmp_lt_u32 s40, 9
    s_cbranch_scc0 M_RNC
    v_lshlrev_b32 v24, 16, v24
    v_add_f32 v24, 1.0, v24
    v_cvt_pk_bf16_f32 v24, v24, v24
    M_RNC:
    s_sub_u32 s40, s2, 229
    s_lshl_b32 s40, s40, 8
    s_add_u32 s40, s40, {WS_PT16}
    v_mov_b32 v26, v24 quad_perm:[1,1,3,3] {DPP_ALL}
    v_lshl_add_u32 v27, v2, 2, s40
    v_mov_b32 v25, s{sTAG}
    v_alignbit_b32 v24, v26, v24, 16
    s_mov_b32 exec_lo, 0x55555555
    s_mov_b32 exec_hi, 0x55555555
    global_store_dwordx2 v27, v[24:25], {P(sWS)} sc1
    s_mov_b64 exec, -1
    M_NRED:
    s_cmp_lg_u32 s3, 5
    s_cbranch_scc1 M_NWR
    v_lshlrev_b32 v24, 4, v2
    s_mov_b32 m0, {L_PT + 3456}
    s_nop 0
    global_load_lds_dwordx4 v24, {P(sWR)}
    s_mov_b64 exec, 0xff
    global_load_lds_dwordx4 v24, {P(sWR)} offset:1024
    s_mov_b64 exec, -1
    M_NWR:
    """)
    a(f"""
    s_add_u32 s50, s3, 5               ; B[w]
    s_add_u32 s51, s3, -3              ; A
    s_add_u32 s52, s3, 7               ; C
    s_add_u32 s53, s3, 10              ; D
    s_cmp_ge_u32 s3, 5
    s_cselect_b32 s50, s53, s50
    s_lshl_b32 s50, s50, 10
    s_lshl_b32 s51, s51, 10
    s_lshl_b32 s52, s52, 10
    s_add_u32 s54, s51, 18432
    s_add_u32 s55, s52, 18432
    s_cmp_lt_u32 s3, 3
    s_cselect_b32 s51, {(L_ZERO - L_PART) & 0xffffffff}, s51
    s_cselect_b32 s52, {(L_ZERO - L_PART) & 0xffffffff}, s52
    s_cselect_b32 s54, {(L_ZERO - L_PART) & 0xffffffff}, s54
    s_cselect_b32 s55, {(L_ZERO - L_PART) & 0xffffffff}, s55
    v_lshlrev_b32 v16, 4, v2
    v_add_u32 v16, {L_PART}, v16
    v_add_u32 v17, s51, v16
    v_add_u32 v18, s52, v16
    v_add_u32 v19, s54, v16
    v_add_u32 v20, s55, v16
    v_add_u32 v16, s50, v16
    s_lshl_b32 s40, s3, 9
    v_add_u32 v3, s40, v3
    ds_read_b64 v[64:65], v{VZ} offset:{L_PRM + 32}
    ds_read_b64 v[66:67], v{VZ} offset:{L_PRM + 48}
    ds_read_b64 v[68:69], v{VZ} offset:{L_PRM + 64}
    ds_read_b64 v[70:71], v{VZ} offset:{L_PRM + 80}
    ds_read_b64 v[72:73], v3
    ds_read_b64 v[74:75], v3 offset:{HB_P}
    s_mul_i32 s40, s3, 1536
    s_add_u32 s40, s40, {L_TAB}
    v_and_b32 v4, 15, v2
    v_mul_u32_u24 v4, 96, v4
    v_lshrrev_b32 v5, 5, v2
    v_mul_u32_u24 v5, 48, v5
    v_and_b32 v6, 16, v2
    v_add3_u32 v4, v4, v5, v6
    v_add_u32 v4, s40, v4
    v_lshrrev_b32 v6, 2, v2
    v_mul_u32_u24 v5, 96, v6
    v_and_b32 v7, 3, v2
    v_mul_u32_u24 v8, 12, v7
    v_add3_u32 v5, v5, v8, s40
    v_lshlrev_b32 v6, 15, v6
    v_lshl_add_u32 v6, v7, 4, v6
    s_lshl_b32 s40, s3, 19
    s_lshl_b32 s41, s2, 6
    s_add_u32 s40, s40, s41
    s_add_u32 s40, s40, {WS_Z2}
    v_add_u32 v6, s40, v6
    v_add_u32 v7, 16384, v6
    v_mov_b32 v119, s{sTAG}
    v_mov_b32 v123, s{sTAG}
    s_waitcnt lgkmcnt(0)
    v_ldexp_f32 v70, v70, v68
    v_ldexp_f32 v71, v71, v69
    """)
    for e in range(4): a(f"v_fma_mix_f32 v{104+e}, v{72+e//2}, v64, 0 op_sel:[{e&1},0,0] op_sel_hi:[1,0,0]")
    for e in range(4): a(f"v_fma_mix_f32 v{108+e}, v{74+e//2}, v65, 0 op_sel:[{e&1},0,0] op_sel_hi:[1,0,0]")
    rnd_pairs(a, [104, 106, 108, 110])
    a(f"""
    v_min_u32 v124, 175, v0
    v_lshlrev_b32 v125, 4, v0
    v_lshlrev_b32 v124, 4, v124
    v_add_u32 v126, {WS_PT16}, v125
    v_add_u32 v127, {WS_PT16 + 4096}, v124
    v_lshrrev_b32 v125, 1, v125
    v_lshrrev_b32 v124, 1, v124
    v_add_u32 v125, {L_PT}, v125
    v_add_u32 v124, {L_PT + 2048}, v124
    s_barrier                          ; B6
    ds_read_b128 v[80:83], v16
    ds_read_b128 v[84:87], v17
    ds_read_b128 v[88:91], v18
    ds_read_b128 v[92:95], v16 offset:18432
    ds_read_b128 v[96:99], v19
    ds_read_b128 v[100:103], v20
    s_cmp_ge_u32 s3, 4
    s_cbranch_scc1 M_NPL
    global_load_dwordx4 v[128:131], v126, {P(sWS)} sc1
    global_load_dwordx4 v[132:135], v127, {P(sWS)} sc1
    M_NPL:
    """)
    if "2a" in HINT: a("s_cmp_lg_u32 s3, 5\ns_cbranch_scc1 M_NH2"); hint_add(a, 0, "H2"); a.label("M_NH2")
    a("s_waitcnt lgkmcnt(3)")
    for e in range(4): a(f"v_add_f32 v{80+e}, v{80+e}, v{84+e}")
    for e in range(4): a(f"v_add_f32 v{80+e}, v{80+e}, v{88+e}")
    a("s_waitcnt lgkmcnt(0)")
    for e in range(4): a(f"v_add_f32 v{84+e}, v{92+e}, v{96+e}")
    for e in range(4): a(f"v_add_f32 v{84+e}, v{84+e}, v{100+e}")
    for e in range(8): a(f"v_mul_f32 v{80+e}, v{70+e//4}, v{80+e}")
    for i in range(4): a(f"v_cvt_pk_bf16_f32 v{88+i}, v{80+2*i}, v{81+2*i}")
    a("v_mov_b32 v62, 0x3f80")
    a("v_mov_b32 v63, 0x3f800000")
    for e in range(8): a(f"v_dot2_f32_bf16 v{80+e}, v{88+e//2}, v{62+(e&1)}, v{104+e}")
    rnd_pairs(a, [80, 82, 84, 86])
    for e in range(8): a(f"v_mul_f32 v{80+e}, v{66+e//4}, v{80+e}")
    for e in range(4): a(f"v_cvt_pk_bf16_f32 v{88+e}, v{80+e}, v{84+e}")
    a(f"""
    ds_write_b128 v4, v[88:91]
    ds_read2_b32 v[116:117], v5 offset0:0 offset1:1
    ds_read_b32 v118, v5 offset:8
    ds_read2_b32 v[120:121], v5 offset0:12 offset1:13
    ds_read_b32 v122, v5 offset:56
    s_waitcnt lgkmcnt(2)
    global_store_dwordx4 v6, v[116:119], {P(sWS)} sc1
    s_waitcnt lgkmcnt(0)
    global_store_dwordx4 v7, v[120:123], {P(sWS)} sc1
    """)
    if "2b" in HINT: a("s_cmp_lg_u32 s3, 0\ns_cbranch_scc1 M_NH2"); hint_add(a, 0, "H2"); a.label("M_NH2")
    stamp(a, 17)
    gen_tail(a)
    return ("ka_kernel", 256, 512, M_LDS, 256, 100, 256)

def dn_touch(a):
    a("s_cmp_ge_u32 s3, 3\ns_cbranch_scc1 T_NT")
    a("""
    s_lshr_b32 s64, s2, 3
    s_mul_i32 s64, s64, 162
    s_mul_i32 s65, s3, 54
    s_add_u32 s64, s64, s65
    s_and_b32 s65, s2, 7
    s_mul_i32 s65, s65, 5184
    s_add_u32 s64, s64, s65
    v_min_u32 v252, 53, v2
    v_add_u32 v252, s64, v252
    v_lshlrev_b32 v252, 7, v252
    """)
    a(f"global_load_dword v250, v252, {P(sWD)}")
    a.label("T_NT")


def hint_add(a, hop, lab):
    a(f"""
    s_lshr_b32 s64, s2, 3
    s_lshl_b32 s64, s64, 7
    s_add_u32 s64, s64, {WS_CNT + hop*32768}
    v_lshlrev_b32 v252, 12, v2
    s_mov_b64 exec, 0xff
    v_add_u32 v252, s64, v252
    global_atomic_add v252, v{VONE}, {P(sWS)} sc1
    s_mov_b64 exec, -1
    """)
def hint_wait(a, hop, lab, bo):
    a(f"""
    s_mov_b32 s64, 200
    s_mov_b32 exec_lo, {-1 if hop == 0 else 0}
    s_mov_b32 exec_hi, {0 if hop == 0 else -1}
    {lab}:
    global_load_dword v252, v253, {P(sWS)} sc1
    s_waitcnt vmcnt(0)
    v_cmp_ne_u32 vcc, v252, v250
    s_cbranch_vccz {lab}D
    s_mov_b64 exec, vcc
    s_sleep {bo}
    s_sub_u32 s64, s64, 1
    s_cbranch_scc0 {lab}
    {lab}D:
    s_mov_b64 exec, -1
    """)

def reduce2(a, A, B):
    for m in [f"row_shr:1 {DPP_ALL} bound_ctrl:0", f"row_shr:2 {DPP_ALL} bound_ctrl:0", f"row_shr:4 {DPP_ALL} bound_ctrl:0", f"row_shr:8 {DPP_ALL} bound_ctrl:0",
              "row_bcast:15 row_mask:0xa bank_mask:0xf", "row_bcast:31 row_mask:0xc bank_mask:0xf"]:
        a(f"v_add_f32 v{A}, v{A}, v{A} {m}")
        if B is not None: a(f"v_add_f32 v{B}, v{B}, v{B} {m}")
        a("s_nop 0" if B is not None else "s_nop 1")

def gen_tail(a):
    XF, C1, SB, GB, WR = 16, 26, 36, 46, 56
    ONES, LO, HI, RC = 61, 62, 63, 15
    Z, X1, P1, T, H2, O = 64, 70, 80, 86, 96, 102
    WG_, WD_ = 136, 176
    ZG, ZA = 192, 208
    sel = lambda e: LO + (e & 1)
    sKEY, sOWN = 47, 48
    GUK = 1
    GUAT = E('F_GU', 'b7')
    PFIRST = int(E('F_PFIRST', '1'))
    PLAN = E("F_PLAN", "B")
    def w_dma(mats):
        a(f"""
        v_lshrrev_b32 v9, 2, v2
        s_mul_i32 s40, s3, 144
        v_add_u32 v9, s40, v9
        v_mul_u32_u24 v9, 9216, v9
        v_and_b32 v8, 3, v2
        v_lshl_add_u32 v9, v8, 4, v9
        s_lshl_b32 s40, s46, 6
        v_add_u32 v9, s40, v9
        s_mul_i32 s50, s3, 9216
        s_mov_b32 s40, {16*9216}
        """)
        for k, m in enumerate(mats):
            a(f"s_add_u32 m0, s50, {L_G if m == 'g' else L_U}")
            a(f"v_mov_b32 v8, v9")
            for i in range(9):
                a(f"global_load_lds_dwordx4 v8, {P(sWG if m == 'g' else sWU)}")
                if i < 8: a("s_add_u32 m0, m0, 1024\nv_add_u32 v8, s40, v8")
    def gu_dma():
        a("s_cmp_ge_u32 s2, 144\ns_cbranch_scc1 T_NGU")
        w_dma("gu" if PLAN == "A" else "g")
        if not PFIRST: a(f"s_waitcnt vmcnt({20 if PLAN == 'A' else 11})\ns_branch T_PP1")
        a.label("T_NGU")
    def dn_dma():
        a('s_cmp_ge_u32 s2, 144\ns_cbranch_scc1 T_NDN\ns_cmp_ge_u32 s3, 4\ns_cbranch_scc1 T_NDN')
        a(f"""
        s_mul_i32 s40, s46, 36864
        s_mul_i32 s51, s3, 9216
        s_add_u32 s40, s40, s51
        s_add_u32 m0, s51, {L_D2}
        v_lshl_add_u32 v9, v2, 4, s40
        """)
        for i in range(9):
            a(f"global_load_lds_dwordx4 v9, {P(sWD)} offset:{1024*(i%3)} {E('F_DFL', '')}")
            if i % 3 == 2 and i < 8: a("s_add_u32 m0, m0, 3072\nv_add_u32 v9, 3072, v9")
        a.label("T_NDN")
    a(f"""
    s_cmp_lg_u32 s3, 5
    s_cbranch_scc1 T_B7
    s_waitcnt vmcnt(2)
    T_B7:
    s_barrier                          ; B7
    s_cmp_ge_u32 s3, 4
    s_cbranch_scc1 T_ZW
    """)
    a(f"""
    s_mov_b32 s41, {SPIN}
    """)
    if not PFIRST: gu_dma()
    a(f"""
    s_waitcnt vmcnt(2)
    s_branch T_PP1
    T_PP:
    global_load_dwordx4 v[128:131], v126, {P(sWS)} sc1
    global_load_dwordx4 v[132:135], v127, {P(sWS)} sc1
    s_waitcnt vmcnt(0)
    T_PP1:
    v_xor_b32 v129, s{sTAG}, v129
    v_xor_b32 v131, s{sTAG}, v131
    v_xor_b32 v133, s{sTAG}, v133
    v_xor_b32 v135, s{sTAG}, v135
    v_or3_b32 v129, v129, v131, v133
    v_or_b32 v129, v129, v135
    v_cmp_ne_u32 vcc, 0, v129
    s_cbranch_vccz T_PD
    s_sub_u32 s41, s41, 1
    s_cbranch_scc0 T_PP
    T_PD:
    ds_write2_b32 v125, v128, v130 offset0:0 offset1:1
    ds_write2_b32 v124, v132, v134 offset0:0 offset1:1
    """)
    signal(a, C_P)
    if PFIRST: gu_dma()
    a(f"""
    s_branch T_COM
    T_ZW:
    s_sub_u32 s40, s3, 4
    s_lshl_b32 s41, s40, 12
    s_lshl_b32 s50, s2, 14
    s_add_u32 s41, s41, s50
    s_add_u32 s41, s41, {WS_Z2}
    v_lshl_add_u32 v{ZA+3}, v2, 4, s41
    s_lshl_b32 s40, s40, 8             ; 4 * 64(w-4)
    v_lshrrev_b32 v64, 2, v2
    v_lshl_add_u32 v65, v64, 2, s40    ; 4p
    v_and_b32 v66, 3, v2               ; g
    v_mul_u32_u24 v67, {3*ZR_P}, v66
    v_add_u32 v{ZA}, v65, v67
    v_add_u32 v{ZA}, {L_ZR}, v{ZA}
    v_add_u32 v{ZA+1}, {ZR_P}, v{ZA}
    v_add_u32 v{ZA+2}, {2*ZR_P}, v{ZA}
    s_lshr_b32 s41, s2, 5
    s_sub_u32 s50, 7, s41
    s_min_u32 s41, s41, s50            ; owner k
    v_and_b32 v67, 3, v64
    v_and_b32 v65, -16, v65            ; (p>>2)*16
    v_add_u32 v65, {L_ZC}, v65
    v_mov_b32 v68, {L_ZC + 1024}
    v_cmp_eq_u32 vcc, s41, v67
    s_nop 1
    v_cndmask_b32 v65, v68, v65, vcc
    v_add_u32 v67, 4, v65
    v_add_u32 v68, 8, v65
    v_add_u32 v69, 12, v65
    v_cmp_eq_u32 vcc, 2, v66
    s_nop 1
    v_cndmask_b32 v{ZA+2}, v{ZA+2}, v65, vcc
    v_cmp_eq_u32 vcc, 3, v66
    s_nop 1
    v_cndmask_b32 v{ZA}, v{ZA}, v67, vcc
    v_cndmask_b32 v{ZA+1}, v{ZA+1}, v68, vcc
    v_cndmask_b32 v{ZA+2}, v{ZA+2}, v69, vcc
    """)
    a.label("T_COM")
    a(f"""
    v_mov_b32 v64, 0
    v_mov_b32 v65, 0
    v_mov_b32 v66, 0
    v_mov_b32 v67, 0
    v_lshlrev_b32 v68, 4, v0
    v_min_u32 v69, 15, v0
    v_lshlrev_b32 v69, 4, v69
    ds_write_b128 v68, v[64:67] offset:{L_LIST}
    ds_write_b128 v69, v[64:67] offset:{L_LIST + 8192}
    v_mov_b32 v{ONES}, 0x3f803f80
    v_mov_b32 v{RC}, {fbits(1.0/576)}
    """)
    for w in range(4): unpk(a, XF+2*w, XF+2*w+1, 10+w)
    a(f"""
    v_lshlrev_b32 v{XF+8}, 16, v14
    v_lshlrev_b32 v4, 4, v2
    v_add_u32 v4, {L_PT}, v4
    v_lshlrev_b32 v5, 1, v2
    v_add_u32 v5, {L_PT + 1024}, v5
    s_mul_i32 s40, s3, {ZR_P}
    s_add_u32 s40, s40, {L_ZR}
    v_lshl_add_u32 v6, v2, 4, s40
    s_lshl_b32 s40, s3, 1
    s_add_u32 s40, s40, {L_ZC}
    v_lshl_add_u32 v7, v2, 4, s40
    """)
    def z_issue():
        for n in range(4): a(f"global_load_dwordx4 {vr(ZG+4*n,4)}, v{ZA+3}, {P(sWS)} offset:{1024*n} sc1")
    stamp(a, 18)
    spin(a, C_P, 4)
    for t, d in ((0, 112), (1, 118), (2, 124)):
        a(f"ds_read_b128 {vr(72+8*t, 4)}, v4 offset:{1152*t}")
        a(f"ds_read_u16 v{76+8*t}, v5 offset:{1152*t}")
    a(f"""
    ds_read_b128 {vr(WR,4)}, v4 offset:3456
    ds_read_u16 v{WR+4}, v5 offset:3456
    s_waitcnt lgkmcnt(4)
    """)
    for w in range(4): unpk(a, SB+2*w, SB+2*w+1, 72+w)
    a(f"v_lshlrev_b32 v{SB+8}, 16, v76")
    for w in range(4):
        a(f"v_and_b32 v{C1+2*w}, 0xffff, v{80+w}")
        a(f"v_and_b32 v{C1+2*w+1}, 0xffff0000, v{80+w}")
    a(f"v_mov_b32 v{C1+8}, v84")
    a("s_waitcnt lgkmcnt(2)")
    for w in range(4):
        a(f"v_and_b32 v{GB+2*w}, 0xffff, v{88+w}")
        a(f"v_and_b32 v{GB+2*w+1}, 0xffff0000, v{88+w}")
    a(f"""
    v_mov_b32 v{GB+8}, v92
    s_cmp_lt_u32 s3, 4
    s_cbranch_scc1 T_B9
    s_mov_b32 s41, {SPIN}
    """)
    if "2" in HINT:
        a("s_cmp_lg_u32 s3, 7\ns_cbranch_scc1 T_H2S")
        hint_wait(a, 0, "T_H2W", int(E("HBO", "6")))
        signal(a, C_KP + 8)
        a("s_branch T_ZP1")
        a.label("T_H2S")
        spin(a, C_KP + 8, 1)
        a("s_branch T_ZP1")
    a(f"""
    s_waitcnt vmcnt(0)
    T_ZP:
    s_sleep {BO_Z}
    T_ZP1:
    """)
    z_issue()
    a(f"""
    s_waitcnt vmcnt(0)
    s_mov_b64 exec, -1
    v_xor_b32 v64, s{sTAG}, v{ZG+3}
    v_xor_b32 v65, s{sTAG}, v{ZG+7}
    v_xor_b32 v66, s{sTAG}, v{ZG+11}
    v_xor_b32 v67, s{sTAG}, v{ZG+15}
    v_or3_b32 v64, v64, v65, v66
    v_or_b32 v64, v64, v67
    v_cmp_ne_u32 vcc, 0, v64
    s_cbranch_vccz T_ZD
    s_mov_b64 exec, vcc
    s_sub_u32 s41, s41, 1
    s_cbranch_scc0 T_ZP
    s_mov_b64 exec, -1
    T_ZD:
    """)
    stamp(a, 19)
    for n in (0, 2):
        for s_ in range(3): a(f"ds_write2_b32 v{ZA+s_}, v{ZG+4*n+s_}, v{ZG+4*n+4+s_} offset0:{16*n} offset1:{16*n+16}")
    a(f"""
    T_B9:
    s_waitcnt lgkmcnt(0)
    s_barrier                          ; B9
    ds_read_b128 {vr(Z,4)}, v6
    ds_read_u16 v{Z+4}, v7
    s_waitcnt lgkmcnt(0)
    """)
    stamp(a, 20)
    if "3a" in HINT: a("s_cmp_lg_u32 s3, 5\ns_cbranch_scc1 T_NH3"); hint_add(a, 1, "H3"); a.label("T_NH3")
    if PLAN == "A": dn_dma()
    else:
        a("s_cmp_ge_u32 s2, 144\ns_cbranch_scc1 T_NUP\ns_cmp_ge_u32 s3, 4\ns_cbranch_scc1 T_NUP")
        w_dma("u")
        a.label("T_NUP")
        dn_touch(a)
    def pack(dst, src):
        for i in range(4): a(f"v_cvt_pk_bf16_f32 v{dst+i}, v{src+2*i}, v{src+2*i+1}")
        a(f"v_cvt_pk_bf16_f32 v{dst+4}, v{src+8}, 0")
    def dots(dst, src, bf, cf):
        for e in (8, 0, 1, 2, 3, 4, 5, 6, 7): a(f"v_dot2_f32_bf16 v{dst+e}, v{src+e//2}, {bf(e)}, {cf(e)}")
    vsel = lambda e: f"v{sel(e)}"
    dots(X1, Z, vsel, lambda e: f"v{XF+e}")
    pack(P1, X1)
    ln_core(a, P1, X1, T, ONES, LO, RC, "T_FAST")
    if "3b" in HINT: a("s_cmp_lg_u32 s3, 5\ns_cbranch_scc1 T_NH3"); hint_add(a, 1, "H3"); a.label("T_NH3")
    pack(Z, X1)
    dots(X1, Z, lambda e: f"v{C1+e}", lambda e: "0")
    pack(Z, X1)
    dots(X1, Z, vsel, lambda e: f"v{SB+e}")
    pack(H2, X1)
    for i in range(5): a(f"v_dot2_f32_bf16 v{T}, v{H2+i}, v{WR+i}, {'0' if i == 0 else 'v%d' % T}")
    a(f"""
    s_lshl_b32 s40, s2, 3
    s_add_u32 s40, s40, s3
    s_sub_u32 s40, 0xffff, s40
    """)
    reduce2(a, T, None)
    a(f"""
    v_cvt_pk_bf16_f32 v{T}, v{T}, v{T}
    s_lshl_b32 s41, s3, 3
    v_mov_b32 v{T+2}, s41
    v_readlane_b32 s{sKEY}, v{T}, 63
    v_mov_b32 v{T+1}, s{sTAG}
    s_and_b32 s{sKEY}, s{sKEY}, 0xffff0000
    s_ashr_i32 s41, s{sKEY}, 31
    s_or_b32 s41, s41, 0x80000000
    s_xor_b32 s{sKEY}, s{sKEY}, s41
    s_and_b32 s{sKEY}, s{sKEY}, 0xffff0000
    s_or_b32 s{sKEY}, s{sKEY}, s40
    v_mov_b32 v{T}, s{sKEY}
    s_mov_b64 exec, 1
    ds_write_b64 v{T+2}, {vr(T,2)} offset:{L_CNT + C_KEYS}
    ds_add_u32 v{VZ}, v{VONE} offset:{L_CNT + C_KEY}
    s_mov_b64 exec, -1
    v_and_b32 v4, 3, v2
    v_lshlrev_b32 v4, 4, v4
    v_lshrrev_b32 v5, 2, v2
    v_lshlrev_b32 v5, 14, v5
    s_lshl_b32 s41, s2, 6
    s_add_u32 s41, s41, {WS_KEY}
    v_add3_u32 v5, v5, v4, s41
    s_mov_b32 s41, s3
    s_cmp_lg_u32 s3, 7
    s_cbranch_scc1 T_NK
    T_KS:
    ds_read_b32 v{T+3}, v{VZ} offset:{L_CNT + C_KEY}
    ds_read_b128 v[108:111], v4 offset:{L_CNT + C_KEYS}
    s_waitcnt lgkmcnt(0)
    v_readfirstlane_b32 s94, v{T+3}
    s_cmp_ge_u32 s94, 8
    s_cbranch_scc0 T_KS
    {"s_mov_b32 exec_hi, 0" if NREP == 8 else ("" if NREP == 16 else "s_mov_b64 exec, %s" % hex((1 << (4*NREP)) - 1))}
    s_waitcnt lgkmcnt(0)
    global_store_dwordx4 v5, v[108:111], {P(sWS)} sc1
    s_mov_b64 exec, -1
    T_NK:
    """)
    stamp(a, 21)
    if DNAT == "kp":
        k0_ = len(a.lines); dn_touch(a)
    dots(X1, H2, lambda e: f"v{GB+e}", lambda e: "0")
    for w in range(4): unpk(a, XF+2*w, XF+2*w+1, P1+w)
    a(f"v_lshlrev_b32 v{XF+8}, 16, v{P1+4}")
    pack(Z, X1)
    dots(X1, Z, vsel, lambda e: f"v{XF+e}")
    a(f"""
    s_and_b32 s40, s2, {NREP-1}
    s_lshl_b32 s40, s40, 14
    s_lshl_b32 s50, s3, 11
    s_add_u32 s40, s40, s50
    s_add_u32 s40, s40, {WS_KEY}
    v_lshl_add_u32 v6, v2, 4, s40
    """)
    pack(O, X1)
    a(f"""
    s_cmp_lg_u32 s41, 7
    s_cbranch_scc1 T_NK2
    """)
    if "3" in HINT: hint_wait(a, 1, "T_H3W", int(E("HBO", "6")))
    else: a("s_waitcnt vmcnt(0)")
    signal(a, C_KP)
    a(f"""
    T_NK2:
    """)
    KK = 108
    OLATE = int(E('F_OLATE', '0'))
    DNP = E("F_DNP", "k")
    a(f"""
    s_cmp_ge_u32 s2, 144
    s_cbranch_scc1 T_NW
    s_cmp_ge_u32 s3, 4
    s_cbranch_scc1 T_W2
    s_waitcnt vmcnt({9 if PLAN == "A" else 0})
    """)
    signal(a, C_KP + 4)
    a(f"""
    T_W2:
    v_bfe_u32 v7, v2, 2, 2             ; r
    v_lshrrev_b32 v8, 4, v2            ; q
    v_lshl_add_u32 v7, v8, 3, v7       ; 8q + r
    v_and_b32 v8, 3, v2
    v_lshlrev_b32 v8, 3, v8            ; 8c
    v_mul_u32_u24 v21, 1152, v7
    v_add_u32 v21, v21, v8
    s_lshl_b32 s40, s3, 5
    s_add_u32 s40, s40, {L_D2}
    v_add_u32 v21, s40, v21
    v_lshl_add_u32 v7, v7, 6, v8
    s_lshr_b32 s40, s3, 1
    s_mul_i32 s50, s40, 5
    s_cmp_eq_u32 s40, 3
    s_cselect_b32 s50, 14, s50
    s_lshl_b32 s51, s50, 11
    s_and_b32 s40, s3, 1
    s_lshl_b32 s40, s40, 5
    s_add_u32 s40, s40, s51
    s_add_u32 s40, s40, {L_U}
    v_add_u32 v7, s40, v7
    v_add_u32 v8, {L_G - L_U}, v7
    """)
    spin(a, C_KP + 4, 4)
    stamp(a, 30)
    for i in range(5):
        a(f"ds_read_b64_tr_b16 {vr(WG_+8*i,2)}, v8 offset:{2048*i}")
        a(f"ds_read_b64_tr_b16 {vr(WG_+8*i+2,2)}, v8 offset:{2048*i + 256}")
        a(f"ds_read_b64_tr_b16 {vr(WG_+8*i+4,2)}, v7 offset:{2048*i}")
        a(f"ds_read_b64_tr_b16 {vr(WG_+8*i+6,2)}, v7 offset:{2048*i + 256}")
    if DNP == "k": dn_dma()
    a.label("T_NW")
    def dn_tr(v):
        for i in range(5):
            a(f"ds_read_b64_tr_b16 {vr(WD_+4*i,2)}, v{v} offset:{256*i}")
            a(f"ds_read_b64_tr_b16 {vr(WD_+4*i+2,2)}, v{v} offset:{256*i + 4608}")
    def k_issue():
        for i in range(2): a(f"global_load_dwordx4 {vr(KK+4*i,4)}, v6, {P(sWS)} offset:{1024*i} sc1")
    a(f"""
    v_and_b32 v4, 3, v2
    v_lshlrev_b32 v4, 3, v4
    s_lshl_b32 s77, s3, 2
    s_add_u32 s77, s77, {L_LIST}
    v_lshlrev_b32 v5, 5, v2
    s_mov_b32 s41, {SPIN}
    """)
    spin(a, C_KP, 1)
    stamp(a, 22)
    if "3" in HINT: a("s_branch T_KP1")
    elif int(E("F_DSK", "1")): a("s_cmp_lt_u32 s2, 144\ns_cbranch_scc1 T_KP1")
    a(f"T_KP:\ns_sleep {BO_K}\nT_KP1:")
    k_issue()
    a(f"""
    s_waitcnt vmcnt(0)
    s_mov_b64 exec, -1
    v_xor_b32 v64, s{sTAG}, v{KK+1}
    v_xor_b32 v65, s{sTAG}, v{KK+3}
    v_xor_b32 v66, s{sTAG}, v{KK+5}
    v_xor_b32 v67, s{sTAG}, v{KK+7}
    v_or3_b32 v64, v64, v65, v66
    v_or_b32 v64, v64, v67
    v_cmp_ne_u32 vcc, 0, v64
    s_cbranch_vccz T_KD
    s_mov_b64 exec, vcc
    s_sub_u32 s41, s41, 1
    s_cbranch_scc0 T_KP
    s_mov_b64 exec, -1
    T_KD:
    """)
    stamp(a, 23)
    a(f"""
    v_max_u32 v64, v{KK}, v{KK+4}
    v_max_u32 v65, v{KK+2}, v{KK+6}
    s_nop 0
    v_max_u32 v64, v64, v64 row_shr:4 {DPP_ALL} bound_ctrl:0
    v_max_u32 v65, v65, v65 row_shr:4 {DPP_ALL} bound_ctrl:0
    s_nop 0
    v_max_u32 v64, v64, v64 row_shr:8 {DPP_ALL} bound_ctrl:0
    v_max_u32 v65, v65, v65 row_shr:8 {DPP_ALL} bound_ctrl:0
    s_mov_b32 exec_lo, 0xf000f000
    s_mov_b32 exec_hi, 0xf000f000
    ds_max_u32 v4, v64 offset:{L_CNT + C_MX}
    ds_max_u32 v4, v65 offset:{L_CNT + C_MX + 4}
    s_mov_b64 exec, -1
    s_waitcnt lgkmcnt(0)
    s_barrier                          ; B10
    ds_read_b128 v[64:67], v{VZ} offset:{L_CNT + C_MX}
    ds_read_b128 v[68:71], v{VZ} offset:{L_CNT + C_MX + 16}
    s_waitcnt lgkmcnt(0)
    v_min3_u32 v64, v64, v65, v66
    v_min3_u32 v68, v68, v69, v70
    v_min3_u32 v64, v64, v67, v71
    v_min_u32 v64, v64, v68
    s_mov_b32 s74, 0
    """)
    for i in range(4): a(f"v_cmp_ge_u32 s[{66+2*i}:{67+2*i}], v{KK+2*i}, v64")
    for i in range(4):
        l = a.newlabel("CK")
        a(f"""
        s_mov_b64 exec, s[{66+2*i}:{67+2*i}]
        s_cbranch_execz {l}
        v_mov_b32 v68, s74
        v_mbcnt_lo_u32_b32 v68, s{66+2*i}, v68
        v_mbcnt_hi_u32_b32 v68, s{67+2*i}, v68
        s_bcnt1_i32_b64 s75, exec
        v_lshl_add_u32 v68, v68, 5, s77
        s_add_u32 s74, s74, s75
        ds_write_b32 v68, v{KK+2*i}
        {l}:
        """)
    a(f"""
    s_mov_b64 exec, 1
    v_mov_b32 v65, s74
    ds_max_u32 v{VZ}, v65 offset:{L_CNT + C_N}
    s_mov_b64 exec, -1
    s_mov_b32 s{sOWN}, 0
    s_mov_b32 s76, 0
    s_waitcnt lgkmcnt(0)
    s_barrier                          ; B11
    ds_read_b32 v72, v{VZ} offset:{L_CNT + C_N}
    T_OUT:
    ds_read_b128 v[64:67], v5 offset:{L_LIST}
    ds_read_b128 v[68:71], v5 offset:{L_LIST + 16}
    v_add_u32 v5, 2048, v5
    s_add_u32 s76, s76, 64
    s_waitcnt lgkmcnt(1)
    v_readfirstlane_b32 s74, v72
    """)
    for i in range(4): a(f"v_cmp_lt_u32 s[{66+2*i}:{67+2*i}], s{sKEY}, v{64+i}")
    a("s_waitcnt lgkmcnt(0)")
    for i in range(4): a(f"v_cmp_lt_u32 s[{80+2*i}:{81+2*i}], s{sKEY}, v{68+i}")
    for i, r in enumerate((66, 68, 70, 72, 80, 82, 84, 86)):
        a(f"s_bcnt1_i32_b64 s75, s[{r}:{r+1}]")
        a(f"s_add_u32 s{sOWN}, s{sOWN}, s75")
    a(f"""
    s_min_u32 s74, s74, 256
    s_cmp_lt_u32 s76, s74
    s_cbranch_scc1 T_OUT
    """)
    stamp(a, 24)
    a(f"""
    s_lshl_b32 s40, s2, 3
    s_add_u32 s40, s40, s3
    s_mul_i32 s40, s40, 1152
    v_mov_b32 v18, 0
    v_mov_b32 v19, 0
    s_cmp_lt_u32 s{sOWN}, 8
    s_cbranch_scc0 T_STO
    ; selected row: publish h2 and x1
    s_mul_i32 s40, s{sOWN}, 3200
    s_add_u32 s40, s40, {WS_ROW}
    v_lshl_add_u32 v4, v2, 4, s40
    v_mov_b32 v64, v{H2+3}
    v_mov_b32 v65, v{P1+3}
    v_lshl_or_b32 v66, v{P1+4}, 16, v{H2+4}
    v_mov_b32 v67, s{sTAG}
    v_mov_b32 v{H2+3}, s{sTAG}
    v_mov_b32 v{P1+3}, s{sTAG}
    v_mov_b32 v68, s{sKEY}
    v_mov_b32 v69, s{sTAG}
    v_mov_b32 v70, s{sKEY}
    v_mov_b32 v71, s{sTAG}
    """)
    RH = int(E("F_RH", "0"))
    for r_ in range(RREP):
        kst = f"s_mov_b64 exec, 0xff\nglobal_store_dwordx4 v4, v[68:71], {P(sWS)} offset:3072 sc1\ns_mov_b64 exec, -1"
        if RH == 1: a(kst)
        a(f"global_store_dwordx4 v4, {vr(H2,4)}, {P(sWS)} sc1")
        a(f"global_store_dwordx4 v4, v[64:67], {P(sWS)} offset:1024 sc1")
        a(f"global_store_dwordx4 v4, {vr(P1,4)}, {P(sWS)} offset:2048 sc1")
        if RH != 1: a(kst)
        if r_ < RREP - 1: a("v_add_u32 v4, 25600, v4")
    a(f"""
    s_branch T_STD
    T_STO:
    v_lshl_add_u32 v18, v2, 4, s40
    v_lshl_add_u32 v19, v2, 1, s40
    {"s_cmp_lt_u32 s2, 144" if OLATE else ""}
    {"s_cbranch_scc1 T_STD" if OLATE else ""}
    global_store_dwordx4 v18, {vr(O,4)}, {P(sOUT)} {E('F_OST', '')}
    global_store_short v19, v{O+4}, {P(sOUT)} offset:1024 {E('F_OST', '')}
    T_STD:
    s_cmp_ge_u32 s2, 144
    s_cbranch_scc1 T_END
    s_mul_i32 s40, s3, 3200
    s_lshr_b32 s41, s2, 3
    s_and_b32 s41, s41, {RREP-1}
    s_mul_i32 s41, s41, 25600
    s_add_u32 s40, s40, s41
    s_add_u32 s40, s40, {WS_ROW}
    v_lshl_add_u32 v4, v2, 4, s40
    v_mov_b32 v22, s40
    s_lshl_b32 s40, s3, 2
    v_mov_b32 v23, s40
    s_mul_i32 s40, s3, {SR_P}
    s_add_u32 s40, s40, {L_SH}
    v_lshl_add_u32 v5, v2, 4, s40
    v_lshl_add_u32 v6, v2, 1, s40
    s_mov_b32 s41, {SPIN}
    """)
    if DNP == "r": dn_dma()
    a(f"""
    v_and_b32 v7, 7, v2
    v_mul_u32_u24 v17, 80, v7
    v_mul_u32_u24 v7, {SR_P}, v7
    v_and_b32 v8, 0x30, v2
    v_add_u32 v17, v17, v8
    s_lshl_b32 s40, s50, 6
    s_add_u32 s40, s40, {L_SH}
    v_add3_u32 v7, v7, v8, s40
    s_lshl_b32 s40, s3, 10
    s_add_u32 s40, s40, {L_GP}
    v_lshl_add_u32 v8, v2, 4, s40
    v_and_b32 v9, 1, v2
    v_lshlrev_b32 v9, 9, v9
    v_bfe_u32 v16, v2, 1, 4
    v_lshl_add_u32 v9, v16, 4, v9
    v_lshrrev_b32 v16, 5, v2
    v_lshl_add_u32 v9, v16, 10, v9
    s_lshr_b32 s40, s3, 2
    s_lshl_b32 s40, s40, 8
    s_and_b32 s51, s3, 3
    s_lshl_b32 s51, s51, 2
    s_add_u32 s40, s40, s51
    s_add_u32 s40, s40, {L_GP}
    v_add_u32 v9, s40, v9
    s_mul_i32 s40, s3, 80
    v_and_b32 v16, -2, v2
    v_add_u32 v16, s40, v16
    """)
    if RH: a(f"""
    T_RH:
    global_load_dwordx2 v[80:81], v22, {P(sWS)} offset:3072 sc1
    s_waitcnt vmcnt(0)
    v_cmp_ne_u32 vcc, s{sTAG}, v81
    s_cbranch_vccz T_RP1
    s_sleep {E("RHB", "2")}
    s_sub_u32 s41, s41, 1
    s_cbranch_scc0 T_RH
    """)
    a(f"""
    T_RP:
    s_sleep {BO_R}
    T_RP1:
    global_load_dwordx4 v[64:67], v4, {P(sWS)} sc1
    global_load_dwordx4 v[68:71], v4, {P(sWS)} offset:1024 sc1
    global_load_dwordx4 v[72:75], v4, {P(sWS)} offset:2048 sc1
    {"" if RH else "global_load_dwordx2 v[80:81], v22, %s offset:3072 sc1" % P(sWS)}
    s_waitcnt vmcnt(0)
    v_xor_b32 v76, s{sTAG}, v67
    v_xor_b32 v77, s{sTAG}, v71
    v_xor_b32 v78, s{sTAG}, v75
    v_xor_b32 v79, s{sTAG}, v81
    v_or3_b32 v76, v76, v77, v78
    v_or_b32 v76, v76, v79
    v_cmp_ne_u32 vcc, 0, v76
    s_cbranch_vccz T_RD
    s_sub_u32 s41, s41, 1
    s_cbranch_scc0 T_RP
    T_RD:
    v_mov_b32 v67, v68
    v_mov_b32 v75, v69
    ds_write_b128 v5, v[64:67]
    ds_write_b16 v6, v70 offset:1024
    ds_write_b128 v5, v[72:75] offset:{L_SX - L_SH}
    ds_write_b16_d16_hi v6, v70 offset:{L_SX - L_SH + 1024}
    ds_write_b32 v23, v80 offset:{L_CNT + C_SEL}
    s_waitcnt lgkmcnt(3)
    """)
    stamp(a, 25)
    if OLATE: a(f"""
    s_cmp_lt_u32 s{sOWN}, 8
    s_cbranch_scc1 T_NO2
    global_store_dwordx4 v18, {vr(O,4)}, {P(sOUT)} {E('F_OST', '')}
    global_store_short v19, v{O+4}, {P(sOUT)} offset:1024 {E('F_OST', '')}
    T_NO2:
    """)
    a("s_barrier                          ; B12")
    AF = 64; AG, AU = 84, 88
    for i in range(5): a(f"ds_read_b128 {vr(AF+4*i,4)}, v7 offset:{64*i}")
    for i in range(5):
        if i == 4: a("s_cmp_ge_u32 s3, 4"); a("s_cbranch_scc1 T_G4")
        a(f"s_waitcnt lgkmcnt({4-i})")
        a(f"v_mfma_f32_16x16x32_bf16 {vr(AG,4)}, {vr(AF+4*i,4)}, {vr(WG_+8*i,4)}, {'0' if i == 0 else vr(AG,4)}")
        a(f"v_mfma_f32_16x16x32_bf16 {vr(AU,4)}, {vr(AF+4*i,4)}, {vr(WG_+8*i+4,4)}, {'0' if i == 0 else vr(AU,4)}")
    a(f"""
    T_G4:
    v_lshrrev_b32 v18, 5, v2
    v_lshlrev_b32 v18, 5, v18
    v_bfe_u32 v19, v2, 3, 2
    v_add_u32 v18, v18, v19
    s_lshl_b32 s40, s3, 2
    v_add_u32 v18, s40, v18
    v_mul_u32_u24 v18, {144*128}, v18
    s_mov_b32 exec_hi, 0
    ds_write_b128 v8, {vr(AG,4)}
    ds_write_b128 v8, {vr(AU,4)} offset:512
    s_mov_b64 exec, -1
    """)
    dn_tr(21)
    a(f"""
    v_and_b32 v19, 7, v2
    v_lshl_add_u32 v18, v19, 4, v18
    s_lshl_b32 s40, s2, 7
    s_add_u32 s40, s40, {WS_PT}
    v_add_u32 v18, s40, v18
    v_add_u32 v19, {64*144*128}, v18
    v_add_u32 v20, {128*144*128}, v18
    s_waitcnt lgkmcnt(10)
    s_barrier                          ; B13
    ds_read_b32 v64, v9
    ds_read_b32 v65, v9 offset:2048
    ds_read_b32 v66, v9 offset:4096
    ds_read_b32 v67, v9 offset:6144
    """)
    NX = 0
    a(f"""
    s_mov_b32 s52, 0x05030201
    s_mov_b32 s53, 0x06050302
    s_mov_b32 s54, 0x07060503
    v_mov_b32 v71, s{sTAG}
    v_mov_b32 v75, s{sTAG}
    v_mov_b32 v79, s{sTAG}
    s_waitcnt lgkmcnt({2 + NX})
    v_add_f32 v64, v64, v65
    s_waitcnt lgkmcnt({NX})
    v_add_f32 v66, v66, v67
    v_add_f32 v64, v64, v66
    v_cvt_pk_bf16_f32 v64, v64, v64
    v_lshlrev_b32 v64, 16, v64
    v_mul_f32 v65, {fbits(-LOG2E)}, v64
    v_exp_f32 v65, v65
    s_nop 0
    v_add_f32 v65, 1.0, v65
    v_rcp_f32 v65, v65
    s_nop 0
    v_mul_f32 v65, v64, v65
    v_cvt_pk_bf16_f32 v65, v65, v65
    v_lshlrev_b32 v65, 16, v65
    s_nop 0
    v_mul_f32 v65, v64, v65 quad_perm:[1,1,3,3] {DPP_ALL}
    v_cvt_pk_bf16_f32 v65, v65, v65
    s_mov_b32 exec_lo, 0x55555555
    s_mov_b32 exec_hi, 0x55555555
    ds_write_b16 v16, v65 offset:{L_ACT}
    s_mov_b64 exec, -1
    s_waitcnt lgkmcnt(0)
    s_barrier                          ; B14
    ds_read_b128 v[64:67], v17 offset:{L_ACT}
    s_waitcnt lgkmcnt(0)
    """)
    stamp(a, 26)
    DA = 80
    for i in range(5): a(f"v_mfma_f32_16x16x32_bf16 {vr(DA+4*i,4)}, v[64:67], {vr(WD_+4*i,4)}, 0")
    a(f"""
    s_mul_i32 s40, s2, {144*128}
    s_add_u32 s40, s40, {WS_PT}
    v_lshl_add_u32 v4, v0, 4, s40
    v_add_u32 v5, 8192, v4
    v_add_u32 v6, 16384, v4
    s_nop 0
    """)
    def p24(d, s_):
        a(f"v_perm_b32 v{d}, v{s_+1}, v{s_}, s52")
        a(f"v_perm_b32 v{d+1}, v{s_+2}, v{s_+1}, s53")
        a(f"v_perm_b32 v{d+2}, v{s_+3}, v{s_+2}, s54")
    for r_ in range(4): a(f"v_permlane32_swap_b32 v{DA+r_}, v{DA+4+r_}")
    p24(68, DA)
    a(f"global_store_dwordx4 v18, v[68:71], {P(sWS)} sc1")
    for r_ in range(4): a(f"v_permlane32_swap_b32 v{DA+8+r_}, v{DA+12+r_}")
    p24(72, DA+8)
    a(f"global_store_dwordx4 v19, v[72:75], {P(sWS)} sc1")
    a("s_cmp_ge_u32 s3, 4")
    a("s_cbranch_scc1 T_NS3")
    p24(76, DA+16)
    a(f"""
    s_mov_b32 exec_hi, 0
    global_store_dwordx4 v20, v[76:79], {P(sWS)} sc1
    s_mov_b64 exec, -1
    T_NS3:
    """)
    stamp(a, 27)
    a(f"""
    s_cmp_lg_u32 s3, 7
    s_cbranch_scc1 T_NF
    s_lshr_b32 s40, s2, 2
    s_lshl_b32 s40, s40, 4
    s_and_b32 s41, s2, 1
    s_lshl_b32 s41, s41, 3
    s_add_u32 s40, s40, s41
    v_and_b32 v24, 7, v2
    v_add_u32 v24, s40, v24
    v_lshlrev_b32 v24, 1, v24          ; 2d
    v_bfe_u32 v25, v2, 3, 2
    s_and_b32 s41, s2, 2
    s_lshl_b32 s41, s41, 1
    v_add_u32 v25, s41, v25            ; row
    v_lshlrev_b32 v26, 2, v25
    v_mul_u32_u24 v25, {SR_P}, v25
    v_add_u32 v25, v25, v24
    v_add_u32 v27, {L_PT + 2304}, v24
    ds_read_b32 v28, v26 offset:{L_CNT + C_SEL}
    ds_read_u16 v29, v25 offset:{L_SH}
    ds_read_u16 v30, v25 offset:{L_SX}
    ds_read_u16 v31, v27
    s_waitcnt lgkmcnt(0)
    v_and_b32 v32, 0xffff, v28
    v_sub_u32 v32, 0xffff, v32
    v_min_u32 v32, 2047, v32
    v_mul_u32_u24 v32, 1152, v32
    v_add_u32 v32, v32, v24
    v_ashrrev_i32 v33, 31, v28
    v_not_b32 v33, v33
    v_or_b32 v33, 0x80000000, v33
    v_xor_b32 v33, v33, v28
    v_and_b32 v33, 0xffff0000, v33     ; r
    v_mul_f32 v33, {fbits(-LOG2E)}, v33
    v_exp_f32 v33, v33
    v_lshlrev_b32 v29, 16, v29
    v_add_f32 v33, 1.0, v33
    v_rcp_f32 v33, v33
    v_lshlrev_b32 v30, 16, v30
    v_cvt_pk_bf16_f32 v33, v33, v33
    v_lshlrev_b32 v33, 16, v33
    v_lshlrev_b32 v31, 16, v31
    s_cmp_lg_u32 s2, 0
    s_cbranch_scc1 T_NF
    ; epoch update: every workgroup read the epoch before its first publication, which this workgroup has consumed
    v_mov_b32 v34, {WS_EPOCH}
    v_mov_b32 v35, s{sTAG}
    s_mov_b64 exec, 1
    global_store_dword v34, v35, {P(sWS)}
    s_mov_b64 exec, -1
    T_NF:
    s_mov_b32 s52, 0x0201000c
    s_mov_b32 s53, 0x0504030c
    s_mov_b32 s54, 0x0403020c
    s_mov_b32 s55, 0x0302010c
    v_mov_b32 v107, s{sTAG}
    v_mov_b32 v104, 0
    v_mov_b32 v105, 0
    v_mov_b32 v106, 0
    v_bfe_u32 v7, v2, 4, 2
    v_lshlrev_b32 v7, 5, v7
    v_and_b32 v8, 7, v2
    v_lshl_add_u32 v7, v8, 2, v7
    s_lshl_b32 s40, s3, 7
    v_add_u32 v7, s40, v7
    s_mov_b32 s41, {SPIN}
    s_waitcnt vmcnt(0)
    T_GP:
    s_sleep {BO_G}
    global_load_dwordx4 v[96:99], v4, {P(sWS)} sc1
    global_load_dwordx4 v[100:103], v5, {P(sWS)} sc1
    s_cmp_ge_u32 s3, 2
    s_cbranch_scc1 T_G3
    global_load_dwordx4 v[104:107], v6, {P(sWS)} sc1
    T_G3:
    s_waitcnt vmcnt(0)
    s_mov_b64 exec, -1
    v_xor_b32 v64, s{sTAG}, v99
    v_xor_b32 v65, s{sTAG}, v103
    v_xor_b32 v66, s{sTAG}, v107
    v_or3_b32 v64, v64, v65, v66
    v_cmp_ne_u32 vcc, 0, v64
    s_cbranch_vccz T_GD
    s_mov_b64 exec, vcc
    s_sub_u32 s41, s41, 1
    s_cbranch_scc0 T_GP
    s_mov_b64 exec, -1
    T_GD:
    """)
    stamp(a, 28)
    for n in range(3):
        g = 96 + 4*n; d = 64 + 4*n
        a(f"v_perm_b32 v{d}, v{g}, v{g}, s52")
        a(f"v_perm_b32 v{d+1}, v{g+1}, v{g}, s53")
        a(f"v_perm_b32 v{d+2}, v{g+2}, v{g+1}, s54")
        a(f"v_perm_b32 v{d+3}, v{g+2}, v{g+2}, s55")
    for e in range(4): a(f"v_add_f32 v{64+e}, v{64+e}, v{68+e}")
    for e in range(4): a(f"v_add_f32 v{64+e}, v{64+e}, v{72+e}")
    a(f"""
    s_nop 1
    v_permlane32_swap_b32 v64, v66
    v_permlane32_swap_b32 v65, v67
    v_add_f32 v64, v64, v66
    v_add_f32 v65, v65, v67
    s_nop 1
    v_permlane16_swap_b32 v64, v65
    v_add_f32 v64, v64, v65
    s_nop 1
    v_add_f32 v64, v64, v64 row_shl:8 row_mask:0xf bank_mask:0x3
    s_mov_b32 exec_lo, 0x00ff00ff
    s_mov_b32 exec_hi, 0x00ff00ff
    ds_write_b32 v7, v64 offset:{L_RED}
    s_mov_b64 exec, -1
    v_lshlrev_b32 v8, 2, v2
    s_waitcnt lgkmcnt(0)
    s_barrier                          ; B15
    s_cmp_lg_u32 s3, 7
    s_cbranch_scc1 T_END
    """)
    for w in range(8): a(f"ds_read_b32 v{64+w}, v8 offset:{L_RED + 128*w}")
    a("s_waitcnt lgkmcnt(4)")
    a("v_add_f32 v64, v64, v65"); a("v_add_f32 v66, v66, v67")
    a("s_waitcnt lgkmcnt(0)")
    a("v_add_f32 v68, v68, v69"); a("v_add_f32 v70, v70, v71")
    a("v_add_f32 v64, v64, v66"); a("v_add_f32 v68, v68, v70"); a("v_add_f32 v64, v64, v68")
    rnd1(a, 64); a("v_mul_f32 v64, v64, v33")
    rnd1(a, 64); a("v_add_f32 v64, v64, v29")
    rnd1(a, 64); a("v_mul_f32 v64, v64, v31")
    rnd1(a, 64); a("v_add_f32 v64, v64, v30")
    a(f"""
    v_cvt_pk_bf16_f32 v64, v64, v64
    s_mov_b32 exec_hi, 0
    global_store_short v32, v64, {P(sOUT)}
    """)
    if int(E("F_DBG", "0")): a(f"""
    s_cmp_ge_u32 s2, 4
    s_cbranch_scc1 T_END
    v_lshlrev_b32 v26, 0, v26
    v_add_u32 v26, {WS_SEL}, v26
    global_store_dword v26, v28, {P(sWS)}
    """)
    a.label("T_END")
    diag_end(a)
    stamp_flush(a, 29, 0)
    a.label("M_END")
    a("s_endpgm")
```

```python
from nc import *
import re
KG_PITCH = 272
KG_STAGE = 16 * KG_PITCH
L_PRM = 0
L_ZERO = 512
L_STG = 1536
L_PART = 1536
L_LNR = L_STG + 25600
L_CB = L_LNR + 4 * 2592
KC_P = 4160
L_KC2 = L_CB + 1024
L_STG2 = L_KC2
L_HB = L_KC2 + 4 * KC_P
HB_P = 4608
L_TAB = 69120
TP = 2816
L_KC = L_TAB + 6 * TP
L_DN = L_KC + 8 * KC_P
L_PT = L_DN + 36864
M_LDS = L_PT + 4608
L_GU = L_DN - 73728
L_G, L_U, L_D2 = L_DN, L_GU, L_GU + 36864
assert L_KC % 64 == 0 and L_KC2 % 64 == 0 and L_HB + 3 * HB_P <= L_TAB
ZR_P = 1056
L_ZR = 1536
L_ZC = L_ZR + 8 * ZR_P
L_LIST = L_ZC + 1280
SR_P = 1168
L_SH = L_LIST + 8448
L_SX = L_SH + 8 * SR_P
L_GP = L_ZR
L_ACT = L_SX + 8 * SR_P
L_RED = L_ACT + 640
assert L_RED + 1024 <= L_GU
WS_Z2 = 0x600000; WS_KEY = 0x10000; WS_ROW = 0xD00000; WS_PT16 = 0x70000; WS_PF = 0x72000; WS_PT = 0xA00000; WS_CNT = 0xC90000; WS_EPOCH = 0x1300000
DNAT = E("F_DN", "ln2")
LATE_DN = DNAT in ("nd", "b9s", "b7s", "dir", "kp")
BO_Z, BO_K, BO_R, BO_G = [int(x) for x in E("BO", "18,6,10,1").split(",")]
HINT = E("HINT", "")
NREP = int(E("F_NREP", "8")); RREP = int(E("F_RREP", "1"))
NT = E("M_NT", "nt")
PNT = E("M_PNT", "")
XNT = E("M_XNT", "nt")
ZST = E("M_ZST", "")
SPIN = 1 << 16
BETA = float(E('BETA', '1.25'))
KST = int(E('KST', '0'))
W2LATE = int(E('M_W2LATE', '1'))
CPL = int(E('M_CPL', '10'))
DIRECT = {1, 8, 128, 1024}
sTAG, sD, sHH, sKS = 38, 42, 43, 44
sDAB, sDC, sLD = 46, 47, 48

L_CNT = L_PRM + 192
C_LN, C_TAG, C_TAB, C_K, C_H = 0, 4, 16, 32, 48
C_P, C_KEY, C_N, C_KP, C_PR = 52, 56, 60, 64, 80
C_MX, C_KEYS, C_SEL = 96, 128, 192
L_TAG = L_CNT + C_TAG
VZ, VONE = 248, 249
def signal(a, off, vaddr=None):
    a("s_mov_b64 exec, 1")
    a(f"ds_add_u32 v{vaddr or VZ}, v{VONE} offset:{L_CNT + off}")
    a("s_mov_b64 exec, -1")
def spin(a, off, n, vaddr=None, vt=251, st=94):
    l = a.newlabel("SP")
    a(f"""
    {l}:
    ds_read_b32 v{vt}, v{vaddr or VZ} offset:{L_CNT + off}
    s_waitcnt lgkmcnt(0)
    v_readfirstlane_b32 s{st}, v{vt}
    s_cmp_ge_u32 s{st}, {n}
    s_cbranch_scc0 {l}
    """)

def ln_stats(a, X, T, sX0, vC):
    D = T + 4
    a(f"v_readfirstlane_b32 s{sX0}, v{X}")
    a("s_nop 1")
    a(f"v_subrev_f32 v{D+8}, s{sX0}, v{X+8}")
    a(f"s_mov_b32 s{sX0+1}, s{sX0}")
    for i in range(4): a(f"v_pk_add_f32 {vr(D+2*i,2)}, {vr(X+2*i,2)}, s[{sX0}:{sX0+1}] neg_lo:[0,1] neg_hi:[0,1]")
    a(f"v_pk_mul_f32 {vr(T+2,2)}, {vr(D,2)}, {vr(D,2)}")
    a(f"v_pk_add_f32 {vr(T,2)}, {vr(D,2)}, {vr(D+2,2)}")
    a(f"v_pk_fma_f32 {vr(T+2,2)}, {vr(D+2,2)}, {vr(D+2,2)}, {vr(T+2,2)}")
    a(f"v_pk_add_f32 {vr(D,2)}, {vr(D+4,2)}, {vr(D+6,2)}")
    a(f"v_pk_fma_f32 {vr(T+2,2)}, {vr(D+4,2)}, {vr(D+4,2)}, {vr(T+2,2)}")
    a(f"v_pk_add_f32 {vr(T,2)}, {vr(T,2)}, {vr(D,2)}")
    a(f"v_pk_fma_f32 {vr(T+2,2)}, {vr(D+6,2)}, {vr(D+6,2)}, {vr(T+2,2)}")
    a(f"v_add_f32 v{T}, v{T}, v{T+1}")
    a(f"v_fmac_f32 v{T+2}, v{D+8}, v{D+8}")
    a(f"v_add_f32 v{T}, v{T}, v{D+8}")
    a(f"v_add_f32 v{T+2}, v{T+2}, v{T+3}")
    a("s_nop 0")
    for m in [f"row_shr:1 {DPP_ALL} bound_ctrl:0", f"row_shr:2 {DPP_ALL} bound_ctrl:0", f"row_shr:4 {DPP_ALL} bound_ctrl:0", f"row_shr:8 {DPP_ALL} bound_ctrl:0",
              "row_bcast:15 row_mask:0xa bank_mask:0xf", "row_bcast:31 row_mask:0xc bank_mask:0xf"]:
        a(f"v_add_f32 v{T}, v{T}, v{T} {m}")
        a(f"v_add_f32 v{T+2}, v{T+2}, v{T+2} {m}")
        a("s_nop 0")
    a(f"""
    v_readlane_b32 s{sX0+2}, v{T}, 63
    v_readlane_b32 s{sX0+3}, v{T+2}, 63
    s_nop 0
    v_mul_f32 v{T}, s{sX0+2}, v{vC}
    v_mul_f32 v{T+1}, s{sX0+3}, v{vC}
    v_fma_f32 v{T+1}, -v{T}, v{T}, v{T+1}
    v_add_f32 v{T}, s{sX0}, v{T}
    v_max_f32 v{T+1}, 0, v{T+1}
    v_cvt_pk_bf16_f32 v{T+1}, v{T}, v{T+1}
    v_lshlrev_b32 v{T}, 16, v{T+1}
    v_and_b32 v{T+1}, 0xffff0000, v{T+1}
    v_add_f32 v{T+1}, {fbits(1e-5)}, v{T+1}
    v_cvt_pk_bf16_f32 v{T+1}, v{T+1}, v{T+1}
    v_lshlrev_b32 v{T+1}, 16, v{T+1}
    v_sqrt_f32 v{T+1}, v{T+1}
    """)
    a(f"v_sub_f32 v{D+8}, v{X+8}, v{T}")
    for i in range(4): a(f"v_pk_add_f32 {vr(D+2*i,2)}, {vr(X+2*i,2)}, {vr(T,2)} op_sel_hi:[1,0] neg_lo:[0,1] neg_hi:[0,1]")
    a(f"""
    v_cvt_pk_bf16_f32 v{T+1}, v{T+1}, v{T+1}
    v_lshlrev_b32 v{T+1}, 16, v{T+1}
    v_rcp_f32 v{T+1}, v{T+1}
    """)
    rnd_pairs(a, [D, D+2, D+4, D+6]); rnd1(a, D+8)
    for i in range(4): a(f"v_pk_mul_f32 {vr(D+2*i,2)}, {vr(D+2*i,2)}, {vr(T,2)} op_sel:[0,1] op_sel_hi:[1,1]")
    a(f"v_mul_f32 v{D+8}, v{D+8}, v{T+1}")
    return D


VFA, VT0, VT1, VT2 = 210, 211, 212, 213
VE0, VE1, VE2, VE3, VE4, VC0, VC1, VC2, VED = 200, 201, 202, 203, 204, 205, 206, 207, 208
XG = 224; VMP = 120; VD = 243; VMA = 240; VXA = 252
sSH = 48
def kgen_setup(a):
    a(f"""
    s_mul_i32 s50, s3, {KG_STAGE}
    s_add_u32 s51, s50, {L_STG2 - 4*KG_STAGE}
    s_add_u32 s50, s50, {L_STG}
    s_cmp_ge_u32 s3, 4
    s_cselect_b32 s50, s51, s50
    s_mov_b32 m0, s50
    v_mul_u32_u24 v{VFA}, {KG_PITCH}, v10
    v_lshl_add_u32 v{VFA}, v11, 4, v{VFA}
    v_add_u32 v{VFA}, s50, v{VFA}
    s_mul_i32 s61, s3, {TP}
    s_add_u32 s61, s61, {L_TAB}          ; own partial table
    v_lshrrev_b32 v12, 1, v11
    v_lshlrev_b32 v{VT0}, 9, v12
    v_and_b32 v13, 1, v11
    v_lshl_add_u32 v{VT0}, v13, 4, v{VT0}
    v_lshl_add_u32 v{VT0}, v10, 5, v{VT0}
    v_add_u32 v{VT0}, s61, v{VT0}
    ; tile1: idx = 256 + 64q + (q<2 ? 4j : 2j), second pair at +(q<2 ? 2 : 32)
    v_sub_u32 v13, 4, v12
    v_lshlrev_b32 v13, v13, v10
    v_lshl_add_u32 v13, v11, 8, v13
    v_add_u32 v13, s61, v13
    v_add_u32 v{VT1}, 1024, v13
    v_mul_u32_u24 v12, 120, v12
    v_add3_u32 v{VT1+3}, v{VT1}, v12, 8
    v_lshlrev_b32 v{VT2}, 8, v11
    v_lshl_add_u32 v{VT2}, v10, 2, v{VT2}
    v_add_u32 v{VT2}, s61, v{VT2}
    ; expansion
    s_mul_i32 s60, s41, {2*TP}
    s_add_u32 s60, s60, {L_TAB}          ; channel table pair
    v_mov_b32 v{VC0}, s60
    v_add_u32 v{VC1}, -4, v{VC0}
    v_add_u32 v{VC2}, -8, v{VC0}
    v_sub_u32 v12, 63, v2                ; L
    s_lshl_b32 s51, s{sHH}, 8
    s_sub_u32 s51, s60, s51
    s_add_u32 s51, s51, {4*576}
    v_lshl_add_u32 v{VE0}, v12, 2, s51
    v_add_u32 v{VE1}, 4, v{VE0}
    s_add_u32 s51, s60, {4*384}
    v_lshl_add_u32 v{VE2}, v12, 3, s51
    v_add_u32 v{VE3}, 4, v{VE2}
    v_add_u32 v{VE4}, 8, v{VE2}
    v_lshlrev_b32 v13, 5, v12
    v_lshlrev_b32 v12, 4, v12
    v_add_u32 v12, 512, v12
    v_min_u32 v12, v12, v13
    v_add_u32 v12, s60, v12
    s_cmp_eq_u32 s{sHH}, 0
    s_cselect_b64 vcc, -1, 0
    s_mul_i32 s51, s41, {4*KC_P}
    s_add_u32 s51, s51, {L_KC}
    s_cmp_eq_u32 s41, 2
    s_cselect_b32 s51, {L_KC2}, s51
    v_cndmask_b32 v{VE2}, v{VE2}, v12, vcc
    v_lshrrev_b32 v12, 1, v2
    v_mul_u32_u24 v12, {KC_P}, v12
    v_and_b32 v13, 1, v2
    v_lshl_add_u32 v12, v13, 4, v12
    v_add_u32 v{VT1+2}, s51, v12
    v_lshl_add_u32 v{VED}, v2, 4, s51
    s_lshl_b32 s51, s41, 2
    v_mov_b32 v{VED+1}, s51
    s_lshl_b32 s{sSH}, s{sHH}, 4
    s_sub_u32 s{sSH}, 16, s{sSH}
    s_mov_b32 s52, {fbits(L_HI)}
    s_mov_b32 s53, {fbits(L_LO)}
    s_mov_b32 s54, {fbits(LN2)}
    s_mov_b32 s55, {fbits(P_HI)}
    s_mov_b32 s56, {fbits(P_LO)}
    s_mov_b32 s58, {fbits(BETA)}
    """)

def gen_kgen(a, cp, hooks):
    R = Regs(56, 200)
    AR, BH, CR, CI, DT, T0, T1, BL, VE = 40, 41, 42, 43, 44, 45, 46, 47, 48
    if cp: a(f"""
    s_waitcnt vmcnt({cp})
    s_cmp_eq_u32 s3, 3
    s_cbranch_scc1 KG_W1
    """)
    if DNAT == "t0": a("s_waitcnt vmcnt(1)\ns_cmp_lt_u32 s3, 3\ns_cbranch_scc1 KG_W1")
    a(f"s_waitcnt vmcnt({max(cp-1, 0)})")
    a.label("KG_W1")
    stamp(a, 13)
    hooks.get("p", lambda: None)()
    a(f"v_lshlrev_b32 v{DT}, 16, v{DT}")
    a(f"v_lshlrev_b32 v{AR}, s{sSH}, v{AR}")
    a(f"v_lshlrev_b32 v{BH}, s{sSH}, v{BH}")
    exp_bf16(a, DT, DT, T0, T1, 52, 53, 54)
    a(f"v_and_b32 v{AR}, 0xffff0000, v{AR}")
    a(f"v_and_b32 v{BH}, 0xffff0000, v{BH}")
    exp_bf16(a, AR, AR, T0, T1, 52, 53, 54)
    a(f"""
    v_mul_f32 v{AR}, v{AR}, v{DT}
    v_mul_f32 v{T0}, v{BH}, v{DT}
    v_mul_f32 v{AR}, s52, v{AR}
    v_sub_f32 v{AR}, 0, v{AR}
    v_mul_f32 v{BH}, s55, v{T0}
    v_fma_f32 v{BL}, v{T0}, s55, -v{BH}
    v_fma_f32 v{BL}, v{T0}, s56, v{BL}
    v_and_b32 v{VE}, 0x7fff7fff, v{CR}
    v_and_b32 v{T1}, 0x7fff7fff, v{CI}
    v_pk_max_u16 v{VE}, v{VE}, v{T1}
    v_lshlrev_b32 v{T1}, 16, v{VE}
    v_max_u32 v{VE}, v{VE}, v{T1}
    """)
    def anchor(Pp):
        d = R.get(2); t = R.get(2)
        pc = fbits(float(Pp)) if Pp not in (1, 2, 4) else f"{Pp}.0"
        a(f"v_mul_f32 v{t}, {pc}, v{AR}")
        a(f"v_mul_f32 v{t+1}, {pc}, v{BH}")
        a(f"v_exp_f32 v{t}, v{t}")
        a(f"v_fract_f32 v{t+1}, v{t+1}")
        a(f"v_fmamk_f32 v{t+1}, v{BL}, {fbits(float(Pp))}, v{t+1}")
        a(f"v_cos_f32 v{d}, v{t+1}")
        a(f"v_sin_f32 v{d+1}, v{t+1}")
        a("s_nop 0")
        a(f"v_pk_mul_f32 {vr(d,2)}, {vr(d,2)}, {vr(t,2)} op_sel_hi:[1,0]")
        R.put(t, 2)
        return d
    def mul(x, y):
        d = R.get(2); cmul(a, d, x, y); return d
    def power(Pp, half):
        return anchor(Pp) if Pp in DIRECT else mul(half, half)
    NPK = 6
    PK = R.get(NPK, 2); pk = [0]
    Q = LdsQ(a); pending = []; rows_since = [0]; wq = []; late = []
    WB = int(E("KG_WB", "2"))
    def flush_w():
        while wq: Q.issue(wq.pop(0))
    def put_row(row, x, neg):
        t = PK + (pk[0] % NPK); pk[0] += 1
        rows_since[0] += 1
        if pending and rows_since[0] >= 4: flush_mfma(1)
        if late and rows_since[0] >= 11: Q.issue(late.pop(0))
        a(f"v_cvt_pk_f16_f32 v{t}, v{x}, {'-' if neg else ''}v{x+1}")
        if len(wq) >= WB: flush_w()
        wq.append(f"ds_write_addtid_b32 v{t} offset:{row*KG_PITCH}")
    def flush_mfma(k):
        while k > 0 and pending:
            op, txt = pending.pop(0)
            Q.need(op); a(txt); k -= 1
    F = {}
    a(f"v_mov_b32 v{PK}, 0x3c00")
    Q.issue(f"ds_write_addtid_b32 v{PK} offset:0"); pk[0] = 1
    F[1] = anchor(8); put_row(1, F[1], False)
    dpp = [f"row_shr:1 {DPP_ALL} bound_ctrl:0", f"row_shr:2 {DPP_ALL} bound_ctrl:0", f"row_shr:4 {DPP_ALL} bound_ctrl:0", f"row_shr:8 {DPP_ALL} bound_ctrl:0",
           "row_bcast:15 row_mask:0xa bank_mask:0xf", "row_bcast:31 row_mask:0xc bank_mask:0xf"]
    def dstep():
        if dpp: a(f"v_max_u32 v{VE}, v{VE}, v{VE} {dpp.pop(0)}")
    F[2] = power(16, F[1]); put_row(2, F[2], False); dstep()
    F[3] = mul(F[1], F[2]); put_row(3, F[3], False); dstep()
    F[4] = power(32, F[2]); put_row(4, F[4], False); dstep()
    for j in (5, 6, 7):
        F[j] = mul(F[4], F[j-4]); put_row(j, F[j], False); dstep()
    F[8] = power(64, F[4]); put_row(8, F[8], False)
    a(f"v_readlane_b32 s57, v{VE}, 63")
    for j in range(9, 16):
        t = mul(F[8], F[j-8]); put_row(j, t, False); R.put(t, 2)
    for j in range(1, 9): R.put(F[j], 2)
    BF = R.get(16, 4)
    flush_w()
    if KST: stamp(a, 14)
    for k in range(4): Q.issue(f"ds_read_b128 {vr(BF+4*k,4)}, v{VFA} offset:{64*k}")
    Ee = {}
    Ee[1] = anchor(1)
    a(f"""
    s_and_b32 s57, s57, 0xffff0000
    v_frexp_exp_i32_f32 v{VE}, s57
    v_lshlrev_b32 v{CR}, s{sSH}, v{CR}
    v_lshlrev_b32 v{CI}, s{sSH}, v{CI}
    v_sub_u32 v{VE}, 6, v{VE}
    v_and_b32 v{CR}, 0xffff0000, v{CR}
    v_and_b32 v{CI}, 0xffff0000, v{CI}
    v_ldexp_f32 v{T0}, s58, v{VE}
    v_mul_f32 v{DT}, {fbits(1.0/BETA)}, v{DT}
    v_mul_f32 v{CR}, v{CR}, v{T0}
    v_mul_f32 v{CI}, v{CI}, v{T0}
    v_sub_u32 v{VE}, 1, v{VE}
    v_ldexp_f32 v{DT}, v{DT}, v{VE}
    """)
    Q.issue(f"ds_write_b32 v{VED+1}, v{DT} offset:{L_PRM + 5*16}")
    G = {0: CR}
    Ee[2] = power(2, Ee[1]); Ee[4] = power(4, Ee[2])
    Ee[128] = anchor(128)
    ACC = R.get(12, 4); AFR = R.get(16, 4)
    def tile_mfma(tau):
        flush_w(); flush_mfma(100)
        while late: Q.issue(late.pop(0))
        c = vr(ACC+4*tau, 4)
        for k in range(4):
            oh = Q.issue(f"ds_read_b128 {vr(AFR+4*k,4)}, v{VFA} offset:{64*k}")
            pending.append((oh, f"v_mfma_f32_16x16x32_f16 {c}, {vr(AFR+4*k,4)}, {vr(BF+4*k,4)}, {'0' if k == 0 else c}"))
        rows_since[0] = 0
        if tau == 0: late.append(f"ds_write_b128 v{VT0}, {c}")
    put_row(0, G[0], True)
    G[1] = mul(G[0], Ee[1]); put_row(1, G[1], True)
    G[2] = mul(G[0], Ee[2]); put_row(2, G[2], True)
    G[3] = mul(G[1], Ee[2]); put_row(3, G[3], True)
    G[4] = mul(G[0], Ee[4]); put_row(4, G[4], True)
    for r in (5, 6, 7):
        G[r] = mul(G[r-4], Ee[4]); put_row(r, G[r], True)
    R.put(Ee[1], 2); R.put(Ee[2], 2); R.put(Ee[4], 2)
    for r in range(8):
        G[128+r] = mul(G[r], Ee[128]); put_row(8+r, G[128+r], True)
        if r & 1:
            R.put(G[r], 2); R.put(G[128+r], 2)
    Ee[256] = power(256, Ee[128]); R.put(Ee[128], 2)
    if KST: stamp(a, 15)
    tile_mfma(0)
    Ee[512] = power(512, Ee[256])
    hooks.get("t0", lambda: None)()
    gl = [0, 4, 128, 132]
    for kk in range(2):
        for r in range(4):
            g = 128*kk + 2*r
            t = mul(G[g], Ee[256]); put_row(4*kk + r, t, True)
            if g in gl: G[256+g] = t
            else: R.put(t, 2); R.put(G[g], 2)
    R.put(Ee[256], 2)
    for r, g in enumerate(gl):
        G[512+g] = mul(G[g], Ee[512]); put_row(8+r, G[512+g], True)
        if g & 4: R.put(G[512+g], 2); R.put(G[g], 2)
    for r, g in enumerate(gl):
        G[768+g] = mul(G[256+g], Ee[512]); put_row(12+r, G[768+g], True)
        if g & 4: R.put(G[768+g], 2); R.put(G[256+g], 2)
    R.put(Ee[512], 2)
    if KST: stamp(a, 16)
    tile_mfma(1)
    Ee[1024] = power(1024, None)
    hooks.get("t1", lambda: None)()
    for k in range(8):
        t = mul(G[128*k], Ee[1024]); put_row(k, t, True); R.put(t, 2)
    Ee[2048] = power(2048, Ee[1024])
    t = mul(G[0], Ee[2048]); put_row(8, t, True); R.put(t, 2)
    tile_mfma(2)
    hooks.get("t2", lambda: None)()
    Q.issue(f"ds_write_b64 v{VT1}, {vr(ACC+4,2)}")
    Q.issue(f"ds_write_b64 v{VT1+3}, {vr(ACC+6,2)}")
    flush_mfma(100)
    a(f"""
    s_mov_b32 exec_hi, 0xffff
    s_nop 6
    ds_write_b32 v{VT2}, v{ACC+8} offset:2048
    s_mov_b32 exec_hi, 0
    ds_write_b32 v{VT2}, v{ACC+9} offset:{2048+64}
    ds_write_b32 v{VT2}, v{ACC+10} offset:{2048+128}
    ds_write_b32 v{VT2}, v{ACC+11} offset:{2048+192}
    """)
    print("kgen vgpr hi", R.hi, file=sys.stderr)

def expand_emit(a, W, C4, C5, T, rho):
    o = 1024*rho
    a(f"""
    ds_write_b128 v{VED}, {vr(W,4)} offset:{3*KC_P + o}
    v_mov_b32 v{C4}, v{W} wave_shl:1 {DPP_ALL}
    v_mov_b32 v{C5}, v{W+1} wave_shl:1 {DPP_ALL}
    v_alignbit_b32 v{T}, v{W+1}, v{W}, 16
    v_alignbit_b32 v{T+1}, v{W+2}, v{W+1}, 16
    v_alignbit_b32 v{T+2}, v{W+3}, v{W+2}, 16
    v_alignbit_b32 v{T+3}, v{C4}, v{W+3}, 16
    v_mov_b32 v{T+4}, v{W+1}
    v_mov_b32 v{T+5}, v{W+2}
    ds_write_b128 v{VED}, {vr(T,4)} offset:{2*KC_P + o}
    v_mov_b32 v{T+6}, v{W+3}
    v_mov_b32 v{T+7}, v{C4}
    v_mov_b32 v{T+8}, v{T+1}
    v_mov_b32 v{T+9}, v{T+2}
    ds_write_b128 v{VED}, {vr(T+4,4)} offset:{KC_P + o}
    v_mov_b32 v{T+10}, v{T+3}
    v_alignbit_b32 v{T+11}, v{C5}, v{C4}, 16
    ds_write_b128 v{VED}, {vr(T+8,4)} offset:{o}
    """)

def expand(a, hh):
    r2 = lambda d, v, o: a(f"ds_read2st64_b32 {vr(d,2)}, v{v} offset0:{o} offset1:{o + TP//256}")
    r2(56, VE0, 0); r2(58, VE1, 0); r2(60, VC0, 9 - hh)
    if hh: r2(62, VC1, 8)
    if hh == 0:
        for i in range(2):
            a(f"ds_read_b128 {vr(64+4*i,4)}, v{VE2} offset:{16*i}")
            a(f"ds_read_b128 {vr(72+4*i,4)}, v{VE2} offset:{TP + 16*i}")
        n2 = 4
    else:
        r2(64, VE2, 0); r2(66, VE3, 0); r2(68, VE4, 0); r2(70, VC0, 6); r2(72, VC1, 6); r2(74, VC2, 6)
        n2 = 6
    a(f"""
    s_mov_b32 vcc_lo, 0x55555555
    s_mov_b32 vcc_hi, 0x55555555
    s_waitcnt lgkmcnt({n2})
    v_add_f32 v56, v56, v57
    v_add_f32 v58, v58, v59
    v_add_f32 v60, v60, v61
    """)
    if hh: a("v_add_f32 v62, v62, v63")
    a(f"""
    v_cndmask_b32 v57, v56, v58, vcc
    v_cvt_pk_f16_f32 v80, v58, v58
    v_cvt_pk_f16_f32 v82, v56, v56
    v_cvt_pk_f16_f32 v81, v58, v57
    v_cvt_pk_f16_f32 v84, v60, v60
    v_mov_b32 v83, v82
    v_cvt_pk_f16_f32 v85, v{62 if hh else 60}, v{62 if hh else 60}
    """)
    expand_emit(a, 80, 84, 85, 88, hh)
    a("s_waitcnt lgkmcnt(4)")
    if hh == 0:
        for i in range(8): a(f"v_add_f32 v{64+i}, v{64+i}, v{72+i}")
        a(f"""
        v_cvt_pk_f16_f32 v100, v71, v70
        v_cvt_pk_f16_f32 v101, v69, v68
        v_cvt_pk_f16_f32 v102, v67, v66
        v_cvt_pk_f16_f32 v103, v65, v64
        v_mov_b32 v104, 0
        v_mov_b32 v105, 0
        s_mov_b32 exec_hi, 0
        v_cvt_pk_f16_f32 v100, v68, v67
        v_cvt_pk_f16_f32 v101, v66, v66
        v_cvt_pk_f16_f32 v102, v66, v65
        v_cvt_pk_f16_f32 v103, v64, v64
        s_mov_b64 exec, -1
        """)
    else:
        for i in range(6): a(f"v_add_f32 v{64+2*i}, v{64+2*i}, v{65+2*i}")
        a(f"""
        v_cvt_pk_f16_f32 v100, v68, v68
        v_cvt_pk_f16_f32 v101, v66, v66
        v_cvt_pk_f16_f32 v102, v66, v64
        v_cvt_pk_f16_f32 v103, v64, v64
        v_cvt_pk_f16_f32 v104, v70, v72
        v_cvt_pk_f16_f32 v105, v74, v74
        """)
    expand_emit(a, 100, 104, 105, 108, 3 - hh)
    if hh == 0: a(f"""
    v_mov_b32 v104, 0
    v_mov_b32 v105, 0
    v_mov_b32 v106, 0
    v_mov_b32 v107, 0
    s_mov_b64 exec, 0xff
    ds_write_b128 v{VT1+2}, v[104:107] offset:4096
    """)

def pf_lines(a, mat, part, v0):
    A, B, C = v0, v0+1, v0+2
    a(f"""
    s_lshr_b32 s64, s2, 3
    s_mul_i32 s64, s64, 162
    s_add_u32 s64, s64, {54*part}
    s_and_b32 s65, s2, 7
    s_mul_i32 s65, s65, 9
    v_min_u32 v{A}, 53, v2
    v_add_u32 v{A}, s64, v{A}
    """)
    fl = E("M_PFFL", "")
    if mat == "d":
        a(f"""
        s_mul_i32 s65, s65, 576
        v_add_u32 v{B}, s65, v{A}
        v_lshlrev_b32 v{B}, 7, v{B}
        global_load_dword v250, v{B}, {P(sWD)} {fl}
        """)
    else:
        a(f"""
        v_mul_u32_u24 v{C}, 7282, v{A}
        v_lshrrev_b32 v{C}, 16, v{C}
        v_mul_u32_u24 v{B}, 9, v{C}
        v_sub_u32 v{B}, v{A}, v{B}
        v_add_u32 v{B}, s65, v{B}
        v_mul_u32_u24 v{C}, 9216, v{C}
        v_lshl_add_u32 v{C}, v{B}, 7, v{C}
        """)
        if v0 == 252:
            a(f"global_load_dword v250, v{C}, s[78:79] {fl}")
            return
        for m in mat:
            a(f"global_load_dword v250, v{C}, {P(sWG if m == 'g' else sWU)} {fl}")
            if int(E("M_PFH", "0")): a(f"global_load_dword v250, v{C}, {P(sWG if m == 'g' else sWU)} offset:64 {fl}")

JA = [(k, v) for v in (0, 1, 2) for k in range(3, 8) if k + v <= 7]
JB = [(k, v) for v in (0, 1, 2) for k in range(3)]
JC = [(k, v) for v in (3, 4) for k in range(5) if k + v <= 7]
JD = [(k, v) for v in (5, 6, 7) for k in range(3) if k + v <= 7]
POFF = {"A": (0, 3), "B": (5, 0), "C": (10, 3), "D": (15, 5)}
def JCH(k): return [(kb, g - kb) for g in (k, 7 - k) for kb in range(g + 1)]
VA = 64
VACC = 224
VB = 32
NB = 8
VAS = 16
NH = int(E("M_NH", "5"))
NPX = int(E("M_NPX", "8"))
VKA, VHA = 4, 6
VPW = 8

def aread(r, va, kap, two):
    o = 64*(63-kap)
    if two: return [f"ds_read2_b64 {vr(r,4)}, v{two + (o >> 11)} offset0:{(o & 2047) >> 3} offset1:{((o & 2047) >> 3) + 1}"]
    return [f"ds_read_b64 {vr(r,2)}, v{va} offset:{o}", f"ds_read_b64 {vr(r+2,2)}, v{va} offset:{o+8}"]
class Job:
    def __init__(self, parts, npx=None):
        self.parts = parts
        self.npx = NPX if npx is None else npx
        self.two = VKA if (parts[0][2] is None and int(E("K_TWO", "1"))) else 0
        use = {}
        for ci, bl, _ in parts:
            for kb, vb in bl: use[(ci, kb)] = use.get((ci, kb), 0) + 1
        order = sorted(use, key=lambda x: (-use[x], x))
        self.held = {g: i for i, g in enumerate(order[:NH])}
    def preload(self, a):
        if self.two: a(f"v_add_u32 v{VKA+1}, 2048, v{VKA}")
        elif int(E("PL_TWO", "0")):
            for ci in sorted(set(c for c, _ in self.held)): a(f"v_mov_b32 v{56+2*ci}, v{VKA+ci}\nv_add_u32 v{57+2*ci}, 2048, v{VKA+ci}")
        for x in range(7, 7 - self.npx, -1):
            for (ci, kb), i in self.held.items():
                kap = 8*kb + x; r = VA + 32*i + 4*x
                for t in aread(r, VKA+ci, kap, self.two or (56+2*ci if int(E("PL_TWO", "0")) else 0)): a(t)
    def run(self, a, fillers=None):
        Q = LdsQ(a)
        fillers = list(fillers or [])
        acc = {}; seq = []
        for ci, bl, tag in self.parts:
            vbs = sorted(set(v for _, v in bl), reverse=(tag is None and int(E("K_REV", "0")) == 1))
            for vb in vbs:
                for y in range(8):
                    seq.append(((ci, 8*vb + y), [((ci, kb, 7 - y), (ci, kb + vb)) for kb, v in bl if v == vb]))
        for _, ms in seq:
            for _, tk in ms:
                if tk not in acc: acc[tk] = VACC + 4*len(acc)
        assert len(acc) <= 6
        mf = []
        for bi, (bk, ms) in enumerate(seq):
            for ak, tk in ms: mf.append((bi, ak, tk))
        if int(E("M_STAG", "1")) and self.parts[-1][2]:
            nl = len(seq) - 8
            body = [m for m in mf if m[0] < nl]; tail = [m for m in mf if m[0] >= nl]
            tks = sorted(set(m[2] for m in tail))
            if len(tks) > 1:
                tail = sorted(tail, key=lambda m: (max(tks.index(m[2]) - 1, 0), m[0], m[2]))
            mf = body + tail
        last = {}
        for n, (_, _, tk) in enumerate(mf): last[tk] = n
        loads = []; sa = 0; areg = {}
        ring = [VAS + 4*i for i in range(2)] + ([232 + 4*i for i in range(4)] if len(acc) <= 2 else [240 - 0][:0])
        firstuse = {}
        for n, (bi, ak, tk) in enumerate(mf):
            if ("b", bi) not in firstuse:
                firstuse[("b", bi)] = n
                ci, v = seq[bi][0]
                loads.append((n, ("b", bi), [f"ds_read_b128 {vr(VB + 4*(bi % NB),4)}, v{VHA+ci} offset:{64*v}"]))
            ci, kb, x = ak
            if (ci, kb) in self.held:
                r = VA + 32*self.held[(ci, kb)] + 4*x; areg[n] = r
                if x <= 7 - self.npx and ("h", r) not in firstuse:
                    kap = 8*kb + x; firstuse[("h", r)] = n
                    loads.append((n, ("h", r), aread(r, VKA+ci, kap, self.two)))
            else:
                r = ring[sa % len(ring)]; kap = 8*kb + x
                loads.append((n, ("a", sa), aread(r, VKA+ci, kap, self.two)))
                areg[n] = r; firstuse[("a", sa)] = n; sa += 1
        lastuse_b = {}
        for n, (bi, _, _) in enumerate(mf): lastuse_b[bi] = n
        opid = {}; li = 0; started = set(); pend = []
        LEAD = int(E("M_LEAD", "10")); LEADH = int(E("M_LEADH", "14"))
        def can_issue(key, n):
            if key[0] == "h": return True
            if key[0] == "b": return key[1] < NB or lastuse_b[key[1] - NB] < n
            return key[1] < len(ring) or firstuse[("a", key[1] - len(ring))] < n
        akey_of = {}
        for (n0, key, _) in loads:
            if key[0] in "ah": akey_of[n0] = key
        tagof = {ci: tag for ci, _, tag in self.parts}
        for n, (bi, ak, tk) in enumerate(mf):
            while li < len(loads) and loads[li][0] <= n + (LEADH if loads[li][1][0] == "h" else LEAD) and can_issue(loads[li][1], n):
                for t in loads[li][2]: opid[loads[li][1]] = Q.issue(t)
                li += 1
            need = opid[("b", bi)]
            if n in akey_of: need = max(need, opid[akey_of[n]])
            Q.need(need)
            c = acc[tk]
            a(f"v_mfma_f32_16x16x32_f16 {vr(c,4)}, {vr(areg[n],4)}, {vr(VB + 4*(bi % NB),4)}, {'0' if tk not in started else vr(c,4)}")
            started.add(tk)
            if fillers and n >= 2:
                for _ in range(2):
                    if fillers:
                        t_ = fillers.pop(0)
                        if t_: a(t_)
            if last[tk] == n and tagof[tk[0]]: pend.append((n + 9, tk))
            while pend and pend[0][0] <= n:
                tk2 = pend.pop(0)[1]
                s0, g0 = POFF[tagof[tk2[0]]]
                Q.issue(f"ds_write_b128 v{VPW+tk2[0]}, {vr(acc[tk2],4)} offset:{(s0 + tk2[1] - g0)*1024}")
        a("s_nop 7")
        for _, tk2 in pend:
            s0, g0 = POFF[tagof[tk2[0]]]
            Q.issue(f"ds_write_b128 v{VPW+tk2[0]}, {vr(acc[tk2],4)} offset:{(s0 + tk2[1] - g0)*1024}")
        return acc

def epi_core(a, Y, H, T, ks, dd, ga, n):
    for e in range(n): a(f"v_mul_f32 v{Y+e}, {ks}, v{Y+e}")
    for e in range(n): a(f"v_fma_mix_f32 v{T+e}, v{H+e//2}, {dd}, 0 op_sel:[{e&1},0,0] op_sel_hi:[1,0,0]")
    rnd_pairs(a, [Y+2*i for i in range(n//2)] + [T+2*i for i in range(n//2)])
    for e in range(n): a(f"v_add_f32 v{Y+e}, v{Y+e}, v{T+e}")
    rnd_pairs(a, [Y+2*i for i in range(n//2)])
    for e in range(n): a(f"v_mul_f32 v{Y+e}, {ga}, v{Y+e}")

def pack9(a, dst, src):
    for i in range(4): a(f"v_cvt_pk_bf16_f32 v{dst+i}, v{src+2*i}, v{src+2*i+1}")
    a(f"v_cvt_pk_bf16_f32 v{dst+4}, v{src+8}, 0")
def dots9(a, dst, src, bf, cf):
    for e in (8, 0, 1, 2, 3, 4, 5, 6, 7): a(f"v_dot2_f32_bf16 v{dst+e}, v{src+e//2}, {bf(e)}, {cf(e)}")
def ln_core(a, P1, X1, T, ONES, LO, RC, lab):
    vsel = lambda e: f"v{LO + (e & 1)}"
    for i in range(5):
        a(f"v_dot2_f32_bf16 v{T}, v{P1+i}, v{ONES}, {'0' if i == 0 else 'v%d' % T}")
        a(f"v_dot2_f32_bf16 v{T+2}, v{P1+i}, v{P1+i}, {'0' if i == 0 else 'v%d' % (T+2)}")
    a("s_nop 1")
    reduce2(a, T, T+2)
    a(f"""
    v_readlane_b32 s66, v{T}, 63
    v_readlane_b32 s67, v{T+2}, 63
    s_nop 0
    v_mul_f32 v{T}, s66, v{RC}
    v_mul_f32 v{T+1}, s67, v{RC}
    v_mul_f32 v{T+2}, v{T}, v{T}
    v_fma_f32 v{T+1}, -v{T}, v{T}, v{T+1}
    v_mul_f32 v{T+3}, 0x41800000, v{T+1}
    v_cmp_gt_f32 vcc, v{T+2}, v{T+3}
    s_cbranch_vccz {lab}
    v_sub_f32 v{T+3}, 0, v{T}
    """)
    dots9(a, X1, P1, vsel, lambda e: f"v{T+3}")
    a(f"v_mul_f32 v{T+2}, v{X1+8}, v{X1+8}")
    for e in range(8): a(f"v_fmac_f32 v{T+2}, v{X1+e}, v{X1+e}")
    a("s_nop 1")
    reduce2(a, T+2, None)
    a(f"""
    v_readlane_b32 s67, v{T+2}, 63
    s_nop 1
    v_mul_f32 v{T+1}, s67, v{RC}
    {lab}:
    v_cvt_pk_bf16_f32 v{T+1}, -v{T}, v{T+1}
    v_lshlrev_b32 v{T}, 16, v{T+1}
    v_and_b32 v{T+1}, 0xffff0000, v{T+1}
    v_add_f32 v{T+1}, {fbits(1e-5)}, v{T+1}
    v_cvt_pk_bf16_f32 v{T+1}, v{T+1}, v{T+1}
    v_lshlrev_b32 v{T+1}, 16, v{T+1}
    v_sqrt_f32 v{T+1}, v{T+1}
    """)
    dots9(a, X1, P1, vsel, lambda e: f"v{T}")
    a(f"""
    v_cvt_pk_bf16_f32 v{T+1}, v{T+1}, v{T+1}
    v_lshlrev_b32 v{T+1}, 16, v{T+1}
    v_rcp_f32 v{T+1}, v{T+1}
    """)
    rnd1(a, X1+8); rnd_pairs(a, [X1, X1+2, X1+4, X1+6])
    a(f"v_mul_f32 v{X1+8}, v{X1+8}, v{T+1}")
    for i in range(4): a(f"v_pk_mul_f32 {vr(X1+2*i,2)}, {vr(X1+2*i,2)}, {vr(T,2)} op_sel:[0,1] op_sel_hi:[1,1]")

def gen_F(a):
    kernel_head(a, "ka_kernel")
    if DIAG == 31: a("s_memrealtime s[90:91]")
    a(f"""
    s_cmp_ge_u32 s2, 256
    s_cbranch_scc1 M_END
    s_load_dwordx16 s[4:19], s[0:1], 0
    s_load_dwordx16 s[20:35], s[0:1], 64
    s_load_dwordx2 s[36:37], s[0:1], 128
    v_lshrrev_b32 v1, 6, v0
    v_and_b32 v2, 63, v0
    """)
    if ST: a(f"v_mov_b32 v{VST}, 0")
    a("v_readfirstlane_b32 s3, v1")
    stamp(a, 0)
    if CPL:
        a(f"""
        s_cmp_lg_u32 s3, 3
        s_cbranch_scc1 M_NCP
        s_getpc_b64 s[74:75]
        M_PC:
        s_sub_u32 s74, s74, M_PC - ka_kernel
        s_subb_u32 s75, s75, 0
        s_lshr_b32 s76, s2, 3
        s_mul_i32 s76, s76, {CPL}
        v_min_u32 v25, {CPL-1}, v2
        v_add_u32 v25, s76, v25
        v_lshlrev_b32 v25, 7, v25
        v_min_u32 v25, CODE_END - ka_kernel - 4, v25
        global_load_dword v250, v25, s[74:75]
        M_NCP:
        """)
    LL = 10; X = 80; T = 96
    a(f"""
    s_lshl_b32 s40, s2, 3
    s_add_u32 s40, s40, s3
    s_mul_i32 s40, s40, 1152
    v_lshl_add_u32 v3, v2, 4, s40
    v_lshl_add_u32 v4, v2, 1, s40
    v_mov_b32 v20, 0
    v_mov_b32 v21, 0
    v_mov_b32 v22, 0
    v_mov_b32 v23, 0
    v_mov_b32 v{VZ}, 0
    v_mov_b32 v{VONE}, 1
    v_lshlrev_b32 v24, 4, v2
    s_cmp_eq_u32 s3, 0
    s_cbranch_scc0 M_Z1
    s_mov_b64 exec, 0x3fffffff
    ds_write_b128 v24, v[20:23] offset:{L_HB}
    ds_write_b128 v24, v[20:23] offset:{L_HB + HB_P}
    ds_write_b128 v24, v[20:23] offset:{L_HB + 2*HB_P}
    M_Z1:
    s_cmp_eq_u32 s3, 3
    s_cbranch_scc0 M_Z0
    s_mov_b64 exec, 0xfffff
    ds_write_b128 v24, v[20:23] offset:{L_CNT}
    M_Z0:
    s_mov_b64 exec, -1
    s_lshr_b32 s41, s3, 1
    s_lshl_b32 s{sD}, s2, 1
    s_add_u32 s{sD}, s{sD}, s41
    s_lshr_b32 s45, s2, 2
    s_add_u32 s45, s45, 512            ; channel c
    s_cmp_eq_u32 s41, 2
    s_cselect_b32 s{sD}, s45, s{sD}
    s_and_b32 s{sHH}, s3, 1
    ; mod item: cg = u % 27, ks = u / 27
    s_mul_i32 s{sKS}, s2, 2428
    s_lshr_b32 s{sKS}, s{sKS}, 16
    s_mul_i32 s40, s{sKS}, 27
    s_sub_u32 s49, s2, s40             ; cg
    v_lshrrev_b32 v25, 2, v2
    s_lshl_b32 s40, s{sKS}, 6
    v_add_u32 v25, s40, v25
    v_mul_u32_u24 v25, 6912, v25
    v_and_b32 v26, 3, v2
    v_lshl_add_u32 v25, v26, 4, v25
    v_add_u32 v39, s40, v2
    s_lshl_b32 s40, s49, 7
    s_lshl_b32 s50, s{sHH}, 6
    s_add_u32 s40, s40, s50
    v_add_u32 v216, s40, v25
    v_lshlrev_b32 v39, 1, v39
    s_lshl_b32 s40, s{sD}, 8
    v_lshl_add_u32 v5, v2, 2, s40
    s_lshl_b32 s40, s{sD}, 1
    v_mov_b32 v6, s40
    s_waitcnt lgkmcnt(0)
    global_load_dwordx4 {vr(LL,4)}, v3, {P(sX)} {XNT}
    global_load_ushort v{LL+4}, v4, {P(sX)} offset:1024 {XNT}
    s_mov_b32 s50, {16*6912}
    v_add_u32 v217, s50, v216
    v_add_u32 v218, s50, v217
    v_add_u32 v219, s50, v218
    v_mov_b32 v7, {WS_EPOCH}
    """)
    if HINT: a(f"""
    v_lshrrev_b32 v246, 5, v2
    v_lshlrev_b32 v246, 15, v246
    v_and_b32 v247, 31, v2
    v_lshl_add_u32 v246, v247, 7, v246
    s_and_b32 s50, s2, 7
    s_lshl_b32 s50, s50, 12
    s_add_u32 s50, s50, {WS_CNT}
    v_add_u32 v246, s50, v246
    """)
    a(f"""
    {"s_setprio 2" if int(E("M_PRIO1", "1")) else ""}
    s_cmp_ge_u32 s3, 6
    s_cbranch_scc1 M_T0MOD
    s_barrier                          ; B0
    global_load_ushort v44, v6, {P(sLDT)}
    global_load_dword v40, v5, {P(sLAR)} {PNT}
    global_load_dword v41, v5, {P(sAIM)} {PNT}
    global_load_dword v42, v5, {P(sCR)} {PNT}
    global_load_dword v43, v5, {P(sCI)} {PNT}
    s_mov_b32 s62, 5
    """)
    if DNAT == "t0":
        k0_ = len(a.lines); dn_touch(a)
        for i in range(k0_, len(a.lines)): a.lines[i] = a.lines[i].replace("v252", "v247")
        a.lines.insert(len(a.lines) - 1, "  s_mov_b32 s62, 6")
    a(f"""
    s_branch M_T0J
    M_T0MOD:
    s_setprio {E("P67", "2")}
    s_barrier                          ; B0
    {"global_load_dword v247, v246, %s sc1" % P(sWS) if HINT else ""}
    global_load_dword v47, v7, {P(sWS)}
    s_mov_b32 s62, 2
    s_cmp_ge_u32 s2, 243
    s_cbranch_scc1 M_T0J
    global_load_ushort v44, v39, {P(sC)}
    """)
    for i in range(4): a(f"global_load_dwordx4 {vr(48+4*i,4)}, v{216+i}, {P(sWMOD)} {NT}")
    a(f"""
    s_mov_b32 s62, 7
    M_T0J:
    """)
    PK23 = int(E("M_PK23", "0"))
    S4 = int(E("M_S4", "1"))
    UN = {0: 0, 1: 4, 6: 8, 7: 12, 2: 0, 3: 0, 4: 0, 5: 0} if S4 else {2: 0, 3: 3, 6: 6, 7: 9, 0: 12, 1: 14, 4: 0, 5: 0}
    unib = sum(UN[w] << (4*w) for w in range(8))
    def su_xn(): a(f"""
    s_lshl_b32 s40, s3, 2
    s_lshr_b32 s63, {hex(unib)}, s40
    s_and_b32 s63, s63, 15
    s_lshl_b32 s50, s63, 10
    s_lshl_b32 s51, s2, 14
    s_add_u32 s50, s50, s51
    s_add_u32 s50, s50, {WS_XN}
    v_lshl_add_u32 v{VXA}, v2, 4, s50
    """)
    def su_mp(): a(f"""
    v_lshrrev_b32 v21, 4, v2
    s_lshl_b32 s50, s2, 1
    v_add_u32 v20, s50, v21
    v_mov_b32 v22, s45
    v_cmp_gt_u32 vcc, 2, v21
    v_and_b32 v23, 15, v2
    v_min_u32 v23, 8, v23
    v_cndmask_b32 v20, v22, v20, vcc   ; channel
    v_lshlrev_b32 v23, 9, v23
    v_lshlrev_b32 v{VD}, 1, v20
    v_lshrrev_b32 v22, 6, v20
    v_mul_u32_u24 v22, {9*512}, v22
    v_and_b32 v20, 63, v20
    v_lshl_add_u32 v20, v20, 3, v22
    v_add_u32 v20, v20, v23
    v_add_u32 v{VMA}, {WS_MP}, v20
    v_add_u32 v{VMA+1}, {WS_MP + 9*9*512}, v20
    v_add_u32 v{VMA+2}, {WS_MP + 18*9*512}, v20
    s_mul_i32 s40, s49, 9
    s_add_u32 s40, s40, s{sKS}
    s_lshl_b32 s40, s40, 9
    s_lshl_b32 s50, s{sHH}, 8
    s_add_u32 s40, s40, s50
    s_add_u32 s40, s40, {WS_MP}
    v_and_b32 v34, 3, v2
    v_lshlrev_b32 v34, 6, v34
    v_lshrrev_b32 v35, 3, v2
    v_lshl_add_u32 v34, v35, 3, v34
    v_add_u32 v34, s40, v34
    v_add_u32 v35, {27*9*512}, v34
    """)
    def su_conv(): a(f"""
    v_and_b32 v20, 15, v2              ; i / j
    v_lshrrev_b32 v21, 4, v2
    s_lshl_b32 s40, s3, 2
    v_and_b32 v22, 3, v20
    v_mul_u32_u24 v22, {KC_P}, v22
    v_lshrrev_b32 v23, 2, v20
    v_lshlrev_b32 v23, 3, v23
    v_lshl_add_u32 v23, v21, 4, v23
    v_sub_u32 v22, v22, v23
    v_add_u32 v22, {L_KC + 72}, v22
    v_lshlrev_b32 v23, 5, v20
    v_lshlrev_b32 v19, 4, v21
    v_sub_u32 v19, v23, v19
    v_add_u32 v19, {L_HB + 48}, v19
    v_lshl_add_u32 v3, v21, 3, v23     ; 32j + 8q
    v_add_u32 v3, {L_HB + 480}, v3
    s_lshr_b32 s40, 0x01021100, s40
    s_and_b32 s40, s40, 15
    s_mul_i32 s50, s40, {4*KC_P}
    s_cmp_eq_u32 s40, 2
    s_cselect_b32 s50, {(L_KC2 - L_KC) & 0xffffffff}, s50
    v_add_u32 v{VKA}, s50, v22
    v_add_u32 v{VKA+1}, {4*KC_P}, v22
    s_mul_i32 s50, s40, {HB_P}
    v_add_u32 v{VHA}, s50, v19
    v_add_u32 v{VHA+1}, {HB_P}, v19
    s_mul_i32 s50, s40, 18432
    s_add_u32 s50, s50, {L_PART}
    v_lshl_add_u32 v{VPW}, v2, 4, s50
    v_lshlrev_b32 v{VPW+1}, 4, v2
    v_add_u32 v{VPW+1}, {L_PART + 18432}, v{VPW+1}
    s_lshl_b32 s40, s40, 2
    v_mov_b32 v1, s40
    """)
    def su_epi(): a(f"""
    s_add_u32 s83, s3, 5
    s_add_u32 s84, s3, -3
    s_add_u32 s85, s3, 7
    s_add_u32 s86, s3, 10
    s_cmp_ge_u32 s3, 5
    s_cselect_b32 s83, s86, s83
    s_cmp_lt_u32 s3, 3
    s_cselect_b32 s84, s83, s84
    s_cselect_b32 s85, s83, s85
    s_cselect_b32 s82, 0, 1.0
    s_lshl_b32 s83, s83, 10
    s_lshl_b32 s84, s84, 10
    s_lshl_b32 s85, s85, 10
    v_lshlrev_b32 v26, 4, v2
    v_add_u32 v26, {L_PART}, v26
    v_add_u32 v24, s83, v26
    v_add_u32 v25, s84, v26
    v_add_u32 v26, s85, v26
    s_lshl_b32 s40, s3, 9
    v_add_u32 v27, s40, v3
    s_mul_i32 s40, s3, 1536
    s_add_u32 s40, s40, {L_TAB}
    v_and_b32 v28, 15, v2
    v_mul_u32_u24 v28, 96, v28
    v_lshrrev_b32 v29, 5, v2
    v_mul_u32_u24 v29, 48, v29
    v_and_b32 v30, 16, v2
    v_add3_u32 v28, v28, v29, v30
    v_add_u32 v28, s40, v28
    v_lshrrev_b32 v30, 2, v2
    v_mul_u32_u24 v29, 96, v30
    v_and_b32 v31, 3, v2
    v_mul_u32_u24 v16, 12, v31
    v_add3_u32 v29, v29, v16, s40
    v_lshlrev_b32 v30, 15, v30
    v_lshl_add_u32 v30, v31, 4, v30
    s_lshl_b32 s40, s3, 19
    s_lshl_b32 s86, s2, 6
    s_add_u32 s40, s40, s86
    s_add_u32 s40, s40, {WS_Z2}
    v_add_u32 v30, s40, v30
    """)
    def su_pack(): a(f"""
    v_lshrrev_b32 v22, 2, v2
    {"s_lshr_b32 s40, s3, 2" if PK23 else "s_and_b32 s40, s3, 3"}
    {"s_lshl_b32 s40, s40, 1" if PK23 else ""}
    {"s_add_u32 s40, s40, s%d" % sHH if PK23 else ""}
    s_lshl_b32 s40, s40, 6
    v_add_u32 v22, s40, v22            ; u'
    v_and_b32 v23, 3, v2
    v_mul_u32_u24 v222, 2592, v23
    v_lshl_add_u32 v222, v22, 2, v222
    v_add_u32 v222, {L_LNR}, v222
    v_lshrrev_b32 v223, 2, v22
    v_lshlrev_b32 v223, 4, v223
    v_lshl_add_u32 v223, v23, 2, v223
    v_add_u32 v223, {L_CB}, v223
    v_lshlrev_b32 v22, 14, v22
    v_lshl_add_u32 v22, v23, 4, v22
    s_lshl_b32 s40, s2, 6
    s_add_u32 s40, s40, {WS_XN}
    v_add_u32 v253, s40, v22
    """)
    def su_kgen():
        a("v_and_b32 v20, 15, v2\nv_lshrrev_b32 v21, 4, v2")
        k0 = len(a.lines)
        kgen_setup(a)
        for i in range(k0, len(a.lines)):
            for o, n in (("v10", "v20"), ("v11", "v21"), ("v12", "v22"), ("v13", "v23")):
                a.lines[i] = re.sub(rf"\b{o}\b", n, a.lines[i])
    a("s_cmp_ge_u32 s3, 6\ns_cbranch_scc1 M_SU6")
    su_kgen()
    a("s_cmp_lt_u32 s3, 4\ns_cbranch_scc1 M_SUD")
    if int(E("SU45", "1")): su_conv(); su_epi()
    a("s_branch M_SUP")
    a.label("M_SU6")
    su_mp()
    a.label("M_SUP")
    su_pack()
    a.label("M_SUD")
    a(f"""
    s_lshr_b32 s40, s3, 1
    s_mul_i32 s40, s40, 2592
    s_mul_i32 s50, s{sHH}, 1280
    s_add_u32 s40, s40, s50
    s_add_u32 s40, s40, {L_LNR}
    v_lshl_add_u32 v220, v2, 4, s40
    s_lshl_b32 s40, s3, 1
    s_add_u32 s40, s40, {L_CB}
    v_lshl_add_u32 v221, v2, 4, s40
    v_mov_b32 v15, {fbits(1.0/576)}
    v_mov_b32 v92, 0x3f803f80
    v_mov_b32 v94, 0x3f80
    v_mov_b32 v95, 0x3f800000
    """)
    stamp(a, 12)
    a(f"""
    s_cmp_eq_u32 s62, 7
    s_cbranch_scc1 M_W6
    s_cmp_eq_u32 s62, 5
    s_cbranch_scc1 M_W5
    s_waitcnt vmcnt({2 if HINT else 1})
    M_W5:
    s_waitcnt vmcnt(5)
    M_W6:
    s_waitcnt vmcnt({7 if HINT else 6})
    """)
    stamp(a, 1)
    ln_core(a, LL, X, T, 92, 94, 15, "M_FAST")
    pack9(a, T, X)
    a(f"""
    ds_write_b128 v220, {vr(T,4)}
    ds_write_b16 v221, v{T+4}
    s_cmp_lt_u32 s3, 6
    s_cbranch_scc1 M_NTAG
    s_cmp_eq_u32 s62, 7
    s_cbranch_scc1 M_TG5
    s_waitcnt vmcnt(0)
    M_TG5:
    s_waitcnt vmcnt(5)
    s_mov_b32 s40, 0x9E3779B1
    v_mul_lo_u32 v33, v47, s40
    v_add_u32 v33, 0x7F4A7C15, v33
    ds_write_b32 v{VZ}, v33 offset:{L_TAG}
    M_NTAG:
    """)
    signal(a, C_LN)
    AC = 112
    def mod_item(rho, w0):
        for e in range(8): a(f"v_mov_b32 v{AC+e}, 0")
        for i in range(4):
            a(f"s_waitcnt vmcnt({w0 - i})")
            for w in range(4):
                a(f"v_dot2c_f32_bf16 v{AC+2*w}, v{48+16*rho+4*i+w}, v{108+i}")
                a(f"v_dot2c_f32_bf16 v{AC+2*w+1}, v{48+16*rho+4*i+w}, v{104+i}")
        a("s_nop 2")
        for e in range(4): a(f"v_permlane32_swap_b32 v{AC+e}, v{AC+4+e}")
        for e in range(4): a(f"v_add_f32 v{AC+e}, v{AC+e}, v{AC+4+e}")
        a("s_nop 0")
        a(f"v_permlane16_swap_b32 v{AC}, v{AC+2}")
        a(f"v_permlane16_swap_b32 v{AC+1}, v{AC+3}")
        a(f"v_add_f32 v{AC}, v{AC}, v{AC+2}")
        a(f"v_add_f32 v{AC+1}, v{AC+1}, v{AC+3}")
        a("s_nop 1")
        a(f"v_add_f32 v32, v{AC}, v{AC} row_ror:8 row_mask:0xf bank_mask:0x3")
        a(f"v_add_f32 v32, v{AC+1}, v{AC+1} row_ror:8 row_mask:0xf bank_mask:0xc")
        a("s_nop 1")
        a(f"v_add_f32 v32, v32, v32 row_shl:4 row_mask:0xf bank_mask:0x5")
        a("s_mov_b32 exec_lo, 0x0f0f0f0f")
        a("s_mov_b32 exec_hi, 0x0f0f0f0f")
        a(f"global_store_dwordx2 v{34+rho}, v[32:33], {P(sWS)} sc1")
        a("s_mov_b64 exec, -1")
    MODF = int(E("M_MODF", "1"))
    a(f"""
    {"s_bitcmp1_b32 s3, 1" if PK23 else "s_cmp_lt_u32 s3, 4"}
    {"s_cbranch_scc0 M_KG" if PK23 else "s_cbranch_scc1 M_KG"}
    s_cmp_lt_u32 s3, 6
    s_cbranch_scc1 M_PACK
    s_cmp_ge_u32 s2, 243
    s_cbranch_scc1 M_PACK
    s_mov_b32 s40, {fbits(-LOG2E)}
    s_waitcnt vmcnt(4)
    v_lshlrev_b32 v44, 16, v44
    v_mul_f32 v45, s40, v44
    v_exp_f32 v45, v45
    v_lshrrev_b32 v46, 2, v2
    v_add_f32 v45, 1.0, v45
    v_rcp_f32 v45, v45
    v_lshlrev_b32 v46, 2, v46
    v_mul_f32 v44, v44, v45
    v_cvt_pk_bf16_f32 v44, v44, 0
    """)
    for i in range(4): a(f"ds_bpermute_b32 v{108+i}, v46, v44 offset:{64*i}")
    a(f"""
    s_waitcnt lgkmcnt(0)
    """)
    for i in range(4): a(f"v_lshlrev_b32 v{104+i}, 16, v{108+i}")
    if MODF:
        mod_item(0, 3)
        stamp(a, 7)
    a.label("M_PACK")
    G0 = 80
    for i in range(1, 4): a(f"v_add_u32 v{20+i}, {64*i}, v222")
    a(f"""
    s_mov_b32 s41, {16 << 14}
    M_SPL:
    ds_read_b64 v[96:97], v{VZ} offset:{L_CNT + C_LN}
    """)
    for i in range(4):
        a(f"ds_read2st64_b32 {vr(G0+4*i,2)}, v{222 if i == 0 else 20+i} offset0:0 offset1:5")
        a(f"ds_read_b32 v{G0+4*i+2}, v223 offset:{64*i}")
    a(f"""
    s_waitcnt lgkmcnt(8)
    v_readfirstlane_b32 s94, v96
    v_readfirstlane_b32 s{sTAG}, v97
    s_cmp_ge_u32 s94, 8
    s_cbranch_scc0 M_SPL
    """)
    for i in range(4):
        a(f"v_mov_b32 v{G0+4*i+3}, v97")
        a(f"s_waitcnt lgkmcnt({6-2*i})")
        a(f"global_store_dwordx4 v253, {vr(G0+4*i,4)}, {P(sWS)} sc1")
        if i < 3: a("v_add_u32 v253, s41, v253")
    stamp(a, 2)
    a(f"""
    {"s_setprio 0" if MODF else ""}
    s_cmp_ge_u32 s3, 6
    s_cbranch_scc1 M_MOD
    s_waitcnt vmcnt(4)
    """)
    if not PK23: signal(a, C_H)
    if E("C_PRIO"): a("s_setprio 1")
    a("s_branch KG_W1")
    a.label("M_KG")
    a("s_setprio 0")
    stamp(a, 2)
    def mp_issue():
        for c in range(3): a(f"global_load_dwordx2 {vr(VMP+2*c,2)}, v{VMA+c}, {P(sWS)} sc1")
    def xn_issue(n=3):
        for i in range(n): a(f"global_load_dwordx4 {vr(XG+4*i,4)}, v{VXA}, {P(sWS)} offset:{1024*i} sc1")
    def first_issue(lo=0, hi=4):
        l = a.newlabel("NI")
        if S4:
            if lo == 0:
                a(f"s_cmp_ge_u32 s3, 2\ns_cbranch_scc1 {l}"); xn_issue(4); a.label(l)
            return
        a(f"""
        s_sub_u32 s40, s3, {lo}
        s_cmp_ge_u32 s40, {hi - lo}
        s_cbranch_scc1 {l}
        s_cmp_lt_u32 s3, 2
        s_cbranch_scc1 {l}B
        global_load_dwordx4 {vr(XG+8,4)}, v{VXA}, {P(sWS)} offset:2048 sc1
        {l}B:
        """)
        xn_issue(2)
        a.label(l)
    XAT = E("M_XAT", "mix")
    hooks = {}
    if XAT not in ("tab", "exp", "pl", "mix"): hooks[XAT] = first_issue
    def chook(spec):
        def f_():
            l = a.newlabel("CH")
            a(f"""
            s_cmp_lt_u32 s3, 4
            s_cbranch_scc1 {l}
            s_mov_b32 s80, m0
            s_cmp_eq_u32 s3, 4
            s_cselect_b32 s78, s22, s24
            s_cselect_b32 s79, s23, s25
            """)
            for it in spec.split(","):
                if it[0] == "p": pf_lines(a, "g", int(it[1]), 252)
                else:
                    k = int(it[1])
                    a(f"""
                    s_cmp_ge_u32 s2, 144
                    s_cbranch_scc1 {l}_{k}
                    s_and_b32 s40, s2, 7
                    s_mul_i32 s40, s40, 18
                    s_lshr_b32 s64, s2, 3
                    s_add_u32 s40, s40, s64
                    s_mul_i32 s40, s40, 36864
                    s_mul_i32 s64, s{sHH}, 18432
                    s_add_u32 s64, s64, {6144*k}
                    s_add_u32 s40, s40, s64
                    s_add_u32 m0, s64, {L_DN}
                    v_lshl_add_u32 v252, v2, 4, s40
                    """)
                    for i in range(6):
                        if i == 3: a("s_add_u32 m0, m0, 3072\nv_add_u32 v252, 3072, v252")
                        a(f"global_load_lds_dwordx4 v252, {P(sWD)} offset:{1024*(i%3)}")
                    a(f"{l}_{k}:")
            a(f"s_mov_b32 m0, s80")
            a.label(l)
        return f_
    if E("C_PRIO"): hooks[E("C_PRIO")] = lambda: a("s_setprio 0")
    CH = dict(x.split(":") for x in E("M_CH", "").split(";") if x)
    for k_, v_ in CH.items(): hooks[k_] = chook(v_)
    if DNAT == "kg":
        def kt():
            k0_ = len(a.lines); dn_touch(a)
            for i in range(k0_, len(a.lines)): a.lines[i] = a.lines[i].replace("v252", "v247")
        hooks[E("F_DNH", "p")] = kt
    gen_kgen(a, 0, hooks)
    signal(a, C_TAB, VED+1)
    if int(E("SU45", "1")): a("s_cmp_ge_u32 s3, 4\ns_cbranch_scc1 M_SUE")
    su_conv(); su_xn(); su_epi()
    a.label("M_SUE")
    if XAT == "tab": first_issue()
    if XAT == "mix": first_issue(2, 4)
    stamp(a, 4)
    spin(a, C_TAB, 2, VED+1)
    stamp(a, 5)
    a(f"""
    s_cmp_eq_u32 s{sHH}, 0
    s_cbranch_scc0 M_EXB
    """)
    expand(a, 0)
    a("s_branch M_EXD")
    a.label("M_EXB")
    expand(a, 1)
    a.label("M_EXD")
    signal(a, C_K, VED+1)
    if XAT == "exp": first_issue()
    if XAT == "mix": first_issue(0, 2)
    stamp(a, 6)
    a("s_mov_b32 s73, 0")
    a("s_branch M_CSET")
    a.label("M_MOD")
    a(f"""
    s_cmp_ge_u32 s2, 243
    s_cbranch_scc1 M_MODX
    """)
    for i in range(4): a(f"global_load_dwordx4 {vr(64+4*i,4)}, v{216+i}, {P(sWMOD)} offset:3456 {NT}")
    if not MODF:
        mod_item(0, 11)
        a("s_setprio 0")
        stamp(a, 7)
        mod_item(1, 4)
    a.label("M_MODX")
    su_conv(); su_xn(); su_epi()
    if HINT: a("v_add_u32 v250, 8, v247\nv_mov_b32 v253, v246")
    a("s_setprio 0")
    a(f"""
    s_cmp_lg_u32 s3, 6
    s_cbranch_scc1 M_W7X
    """)
    spin(a, C_TAB if MODF else C_K, int(E("M_MPN", "1")))
    a(f"global_load_ushort v{VD}, v{VD}, {P(sDSK)}")
    mp_issue()
    a(f"""
    s_mov_b32 s41, {SPIN}
    M_MP:
    s_waitcnt vmcnt(0)
    v_xor_b32 v16, s{sTAG}, v{VMP+1}
    v_xor_b32 v17, s{sTAG}, v{VMP+3}
    v_xor_b32 v18, s{sTAG}, v{VMP+5}
    v_or3_b32 v16, v16, v17, v18
    v_cmp_ne_u32 vcc, 0, v16
    s_cbranch_vccz M_MPD
    """)
    mp_issue()
    a(f"""
    s_waitcnt vmcnt(0)
    s_sub_u32 s41, s41, 1
    s_cbranch_scc0 M_MP
    M_MPD:
    {"s_setprio 1" if int(E("M_PRS", "1")) else ""}
    s_mov_b32 exec_lo, 0xfe00fe00
    s_mov_b32 exec_hi, 0xfe00fe00
    v_mov_b32 v{VMP}, 0
    v_mov_b32 v{VMP+2}, 0
    v_mov_b32 v{VMP+4}, 0
    s_mov_b64 exec, -1
    """)
    for sh in (1, 2, 4, 8):
        for r in (VMP, VMP+2, VMP+4): a(f"v_add_f32 v{r}, v{r}, v{r} row_shr:{sh} {DPP_ALL} bound_ctrl:0")
    a(f"""
    v_cvt_pk_bf16_f32 v17, v{VMP}, v{VMP+2}
    v_cvt_pk_bf16_f32 v18, v{VMP+4}, v{VMP+4}
    v_lshlrev_b32 v16, 16, v17         ; sa
    v_and_b32 v17, 0xffff0000, v17     ; ca
    v_add_f32 v17, 1.0, v17
    v_cvt_pk_bf16_f32 v17, v17, v17
    v_and_b32 v17, 0xffff0000, v17     ; c1
    v_mul_f32 v19, 0x42800000, v17
    v_add_f32 v19, abs(v19), abs(v16)
    v_frexp_exp_i32_f32 v19, v19
    v_sub_u32 v19, 15, v19
    v_ldexp_f32 v17, v17, v19
    v_ldexp_f32 v16, v16, v19
    v_sub_u32 v19, 0, v19
    v_lshlrev_b32 v{VD}, 16, v{VD}
    v_lshlrev_b32 v18, 16, v18
    v_ldexp_f32 v{VD}, v{VD}, v19
    v_lshrrev_b32 v20, 2, v2
    v_and_b32 v20, 12, v20
    s_mov_b32 exec_lo, 0x80008000
    s_mov_b32 exec_hi, 0x00008000
    ds_write_b32 v20, v17 offset:{L_PRM}
    ds_write_b32 v20, v16 offset:{L_PRM + 16}
    ds_write_b32 v{VZ}, v33 offset:{L_CNT + C_PR + 4}
    ds_write_b32 v20, v{VD} offset:{L_PRM + 32}
    ds_write_b32 v20, v18 offset:{L_PRM + 48}
    ds_write_b32 v20, v19 offset:{L_PRM + 64}
    s_mov_b64 exec, -1
    """)
    signal(a, C_PR)
    a("s_setprio 0")
    stamp(a, 14)
    a("s_branch M_NI2")
    a.label("M_W7X")
    I2L = int(E("M_I2L", "0"))
    if MODF and not I2L:
        a("s_cmp_ge_u32 s2, 243\ns_cbranch_scc1 M_NI2")
        mod_item(1, 3)
    a.label("M_NI2")
    stamp(a, 3)
    spin(a, C_K, int(E("M_W6N", "1")))
    xn_issue(4 if S4 else 3)
    if I2L:
        a("s_mov_b32 s73, 0\nv_mov_b32 v124, v35")
        for i in range(4): a(f"v_mov_b32 v{120+i}, v{28+i}")
    else:
        a("s_mov_b32 s73, 0\ns_cmp_lg_u32 s3, 6\ns_cbranch_scc1 M_CSET\ns_cmp_ge_u32 s2, 243\ns_cbranch_scc1 M_CSET")
        mod_item(1, 7 if S4 else 6)
        a("s_mov_b32 s73, 1")
    def pf_waves(spec, tag, v0):
        for grp in filter(None, spec.split(";")):
            w, items = grp.split(":")
            l = a.newlabel("PF")
            a(f"s_cmp_lg_u32 s3, {w}"); a(f"s_cbranch_scc1 {l}")
            for it in items.split(","): pf_lines(a, it[:-1], int(it[-1]), v0)
            a.label(l)
    pf_waves(E("M_PFA", ""), "a", 100)
    a.label("M_CSET")
    jobs = {"A": Job([(0, JA, "A")]), "B": Job([(0, JB, "B")]), "C": Job([(0, JC, "C")]), "D": Job([(1, JD, "D"), (0, JD, "D")])}
    for k in range(4): jobs[f"K{k}"] = Job([(0, JCH(k), None)], int(E("M_NPXK", "2")))
    a(f"""
    s_lshl_b32 s40, s3, 2
    s_lshr_b32 s40, {E('M_JOBS', '0x31242010')}, s40
    s_and_b32 s62, s40, 15
    s_and_b32 s40, s2, 3
    s_cmp_eq_u32 s62, 4
    s_cselect_b32 s40, s40, 0
    s_add_u32 s62, s62, s40
    """)
    def dispatch(pre):
        for i, nm in enumerate(list(jobs)[:-1]):
            a(f"s_cmp_eq_u32 s62, {i}")
            a(f"s_cbranch_scc1 {pre}{nm}")
        a(f"s_branch {pre}K3")
    SF = int(E("M_SF", "1"))
    if SF: a("s_cmp_ge_u32 s3, 6\ns_cbranch_scc1 M_TGS\nM_PL0:")
    spin(a, C_K, 2, 1)
    dispatch("M_PL")
    for nm, jb in jobs.items():
        a.label(f"M_PL{nm}")
        if nm == "D": spin(a, C_K + 4, 2)
        jb.preload(a)
        a("s_branch M_STG")
    a.label("M_STG")
    stamp(a, 8)
    a(f"""
    s_cmp_ge_u32 s3, 4
    s_cbranch_scc1 M_HW
    {"s_cmp_ge_u32 s3, 2" if S4 else ""}
    {"s_cbranch_scc1 M_U3" if S4 else ""}
    """)
    a(f"""
    M_TGS:
    {"s_setprio 1" if int(E("M_PRS", "1")) else ""}
    ds_read_b64 v[16:17], v{VZ} offset:{L_CNT + C_PR}
    ds_read_b128 v[48:51], v{VZ} offset:{L_PRM}
    ds_read_b128 v[52:55], v{VZ} offset:{L_PRM + 16}
    s_lshl_b32 s40, s63, 8
    s_add_u32 s40, s40, {L_HB + 480}
    s_mov_b32 m0, s40
    s_mov_b32 s41, {SPIN}
    v_mov_b32 v62, 0x3f80
    v_mov_b32 v63, 0x3f800000
    s_waitcnt lgkmcnt(0)
    v_readfirstlane_b32 s94, v16
    v_readfirstlane_b32 s{sTAG}, v17
    v_readfirstlane_b32 s66, v48
    v_readfirstlane_b32 s69, v50
    v_readfirstlane_b32 s67, v49
    v_readfirstlane_b32 s70, v52
    v_readfirstlane_b32 s71, v53
    v_readfirstlane_b32 s72, v54
    s_lshr_b32 s66, s66, 16
    s_lshr_b32 s68, s69, 16
    s_cmp_ge_u32 s94, 1
    s_cbranch_scc0 M_TGS
    s_waitcnt vmcnt(1)
    s_cmp_eq_u32 s73, 1
    s_cbranch_scc1 M_XP1
    M_XP:
    s_waitcnt vmcnt(0)
    M_XP1:
    v_xor_b32 v16, s{sTAG}, v{XG+3}
    v_xor_b32 v17, s{sTAG}, v{XG+7}
    v_xor_b32 v18, s{sTAG}, v{XG+11}
    {"v_xor_b32 v19, s%d, v%d" % (sTAG, XG+15) if S4 else "s_cmp_lt_u32 s3, 2"}
    {"v_or_b32 v18, v18, v19" if S4 else "s_cselect_b32 s40, 0, -1"}
    {"" if S4 else "v_and_b32 v18, s40, v18"}
    v_or3_b32 v16, v16, v17, v18
    v_cmp_ne_u32 vcc, 0, v16
    s_cbranch_vccz M_XD
    s_mov_b64 exec, vcc
    """)
    xn_issue(4 if S4 else 3)
    a(f"""
    s_mov_b64 exec, -1
    s_sub_u32 s41, s41, 1
    s_cbranch_scc0 M_XP
    M_XD:
    """)
    stamp(a, 9)
    pf_waves(E("M_PFX", ""), "x", 16)
    def units(lst, FO=16):
        Y = 32
        for n, u in enumerate(lst):
            g = XG + 4*u; y = Y + 6*n
            for k, (src, cs) in enumerate(((g, 66), (g+1, 66), (g, 67), (g+1, 67), (g+2, 68), (g+2, 69))):
                a(f"v_dot2_f32_bf16 v{y+k}, v{src}, s{cs}, 0")
        if len(lst) == 1: a("s_nop 0")
        prs = [Y + 2*i for i in range(3*len(lst))]
        for p in prs: a(f"v_cvt_pk_bf16_f32 v{p+1}, v{p}, v{p+1}")
        for i, p in enumerate(prs):
            a(f"v_dot2_f32_bf16 v{p}, v{p+1}, v62, s{70 + i%3}")
            a(f"v_dot2_f32_bf16 v{p+1}, v{p+1}, v63, s{70 + i%3}")
        a("s_nop 1")
        rnd_pairs(a, prs)
        for i, p in enumerate(prs): a(f"v_cvt_pk_f16_f32 v{FO+i}, v{p}, v{p+1}")
        for i, p in enumerate(prs): a(f"ds_write_addtid_b32 v{FO+i} offset:{(i%3)*HB_P + lst[i//3]*256}")
    if S4:
        units([0, 1]); units([2, 3], 56)
    else:
        a("""
        s_cmp_lt_u32 s3, 2
        s_cbranch_scc1 M_U2
        """)
        units([0, 1, 2])
        a("s_branch M_U3")
        a.label("M_U2")
        units([0, 1])
    a.label("M_U3")
    signal(a, C_H)
    pf_waves(E("M_PFS", ""), "s", 16)
    a("s_setprio 0")
    if I2L:
        a("s_cmp_lt_u32 s3, 6\ns_cbranch_scc1 M_NI4\ns_cmp_ge_u32 s2, 243\ns_cbranch_scc1 M_PL0")
        a(f"v_mov_b32 v33, s{sTAG}\nv_mov_b32 v35, v124")
        for i in range(4): a(f"v_mov_b32 v{28+i}, v{120+i}\nv_lshlrev_b32 v{24+i}, 16, v{120+i}")
        mod_item(1, 3)
        a("s_branch M_PL0")
        a.label("M_NI4")
    else: a("s_cmp_ge_u32 s3, 6\ns_cbranch_scc1 M_PL0")
    RR = 160
    def red_issue():
        for s_ in range(8): a(f"global_load_dwordx2 {vr(RR+2*s_,2)}, v178, {P(sWS)} offset:{512*s_} sc1")
        a(f"global_load_dwordx2 {vr(RR+16,2)}, v179, {P(sWS)} sc1")
    def red_addr():
        a(f"""
        s_sub_u32 s40, s2, {229 - 27}
        s_mul_i32 s40, s40, {9*512}
        s_add_u32 s40, s40, {WS_MP}
        v_lshl_add_u32 v178, v2, 3, s40
        v_add_u32 v179, 4096, v178
        """)
    a(f"""
    M_HW:
    ; f-slice of D workgroups, down weights -> LDS
    s_and_b32 s40, s2, 7
    s_mul_i32 s40, s40, 18
    s_lshr_b32 s41, s2, 3
    s_add_u32 s46, s40, s41            ; fs
    """)
    def dn_fill(tag):
        L = ["v_lshrrev_b32 v15, 2, v2", "s_mul_i32 s40, s3, 144", "v_add_u32 v15, s40, v15", "v_mul_u32_u24 v15, 9216, v15", "v_and_b32 v251, 3, v2",
             "v_lshl_add_u32 v15, v251, 4, v15", "s_lshl_b32 s40, s46, 6", "v_add_u32 v15, s40, v15", "s_mul_i32 s40, s3, 9216", f"s_add_u32 m0, s40, {L_G}", f"s_mov_b32 s40, {16*9216}"]
        for i in range(9):
            L.append(f"s_cmp_ge_u32 s2, s47\ns_cbranch_scc1 DN{tag}_{i}\nglobal_load_lds_dwordx4 v15, {P(sWG)} {E('F_GFL', '')}\nDN{tag}_{i}:")
            if i < 8: L += ["s_add_u32 m0, m0, 1024\nv_add_u32 v15, s40, v15"]
        return L
    def pf_fill(spec):
        b = Asm(); b.uid = a.uid + 1000
        for it in spec.split(","): pf_lines(b, it[:-1], int(it[-1]), 252)
        return [x.strip() for x in b.lines if x.strip()]
    a("""
    s_cmp_lt_u32 s3, 4
    s_cselect_b32 s47, 144, 0
    s_bitcmp1_b32 s3, 1
    s_cselect_b32 s78, s24, s22
    s_cselect_b32 s79, s25, s23
    """)
    pf_waves(E("M_PFR", ""), "r", 16)
    if int(E("M_PRIO4", "1")):
        a("s_cmp_lg_u32 s3, 4\ns_cbranch_scc1 M_NP4\ns_setprio 1\nM_NP4:")
    PFJ = dict(x.split(":") for x in E("M_PFJ", "A:g0;B:g1;C:g2").split(";") if x)
    dispatch("M_RUN")
    def hspin(nm): a(f"""
    M_HS{nm}:
    ds_read_b32 v251, v{VZ} offset:{L_CNT + C_H}
    ds_read_b32 v15, v{VZ} offset:{L_TAG}
    s_waitcnt lgkmcnt(0)
    v_readfirstlane_b32 s94, v251
    v_readfirstlane_b32 s{sTAG}, v15
    s_cmp_ge_u32 s94, {6 if PK23 else 8}
    s_cbranch_scc0 M_HS{nm}
    """)
    for nm, jb in jobs.items():
        a.label(f"M_RUN{nm}")
        hspin(nm)
        stamp(a, 10)
        fl_ = []
        if nm in PFJ: fl_ += pf_fill(PFJ[nm])
        if nm == "B":
            b_ = Asm(); sv = a.lines; a.lines = b_.lines
            a("s_cmp_lg_u32 s3, 1\ns_cbranch_scc1 M_NRI\ns_cmp_lt_u32 s2, 229\ns_cbranch_scc1 M_NRI"); red_addr(); red_issue(); a.label("M_NRI")
            a.lines = sv
            fl_ = fl_ + [""] * (2*int(E("M_RAT", "30")) - len(fl_)) + ["\n".join(b_.lines)]
        acc = jb.run(a, fl_)
        if nm[0] == "K":
            k = int(nm[1])
            c0_, c1_ = acc[(0, k)], acc[(0, 7-k)]
            t0_, t1_ = (k, 7-k) if c0_ < c1_ else (7-k, k)
            a(f"""
            ds_read_b32 v40, v{VZ} offset:{L_PRM + 32 + 8}
            ds_read_b32 v41, v{VZ} offset:{L_PRM + 48 + 8}
            ds_read_b32 v42, v{VZ} offset:{L_PRM + 64 + 8}
            ds_read_b32 v43, v{VZ} offset:{L_PRM + 80 + 8}
            ds_read_b64 v[44:45], v3 offset:{2*HB_P + 512*t0_}
            ds_read_b64 v[46:47], v3 offset:{2*HB_P + 512*t1_}
            v_and_b32 v16, 15, v2
            v_mul_u32_u24 v16, 96, v16
            v_lshrrev_b32 v17, 5, v2
            v_mul_u32_u24 v17, 48, v17
            v_bfe_u32 v18, v2, 4, 1
            v_lshl_add_u32 v17, v18, 3, v17
            v_add_u32 v16, v16, v17
            v_add_u32 v16, {L_TAB + 32}, v16
            s_waitcnt lgkmcnt(0)
            v_ldexp_f32 v43, v43, v42
            """)
            c0 = min(c0_, c1_)
            epi_core(a, c0, 44, 48, "v43", "v40", "v41", 8)
            for i in range(4): a(f"v_cvt_pk_bf16_f32 v{48+i}, v{c0+2*i}, v{c0+2*i+1}")
            a(f"ds_write_b64 v16, v[48:49] offset:{1536*t0_}")
            a(f"ds_write_b64 v16, v[50:51] offset:{1536*t1_}")
        a("s_branch M_FIN")
    a.label("M_FIN")
    a("s_setprio 0")
    stamp(a, 11)
    a(f"""
    s_cmp_lg_u32 s3, 1
    s_cbranch_scc1 M_NRED
    s_cmp_lt_u32 s2, 229
    s_cbranch_scc1 M_NRED
    s_mov_b32 s41, {SPIN}
    """)
    red_addr()
    a(f"""
    s_waitcnt vmcnt(0)
    M_RP:
    v_xor_b32 v180, s{sTAG}, v{RR+17}
    """)
    for s_ in range(8):
        a(f"v_xor_b32 v181, s{sTAG}, v{RR+2*s_+1}")
        a("v_or_b32 v180, v180, v181")
    a(f"""
    v_cmp_ne_u32 vcc, 0, v180
    s_cbranch_vccz M_RD
    """)
    red_issue()
    a(f"""
    s_waitcnt vmcnt(0)
    s_sub_u32 s41, s41, 1
    s_cbranch_scc0 M_RP
    M_RD:
    """)
    for s_ in range(8): a(f"v_add_f32 v{RR+16}, v{RR+16}, v{RR+2*s_}")
    a(f"""
    v_cvt_pk_bf16_f32 v180, v{RR+16}, v{RR+16}
    s_sub_u32 s40, s2, {229 + 9}
    s_cmp_lt_u32 s40, 9
    s_cbranch_scc0 M_RNC
    v_lshlrev_b32 v180, 16, v180
    v_add_f32 v180, 1.0, v180
    v_cvt_pk_bf16_f32 v180, v180, v180
    M_RNC:
    s_sub_u32 s40, s2, 229
    s_lshl_b32 s40, s40, 8
    s_add_u32 s40, s40, {WS_PT16}
    v_mov_b32 v182, v180 quad_perm:[1,1,3,3] {DPP_ALL}
    v_lshl_add_u32 v183, v2, 2, s40
    v_mov_b32 v181, s{sTAG}
    v_alignbit_b32 v180, v182, v180, 16
    s_mov_b32 exec_lo, 0x55555555
    s_mov_b32 exec_hi, 0x55555555
    global_store_dwordx2 v183, v[180:181], {P(sWS)} sc1
    s_mov_b64 exec, -1
    M_NRED:
    s_cmp_lg_u32 s3, 5
    s_cbranch_scc1 M_NWR
    v_lshlrev_b32 v180, 4, v2
    s_mov_b32 m0, {L_PT + 3456}
    s_nop 0
    global_load_lds_dwordx4 v180, {P(sWR)}
    s_mov_b64 exec, 0xff
    global_load_lds_dwordx4 v180, {P(sWR)} offset:1024
    s_mov_b64 exec, -1
    M_NWR:
    """)
    a(f"""
    ds_read_b64 v[64:65], v{VZ} offset:{L_PRM + 32}
    ds_read_b64 v[66:67], v{VZ} offset:{L_PRM + 48}
    ds_read_b64 v[68:69], v{VZ} offset:{L_PRM + 64}
    ds_read_b64 v[70:71], v{VZ} offset:{L_PRM + 80}
    ds_read_b64 v[72:73], v27
    ds_read_b64 v[74:75], v27 offset:{HB_P}
    s_waitcnt lgkmcnt(6)
    s_barrier                          ; B6
    ds_read_b128 v[80:83], v24
    ds_read_b128 v[84:87], v25
    ds_read_b128 v[88:91], v26
    ds_read_b128 v[92:95], v24 offset:18432
    ds_read_b128 v[96:99], v25 offset:18432
    ds_read_b128 v[100:103], v26 offset:18432
    v_min_u32 v124, 175, v0
    v_lshlrev_b32 v125, 4, v0
    v_lshlrev_b32 v124, 4, v124
    v_add_u32 v126, {WS_PT16}, v125
    v_add_u32 v127, {WS_PT16 + 4096}, v124
    s_cmp_ge_u32 s3, 4
    s_cbranch_scc1 M_NPL
    global_load_dwordx4 v[128:131], v126, {P(sWS)} sc1
    global_load_dwordx4 v[132:135], v127, {P(sWS)} sc1
    M_NPL:
    s_waitcnt lgkmcnt(6)
    """)
    for e in range(4): a(f"v_fma_mix_f32 v{104+e}, v{72+e//2}, v64, 0 op_sel:[{e&1},0,0] op_sel_hi:[1,0,0]")
    for e in range(4): a(f"v_fma_mix_f32 v{108+e}, v{74+e//2}, v65, 0 op_sel:[{e&1},0,0] op_sel_hi:[1,0,0]")
    a("v_ldexp_f32 v70, v70, v68\nv_ldexp_f32 v71, v71, v69")
    rnd_pairs(a, [104, 106, 108, 110])
    if "2a" in HINT: a("s_cmp_lg_u32 s3, 5\ns_cbranch_scc1 M_NH2"); hint_add(a, 0, "H2"); a.label("M_NH2")
    a("s_waitcnt lgkmcnt(3)")
    for e in range(4): a(f"v_add_f32 v{84+e}, v{84+e}, v{88+e}")
    for e in range(4): a(f"v_fmac_f32 v{80+e}, s82, v{84+e}")
    a("s_waitcnt lgkmcnt(0)")
    for e in range(4): a(f"v_add_f32 v{96+e}, v{96+e}, v{100+e}")
    for e in range(4): a(f"v_fma_f32 v{84+e}, s82, v{96+e}, v{92+e}")
    for e in range(8): a(f"v_mul_f32 v{80+e}, v{70+e//4}, v{80+e}")
    for i in range(4): a(f"v_cvt_pk_bf16_f32 v{88+i}, v{80+2*i}, v{81+2*i}")
    a("v_mov_b32 v62, 0x3f80")
    a("v_mov_b32 v63, 0x3f800000")
    for e in range(8): a(f"v_dot2_f32_bf16 v{80+e}, v{88+e//2}, v{62+(e&1)}, v{104+e}")
    rnd_pairs(a, [80, 82, 84, 86])
    for e in range(8): a(f"v_mul_f32 v{80+e}, v{66+e//4}, v{80+e}")
    for e in range(4): a(f"v_cvt_pk_bf16_f32 v{88+e}, v{80+e}, v{84+e}")
    a(f"""
    ds_write_b128 v28, v[88:91]
    ds_read2_b32 v[116:117], v29 offset0:0 offset1:1
    ds_read_b32 v118, v29 offset:8
    ds_read2_b32 v[120:121], v29 offset0:12 offset1:13
    ds_read_b32 v122, v29 offset:56
    v_mov_b32 v119, s{sTAG}
    v_mov_b32 v123, s{sTAG}
    v_add_u32 v31, 16384, v30
    v_lshrrev_b32 v125, 1, v125
    v_lshrrev_b32 v124, 1, v124
    v_add_u32 v125, {L_PT}, v125
    v_add_u32 v124, {L_PT + 2048}, v124
    s_waitcnt lgkmcnt(2)
    global_store_dwordx4 v30, v[116:119], {P(sWS)} sc1
    s_waitcnt lgkmcnt(0)
    global_store_dwordx4 v31, v[120:123], {P(sWS)} sc1
    """)
    if "2b" in HINT: a("s_cmp_lg_u32 s3, 0\ns_cbranch_scc1 M_NH2"); hint_add(a, 0, "H2"); a.label("M_NH2")
    stamp(a, 17)
    gen_tail(a)
    return ("ka_kernel", 256, 512, M_LDS, 256, 100, 256)

def dn_touch(a):
    a("s_cmp_ge_u32 s3, 3\ns_cbranch_scc1 T_NT")
    a("""
    s_lshr_b32 s64, s2, 3
    s_mul_i32 s64, s64, 162
    s_mul_i32 s65, s3, 54
    s_add_u32 s64, s64, s65
    s_and_b32 s65, s2, 7
    s_mul_i32 s65, s65, 5184
    s_add_u32 s64, s64, s65
    v_min_u32 v252, 53, v2
    v_add_u32 v252, s64, v252
    v_lshlrev_b32 v252, 7, v252
    """)
    a(f"global_load_dword v250, v252, {P(sWD)}")
    a.label("T_NT")


def hint_add(a, hop, lab):
    a(f"""
    s_lshr_b32 s64, s2, 3
    s_lshl_b32 s64, s64, 7
    s_add_u32 s64, s64, {WS_CNT + hop*32768}
    v_lshlrev_b32 v252, 12, v2
    s_mov_b64 exec, 0xff
    v_add_u32 v252, s64, v252
    global_atomic_add v252, v{VONE}, {P(sWS)} sc1
    s_mov_b64 exec, -1
    """)
def hint_wait(a, hop, lab, bo):
    a(f"""
    s_mov_b32 s64, 200
    s_mov_b32 exec_lo, {-1 if hop == 0 else 0}
    s_mov_b32 exec_hi, {0 if hop == 0 else -1}
    {lab}:
    global_load_dword v252, v253, {P(sWS)} sc1
    s_waitcnt vmcnt(0)
    v_cmp_ne_u32 vcc, v252, v250
    s_cbranch_vccz {lab}D
    s_mov_b64 exec, vcc
    s_sleep {bo}
    s_sub_u32 s64, s64, 1
    s_cbranch_scc0 {lab}
    {lab}D:
    s_mov_b64 exec, -1
    """)

def reduce2(a, A, B):
    for m in [f"row_shr:1 {DPP_ALL} bound_ctrl:0", f"row_shr:2 {DPP_ALL} bound_ctrl:0", f"row_shr:4 {DPP_ALL} bound_ctrl:0", f"row_shr:8 {DPP_ALL} bound_ctrl:0",
              "row_bcast:15 row_mask:0xa bank_mask:0xf", "row_bcast:31 row_mask:0xc bank_mask:0xf"]:
        a(f"v_add_f32 v{A}, v{A}, v{A} {m}")
        if B is not None: a(f"v_add_f32 v{B}, v{B}, v{B} {m}")
        a("s_nop 0" if B is not None else "s_nop 1")

def gen_tail(a):
    XF, C1, SB, GB, WR = 16, 26, 36, 46, 56
    ONES, LO, HI, RC = 61, 62, 63, 15
    Z, X1, P1, T, H2, O = 64, 70, 80, 86, 96, 102
    WG_, WD_ = 136, 176
    ZG, ZA = 192, 208
    sel = lambda e: LO + (e & 1)
    sKEY, sOWN = 47, 48
    GUK = 1
    GUAT = E('F_GU', 'b7')
    PFIRST = int(E('F_PFIRST', '1'))
    PLAN = E("F_PLAN", "D")
    def w_dma(mats):
        a(f"""
        v_lshrrev_b32 v9, 2, v2
        s_mul_i32 s40, s3, 144
        v_add_u32 v9, s40, v9
        v_mul_u32_u24 v9, 9216, v9
        v_and_b32 v8, 3, v2
        v_lshl_add_u32 v9, v8, 4, v9
        s_lshl_b32 s40, s46, 6
        v_add_u32 v9, s40, v9
        s_mul_i32 s50, s3, 9216
        s_mov_b32 s40, {16*9216}
        """)
        for k, m in enumerate(mats):
            a(f"s_add_u32 m0, s50, {L_G if m == 'g' else L_U}")
            a(f"v_mov_b32 v8, v9")
            for i in range(9):
                a(f"global_load_lds_dwordx4 v8, {P(sWG if m == 'g' else sWU)}")
                if i < 8: a("s_add_u32 m0, m0, 1024\nv_add_u32 v8, s40, v8")
    def gu_dma():
        a("s_cmp_ge_u32 s2, 144\ns_cbranch_scc1 T_NGU")
        if PLAN != "C": w_dma("gu" if PLAN in "AD" else "g")
        if not PFIRST: a(f"s_waitcnt vmcnt({20 if PLAN == 'A' else 11})\ns_branch T_PP1")
        a.label("T_NGU")
    def dn_dma():
        a('s_cmp_ge_u32 s2, 144\ns_cbranch_scc1 T_NDN\ns_cmp_ge_u32 s3, 4\ns_cbranch_scc1 T_NDN')
        a(f"""
        s_mul_i32 s40, s46, 36864
        s_mul_i32 s51, s3, 9216
        s_add_u32 s40, s40, s51
        s_add_u32 m0, s51, {L_D2}
        v_lshl_add_u32 v9, v2, 4, s40
        """)
        for i in range(9):
            a(f"global_load_lds_dwordx4 v9, {P(sWD)} offset:{1024*(i%3)} {E('F_DFL', '')}")
            if i % 3 == 2 and i < 8: a("s_add_u32 m0, m0, 3072\nv_add_u32 v9, 3072, v9")
        a.label("T_NDN")
    a(f"""
    s_cmp_lg_u32 s3, 5
    s_cbranch_scc1 T_B7
    s_waitcnt vmcnt(2)
    T_B7:
    s_barrier                          ; B7
    s_cmp_ge_u32 s3, 4
    s_cbranch_scc1 T_ZW
    """)
    a(f"""
    s_mov_b32 s41, {SPIN}
    """)
    if not PFIRST: gu_dma()
    a(f"""
    s_waitcnt vmcnt(2)
    s_branch T_PP1
    T_PP:
    global_load_dwordx4 v[128:131], v126, {P(sWS)} sc1
    global_load_dwordx4 v[132:135], v127, {P(sWS)} sc1
    s_waitcnt vmcnt(0)
    T_PP1:
    v_xor_b32 v129, s{sTAG}, v129
    v_xor_b32 v131, s{sTAG}, v131
    v_xor_b32 v133, s{sTAG}, v133
    v_xor_b32 v135, s{sTAG}, v135
    v_or3_b32 v129, v129, v131, v133
    v_or_b32 v129, v129, v135
    v_cmp_ne_u32 vcc, 0, v129
    s_cbranch_vccz T_PD
    s_sub_u32 s41, s41, 1
    s_cbranch_scc0 T_PP
    T_PD:
    ds_write2_b32 v125, v128, v130 offset0:0 offset1:1
    ds_write2_b32 v124, v132, v134 offset0:0 offset1:1
    """)
    signal(a, C_P)
    if PFIRST: gu_dma()
    a(f"""
    s_branch T_COM
    T_ZW:
    s_sub_u32 s40, s3, 4
    s_lshl_b32 s41, s40, 12
    s_lshl_b32 s50, s2, 14
    s_add_u32 s41, s41, s50
    s_add_u32 s41, s41, {WS_Z2}
    v_lshl_add_u32 v{ZA+3}, v2, 4, s41
    s_lshl_b32 s40, s40, 8             ; 4 * 64(w-4)
    v_lshrrev_b32 v64, 2, v2
    v_lshl_add_u32 v65, v64, 2, s40    ; 4p
    v_and_b32 v66, 3, v2               ; g
    v_mul_u32_u24 v67, {3*ZR_P}, v66
    v_add_u32 v{ZA}, v65, v67
    v_add_u32 v{ZA}, {L_ZR}, v{ZA}
    v_add_u32 v{ZA+1}, {ZR_P}, v{ZA}
    v_add_u32 v{ZA+2}, {2*ZR_P}, v{ZA}
    s_lshr_b32 s41, s2, 5
    s_sub_u32 s50, 7, s41
    s_min_u32 s41, s41, s50            ; owner k
    v_and_b32 v67, 3, v64
    v_and_b32 v65, -16, v65            ; (p>>2)*16
    v_add_u32 v65, {L_ZC}, v65
    v_mov_b32 v68, {L_ZC + 1024}
    v_cmp_eq_u32 vcc, s41, v67
    s_nop 1
    v_cndmask_b32 v65, v68, v65, vcc
    v_add_u32 v67, 4, v65
    v_add_u32 v68, 8, v65
    v_add_u32 v69, 12, v65
    v_cmp_eq_u32 vcc, 2, v66
    s_nop 1
    v_cndmask_b32 v{ZA+2}, v{ZA+2}, v65, vcc
    v_cmp_eq_u32 vcc, 3, v66
    s_nop 1
    v_cndmask_b32 v{ZA}, v{ZA}, v67, vcc
    v_cndmask_b32 v{ZA+1}, v{ZA+1}, v68, vcc
    v_cndmask_b32 v{ZA+2}, v{ZA+2}, v69, vcc
    """)
    a.label("T_COM")
    a(f"""
    v_mov_b32 v64, 0
    v_mov_b32 v65, 0
    v_mov_b32 v66, 0
    v_mov_b32 v67, 0
    v_lshlrev_b32 v68, 4, v0
    v_min_u32 v69, 15, v0
    v_lshlrev_b32 v69, 4, v69
    ds_write_b128 v68, v[64:67] offset:{L_LIST}
    ds_write_b128 v69, v[64:67] offset:{L_LIST + 8192}
    v_mov_b32 v{ONES}, 0x3f803f80
    v_mov_b32 v{RC}, {fbits(1.0/576)}
    v_and_b32 v212, 3, v2
    v_lshlrev_b32 v212, 4, v212
    v_lshrrev_b32 v213, 2, v2
    v_lshlrev_b32 v213, 14, v213
    s_lshl_b32 s41, s2, 6
    s_add_u32 s41, s41, {WS_KEY}
    v_add3_u32 v213, v213, v212, s41
    s_lshl_b32 s41, s3, 3
    v_mov_b32 v214, s41
    v_mov_b32 v217, s{sTAG}
    s_lshl_b32 s61, s2, 3
    s_add_u32 s61, s61, s3
    s_sub_u32 s61, 0xffff, s61
    """)
    for w in range(4): unpk(a, XF+2*w, XF+2*w+1, 10+w)
    a(f"""
    v_lshlrev_b32 v{XF+8}, 16, v14
    v_lshlrev_b32 v4, 4, v2
    v_add_u32 v4, {L_PT}, v4
    v_lshlrev_b32 v5, 1, v2
    v_add_u32 v5, {L_PT + 1024}, v5
    s_mul_i32 s40, s3, {ZR_P}
    s_add_u32 s40, s40, {L_ZR}
    v_lshl_add_u32 v6, v2, 4, s40
    s_lshl_b32 s40, s3, 1
    s_add_u32 s40, s40, {L_ZC}
    v_lshl_add_u32 v7, v2, 4, s40
    """)
    def z_issue():
        for n in range(4): a(f"global_load_dwordx4 {vr(ZG+4*n,4)}, v{ZA+3}, {P(sWS)} offset:{1024*n} sc1")
    stamp(a, 18)
    spin(a, C_P, 4)
    for t, d in ((0, 112), (1, 118), (2, 124)):
        a(f"ds_read_b128 {vr(72+8*t, 4)}, v4 offset:{1152*t}")
        a(f"ds_read_u16 v{76+8*t}, v5 offset:{1152*t}")
    a(f"""
    ds_read_b128 {vr(WR,4)}, v4 offset:3456
    ds_read_u16 v{WR+4}, v5 offset:3456
    s_waitcnt lgkmcnt(4)
    """)
    for w in range(4): unpk(a, SB+2*w, SB+2*w+1, 72+w)
    a(f"v_lshlrev_b32 v{SB+8}, 16, v76")
    for w in range(4):
        a(f"v_and_b32 v{C1+2*w}, 0xffff, v{80+w}")
        a(f"v_and_b32 v{C1+2*w+1}, 0xffff0000, v{80+w}")
    a(f"v_mov_b32 v{C1+8}, v84")
    a("s_waitcnt lgkmcnt(2)")
    for w in range(4):
        a(f"v_and_b32 v{GB+2*w}, 0xffff, v{88+w}")
        a(f"v_and_b32 v{GB+2*w+1}, 0xffff0000, v{88+w}")
    a(f"""
    v_mov_b32 v{GB+8}, v92
    s_cmp_lt_u32 s3, 4
    s_cbranch_scc1 T_LW
    s_mov_b32 s41, {SPIN}
    """)
    if "2" in HINT:
        a("s_cmp_lg_u32 s3, 7\ns_cbranch_scc1 T_H2S")
        hint_wait(a, 0, "T_H2W", int(E("HBO", "6")))
        signal(a, C_KP + 8)
        a("s_branch T_ZP1")
        a.label("T_H2S")
        spin(a, C_KP + 8, 1)
        a("s_branch T_ZP1")
    a(f"""
    s_waitcnt vmcnt(0)
    T_ZP:
    s_sleep {BO_Z}
    T_ZP1:
    """)
    z_issue()
    a(f"""
    s_waitcnt vmcnt(0)
    s_mov_b64 exec, -1
    v_xor_b32 v64, s{sTAG}, v{ZG+3}
    v_xor_b32 v65, s{sTAG}, v{ZG+7}
    v_xor_b32 v66, s{sTAG}, v{ZG+11}
    v_xor_b32 v67, s{sTAG}, v{ZG+15}
    v_or3_b32 v64, v64, v65, v66
    v_or_b32 v64, v64, v67
    v_cmp_ne_u32 vcc, 0, v64
    s_cbranch_vccz T_ZD
    s_mov_b64 exec, vcc
    s_sub_u32 s41, s41, 1
    s_cbranch_scc1 T_ZPX
    s_and_b32 s40, s41, 3
    s_cbranch_scc1 T_ZP1
    s_branch T_ZP
    T_ZPX:
    s_mov_b64 exec, -1
    T_ZD:
    """)
    stamp(a, 19)
    signal(a, C_KP + 8)
    for n in (0, 2):
        for s_ in range(3): a(f"ds_write2_b32 v{ZA+s_}, v{ZG+4*n+s_}, v{ZG+4*n+4+s_} offset0:{16*n} offset1:{16*n+16}")
    a("s_branch T_B9")
    a.label("T_LW")
    spin(a, C_KP + 8, 4)
    if PLAN == "A": dn_dma()
    else:
        a("s_cmp_ge_u32 s2, 144\ns_cbranch_scc1 T_NUP\ns_cmp_ge_u32 s3, 4\ns_cbranch_scc1 T_NUP")
        if PLAN != "D": w_dma("u" if PLAN == "B" else "gu")
        a.label("T_NUP")
        dn_touch(a)
    a(f"""
    T_B9:
    {"s_setprio 1" if int(E("F_PRIO", "1")) else ""}
    s_waitcnt lgkmcnt(0)
    s_barrier                          ; B9
    ds_read_b128 {vr(Z,4)}, v6
    ds_read_u16 v{Z+4}, v7
    s_waitcnt lgkmcnt(0)
    """)
    stamp(a, 20)
    if "3a" in HINT: a("s_cmp_lg_u32 s3, 5\ns_cbranch_scc1 T_NH3"); hint_add(a, 1, "H3"); a.label("T_NH3")
    def pack(dst, src):
        for i in range(4): a(f"v_cvt_pk_bf16_f32 v{dst+i}, v{src+2*i}, v{src+2*i+1}")
        a(f"v_cvt_pk_bf16_f32 v{dst+4}, v{src+8}, 0")
    def dots(dst, src, bf, cf):
        for e in (8, 0, 1, 2, 3, 4, 5, 6, 7): a(f"v_dot2_f32_bf16 v{dst+e}, v{src+e//2}, {bf(e)}, {cf(e)}")
    vsel = lambda e: f"v{sel(e)}"
    dots(X1, Z, vsel, lambda e: f"v{XF+e}")
    pack(P1, X1)
    ln_core(a, P1, X1, T, ONES, LO, RC, "T_FAST")
    if "3b" in HINT: a("s_cmp_lg_u32 s3, 5\ns_cbranch_scc1 T_NH3"); hint_add(a, 1, "H3"); a.label("T_NH3")
    pack(Z, X1)
    dots(X1, Z, lambda e: f"v{C1+e}", lambda e: "0")
    pack(Z, X1)
    dots(X1, Z, vsel, lambda e: f"v{SB+e}")
    pack(H2, X1)
    for i in range(5): a(f"v_dot2_f32_bf16 v{T}, v{H2+i}, v{WR+i}, {'0' if i == 0 else 'v%d' % T}")
    a("s_nop 2")
    reduce2(a, T, None)
    a(f"""
    v_cvt_pk_bf16_f32 v{T}, v{T}, v{T}
    s_mov_b64 exec, 1
    v_readlane_b32 s{sKEY}, v{T}, 63
    s_ashr_i32 s41, s{sKEY}, 31
    s_or_b32 s41, s41, 0x80000000
    s_xor_b32 s{sKEY}, s{sKEY}, s41
    s_and_b32 s{sKEY}, s{sKEY}, 0xffff0000
    s_or_b32 s{sKEY}, s{sKEY}, s61
    v_mov_b32 v216, s{sKEY}
    ds_write_b64 v214, v[216:217] offset:{L_CNT + C_KEYS}
    ds_add_u32 v{VZ}, v{VONE} offset:{L_CNT + C_KEY}
    s_mov_b64 exec, -1
    s_mov_b32 s41, s3
    s_cmp_lg_u32 s3, 7
    s_cbranch_scc1 T_NK
    T_KS:
    ds_read_b32 v{T+3}, v{VZ} offset:{L_CNT + C_KEY}
    ds_read_b128 v[108:111], v212 offset:{L_CNT + C_KEYS}
    s_waitcnt lgkmcnt(0)
    v_readfirstlane_b32 s94, v{T+3}
    s_cmp_ge_u32 s94, 8
    s_cbranch_scc0 T_KS
    {"s_mov_b32 exec_hi, 0" if NREP == 8 else ("" if NREP == 16 else "s_mov_b64 exec, %s" % hex((1 << (4*NREP)) - 1))}
    s_waitcnt lgkmcnt(0)
    global_store_dwordx4 v213, v[108:111], {P(sWS)} sc1
    s_mov_b64 exec, -1
    T_NK:
    s_setprio 0
    """)
    stamp(a, 21)
    if DNAT == "kp":
        k0_ = len(a.lines); dn_touch(a)
    dots(X1, H2, lambda e: f"v{GB+e}", lambda e: "0")
    for w in range(4): unpk(a, XF+2*w, XF+2*w+1, P1+w)
    a(f"v_lshlrev_b32 v{XF+8}, 16, v{P1+4}")
    pack(Z, X1)
    dots(X1, Z, vsel, lambda e: f"v{XF+e}")
    a(f"""
    s_and_b32 s40, s2, {NREP-1}
    s_lshl_b32 s40, s40, 14
    s_lshl_b32 s50, s3, 11
    s_add_u32 s40, s40, s50
    s_add_u32 s40, s40, {WS_KEY}
    v_lshl_add_u32 v6, v2, 4, s40
    """)
    pack(O, X1)
    a(f"""
    s_cmp_lg_u32 s41, 7
    s_cbranch_scc1 T_NK2
    """)
    if "3" in HINT: hint_wait(a, 1, "T_H3W", int(E("HBO", "6")))
    else: a("s_waitcnt vmcnt(0)")
    signal(a, C_KP)
    a(f"""
    T_NK2:
    """)
    KK = 108
    OLATE = int(E('F_OLATE', '0'))
    DNP = E("F_DNP", "k")
    a(f"""
    s_cmp_ge_u32 s2, 144
    s_cbranch_scc1 T_NW
    s_cmp_ge_u32 s3, 4
    s_cbranch_scc1 T_W2
    s_waitcnt vmcnt({9 if PLAN == "A" else 0})
    """)
    signal(a, C_KP + 4)
    a(f"""
    T_W2:
    v_bfe_u32 v7, v2, 2, 2             ; r
    v_lshrrev_b32 v8, 4, v2            ; q
    v_lshl_add_u32 v7, v8, 3, v7       ; 8q + r
    v_and_b32 v8, 3, v2
    v_lshlrev_b32 v8, 3, v8            ; 8c
    v_mul_u32_u24 v21, 1152, v7
    v_add_u32 v21, v21, v8
    s_lshl_b32 s40, s3, 5
    s_add_u32 s40, s40, {L_D2}
    v_add_u32 v21, s40, v21
    v_lshl_add_u32 v7, v7, 6, v8
    s_lshr_b32 s40, s3, 1
    s_mul_i32 s50, s40, 5
    s_cmp_eq_u32 s40, 3
    s_cselect_b32 s50, 14, s50
    s_lshl_b32 s51, s50, 11
    s_and_b32 s40, s3, 1
    s_lshl_b32 s40, s40, 5
    s_add_u32 s40, s40, s51
    s_add_u32 s40, s40, {L_U}
    v_add_u32 v7, s40, v7
    v_add_u32 v8, {L_G - L_U}, v7
    """)
    spin(a, C_KP + 4, 4)
    stamp(a, 30)
    for i in range(5):
        a(f"ds_read_b64_tr_b16 {vr(WG_+8*i,2)}, v8 offset:{2048*i}")
        a(f"ds_read_b64_tr_b16 {vr(WG_+8*i+2,2)}, v8 offset:{2048*i + 256}")
        a(f"ds_read_b64_tr_b16 {vr(WG_+8*i+4,2)}, v7 offset:{2048*i}")
        a(f"ds_read_b64_tr_b16 {vr(WG_+8*i+6,2)}, v7 offset:{2048*i + 256}")
    if DNP == "k": dn_dma()
    a.label("T_NW")
    def dn_tr(v):
        for i in range(5):
            a(f"ds_read_b64_tr_b16 {vr(WD_+4*i,2)}, v{v} offset:{256*i}")
            a(f"ds_read_b64_tr_b16 {vr(WD_+4*i+2,2)}, v{v} offset:{256*i + 4608}")
    def k_issue():
        for i in range(2): a(f"global_load_dwordx4 {vr(KK+4*i,4)}, v6, {P(sWS)} offset:{1024*i} sc1")
    a(f"""
    v_and_b32 v4, 3, v2
    v_lshlrev_b32 v4, 3, v4
    s_mov_b32 s41, {SPIN}
    """)
    spin(a, C_KP, 1)
    stamp(a, 22)
    if "3" in HINT: a("s_branch T_KP1")
    elif int(E("F_DSK", "1")): a("s_cmp_lt_u32 s2, 144\ns_cbranch_scc1 T_KP1")
    a(f"T_KP:\ns_sleep {BO_K}\nT_KP1:")
    k_issue()
    a(f"""
    s_waitcnt vmcnt(0)
    s_mov_b64 exec, -1
    v_xor_b32 v64, s{sTAG}, v{KK+1}
    v_xor_b32 v65, s{sTAG}, v{KK+3}
    v_xor_b32 v66, s{sTAG}, v{KK+5}
    v_xor_b32 v67, s{sTAG}, v{KK+7}
    v_or3_b32 v64, v64, v65, v66
    v_or_b32 v64, v64, v67
    v_cmp_ne_u32 vcc, 0, v64
    s_cbranch_vccz T_KD
    s_mov_b64 exec, vcc
    s_sub_u32 s41, s41, 1
    s_cbranch_scc1 T_KPX
    s_and_b32 s40, s41, 3
    s_cbranch_scc1 T_KP1
    s_branch T_KP
    T_KPX:
    s_mov_b64 exec, -1
    T_KD:
    """)
    stamp(a, 23)
    a(f"""
    v_max_u32 v64, v{KK}, v{KK+4}
    v_max_u32 v65, v{KK+2}, v{KK+6}
    s_nop 0
    v_max_u32 v64, v64, v64 row_shr:4 {DPP_ALL} bound_ctrl:0
    v_max_u32 v65, v65, v65 row_shr:4 {DPP_ALL} bound_ctrl:0
    s_nop 0
    v_max_u32 v64, v64, v64 row_shr:8 {DPP_ALL} bound_ctrl:0
    v_max_u32 v65, v65, v65 row_shr:8 {DPP_ALL} bound_ctrl:0
    s_mov_b32 exec_lo, 0xf000f000
    s_mov_b32 exec_hi, 0xf000f000
    ds_max_u32 v4, v64 offset:{L_CNT + C_MX}
    ds_max_u32 v4, v65 offset:{L_CNT + C_MX + 4}
    s_mov_b64 exec, -1
    s_waitcnt lgkmcnt(0)
    s_barrier                          ; B10
    ds_read_b128 v[64:67], v{VZ} offset:{L_CNT + C_MX}
    ds_read_b128 v[68:71], v{VZ} offset:{L_CNT + C_MX + 16}
    s_waitcnt lgkmcnt(0)
    v_min3_u32 v64, v64, v65, v66
    v_min3_u32 v68, v68, v69, v70
    v_min3_u32 v64, v64, v67, v71
    v_min_u32 v64, v64, v68
    s_lshl_b32 s40, s2, 3
    s_add_u32 s40, s40, s3
    s_mul_i32 s51, s40, 3072
    v_cmp_ge_u32 vcc, s{sKEY}, v64
    """)
    for i in range(4): a(f"v_cmp_ge_u32 s[{66+2*i}:{67+2*i}], v{KK+2*i}, v64")
    a(f"""
    s_bcnt1_i32_b64 s74, s[66:67]
    s_bcnt1_i32_b64 s75, s[68:69]
    s_bcnt1_i32_b64 s76, s[70:71]
    s_bcnt1_i32_b64 s77, s[72:73]
    s_add_u32 s75, s75, s74
    s_add_u32 s76, s76, s75
    s_add_u32 s77, s77, s76
    s_mov_b64 exec, 1
    v_mov_b32 v65, s77
    ds_add_rtn_u32 v66, v{VZ}, v65 offset:{L_CNT + C_N}
    s_mov_b64 exec, -1
    s_cbranch_vccz T_NPUB
    ; candidate row: publish h2 and x1 (slot = token)
    s_add_u32 s51, s51, {WS_ROW}
    v_lshl_add_u32 v5, v2, 4, s51
    v_mov_b32 v72, v{H2+3}
    v_mov_b32 v73, v{P1+3}
    v_lshl_or_b32 v74, v{P1+4}, 16, v{H2+4}
    v_mov_b32 v75, s{sTAG}
    v_mov_b32 v{H2+3}, s{sTAG}
    v_mov_b32 v{P1+3}, s{sTAG}
    global_store_dwordx4 v5, {vr(H2,4)}, {P(sWS)} sc1
    global_store_dwordx4 v5, v[72:75], {P(sWS)} offset:1024 sc1
    global_store_dwordx4 v5, {vr(P1,4)}, {P(sWS)} offset:2048 sc1
    T_NPUB:
    """)
    for i in range(4):
        if i: a(f"v_mov_b32 v{68+i}, s{73+i}")
        a(f"v_mbcnt_lo_u32_b32 v{68+i}, s{66+2*i}, {'v%d' % (68+i) if i else 0}")
        a(f"v_mbcnt_hi_u32_b32 v{68+i}, s{67+2*i}, v{68+i}")
    a(f"""
    s_waitcnt lgkmcnt(0)
    v_readfirstlane_b32 s74, v66
    v_and_b32 v4, 31, v2
    v_lshlrev_b32 v4, 2, v4
    v_lshrrev_b32 v7, 5, v2
    v_lshlrev_b32 v7, 4, v7
    s_mov_b32 s{sOWN}, 8
    """)
    for i in range(4): a(f"v_add_lshl_u32 v{68+i}, v{68+i}, s74, 2")
    for i in range(4):
        a(f"s_mov_b64 exec, s[{66+2*i}:{67+2*i}]")
        a(f"ds_write_b32 v{68+i}, v{KK+2*i} offset:{L_LIST}")
    a(f"""
    s_mov_b64 exec, -1
    s_mov_b32 s76, 0
    s_mov_b32 s77, 0
    s_waitcnt lgkmcnt(0)
    s_barrier                          ; B11
    ds_read_b32 v65, v{VZ} offset:{L_CNT + C_N}
    T_OUT:
    ds_read_b32 v64, v4 offset:{L_LIST}
    """)
    NPRE = 4
    for i in range(NPRE): a(f"ds_read_b128 {vr(KK+4*i,4)}, v7 offset:{L_LIST + 32*i}")
    a(f"""
    v_mov_b32 v66, 0
    v_add_u32 v67, {32*NPRE}, v7
    s_waitcnt lgkmcnt({NPRE})
    v_readfirstlane_b32 s74, v65       ; n
    """)
    for i in range(NPRE):
        a(f"s_waitcnt lgkmcnt({NPRE-1-i})")
        for e in range(4):
            a(f"v_cmp_gt_u32 vcc, v{KK+4*i+e}, v64")
            a(f"v_addc_co_u32 v66, vcc, 0, v66, vcc")
        if i == 0: a("s_min_u32 s74, s74, 2048")
        if i in (1, 2):
            a(f"s_cmp_le_u32 s74, {8*i+8}")
            a("s_cbranch_scc1 T_RK")
    a(f"""
    s_mov_b32 s75, {8*NPRE}
    T_IN:
    s_cmp_ge_u32 s75, s74
    s_cbranch_scc1 T_RK
    ds_read_b128 {vr(KK,4)}, v67 offset:{L_LIST}
    v_add_u32 v67, 32, v67
    s_add_u32 s75, s75, 8
    s_waitcnt lgkmcnt(0)
    """)
    for e in range(4):
        a(f"v_cmp_gt_u32 vcc, v{KK+e}, v64")
        a(f"v_addc_co_u32 v66, vcc, 0, v66, vcc")
    a(f"""
    s_branch T_IN
    T_RK:
    v_mov_b32 v67, v66
    s_waitcnt lgkmcnt(0)
    s_nop 0
    v_permlane32_swap_b32 v66, v67
    v_add_u32 v66, v66, v67
    v_cmp_eq_u32 vcc, s3, v66
    v_cmp_eq_u32 s[66:67], s{sKEY}, v64
    v_min_u32 v66, 8, v66
    s_ff1_i32_b64 s75, vcc
    v_lshlrev_b32 v67, 2, v66
    s_cbranch_vccz T_NMINE
    v_readlane_b32 s77, v64, s75
    T_NMINE:
    s_ff1_i32_b64 s75, s[66:67]
    ds_write_b32 v67, v64 offset:{L_CNT + C_SEL}
    s_cmp_eq_u64 s[66:67], 0
    s_cbranch_scc1 T_NOWN
    v_readlane_b32 s{sOWN}, v66, s75
    T_NOWN:
    v_add_u32 v4, 128, v4
    s_add_u32 s76, s76, 32
    s_cmp_lt_u32 s76, s74
    s_cbranch_scc1 T_OUT
    """)
    stamp(a, 24)
    a(f"""
    s_andn2_b32 s77, 0x7ff, s77
    s_mul_i32 s77, s77, 3072
    s_add_u32 s77, s77, {WS_ROW}
    v_lshl_add_u32 v4, v2, 4, s77
    s_cmp_ge_u32 s2, 144
    s_cbranch_scc1 T_NRL
    global_load_dwordx4 v[64:67], v4, {P(sWS)} sc1
    global_load_dwordx4 v[68:71], v4, {P(sWS)} offset:1024 sc1
    global_load_dwordx4 v[72:75], v4, {P(sWS)} offset:2048 sc1
    T_NRL:
    s_mul_i32 s40, s40, 1152
    s_cmp_lt_u32 s{sOWN}, 8
    s_cbranch_scc1 T_STD
    v_lshl_add_u32 v18, v2, 4, s40
    v_lshl_add_u32 v19, v2, 1, s40
    global_store_dwordx4 v18, {vr(O,4)}, {P(sOUT)} {E('F_OST', '')}
    global_store_short v19, v{O+4}, {P(sOUT)} offset:1024 {E('F_OST', '')}
    T_STD:
    s_cmp_ge_u32 s2, 144
    s_cbranch_scc1 T_END
    s_mul_i32 s40, s3, {SR_P}
    s_add_u32 s40, s40, {L_SH}
    v_lshl_add_u32 v5, v2, 4, s40
    v_lshl_add_u32 v6, v2, 1, s40
    s_mov_b32 s41, {SPIN}
    """)
    dn_tr(21)
    a(f"""
    v_and_b32 v7, 7, v2
    v_mul_u32_u24 v17, 80, v7
    v_mul_u32_u24 v7, {SR_P}, v7
    v_and_b32 v8, 0x30, v2
    v_add_u32 v17, v17, v8
    s_lshl_b32 s40, s50, 6
    s_add_u32 s40, s40, {L_SH}
    v_add3_u32 v7, v7, v8, s40
    s_lshl_b32 s40, s3, 10
    s_add_u32 s40, s40, {L_GP}
    v_lshl_add_u32 v8, v2, 4, s40
    v_and_b32 v9, 1, v2
    v_lshlrev_b32 v9, 9, v9
    v_bfe_u32 v16, v2, 1, 4
    v_lshl_add_u32 v9, v16, 4, v9
    v_lshrrev_b32 v16, 5, v2
    v_lshl_add_u32 v9, v16, 10, v9
    s_lshr_b32 s40, s3, 2
    s_lshl_b32 s40, s40, 8
    s_and_b32 s51, s3, 3
    s_lshl_b32 s51, s51, 2
    s_add_u32 s40, s40, s51
    s_add_u32 s40, s40, {L_GP}
    v_add_u32 v9, s40, v9
    s_mul_i32 s40, s3, 80
    v_and_b32 v16, -2, v2
    v_add_u32 v16, s40, v16
    s_branch T_RP2
    T_RP:
    s_sleep {BO_R}
    T_RP1:
    global_load_dwordx4 v[64:67], v4, {P(sWS)} sc1
    global_load_dwordx4 v[68:71], v4, {P(sWS)} offset:1024 sc1
    global_load_dwordx4 v[72:75], v4, {P(sWS)} offset:2048 sc1
    T_RP2:
    s_waitcnt vmcnt(0)
    v_xor_b32 v76, s{sTAG}, v67
    v_xor_b32 v77, s{sTAG}, v71
    v_xor_b32 v78, s{sTAG}, v75
    v_or3_b32 v76, v76, v77, v78
    v_cmp_ne_u32 vcc, 0, v76
    s_cbranch_vccz T_RD
    s_sub_u32 s41, s41, 1
    s_cbranch_scc1 T_RD
    s_and_b32 s40, s41, 3
    s_cbranch_scc1 T_RP1
    s_branch T_RP
    T_RD:
    v_mov_b32 v67, v68
    v_mov_b32 v75, v69
    ds_write_b128 v5, v[64:67]
    ds_write_b16 v6, v70 offset:1024
    s_waitcnt lgkmcnt(0)
    """)
    stamp(a, 25)
    a("s_barrier                          ; B12")
    AF = 108; AG, AU = 84, 88
    for i in range(5): a(f"ds_read_b128 {vr(AF+4*i,4)}, v7 offset:{64*i}")
    a(f"ds_write_b128 v5, v[72:75] offset:{L_SX - L_SH}")
    a(f"ds_write_b16_d16_hi v6, v70 offset:{L_SX - L_SH + 1024}")
    for i in range(5):
        if i == 4: a("s_cmp_ge_u32 s3, 4"); a("s_cbranch_scc1 T_G4")
        a(f"s_waitcnt lgkmcnt({6-i})")
        a(f"v_mfma_f32_16x16x32_bf16 {vr(AG,4)}, {vr(AF+4*i,4)}, {vr(WG_+8*i,4)}, {'0' if i == 0 else vr(AG,4)}")
        a(f"v_mfma_f32_16x16x32_bf16 {vr(AU,4)}, {vr(AF+4*i,4)}, {vr(WG_+8*i+4,4)}, {'0' if i == 0 else vr(AU,4)}")
    a(f"""
    T_G4:
    v_lshrrev_b32 v18, 5, v2
    v_lshlrev_b32 v18, 5, v18
    v_bfe_u32 v19, v2, 3, 2
    v_add_u32 v18, v18, v19
    s_lshl_b32 s40, s3, 2
    v_add_u32 v18, s40, v18
    v_mul_u32_u24 v18, {144*128}, v18
    s_mov_b32 exec_hi, 0
    ds_write_b128 v8, {vr(AG,4)}
    ds_write_b128 v8, {vr(AU,4)} offset:512
    s_mov_b64 exec, -1
    v_and_b32 v19, 7, v2
    v_lshl_add_u32 v18, v19, 4, v18
    s_lshl_b32 s40, s2, 7
    s_add_u32 s40, s40, {WS_PT}
    v_add_u32 v18, s40, v18
    v_add_u32 v19, {64*144*128}, v18
    v_add_u32 v20, {128*144*128}, v18
    s_waitcnt lgkmcnt(0)
    s_barrier                          ; B13
    ds_read_b32 v64, v9
    ds_read_b32 v65, v9 offset:2048
    ds_read_b32 v66, v9 offset:4096
    ds_read_b32 v67, v9 offset:6144
    """)
    NX = 0
    a(f"""
    s_mov_b32 s52, 0x05030201
    s_mov_b32 s53, 0x06050302
    s_mov_b32 s54, 0x07060503
    v_mov_b32 v71, s{sTAG}
    v_mov_b32 v75, s{sTAG}
    v_mov_b32 v79, s{sTAG}
    s_waitcnt lgkmcnt({2 + NX})
    v_add_f32 v64, v64, v65
    s_waitcnt lgkmcnt({NX})
    v_add_f32 v66, v66, v67
    v_add_f32 v64, v64, v66
    v_cvt_pk_bf16_f32 v64, v64, v64
    v_lshlrev_b32 v64, 16, v64
    v_mul_f32 v65, {fbits(-LOG2E)}, v64
    v_exp_f32 v65, v65
    s_nop 0
    v_add_f32 v65, 1.0, v65
    v_rcp_f32 v65, v65
    s_nop 0
    v_mul_f32 v65, v64, v65
    v_cvt_pk_bf16_f32 v65, v65, v65
    v_lshlrev_b32 v65, 16, v65
    s_nop 0
    v_mul_f32 v65, v64, v65 quad_perm:[1,1,3,3] {DPP_ALL}
    v_cvt_pk_bf16_f32 v65, v65, v65
    s_mov_b32 exec_lo, 0x55555555
    s_mov_b32 exec_hi, 0x55555555
    ds_write_b16 v16, v65 offset:{L_ACT}
    s_mov_b64 exec, -1
    s_waitcnt lgkmcnt(0)
    s_barrier                          ; B14
    ds_read_b128 v[64:67], v17 offset:{L_ACT}
    s_waitcnt lgkmcnt(0)
    """)
    stamp(a, 26)
    DA = 80
    for i in range(5): a(f"v_mfma_f32_16x16x32_bf16 {vr(DA+4*i,4)}, v[64:67], {vr(WD_+4*i,4)}, 0")
    a(f"""
    s_mul_i32 s40, s2, {144*128}
    s_add_u32 s40, s40, {WS_PT}
    v_lshl_add_u32 v4, v0, 4, s40
    v_add_u32 v5, 8192, v4
    v_add_u32 v6, 16384, v4
    s_nop 0
    """)
    def p24(d, s_):
        a(f"v_perm_b32 v{d}, v{s_+1}, v{s_}, s52")
        a(f"v_perm_b32 v{d+1}, v{s_+2}, v{s_+1}, s53")
        a(f"v_perm_b32 v{d+2}, v{s_+3}, v{s_+2}, s54")
    for r_ in range(4): a(f"v_permlane32_swap_b32 v{DA+r_}, v{DA+4+r_}")
    p24(68, DA)
    a(f"global_store_dwordx4 v18, v[68:71], {P(sWS)} sc1")
    for r_ in range(4): a(f"v_permlane32_swap_b32 v{DA+8+r_}, v{DA+12+r_}")
    p24(72, DA+8)
    a(f"global_store_dwordx4 v19, v[72:75], {P(sWS)} sc1")
    a("s_cmp_ge_u32 s3, 4")
    a("s_cbranch_scc1 T_NS3")
    p24(76, DA+16)
    a(f"""
    s_mov_b32 exec_hi, 0
    global_store_dwordx4 v20, v[76:79], {P(sWS)} sc1
    s_mov_b64 exec, -1
    T_NS3:
    """)
    stamp(a, 27)
    a(f"""
    s_cmp_lg_u32 s3, 7
    s_cbranch_scc1 T_NF
    s_lshr_b32 s40, s2, 2
    s_lshl_b32 s40, s40, 4
    s_and_b32 s41, s2, 1
    s_lshl_b32 s41, s41, 3
    s_add_u32 s40, s40, s41
    v_and_b32 v24, 7, v2
    v_add_u32 v24, s40, v24
    v_lshlrev_b32 v24, 1, v24          ; 2d
    v_bfe_u32 v25, v2, 3, 2
    s_and_b32 s41, s2, 2
    s_lshl_b32 s41, s41, 1
    v_add_u32 v25, s41, v25            ; row
    v_lshlrev_b32 v26, 2, v25
    v_mul_u32_u24 v25, {SR_P}, v25
    v_add_u32 v25, v25, v24
    v_add_u32 v27, {L_PT + 2304}, v24
    ds_read_b32 v28, v26 offset:{L_CNT + C_SEL}
    ds_read_u16 v29, v25 offset:{L_SH}
    ds_read_u16 v30, v25 offset:{L_SX}
    ds_read_u16 v31, v27
    s_waitcnt lgkmcnt(0)
    v_and_b32 v32, 0xffff, v28
    v_sub_u32 v32, 0xffff, v32
    v_min_u32 v32, 2047, v32
    v_mul_u32_u24 v32, 1152, v32
    v_add_u32 v32, v32, v24
    v_ashrrev_i32 v33, 31, v28
    v_not_b32 v33, v33
    v_or_b32 v33, 0x80000000, v33
    v_xor_b32 v33, v33, v28
    v_and_b32 v33, 0xffff0000, v33     ; r
    v_mul_f32 v33, {fbits(-LOG2E)}, v33
    v_exp_f32 v33, v33
    v_lshlrev_b32 v29, 16, v29
    v_add_f32 v33, 1.0, v33
    v_rcp_f32 v33, v33
    v_lshlrev_b32 v30, 16, v30
    v_cvt_pk_bf16_f32 v33, v33, v33
    v_lshlrev_b32 v33, 16, v33
    v_lshlrev_b32 v31, 16, v31
    s_cmp_lg_u32 s2, 0
    s_cbranch_scc1 T_NF
    ; epoch update: every workgroup read the epoch before its first publication, which this workgroup has consumed
    v_mov_b32 v34, {WS_EPOCH}
    v_mov_b32 v35, s{sTAG}
    s_mov_b64 exec, 1
    global_store_dword v34, v35, {P(sWS)}
    s_mov_b64 exec, -1
    T_NF:
    s_mov_b32 s52, 0x0201000c
    s_mov_b32 s53, 0x0504030c
    s_mov_b32 s54, 0x0403020c
    s_mov_b32 s55, 0x0302010c
    v_mov_b32 v107, s{sTAG}
    v_mov_b32 v104, 0
    v_mov_b32 v105, 0
    v_mov_b32 v106, 0
    v_bfe_u32 v7, v2, 4, 2
    v_lshlrev_b32 v7, 5, v7
    v_and_b32 v8, 7, v2
    v_lshl_add_u32 v7, v8, 2, v7
    s_lshl_b32 s40, s3, 7
    v_add_u32 v7, s40, v7
    s_mov_b32 s41, {SPIN}
    s_waitcnt vmcnt(0)
    T_GP:
    s_sleep {BO_G}
    global_load_dwordx4 v[96:99], v4, {P(sWS)} sc1
    global_load_dwordx4 v[100:103], v5, {P(sWS)} sc1
    s_cmp_ge_u32 s3, 2
    s_cbranch_scc1 T_G3
    global_load_dwordx4 v[104:107], v6, {P(sWS)} sc1
    T_G3:
    s_waitcnt vmcnt(0)
    s_mov_b64 exec, -1
    v_xor_b32 v64, s{sTAG}, v99
    v_xor_b32 v65, s{sTAG}, v103
    v_xor_b32 v66, s{sTAG}, v107
    v_or3_b32 v64, v64, v65, v66
    v_cmp_ne_u32 vcc, 0, v64
    s_cbranch_vccz T_GD
    s_mov_b64 exec, vcc
    s_sub_u32 s41, s41, 1
    s_cbranch_scc0 T_GP
    s_mov_b64 exec, -1
    T_GD:
    """)
    stamp(a, 28)
    for n in range(3):
        g = 96 + 4*n; d = 64 + 4*n
        a(f"v_perm_b32 v{d}, v{g}, v{g}, s52")
        a(f"v_perm_b32 v{d+1}, v{g+1}, v{g}, s53")
        a(f"v_perm_b32 v{d+2}, v{g+2}, v{g+1}, s54")
        a(f"v_perm_b32 v{d+3}, v{g+2}, v{g+2}, s55")
    for e in range(4): a(f"v_add_f32 v{64+e}, v{64+e}, v{68+e}")
    for e in range(4): a(f"v_add_f32 v{64+e}, v{64+e}, v{72+e}")
    a(f"""
    s_nop 1
    v_permlane32_swap_b32 v64, v66
    v_permlane32_swap_b32 v65, v67
    v_add_f32 v64, v64, v66
    v_add_f32 v65, v65, v67
    s_nop 1
    v_permlane16_swap_b32 v64, v65
    v_add_f32 v64, v64, v65
    s_nop 1
    v_add_f32 v64, v64, v64 row_shl:8 row_mask:0xf bank_mask:0x3
    s_mov_b32 exec_lo, 0x00ff00ff
    s_mov_b32 exec_hi, 0x00ff00ff
    ds_write_b32 v7, v64 offset:{L_RED}
    s_mov_b64 exec, -1
    v_lshlrev_b32 v8, 2, v2
    s_waitcnt lgkmcnt(0)
    s_barrier                          ; B15
    s_cmp_lg_u32 s3, 7
    s_cbranch_scc1 T_END
    """)
    for w in range(8): a(f"ds_read_b32 v{64+w}, v8 offset:{L_RED + 128*w}")
    a("s_waitcnt lgkmcnt(4)")
    a("v_add_f32 v64, v64, v65"); a("v_add_f32 v66, v66, v67")
    a("s_waitcnt lgkmcnt(0)")
    a("v_add_f32 v68, v68, v69"); a("v_add_f32 v70, v70, v71")
    a("v_add_f32 v64, v64, v66"); a("v_add_f32 v68, v68, v70"); a("v_add_f32 v64, v64, v68")
    rnd1(a, 64); a("v_mul_f32 v64, v64, v33")
    rnd1(a, 64); a("v_add_f32 v64, v64, v29")
    rnd1(a, 64); a("v_mul_f32 v64, v64, v31")
    rnd1(a, 64); a("v_add_f32 v64, v64, v30")
    a(f"""
    v_cvt_pk_bf16_f32 v64, v64, v64
    s_mov_b32 exec_hi, 0
    global_store_short v32, v64, {P(sOUT)}
    """)
    if int(E("F_DBG", "0")): a(f"""
    s_cmp_ge_u32 s2, 4
    s_cbranch_scc1 T_END
    v_lshlrev_b32 v26, 0, v26
    v_add_u32 v26, {WS_SEL}, v26
    global_store_dword v26, v28, {P(sWS)}
    """)
    a.label("T_END")
    diag_end(a)
    stamp_flush(a, 29, 0)
    a.label("M_END")
    a("s_endpgm")
```

```python
from nc import *
import re
KG_PITCH = 272
KG_STAGE = 16 * KG_PITCH
L_PRM = 0
L_ZERO = 512
L_STG = 1536
L_PART = 1536
L_LNR = L_STG + 25600
L_CB = L_LNR + 4 * 2592
KC_P = 4160
L_KC2 = L_CB + 1024
L_STG2 = L_KC2
L_HB = L_KC2 + 4 * KC_P
HB_P = 4608
L_TAB = 69120
TP = 2816
L_KC = L_TAB + 6 * TP
L_DN = L_KC + 8 * KC_P
L_PT = L_DN + 36864
M_LDS = L_PT + 4608
L_GU = L_DN - 73728
L_G, L_U, L_D2 = L_DN, L_GU, L_GU + 36864
assert L_KC % 64 == 0 and L_KC2 % 64 == 0 and L_HB + 3 * HB_P <= L_TAB
ZR_P = 1056
L_ZR = 1536
L_ZC = L_ZR + 8 * ZR_P
L_LIST = L_ZC + 1280
SR_P = 1168
L_SH = L_LIST + 8448
L_SX = L_SH + 8 * SR_P
L_GP = L_ZR
L_ACT = L_SX + 8 * SR_P
L_RED = L_ACT + 640
assert L_RED + 1024 <= L_GU
WS_Z2 = 0x600000; WS_KEY = 0x10000; WS_ROW = 0xD00000; WS_PT16 = 0x70000; WS_PF = 0x72000; WS_PT = 0xA00000; WS_CNT = 0xC90000; WS_EPOCH = 0x1300000
DNAT = E("F_DN", "ln2")
LATE_DN = DNAT in ("nd", "b9s", "b7s", "dir", "kp")
BO_Z, BO_K, BO_R, BO_G = [int(x) for x in E("BO", "16,6,10,3").split(",")]
HINT = E("HINT", "")
NREP = int(E("F_NREP", "8")); RREP = int(E("F_RREP", "1"))
NT = E("M_NT", "nt")
PNT = E("M_PNT", "")
XNT = E("M_XNT", "nt")
ZST = E("M_ZST", "")
SPIN = 1 << 16
BETA = float(E('BETA', '1.25'))
KST = int(E('KST', '0'))
W2LATE = int(E('M_W2LATE', '1'))
CPL = int(E('M_CPL', '10'))
DIRECT = {1, 8, 128, 1024}
sTAG, sD, sHH, sKS = 38, 42, 43, 44
sDAB, sDC, sLD = 46, 47, 48

L_CNT = L_PRM + 192
C_LN, C_TAG, C_TAB, C_K, C_H = 0, 4, 16, 32, 48
C_P, C_KEY, C_N, C_KP, C_PR = 52, 56, 60, 64, 80
C_MX, C_KEYS, C_SEL = 96, 128, 192
L_TAG = L_CNT + C_TAG
VZ, VONE = 248, 249
def signal(a, off, vaddr=None):
    a("s_mov_b64 exec, 1")
    a(f"ds_add_u32 v{vaddr or VZ}, v{VONE} offset:{L_CNT + off}")
    a("s_mov_b64 exec, -1")
def spin(a, off, n, vaddr=None, vt=251, st=94):
    l = a.newlabel("SP")
    a(f"""
    {l}:
    ds_read_b32 v{vt}, v{vaddr or VZ} offset:{L_CNT + off}
    s_waitcnt lgkmcnt(0)
    v_readfirstlane_b32 s{st}, v{vt}
    s_cmp_ge_u32 s{st}, {n}
    s_cbranch_scc0 {l}
    """)

def ln_stats(a, X, T, sX0, vC):
    D = T + 4
    a(f"v_readfirstlane_b32 s{sX0}, v{X}")
    a("s_nop 1")
    a(f"v_subrev_f32 v{D+8}, s{sX0}, v{X+8}")
    a(f"s_mov_b32 s{sX0+1}, s{sX0}")
    for i in range(4): a(f"v_pk_add_f32 {vr(D+2*i,2)}, {vr(X+2*i,2)}, s[{sX0}:{sX0+1}] neg_lo:[0,1] neg_hi:[0,1]")
    a(f"v_pk_mul_f32 {vr(T+2,2)}, {vr(D,2)}, {vr(D,2)}")
    a(f"v_pk_add_f32 {vr(T,2)}, {vr(D,2)}, {vr(D+2,2)}")
    a(f"v_pk_fma_f32 {vr(T+2,2)}, {vr(D+2,2)}, {vr(D+2,2)}, {vr(T+2,2)}")
    a(f"v_pk_add_f32 {vr(D,2)}, {vr(D+4,2)}, {vr(D+6,2)}")
    a(f"v_pk_fma_f32 {vr(T+2,2)}, {vr(D+4,2)}, {vr(D+4,2)}, {vr(T+2,2)}")
    a(f"v_pk_add_f32 {vr(T,2)}, {vr(T,2)}, {vr(D,2)}")
    a(f"v_pk_fma_f32 {vr(T+2,2)}, {vr(D+6,2)}, {vr(D+6,2)}, {vr(T+2,2)}")
    a(f"v_add_f32 v{T}, v{T}, v{T+1}")
    a(f"v_fmac_f32 v{T+2}, v{D+8}, v{D+8}")
    a(f"v_add_f32 v{T}, v{T}, v{D+8}")
    a(f"v_add_f32 v{T+2}, v{T+2}, v{T+3}")
    a("s_nop 0")
    for m in [f"row_shr:1 {DPP_ALL} bound_ctrl:0", f"row_shr:2 {DPP_ALL} bound_ctrl:0", f"row_shr:4 {DPP_ALL} bound_ctrl:0", f"row_shr:8 {DPP_ALL} bound_ctrl:0",
              "row_bcast:15 row_mask:0xa bank_mask:0xf", "row_bcast:31 row_mask:0xc bank_mask:0xf"]:
        a(f"v_add_f32 v{T}, v{T}, v{T} {m}")
        a(f"v_add_f32 v{T+2}, v{T+2}, v{T+2} {m}")
        a("s_nop 0")
    a(f"""
    v_readlane_b32 s{sX0+2}, v{T}, 63
    v_readlane_b32 s{sX0+3}, v{T+2}, 63
    s_nop 0
    v_mul_f32 v{T}, s{sX0+2}, v{vC}
    v_mul_f32 v{T+1}, s{sX0+3}, v{vC}
    v_fma_f32 v{T+1}, -v{T}, v{T}, v{T+1}
    v_add_f32 v{T}, s{sX0}, v{T}
    v_max_f32 v{T+1}, 0, v{T+1}
    v_cvt_pk_bf16_f32 v{T+1}, v{T}, v{T+1}
    v_lshlrev_b32 v{T}, 16, v{T+1}
    v_and_b32 v{T+1}, 0xffff0000, v{T+1}
    v_add_f32 v{T+1}, {fbits(1e-5)}, v{T+1}
    v_cvt_pk_bf16_f32 v{T+1}, v{T+1}, v{T+1}
    v_lshlrev_b32 v{T+1}, 16, v{T+1}
    v_sqrt_f32 v{T+1}, v{T+1}
    """)
    a(f"v_sub_f32 v{D+8}, v{X+8}, v{T}")
    for i in range(4): a(f"v_pk_add_f32 {vr(D+2*i,2)}, {vr(X+2*i,2)}, {vr(T,2)} op_sel_hi:[1,0] neg_lo:[0,1] neg_hi:[0,1]")
    a(f"""
    v_cvt_pk_bf16_f32 v{T+1}, v{T+1}, v{T+1}
    v_lshlrev_b32 v{T+1}, 16, v{T+1}
    v_rcp_f32 v{T+1}, v{T+1}
    """)
    rnd_pairs(a, [D, D+2, D+4, D+6]); rnd1(a, D+8)
    for i in range(4): a(f"v_pk_mul_f32 {vr(D+2*i,2)}, {vr(D+2*i,2)}, {vr(T,2)} op_sel:[0,1] op_sel_hi:[1,1]")
    a(f"v_mul_f32 v{D+8}, v{D+8}, v{T+1}")
    return D


VFA, VT0, VT1, VT2 = 210, 211, 212, 213
VE0, VE1, VE2, VE3, VE4, VC0, VC1, VC2, VED = 200, 201, 202, 203, 204, 205, 206, 207, 208
XG = 224; VMP = 120; VD = 243; VMA = 240; VXA = 252
sSH = 48
def kgen_setup(a):
    a(f"""
    s_mul_i32 s50, s3, {KG_STAGE}
    s_add_u32 s51, s50, {L_STG2 - 4*KG_STAGE}
    s_add_u32 s50, s50, {L_STG}
    s_cmp_ge_u32 s3, 4
    s_cselect_b32 s50, s51, s50
    s_mov_b32 m0, s50
    v_mul_u32_u24 v{VFA}, {KG_PITCH}, v10
    v_lshl_add_u32 v{VFA}, v11, 4, v{VFA}
    v_add_u32 v{VFA}, s50, v{VFA}
    s_mul_i32 s61, s3, {TP}
    s_add_u32 s61, s61, {L_TAB}          ; own partial table
    v_lshrrev_b32 v12, 1, v11
    v_lshlrev_b32 v{VT0}, 9, v12
    v_and_b32 v13, 1, v11
    v_lshl_add_u32 v{VT0}, v13, 4, v{VT0}
    v_lshl_add_u32 v{VT0}, v10, 5, v{VT0}
    v_add_u32 v{VT0}, s61, v{VT0}
    ; tile1: idx = 256 + 64q + (q<2 ? 4j : 2j), second pair at +(q<2 ? 2 : 32)
    v_sub_u32 v13, 4, v12
    v_lshlrev_b32 v13, v13, v10
    v_lshl_add_u32 v13, v11, 8, v13
    v_add_u32 v13, s61, v13
    v_add_u32 v{VT1}, 1024, v13
    v_mul_u32_u24 v12, 120, v12
    v_add3_u32 v{VT1+3}, v{VT1}, v12, 8
    v_lshlrev_b32 v{VT2}, 8, v11
    v_lshl_add_u32 v{VT2}, v10, 2, v{VT2}
    v_add_u32 v{VT2}, s61, v{VT2}
    ; expansion
    s_mul_i32 s60, s41, {2*TP}
    s_add_u32 s60, s60, {L_TAB}          ; channel table pair
    v_mov_b32 v{VC0}, s60
    v_add_u32 v{VC1}, -4, v{VC0}
    v_add_u32 v{VC2}, -8, v{VC0}
    v_sub_u32 v12, 63, v2                ; L
    s_lshl_b32 s51, s{sHH}, 8
    s_sub_u32 s51, s60, s51
    s_add_u32 s51, s51, {4*576}
    v_lshl_add_u32 v{VE0}, v12, 2, s51
    v_add_u32 v{VE1}, 4, v{VE0}
    s_add_u32 s51, s60, {4*384}
    v_lshl_add_u32 v{VE2}, v12, 3, s51
    v_add_u32 v{VE3}, 4, v{VE2}
    v_add_u32 v{VE4}, 8, v{VE2}
    v_lshlrev_b32 v13, 5, v12
    v_lshlrev_b32 v12, 4, v12
    v_add_u32 v12, 512, v12
    v_min_u32 v12, v12, v13
    v_add_u32 v12, s60, v12
    s_cmp_eq_u32 s{sHH}, 0
    s_cselect_b64 vcc, -1, 0
    s_mul_i32 s51, s41, {4*KC_P}
    s_add_u32 s51, s51, {L_KC}
    s_cmp_eq_u32 s41, 2
    s_cselect_b32 s51, {L_KC2}, s51
    v_cndmask_b32 v{VE2}, v{VE2}, v12, vcc
    v_lshrrev_b32 v12, 1, v2
    v_mul_u32_u24 v12, {KC_P}, v12
    v_and_b32 v13, 1, v2
    v_lshl_add_u32 v12, v13, 4, v12
    v_add_u32 v{VT1+2}, s51, v12
    v_lshl_add_u32 v{VED}, v2, 4, s51
    s_lshl_b32 s51, s41, 2
    v_mov_b32 v{VED+1}, s51
    s_lshl_b32 s{sSH}, s{sHH}, 4
    s_sub_u32 s{sSH}, 16, s{sSH}
    s_mov_b32 s52, {fbits(L_HI)}
    s_mov_b32 s53, {fbits(L_LO)}
    s_mov_b32 s54, {fbits(LN2)}
    s_mov_b32 s55, {fbits(P_HI)}
    s_mov_b32 s56, {fbits(P_LO)}
    s_mov_b32 s58, {fbits(BETA)}
    """)

def gen_kgen(a, cp, hooks):
    R = Regs(56, 200)
    AR, BH, CR, CI, DT, T0, T1, BL, VE = 40, 41, 42, 43, 44, 45, 46, 47, 48
    if cp: a(f"""
    s_waitcnt vmcnt({cp})
    s_cmp_eq_u32 s3, 3
    s_cbranch_scc1 KG_W1
    """)
    if DNAT == "t0": a("s_waitcnt vmcnt(1)\ns_cmp_lt_u32 s3, 3\ns_cbranch_scc1 KG_W1")
    a(f"s_waitcnt vmcnt({max(cp-1, 0)})")
    a.label("KG_W1")
    stamp(a, 13)
    hooks.get("p", lambda: None)()
    a(f"v_lshlrev_b32 v{DT}, 16, v{DT}")
    a(f"v_lshlrev_b32 v{AR}, s{sSH}, v{AR}")
    a(f"v_lshlrev_b32 v{BH}, s{sSH}, v{BH}")
    exp_bf16(a, DT, DT, T0, T1, 52, 53, 54)
    a(f"v_and_b32 v{AR}, 0xffff0000, v{AR}")
    a(f"v_and_b32 v{BH}, 0xffff0000, v{BH}")
    exp_bf16(a, AR, AR, T0, T1, 52, 53, 54)
    a(f"""
    v_mul_f32 v{AR}, v{AR}, v{DT}
    v_mul_f32 v{T0}, v{BH}, v{DT}
    v_mul_f32 v{AR}, s52, v{AR}
    v_sub_f32 v{AR}, 0, v{AR}
    v_mul_f32 v{BH}, s55, v{T0}
    v_fma_f32 v{BL}, v{T0}, s55, -v{BH}
    v_fma_f32 v{BL}, v{T0}, s56, v{BL}
    v_and_b32 v{VE}, 0x7fff7fff, v{CR}
    v_and_b32 v{T1}, 0x7fff7fff, v{CI}
    v_pk_max_u16 v{VE}, v{VE}, v{T1}
    v_lshlrev_b32 v{T1}, 16, v{VE}
    v_max_u32 v{VE}, v{VE}, v{T1}
    """)
    def anchor(Pp):
        d = R.get(2); t = R.get(2)
        pc = fbits(float(Pp)) if Pp not in (1, 2, 4) else f"{Pp}.0"
        a(f"v_mul_f32 v{t}, {pc}, v{AR}")
        a(f"v_mul_f32 v{t+1}, {pc}, v{BH}")
        a(f"v_exp_f32 v{t}, v{t}")
        a(f"v_fract_f32 v{t+1}, v{t+1}")
        a(f"v_fmamk_f32 v{t+1}, v{BL}, {fbits(float(Pp))}, v{t+1}")
        a(f"v_cos_f32 v{d}, v{t+1}")
        a(f"v_sin_f32 v{d+1}, v{t+1}")
        a("s_nop 0")
        a(f"v_pk_mul_f32 {vr(d,2)}, {vr(d,2)}, {vr(t,2)} op_sel_hi:[1,0]")
        R.put(t, 2)
        return d
    def mul(x, y):
        d = R.get(2); cmul(a, d, x, y); return d
    def power(Pp, half):
        return anchor(Pp) if Pp in DIRECT else mul(half, half)
    NPK = 6
    PK = R.get(NPK, 2); pk = [0]
    Q = LdsQ(a); pending = []; rows_since = [0]; wq = []; late = []
    WB = int(E("KG_WB", "2"))
    def flush_w():
        while wq: Q.issue(wq.pop(0))
    def put_row(row, x, neg):
        t = PK + (pk[0] % NPK); pk[0] += 1
        rows_since[0] += 1
        if pending and rows_since[0] >= 4: flush_mfma(1)
        if late and rows_since[0] >= 11: Q.issue(late.pop(0))
        a(f"v_cvt_pk_f16_f32 v{t}, v{x}, {'-' if neg else ''}v{x+1}")
        if len(wq) >= WB: flush_w()
        wq.append(f"ds_write_addtid_b32 v{t} offset:{row*KG_PITCH}")
    def flush_mfma(k):
        while k > 0 and pending:
            op, txt = pending.pop(0)
            Q.need(op); a(txt); k -= 1
    F = {}
    a(f"v_mov_b32 v{PK}, 0x3c00")
    Q.issue(f"ds_write_addtid_b32 v{PK} offset:0"); pk[0] = 1
    F[1] = anchor(8); put_row(1, F[1], False)
    dpp = [f"row_shr:1 {DPP_ALL} bound_ctrl:0", f"row_shr:2 {DPP_ALL} bound_ctrl:0", f"row_shr:4 {DPP_ALL} bound_ctrl:0", f"row_shr:8 {DPP_ALL} bound_ctrl:0",
           "row_bcast:15 row_mask:0xa bank_mask:0xf", "row_bcast:31 row_mask:0xc bank_mask:0xf"]
    def dstep():
        if dpp: a(f"v_max_u32 v{VE}, v{VE}, v{VE} {dpp.pop(0)}")
    F[2] = power(16, F[1]); put_row(2, F[2], False); dstep()
    F[3] = mul(F[1], F[2]); put_row(3, F[3], False); dstep()
    F[4] = power(32, F[2]); put_row(4, F[4], False); dstep()
    for j in (5, 6, 7):
        F[j] = mul(F[4], F[j-4]); put_row(j, F[j], False); dstep()
    F[8] = power(64, F[4]); put_row(8, F[8], False)
    a(f"v_readlane_b32 s57, v{VE}, 63")
    for j in range(9, 16):
        t = mul(F[8], F[j-8]); put_row(j, t, False); R.put(t, 2)
    for j in range(1, 9): R.put(F[j], 2)
    BF = R.get(16, 4)
    flush_w()
    if KST: stamp(a, 14)
    for k in range(4): Q.issue(f"ds_read_b128 {vr(BF+4*k,4)}, v{VFA} offset:{64*k}")
    Ee = {}
    Ee[1] = anchor(1)
    a(f"""
    s_and_b32 s57, s57, 0xffff0000
    v_frexp_exp_i32_f32 v{VE}, s57
    v_lshlrev_b32 v{CR}, s{sSH}, v{CR}
    v_lshlrev_b32 v{CI}, s{sSH}, v{CI}
    v_sub_u32 v{VE}, 6, v{VE}
    v_and_b32 v{CR}, 0xffff0000, v{CR}
    v_and_b32 v{CI}, 0xffff0000, v{CI}
    v_ldexp_f32 v{T0}, s58, v{VE}
    v_mul_f32 v{DT}, {fbits(1.0/BETA)}, v{DT}
    v_mul_f32 v{CR}, v{CR}, v{T0}
    v_mul_f32 v{CI}, v{CI}, v{T0}
    v_sub_u32 v{VE}, 1, v{VE}
    v_ldexp_f32 v{DT}, v{DT}, v{VE}
    """)
    Q.issue(f"ds_write_b32 v{VED+1}, v{DT} offset:{L_PRM + 5*16}")
    G = {0: CR}
    Ee[2] = power(2, Ee[1]); Ee[4] = power(4, Ee[2])
    Ee[128] = anchor(128)
    ACC = R.get(12, 4); AFR = R.get(16, 4)
    def tile_mfma(tau):
        flush_w(); flush_mfma(100)
        while late: Q.issue(late.pop(0))
        c = vr(ACC+4*tau, 4)
        for k in range(4):
            oh = Q.issue(f"ds_read_b128 {vr(AFR+4*k,4)}, v{VFA} offset:{64*k}")
            pending.append((oh, f"v_mfma_f32_16x16x32_f16 {c}, {vr(AFR+4*k,4)}, {vr(BF+4*k,4)}, {'0' if k == 0 else c}"))
        rows_since[0] = 0
        if tau == 0: late.append(f"ds_write_b128 v{VT0}, {c}")
    put_row(0, G[0], True)
    G[1] = mul(G[0], Ee[1]); put_row(1, G[1], True)
    G[2] = mul(G[0], Ee[2]); put_row(2, G[2], True)
    G[3] = mul(G[1], Ee[2]); put_row(3, G[3], True)
    G[4] = mul(G[0], Ee[4]); put_row(4, G[4], True)
    for r in (5, 6, 7):
        G[r] = mul(G[r-4], Ee[4]); put_row(r, G[r], True)
    R.put(Ee[1], 2); R.put(Ee[2], 2); R.put(Ee[4], 2)
    for r in range(8):
        G[128+r] = mul(G[r], Ee[128]); put_row(8+r, G[128+r], True)
        if r & 1:
            R.put(G[r], 2); R.put(G[128+r], 2)
    Ee[256] = power(256, Ee[128]); R.put(Ee[128], 2)
    if KST: stamp(a, 15)
    tile_mfma(0)
    Ee[512] = power(512, Ee[256])
    hooks.get("t0", lambda: None)()
    gl = [0, 4, 128, 132]
    for kk in range(2):
        for r in range(4):
            g = 128*kk + 2*r
            t = mul(G[g], Ee[256]); put_row(4*kk + r, t, True)
            if g in gl: G[256+g] = t
            else: R.put(t, 2); R.put(G[g], 2)
    R.put(Ee[256], 2)
    for r, g in enumerate(gl):
        G[512+g] = mul(G[g], Ee[512]); put_row(8+r, G[512+g], True)
        if g & 4: R.put(G[512+g], 2); R.put(G[g], 2)
    for r, g in enumerate(gl):
        G[768+g] = mul(G[256+g], Ee[512]); put_row(12+r, G[768+g], True)
        if g & 4: R.put(G[768+g], 2); R.put(G[256+g], 2)
    R.put(Ee[512], 2)
    if KST: stamp(a, 16)
    tile_mfma(1)
    Ee[1024] = power(1024, None)
    hooks.get("t1", lambda: None)()
    for k in range(8):
        t = mul(G[128*k], Ee[1024]); put_row(k, t, True); R.put(t, 2)
    Ee[2048] = power(2048, Ee[1024])
    t = mul(G[0], Ee[2048]); put_row(8, t, True); R.put(t, 2)
    tile_mfma(2)
    hooks.get("t2", lambda: None)()
    Q.issue(f"ds_write_b64 v{VT1}, {vr(ACC+4,2)}")
    Q.issue(f"ds_write_b64 v{VT1+3}, {vr(ACC+6,2)}")
    flush_mfma(100)
    a(f"""
    s_mov_b32 exec_hi, 0xffff
    s_nop 6
    ds_write_b32 v{VT2}, v{ACC+8} offset:2048
    s_mov_b32 exec_hi, 0
    ds_write_b32 v{VT2}, v{ACC+9} offset:{2048+64}
    ds_write_b32 v{VT2}, v{ACC+10} offset:{2048+128}
    ds_write_b32 v{VT2}, v{ACC+11} offset:{2048+192}
    """)
    print("kgen vgpr hi", R.hi, file=sys.stderr)

def expand_emit(a, W, C4, C5, T, rho):
    o = 1024*rho
    a(f"""
    ds_write_b128 v{VED}, {vr(W,4)} offset:{3*KC_P + o}
    v_mov_b32 v{C4}, v{W} wave_shl:1 {DPP_ALL}
    v_mov_b32 v{C5}, v{W+1} wave_shl:1 {DPP_ALL}
    v_alignbit_b32 v{T}, v{W+1}, v{W}, 16
    v_alignbit_b32 v{T+1}, v{W+2}, v{W+1}, 16
    v_alignbit_b32 v{T+2}, v{W+3}, v{W+2}, 16
    v_alignbit_b32 v{T+3}, v{C4}, v{W+3}, 16
    v_mov_b32 v{T+4}, v{W+1}
    v_mov_b32 v{T+5}, v{W+2}
    ds_write_b128 v{VED}, {vr(T,4)} offset:{2*KC_P + o}
    v_mov_b32 v{T+6}, v{W+3}
    v_mov_b32 v{T+7}, v{C4}
    v_mov_b32 v{T+8}, v{T+1}
    v_mov_b32 v{T+9}, v{T+2}
    ds_write_b128 v{VED}, {vr(T+4,4)} offset:{KC_P + o}
    v_mov_b32 v{T+10}, v{T+3}
    v_alignbit_b32 v{T+11}, v{C5}, v{C4}, 16
    ds_write_b128 v{VED}, {vr(T+8,4)} offset:{o}
    """)

def expand(a, hh):
    r2 = lambda d, v, o: a(f"ds_read2st64_b32 {vr(d,2)}, v{v} offset0:{o} offset1:{o + TP//256}")
    r2(56, VE0, 0); r2(58, VE1, 0); r2(60, VC0, 9 - hh)
    if hh: r2(62, VC1, 8)
    if hh == 0:
        for i in range(2):
            a(f"ds_read_b128 {vr(64+4*i,4)}, v{VE2} offset:{16*i}")
            a(f"ds_read_b128 {vr(72+4*i,4)}, v{VE2} offset:{TP + 16*i}")
        n2 = 4
    else:
        r2(64, VE2, 0); r2(66, VE3, 0); r2(68, VE4, 0); r2(70, VC0, 6); r2(72, VC1, 6); r2(74, VC2, 6)
        n2 = 6
    a(f"""
    s_mov_b32 vcc_lo, 0x55555555
    s_mov_b32 vcc_hi, 0x55555555
    s_waitcnt lgkmcnt({n2})
    v_add_f32 v56, v56, v57
    v_add_f32 v58, v58, v59
    v_add_f32 v60, v60, v61
    """)
    if hh: a("v_add_f32 v62, v62, v63")
    a(f"""
    v_cndmask_b32 v57, v56, v58, vcc
    v_cvt_pk_f16_f32 v80, v58, v58
    v_cvt_pk_f16_f32 v82, v56, v56
    v_cvt_pk_f16_f32 v81, v58, v57
    v_cvt_pk_f16_f32 v84, v60, v60
    v_mov_b32 v83, v82
    v_cvt_pk_f16_f32 v85, v{62 if hh else 60}, v{62 if hh else 60}
    """)
    expand_emit(a, 80, 84, 85, 88, hh)
    a("s_waitcnt lgkmcnt(4)")
    if hh == 0:
        for i in range(8): a(f"v_add_f32 v{64+i}, v{64+i}, v{72+i}")
        a(f"""
        v_cvt_pk_f16_f32 v100, v71, v70
        v_cvt_pk_f16_f32 v101, v69, v68
        v_cvt_pk_f16_f32 v102, v67, v66
        v_cvt_pk_f16_f32 v103, v65, v64
        v_mov_b32 v104, 0
        v_mov_b32 v105, 0
        s_mov_b32 exec_hi, 0
        v_cvt_pk_f16_f32 v100, v68, v67
        v_cvt_pk_f16_f32 v101, v66, v66
        v_cvt_pk_f16_f32 v102, v66, v65
        v_cvt_pk_f16_f32 v103, v64, v64
        s_mov_b64 exec, -1
        """)
    else:
        for i in range(6): a(f"v_add_f32 v{64+2*i}, v{64+2*i}, v{65+2*i}")
        a(f"""
        v_cvt_pk_f16_f32 v100, v68, v68
        v_cvt_pk_f16_f32 v101, v66, v66
        v_cvt_pk_f16_f32 v102, v66, v64
        v_cvt_pk_f16_f32 v103, v64, v64
        v_cvt_pk_f16_f32 v104, v70, v72
        v_cvt_pk_f16_f32 v105, v74, v74
        """)
    expand_emit(a, 100, 104, 105, 108, 3 - hh)
    if hh == 0: a(f"""
    v_mov_b32 v104, 0
    v_mov_b32 v105, 0
    v_mov_b32 v106, 0
    v_mov_b32 v107, 0
    s_mov_b64 exec, 0xff
    ds_write_b128 v{VT1+2}, v[104:107] offset:4096
    """)

def pf_lines(a, mat, part, v0):
    A, B, C = v0, v0+1, v0+2
    a(f"""
    s_lshr_b32 s64, s2, 3
    s_mul_i32 s64, s64, 162
    s_add_u32 s64, s64, {54*part}
    s_and_b32 s65, s2, 7
    s_mul_i32 s65, s65, 9
    v_min_u32 v{A}, 53, v2
    v_add_u32 v{A}, s64, v{A}
    """)
    fl = E("M_PFFL", "")
    if mat == "d":
        a(f"""
        s_mul_i32 s65, s65, 576
        v_add_u32 v{B}, s65, v{A}
        v_lshlrev_b32 v{B}, 7, v{B}
        global_load_dword v250, v{B}, {P(sWD)} {fl}
        """)
    else:
        a(f"""
        v_mul_u32_u24 v{C}, 7282, v{A}
        v_lshrrev_b32 v{C}, 16, v{C}
        v_mul_u32_u24 v{B}, 9, v{C}
        v_sub_u32 v{B}, v{A}, v{B}
        v_add_u32 v{B}, s65, v{B}
        v_mul_u32_u24 v{C}, 9216, v{C}
        v_lshl_add_u32 v{C}, v{B}, 7, v{C}
        """)
        if v0 == 252:
            a(f"global_load_dword v250, v{C}, s[78:79] {fl}")
            return
        for m in mat:
            a(f"global_load_dword v250, v{C}, {P(sWG if m == 'g' else sWU)} {fl}")
            if int(E("M_PFH", "0")): a(f"global_load_dword v250, v{C}, {P(sWG if m == 'g' else sWU)} offset:64 {fl}")

JA = [(k, v) for v in (0, 1, 2) for k in range(3, 8) if k + v <= 7]
JB = [(k, v) for v in (0, 1, 2) for k in range(3)]
JC = [(k, v) for v in (3, 4) for k in range(5) if k + v <= 7]
JD = [(k, v) for v in (5, 6, 7) for k in range(3) if k + v <= 7]
POFF = {"A": (0, 3), "B": (5, 0), "C": (10, 3), "D": (15, 5)}
def JCH(k): return [(kb, g - kb) for g in (k, 7 - k) for kb in range(g + 1)]
VA = 64
VACC = 224
VB = 32
NB = 8
VAS = 16
NH = int(E("M_NH", "5"))
NPX = int(E("M_NPX", "8"))
VKA, VHA = 4, 6
VPW = 8

def aread(r, va, kap, two):
    o = 64*(63-kap)
    if two: return [f"ds_read2_b64 {vr(r,4)}, v{two + (o >> 11)} offset0:{(o & 2047) >> 3} offset1:{((o & 2047) >> 3) + 1}"]
    return [f"ds_read_b64 {vr(r,2)}, v{va} offset:{o}", f"ds_read_b64 {vr(r+2,2)}, v{va} offset:{o+8}"]
class Job:
    def __init__(self, parts, npx=None):
        self.parts = parts
        self.npx = NPX if npx is None else npx
        self.two = VKA if (parts[0][2] is None and int(E("K_TWO", "1"))) else 0
        use = {}
        for ci, bl, _ in parts:
            for kb, vb in bl: use[(ci, kb)] = use.get((ci, kb), 0) + 1
        order = sorted(use, key=lambda x: (-use[x], x))
        self.held = {g: i for i, g in enumerate(order[:NH])}
    def preload(self, a):
        if self.two: a(f"v_add_u32 v{VKA+1}, 2048, v{VKA}")
        elif int(E("PL_TWO", "0")):
            for ci in sorted(set(c for c, _ in self.held)): a(f"v_mov_b32 v{56+2*ci}, v{VKA+ci}\nv_add_u32 v{57+2*ci}, 2048, v{VKA+ci}")
        for x in range(7, 7 - self.npx, -1):
            for (ci, kb), i in self.held.items():
                kap = 8*kb + x; r = VA + 32*i + 4*x
                for t in aread(r, VKA+ci, kap, self.two or (56+2*ci if int(E("PL_TWO", "0")) else 0)): a(t)
    def run(self, a, fillers=None):
        Q = LdsQ(a)
        fillers = list(fillers or [])
        acc = {}; seq = []
        for ci, bl, tag in self.parts:
            vbs = sorted(set(v for _, v in bl), reverse=(tag is None and int(E("K_REV", "0")) == 1))
            for vb in vbs:
                for y in range(8):
                    seq.append(((ci, 8*vb + y), [((ci, kb, 7 - y), (ci, kb + vb)) for kb, v in bl if v == vb]))
        for _, ms in seq:
            for _, tk in ms:
                if tk not in acc: acc[tk] = VACC + 4*len(acc)
        assert len(acc) <= 6
        mf = []
        for bi, (bk, ms) in enumerate(seq):
            for ak, tk in ms: mf.append((bi, ak, tk))
        if int(E("M_STAG", "1")) and self.parts[-1][2]:
            nl = len(seq) - 8
            body = [m for m in mf if m[0] < nl]; tail = [m for m in mf if m[0] >= nl]
            tks = sorted(set(m[2] for m in tail))
            if len(tks) > 1:
                tail = sorted(tail, key=lambda m: (max(tks.index(m[2]) - 1, 0), m[0], m[2]))
            mf = body + tail
        last = {}
        for n, (_, _, tk) in enumerate(mf): last[tk] = n
        loads = []; sa = 0; areg = {}
        ring = [VAS + 4*i for i in range(2)] + ([232 + 4*i for i in range(4)] if len(acc) <= 2 else [240 - 0][:0])
        firstuse = {}
        for n, (bi, ak, tk) in enumerate(mf):
            if ("b", bi) not in firstuse:
                firstuse[("b", bi)] = n
                ci, v = seq[bi][0]
                loads.append((n, ("b", bi), [f"ds_read_b128 {vr(VB + 4*(bi % NB),4)}, v{VHA+ci} offset:{64*v}"]))
            ci, kb, x = ak
            if (ci, kb) in self.held:
                r = VA + 32*self.held[(ci, kb)] + 4*x; areg[n] = r
                if x <= 7 - self.npx and ("h", r) not in firstuse:
                    kap = 8*kb + x; firstuse[("h", r)] = n
                    loads.append((n, ("h", r), aread(r, VKA+ci, kap, self.two)))
            else:
                r = ring[sa % len(ring)]; kap = 8*kb + x
                loads.append((n, ("a", sa), aread(r, VKA+ci, kap, self.two)))
                areg[n] = r; firstuse[("a", sa)] = n; sa += 1
        lastuse_b = {}
        for n, (bi, _, _) in enumerate(mf): lastuse_b[bi] = n
        opid = {}; li = 0; started = set(); pend = []
        LEAD = int(E("M_LEAD", "10")); LEADH = int(E("M_LEADH", "14"))
        def can_issue(key, n):
            if key[0] == "h": return True
            if key[0] == "b": return key[1] < NB or lastuse_b[key[1] - NB] < n
            return key[1] < len(ring) or firstuse[("a", key[1] - len(ring))] < n
        akey_of = {}
        for (n0, key, _) in loads:
            if key[0] in "ah": akey_of[n0] = key
        tagof = {ci: tag for ci, _, tag in self.parts}
        for n, (bi, ak, tk) in enumerate(mf):
            while li < len(loads) and loads[li][0] <= n + (LEADH if loads[li][1][0] == "h" else LEAD) and can_issue(loads[li][1], n):
                for t in loads[li][2]: opid[loads[li][1]] = Q.issue(t)
                li += 1
            need = opid[("b", bi)]
            if n in akey_of: need = max(need, opid[akey_of[n]])
            Q.need(need)
            c = acc[tk]
            a(f"v_mfma_f32_16x16x32_f16 {vr(c,4)}, {vr(areg[n],4)}, {vr(VB + 4*(bi % NB),4)}, {'0' if tk not in started else vr(c,4)}")
            started.add(tk)
            if fillers and n >= 2:
                for _ in range(2):
                    if fillers:
                        t_ = fillers.pop(0)
                        if t_: a(t_)
            if last[tk] == n and tagof[tk[0]]: pend.append((n + 9, tk))
            while pend and pend[0][0] <= n:
                tk2 = pend.pop(0)[1]
                s0, g0 = POFF[tagof[tk2[0]]]
                Q.issue(f"ds_write_b128 v{VPW+tk2[0]}, {vr(acc[tk2],4)} offset:{(s0 + tk2[1] - g0)*1024}")
        a("s_nop 7")
        for _, tk2 in pend:
            s0, g0 = POFF[tagof[tk2[0]]]
            Q.issue(f"ds_write_b128 v{VPW+tk2[0]}, {vr(acc[tk2],4)} offset:{(s0 + tk2[1] - g0)*1024}")
        return acc

def epi_core(a, Y, H, T, ks, dd, ga, n):
    for e in range(n): a(f"v_mul_f32 v{Y+e}, {ks}, v{Y+e}")
    for e in range(n): a(f"v_fma_mix_f32 v{T+e}, v{H+e//2}, {dd}, 0 op_sel:[{e&1},0,0] op_sel_hi:[1,0,0]")
    rnd_pairs(a, [Y+2*i for i in range(n//2)] + [T+2*i for i in range(n//2)])
    for e in range(n): a(f"v_add_f32 v{Y+e}, v{Y+e}, v{T+e}")
    rnd_pairs(a, [Y+2*i for i in range(n//2)])
    for e in range(n): a(f"v_mul_f32 v{Y+e}, {ga}, v{Y+e}")

def pack9(a, dst, src):
    for i in range(4): a(f"v_cvt_pk_bf16_f32 v{dst+i}, v{src+2*i}, v{src+2*i+1}")
    a(f"v_cvt_pk_bf16_f32 v{dst+4}, v{src+8}, 0")
def dots9(a, dst, src, bf, cf):
    for e in (8, 0, 1, 2, 3, 4, 5, 6, 7): a(f"v_dot2_f32_bf16 v{dst+e}, v{src+e//2}, {bf(e)}, {cf(e)}")
def ln_core(a, P1, X1, T, ONES, LO, RC, lab):
    vsel = lambda e: f"v{LO + (e & 1)}"
    for i in range(5):
        a(f"v_dot2_f32_bf16 v{T}, v{P1+i}, v{ONES}, {'0' if i == 0 else 'v%d' % T}")
        a(f"v_dot2_f32_bf16 v{T+2}, v{P1+i}, v{P1+i}, {'0' if i == 0 else 'v%d' % (T+2)}")
    a("s_nop 1")
    reduce2(a, T, T+2)
    a(f"""
    v_readlane_b32 s66, v{T}, 63
    v_readlane_b32 s67, v{T+2}, 63
    s_nop 0
    v_mul_f32 v{T}, s66, v{RC}
    v_mul_f32 v{T+1}, s67, v{RC}
    v_mul_f32 v{T+2}, v{T}, v{T}
    v_fma_f32 v{T+1}, -v{T}, v{T}, v{T+1}
    v_mul_f32 v{T+3}, 0x41800000, v{T+1}
    v_cmp_gt_f32 vcc, v{T+2}, v{T+3}
    s_cbranch_vccz {lab}
    v_sub_f32 v{T+3}, 0, v{T}
    """)
    dots9(a, X1, P1, vsel, lambda e: f"v{T+3}")
    a(f"v_mul_f32 v{T+2}, v{X1+8}, v{X1+8}")
    for e in range(8): a(f"v_fmac_f32 v{T+2}, v{X1+e}, v{X1+e}")
    a("s_nop 1")
    reduce2(a, T+2, None)
    a(f"""
    v_readlane_b32 s67, v{T+2}, 63
    s_nop 1
    v_mul_f32 v{T+1}, s67, v{RC}
    {lab}:
    v_cvt_pk_bf16_f32 v{T+1}, -v{T}, v{T+1}
    v_lshlrev_b32 v{T}, 16, v{T+1}
    v_and_b32 v{T+1}, 0xffff0000, v{T+1}
    v_add_f32 v{T+1}, {fbits(1e-5)}, v{T+1}
    v_cvt_pk_bf16_f32 v{T+1}, v{T+1}, v{T+1}
    v_lshlrev_b32 v{T+1}, 16, v{T+1}
    v_sqrt_f32 v{T+1}, v{T+1}
    """)
    dots9(a, X1, P1, vsel, lambda e: f"v{T}")
    a(f"""
    v_cvt_pk_bf16_f32 v{T+1}, v{T+1}, v{T+1}
    v_lshlrev_b32 v{T+1}, 16, v{T+1}
    v_rcp_f32 v{T+1}, v{T+1}
    """)
    rnd1(a, X1+8); rnd_pairs(a, [X1, X1+2, X1+4, X1+6])
    a(f"v_mul_f32 v{X1+8}, v{X1+8}, v{T+1}")
    for i in range(4): a(f"v_pk_mul_f32 {vr(X1+2*i,2)}, {vr(X1+2*i,2)}, {vr(T,2)} op_sel:[0,1] op_sel_hi:[1,1]")

def gen_F(a):
    kernel_head(a, "ka_kernel")
    if DIAG == 31: a("s_memrealtime s[90:91]")
    a(f"""
    s_cmp_ge_u32 s2, 256
    s_cbranch_scc1 M_END
    s_load_dwordx16 s[4:19], s[0:1], 0
    s_load_dwordx16 s[20:35], s[0:1], 64
    s_load_dwordx2 s[36:37], s[0:1], 128
    v_lshrrev_b32 v1, 6, v0
    v_and_b32 v2, 63, v0
    """)
    if ST: a(f"v_mov_b32 v{VST}, 0")
    a("v_readfirstlane_b32 s3, v1")
    stamp(a, 0)
    if CPL:
        a(f"""
        s_cmp_lg_u32 s3, 3
        s_cbranch_scc1 M_NCP
        s_getpc_b64 s[74:75]
        M_PC:
        s_sub_u32 s74, s74, M_PC - ka_kernel
        s_subb_u32 s75, s75, 0
        s_lshr_b32 s76, s2, 3
        s_mul_i32 s76, s76, {CPL}
        v_min_u32 v25, {CPL-1}, v2
        v_add_u32 v25, s76, v25
        v_lshlrev_b32 v25, 7, v25
        v_min_u32 v25, CODE_END - ka_kernel - 4, v25
        global_load_dword v250, v25, s[74:75]
        M_NCP:
        """)
    LL = 10; X = 80; T = 96
    a(f"""
    s_lshl_b32 s40, s2, 3
    s_add_u32 s40, s40, s3
    s_mul_i32 s40, s40, 1152
    v_lshl_add_u32 v3, v2, 4, s40
    v_lshl_add_u32 v4, v2, 1, s40
    v_mov_b32 v20, 0
    v_mov_b32 v21, 0
    v_mov_b32 v22, 0
    v_mov_b32 v23, 0
    v_mov_b32 v{VZ}, 0
    v_mov_b32 v{VONE}, 1
    v_pk_mov_b32 v[34:35], v[20:21], v[20:21]
    v_pk_mov_b32 v[252:253], v[20:21], v[20:21]
    v_pk_mov_b32 v[240:241], v[20:21], v[20:21]
    v_pk_mov_b32 v[242:243], v[20:21], v[20:21]
    v_pk_mov_b32 v[30:31], v[20:21], v[20:21]
    v_pk_mov_b32 v[210:211], v[20:21], v[20:21]
    v_lshlrev_b32 v24, 4, v2
    s_cmp_eq_u32 s3, 0
    s_cbranch_scc0 M_Z1
    s_mov_b64 exec, 0x3fffffff
    ds_write_b128 v24, v[20:23] offset:{L_HB}
    ds_write_b128 v24, v[20:23] offset:{L_HB + HB_P}
    ds_write_b128 v24, v[20:23] offset:{L_HB + 2*HB_P}
    M_Z1:
    s_cmp_eq_u32 s3, 3
    s_cbranch_scc0 M_Z0
    s_mov_b64 exec, 0xfffff
    ds_write_b128 v24, v[20:23] offset:{L_CNT}
    M_Z0:
    s_mov_b64 exec, -1
    s_lshr_b32 s41, s3, 1
    s_lshl_b32 s{sD}, s2, 1
    s_add_u32 s{sD}, s{sD}, s41
    s_lshr_b32 s45, s2, 2
    s_add_u32 s45, s45, 512            ; channel c
    s_cmp_eq_u32 s41, 2
    s_cselect_b32 s{sD}, s45, s{sD}
    s_and_b32 s{sHH}, s3, 1
    ; mod item: cg = u % 27, ks = u / 27
    s_mul_i32 s{sKS}, s2, 2428
    s_lshr_b32 s{sKS}, s{sKS}, 16
    s_mul_i32 s40, s{sKS}, 27
    s_sub_u32 s49, s2, s40             ; cg
    v_lshrrev_b32 v25, 2, v2
    s_lshl_b32 s40, s{sKS}, 6
    v_add_u32 v25, s40, v25
    v_mul_u32_u24 v25, 6912, v25
    v_and_b32 v26, 3, v2
    v_lshl_add_u32 v25, v26, 4, v25
    v_add_u32 v39, s40, v2
    s_lshl_b32 s40, s49, 7
    s_lshl_b32 s50, s{sHH}, 6
    s_add_u32 s40, s40, s50
    v_add_u32 v216, s40, v25
    v_lshlrev_b32 v39, 1, v39
    s_lshl_b32 s40, s{sD}, 8
    v_lshl_add_u32 v5, v2, 2, s40
    s_lshl_b32 s40, s{sD}, 1
    v_mov_b32 v6, s40
    s_waitcnt lgkmcnt(0)
    global_load_dwordx4 {vr(LL,4)}, v3, {P(sX)} {XNT}
    global_load_ushort v{LL+4}, v4, {P(sX)} offset:1024 {XNT}
    s_mov_b32 s50, {16*6912}
    v_add_u32 v217, s50, v216
    v_add_u32 v218, s50, v217
    v_add_u32 v219, s50, v218
    v_mov_b32 v7, {WS_EPOCH}
    """)
    if HINT: a(f"""
    v_lshrrev_b32 v246, 5, v2
    v_lshlrev_b32 v246, 15, v246
    v_and_b32 v247, 31, v2
    v_lshl_add_u32 v246, v247, 7, v246
    s_and_b32 s50, s2, 7
    s_lshl_b32 s50, s50, 12
    s_add_u32 s50, s50, {WS_CNT}
    v_add_u32 v246, s50, v246
    """)
    a(f"""
    {"s_setprio 2" if int(E("M_PRIO1", "1")) else ""}
    s_cmp_ge_u32 s3, 6
    s_cbranch_scc1 M_T0MOD
    s_barrier                          ; B0
    global_load_ushort v44, v6, {P(sLDT)}
    global_load_dword v40, v5, {P(sLAR)} {PNT}
    global_load_dword v41, v5, {P(sAIM)} {PNT}
    global_load_dword v42, v5, {P(sCR)} {PNT}
    global_load_dword v43, v5, {P(sCI)} {PNT}
    s_mov_b32 s62, 5
    """)
    if DNAT == "t0":
        k0_ = len(a.lines); dn_touch(a)
        for i in range(k0_, len(a.lines)): a.lines[i] = a.lines[i].replace("v252", "v247")
        a.lines.insert(len(a.lines) - 1, "  s_mov_b32 s62, 6")
    a(f"""
    s_branch M_T0J
    M_T0MOD:
    s_setprio {E("P67", "2")}
    s_barrier                          ; B0
    {"global_load_dword v247, v246, %s sc1" % P(sWS) if HINT else ""}
    global_load_dword v47, v7, {P(sWS)}
    s_mov_b32 s62, 2
    s_cmp_ge_u32 s2, 243
    s_cbranch_scc1 M_T0J
    global_load_ushort v44, v39, {P(sC)}
    """)
    for i in range(4): a(f"global_load_dwordx4 {vr(48+4*i,4)}, v{216+i}, {P(sWMOD)} {NT}")
    a(f"""
    s_mov_b32 s62, 7
    M_T0J:
    """)
    PK23 = int(E("M_PK23", "0"))
    S4 = int(E("M_S4", "1"))
    UN = {0: 0, 1: 4, 6: 8, 7: 12, 2: 0, 3: 0, 4: 0, 5: 0} if S4 else {2: 0, 3: 3, 6: 6, 7: 9, 0: 12, 1: 14, 4: 0, 5: 0}
    unib = sum(UN[w] << (4*w) for w in range(8))
    def su_xn(): a(f"""
    s_lshl_b32 s40, s3, 2
    s_lshr_b32 s63, {hex(unib)}, s40
    s_and_b32 s63, s63, 15
    s_lshl_b32 s50, s63, 10
    s_lshl_b32 s51, s2, 14
    s_add_u32 s50, s50, s51
    s_add_u32 s50, s50, {WS_XN}
    v_lshl_add_u32 v{VXA}, v2, 4, s50
    """)
    def su_mp(): a(f"""
    v_lshrrev_b32 v21, 4, v2
    s_lshl_b32 s50, s2, 1
    v_add_u32 v20, s50, v21
    v_mov_b32 v22, s45
    v_cmp_gt_u32 vcc, 2, v21
    v_and_b32 v23, 15, v2
    v_min_u32 v23, 8, v23
    v_cndmask_b32 v20, v22, v20, vcc   ; channel
    v_lshlrev_b32 v23, 9, v23
    v_lshlrev_b32 v{VD}, 1, v20
    v_lshrrev_b32 v22, 6, v20
    v_mul_u32_u24 v22, {9*512}, v22
    v_and_b32 v20, 63, v20
    v_lshl_add_u32 v20, v20, 3, v22
    v_add_u32 v20, v20, v23
    v_add_u32 v{VMA}, {WS_MP}, v20
    v_add_u32 v{VMA+1}, {WS_MP + 9*9*512}, v20
    v_add_u32 v{VMA+2}, {WS_MP + 18*9*512}, v20
    s_mul_i32 s40, s49, 9
    s_add_u32 s40, s40, s{sKS}
    s_lshl_b32 s40, s40, 9
    s_lshl_b32 s50, s{sHH}, 8
    s_add_u32 s40, s40, s50
    s_add_u32 s40, s40, {WS_MP}
    v_and_b32 v34, 3, v2
    v_lshlrev_b32 v34, 6, v34
    v_lshrrev_b32 v35, 3, v2
    v_lshl_add_u32 v34, v35, 3, v34
    v_add_u32 v34, s40, v34
    v_add_u32 v35, {27*9*512}, v34
    """)
    def su_conv(): a(f"""
    v_and_b32 v20, 15, v2              ; i / j
    v_lshrrev_b32 v21, 4, v2
    s_lshl_b32 s40, s3, 2
    v_and_b32 v22, 3, v20
    v_mul_u32_u24 v22, {KC_P}, v22
    v_lshrrev_b32 v23, 2, v20
    v_lshlrev_b32 v23, 3, v23
    v_lshl_add_u32 v23, v21, 4, v23
    v_sub_u32 v22, v22, v23
    v_add_u32 v22, {L_KC + 72}, v22
    v_lshlrev_b32 v23, 5, v20
    v_lshlrev_b32 v19, 4, v21
    v_sub_u32 v19, v23, v19
    v_add_u32 v19, {L_HB + 48}, v19
    v_lshl_add_u32 v3, v21, 3, v23     ; 32j + 8q
    v_add_u32 v3, {L_HB + 480}, v3
    s_lshr_b32 s40, 0x01021100, s40
    s_and_b32 s40, s40, 15
    s_mul_i32 s50, s40, {4*KC_P}
    s_cmp_eq_u32 s40, 2
    s_cselect_b32 s50, {(L_KC2 - L_KC) & 0xffffffff}, s50
    v_add_u32 v{VKA}, s50, v22
    v_add_u32 v{VKA+1}, {4*KC_P}, v22
    s_mul_i32 s50, s40, {HB_P}
    v_add_u32 v{VHA}, s50, v19
    v_add_u32 v{VHA+1}, {HB_P}, v19
    s_mul_i32 s50, s40, 18432
    s_add_u32 s50, s50, {L_PART}
    v_lshl_add_u32 v{VPW}, v2, 4, s50
    v_lshlrev_b32 v{VPW+1}, 4, v2
    v_add_u32 v{VPW+1}, {L_PART + 18432}, v{VPW+1}
    s_lshl_b32 s40, s40, 2
    v_mov_b32 v1, s40
    """)
    def su_epi(): a(f"""
    s_add_u32 s83, s3, 5
    s_add_u32 s84, s3, -3
    s_add_u32 s85, s3, 7
    s_add_u32 s86, s3, 10
    s_cmp_ge_u32 s3, 5
    s_cselect_b32 s83, s86, s83
    s_cmp_lt_u32 s3, 3
    s_cselect_b32 s84, s83, s84
    s_cselect_b32 s85, s83, s85
    s_cselect_b32 s82, 0, 1.0
    s_lshl_b32 s83, s83, 10
    s_lshl_b32 s84, s84, 10
    s_lshl_b32 s85, s85, 10
    v_lshlrev_b32 v26, 4, v2
    v_add_u32 v26, {L_PART}, v26
    v_add_u32 v24, s83, v26
    v_add_u32 v25, s84, v26
    v_add_u32 v26, s85, v26
    s_lshl_b32 s40, s3, 9
    v_add_u32 v27, s40, v3
    s_mul_i32 s40, s3, 1536
    s_add_u32 s40, s40, {L_TAB}
    v_and_b32 v28, 15, v2
    v_mul_u32_u24 v28, 96, v28
    v_lshrrev_b32 v29, 5, v2
    v_mul_u32_u24 v29, 48, v29
    v_and_b32 v30, 16, v2
    v_add3_u32 v28, v28, v29, v30
    v_add_u32 v28, s40, v28
    v_lshrrev_b32 v30, 2, v2
    v_mul_u32_u24 v29, 96, v30
    v_and_b32 v31, 3, v2
    v_mul_u32_u24 v16, 12, v31
    v_add3_u32 v29, v29, v16, s40
    v_lshlrev_b32 v30, 15, v30
    v_lshl_add_u32 v30, v31, 4, v30
    s_lshl_b32 s40, s3, 19
    s_lshl_b32 s86, s2, 6
    s_add_u32 s40, s40, s86
    s_add_u32 s40, s40, {WS_Z2}
    v_add_u32 v30, s40, v30
    """)
    def su_pack(): a(f"""
    v_lshrrev_b32 v22, 2, v2
    {"s_lshr_b32 s40, s3, 2" if PK23 else "s_and_b32 s40, s3, 3"}
    {"s_lshl_b32 s40, s40, 1" if PK23 else ""}
    {"s_add_u32 s40, s40, s%d" % sHH if PK23 else ""}
    s_lshl_b32 s40, s40, 6
    v_add_u32 v22, s40, v22            ; u'
    v_and_b32 v23, 3, v2
    v_mul_u32_u24 v222, 2592, v23
    v_lshl_add_u32 v222, v22, 2, v222
    v_add_u32 v222, {L_LNR}, v222
    v_lshrrev_b32 v223, 2, v22
    v_lshlrev_b32 v223, 4, v223
    v_lshl_add_u32 v223, v23, 2, v223
    v_add_u32 v223, {L_CB}, v223
    v_lshlrev_b32 v22, 14, v22
    v_lshl_add_u32 v22, v23, 4, v22
    s_lshl_b32 s40, s2, 6
    s_add_u32 s40, s40, {WS_XN}
    v_add_u32 v253, s40, v22
    """)
    def su_kgen():
        a("v_and_b32 v20, 15, v2\nv_lshrrev_b32 v21, 4, v2")
        k0 = len(a.lines)
        kgen_setup(a)
        for i in range(k0, len(a.lines)):
            for o, n in (("v10", "v20"), ("v11", "v21"), ("v12", "v22"), ("v13", "v23")):
                a.lines[i] = re.sub(rf"\b{o}\b", n, a.lines[i])
    a("s_cmp_ge_u32 s3, 6\ns_cbranch_scc1 M_SU6")
    su_kgen()
    a("s_cmp_lt_u32 s3, 4\ns_cbranch_scc1 M_SUD")
    if int(E("SU45", "1")): su_conv(); su_epi()
    a("s_branch M_SUP")
    a.label("M_SU6")
    su_mp()
    a.label("M_SUP")
    su_pack()
    a.label("M_SUD")
    a(f"""
    s_lshr_b32 s40, s3, 1
    s_mul_i32 s40, s40, 2592
    s_mul_i32 s50, s{sHH}, 1280
    s_add_u32 s40, s40, s50
    s_add_u32 s40, s40, {L_LNR}
    v_lshl_add_u32 v220, v2, 4, s40
    s_lshl_b32 s40, s3, 1
    s_add_u32 s40, s40, {L_CB}
    v_lshl_add_u32 v221, v2, 4, s40
    v_mov_b32 v15, {fbits(1.0/576)}
    v_mov_b32 v92, 0x3f803f80
    v_mov_b32 v94, 0x3f80
    v_mov_b32 v95, 0x3f800000
    """)
    stamp(a, 12)
    a(f"""
    s_cmp_eq_u32 s62, 7
    s_cbranch_scc1 M_W6
    s_cmp_eq_u32 s62, 5
    s_cbranch_scc1 M_W5
    s_waitcnt vmcnt({2 if HINT else 1})
    M_W5:
    s_waitcnt vmcnt(5)
    M_W6:
    s_waitcnt vmcnt({7 if HINT else 6})
    """)
    stamp(a, 1)
    ln_core(a, LL, X, T, 92, 94, 15, "M_FAST")
    pack9(a, T, X)
    a(f"""
    ds_write_b128 v220, {vr(T,4)}
    ds_write_b16 v221, v{T+4}
    s_cmp_lt_u32 s3, 6
    s_cbranch_scc1 M_NTAG
    s_cmp_eq_u32 s62, 7
    s_cbranch_scc1 M_TG5
    s_waitcnt vmcnt(0)
    M_TG5:
    s_waitcnt vmcnt(5)
    s_mov_b32 s40, 0x9E3779B1
    v_mul_lo_u32 v33, v47, s40
    v_add_u32 v33, 0x7F4A7C15, v33
    ds_write_b32 v{VZ}, v33 offset:{L_TAG}
    M_NTAG:
    """)
    signal(a, C_LN)
    AC = 112
    def mod_item(rho, w0):
        for e in range(8): a(f"v_mov_b32 v{AC+e}, 0")
        for i in range(4):
            a(f"s_waitcnt vmcnt({w0 - i})")
            for w in range(4):
                a(f"v_dot2c_f32_bf16 v{AC+2*w}, v{48+16*rho+4*i+w}, v{108+i}")
                a(f"v_dot2c_f32_bf16 v{AC+2*w+1}, v{48+16*rho+4*i+w}, v{104+i}")
        a("s_nop 2")
        for e in range(4): a(f"v_permlane32_swap_b32 v{AC+e}, v{AC+4+e}")
        for e in range(4): a(f"v_add_f32 v{AC+e}, v{AC+e}, v{AC+4+e}")
        a("s_nop 0")
        a(f"v_permlane16_swap_b32 v{AC}, v{AC+2}")
        a(f"v_permlane16_swap_b32 v{AC+1}, v{AC+3}")
        a(f"v_add_f32 v{AC}, v{AC}, v{AC+2}")
        a(f"v_add_f32 v{AC+1}, v{AC+1}, v{AC+3}")
        a("s_nop 1")
        a(f"v_add_f32 v32, v{AC}, v{AC} row_ror:8 row_mask:0xf bank_mask:0x3")
        a(f"v_add_f32 v32, v{AC+1}, v{AC+1} row_ror:8 row_mask:0xf bank_mask:0xc")
        a("s_nop 1")
        a(f"v_add_f32 v32, v32, v32 row_shl:4 row_mask:0xf bank_mask:0x5")
        a("s_mov_b32 exec_lo, 0x0f0f0f0f")
        a("s_mov_b32 exec_hi, 0x0f0f0f0f")
        a(f"global_store_dwordx2 v{34+rho}, v[32:33], {P(sWS)} sc1")
        a("s_mov_b64 exec, -1")
    MODF = int(E("M_MODF", "1"))
    a(f"""
    {"s_bitcmp1_b32 s3, 1" if PK23 else "s_cmp_lt_u32 s3, 4"}
    {"s_cbranch_scc0 M_KG" if PK23 else "s_cbranch_scc1 M_KG"}
    s_cmp_lt_u32 s3, 6
    s_cbranch_scc1 M_PACK
    s_cmp_ge_u32 s2, 243
    s_cbranch_scc1 M_PACK
    s_mov_b32 s40, {fbits(-LOG2E)}
    s_waitcnt vmcnt(4)
    v_lshlrev_b32 v44, 16, v44
    v_mul_f32 v45, s40, v44
    v_exp_f32 v45, v45
    v_lshrrev_b32 v46, 2, v2
    v_add_f32 v45, 1.0, v45
    v_rcp_f32 v45, v45
    v_lshlrev_b32 v46, 2, v46
    v_mul_f32 v44, v44, v45
    v_cvt_pk_bf16_f32 v44, v44, 0
    """)
    for i in range(4): a(f"ds_bpermute_b32 v{108+i}, v46, v44 offset:{64*i}")
    a(f"""
    s_waitcnt lgkmcnt(0)
    """)
    for i in range(4): a(f"v_lshlrev_b32 v{104+i}, 16, v{108+i}")
    if MODF:
        mod_item(0, 3)
        stamp(a, 7)
    a.label("M_PACK")
    G0 = 80
    for i in range(1, 4): a(f"v_add_u32 v{20+i}, {64*i}, v222")
    a(f"""
    s_mov_b32 s41, {16 << 14}
    M_SPL:
    ds_read_b64 v[96:97], v{VZ} offset:{L_CNT + C_LN}
    """)
    for i in range(4):
        a(f"ds_read2st64_b32 {vr(G0+4*i,2)}, v{222 if i == 0 else 20+i} offset0:0 offset1:5")
        a(f"ds_read_b32 v{G0+4*i+2}, v223 offset:{64*i}")
    a(f"""
    s_waitcnt lgkmcnt(8)
    v_readfirstlane_b32 s94, v96
    v_readfirstlane_b32 s{sTAG}, v97
    s_cmp_ge_u32 s94, 8
    s_cbranch_scc0 M_SPL
    """)
    for i in range(4):
        a(f"v_mov_b32 v{G0+4*i+3}, v97")
        a(f"s_waitcnt lgkmcnt({6-2*i})")
        a(f"global_store_dwordx4 v253, {vr(G0+4*i,4)}, {P(sWS)} sc1")
        if i < 3: a("v_add_u32 v253, s41, v253")
    stamp(a, 2)
    a(f"""
    {"s_setprio 0" if MODF else ""}
    s_cmp_ge_u32 s3, 6
    s_cbranch_scc1 M_MOD
    s_waitcnt vmcnt(4)
    """)
    if not PK23: signal(a, C_H)
    if E("C_PRIO"): a("s_setprio 1")
    a("s_branch KG_W1")
    a.label("M_KG")
    a("s_setprio 0")
    stamp(a, 2)
    def mp_issue():
        for c in range(3): a(f"global_load_dwordx2 {vr(VMP+2*c,2)}, v{VMA+c}, {P(sWS)} sc1")
    def xn_issue(n=3):
        for i in range(n): a(f"global_load_dwordx4 {vr(XG+4*i,4)}, v{VXA}, {P(sWS)} offset:{1024*i} sc1")
    def first_issue(lo=0, hi=4):
        l = a.newlabel("NI")
        if S4:
            if lo == 0:
                a(f"s_cmp_ge_u32 s3, 2\ns_cbranch_scc1 {l}"); xn_issue(4); a.label(l)
            return
        a(f"""
        s_sub_u32 s40, s3, {lo}
        s_cmp_ge_u32 s40, {hi - lo}
        s_cbranch_scc1 {l}
        s_cmp_lt_u32 s3, 2
        s_cbranch_scc1 {l}B
        global_load_dwordx4 {vr(XG+8,4)}, v{VXA}, {P(sWS)} offset:2048 sc1
        {l}B:
        """)
        xn_issue(2)
        a.label(l)
    XAT = E("M_XAT", "mix")
    hooks = {}
    if XAT not in ("tab", "exp", "pl", "mix"): hooks[XAT] = first_issue
    def chook(spec):
        def f_():
            l = a.newlabel("CH")
            a(f"""
            s_cmp_lt_u32 s3, 4
            s_cbranch_scc1 {l}
            s_mov_b32 s80, m0
            s_cmp_eq_u32 s3, 4
            s_cselect_b32 s78, s22, s24
            s_cselect_b32 s79, s23, s25
            """)
            for it in spec.split(","):
                if it[0] == "p": pf_lines(a, "g", int(it[1]), 252)
                else:
                    k = int(it[1])
                    a(f"""
                    s_cmp_ge_u32 s2, 144
                    s_cbranch_scc1 {l}_{k}
                    s_and_b32 s40, s2, 7
                    s_mul_i32 s40, s40, 18
                    s_lshr_b32 s64, s2, 3
                    s_add_u32 s40, s40, s64
                    s_mul_i32 s40, s40, 36864
                    s_mul_i32 s64, s{sHH}, 18432
                    s_add_u32 s64, s64, {6144*k}
                    s_add_u32 s40, s40, s64
                    s_add_u32 m0, s64, {L_DN}
                    v_lshl_add_u32 v252, v2, 4, s40
                    """)
                    for i in range(6):
                        if i == 3: a("s_add_u32 m0, m0, 3072\nv_add_u32 v252, 3072, v252")
                        a(f"global_load_lds_dwordx4 v252, {P(sWD)} offset:{1024*(i%3)}")
                    a(f"{l}_{k}:")
            a(f"s_mov_b32 m0, s80")
            a.label(l)
        return f_
    if E("C_PRIO"): hooks[E("C_PRIO")] = lambda: a("s_setprio 0")
    CH = dict(x.split(":") for x in E("M_CH", "").split(";") if x)
    for k_, v_ in CH.items(): hooks[k_] = chook(v_)
    if DNAT == "kg":
        def kt():
            k0_ = len(a.lines); dn_touch(a)
            for i in range(k0_, len(a.lines)): a.lines[i] = a.lines[i].replace("v252", "v247")
        hooks[E("F_DNH", "p")] = kt
    gen_kgen(a, 0, hooks)
    signal(a, C_TAB, VED+1)
    if int(E("SU45", "1")): a("s_cmp_ge_u32 s3, 4\ns_cbranch_scc1 M_SUE")
    su_conv(); su_xn(); su_epi()
    a.label("M_SUE")
    if XAT == "tab": first_issue()
    if XAT == "mix": first_issue(2, 4)
    stamp(a, 4)
    spin(a, C_TAB, 2, VED+1)
    stamp(a, 5)
    a(f"""
    s_cmp_eq_u32 s{sHH}, 0
    s_cbranch_scc0 M_EXB
    """)
    expand(a, 0)
    a("s_branch M_EXD")
    a.label("M_EXB")
    expand(a, 1)
    a.label("M_EXD")
    signal(a, C_K, VED+1)
    if XAT == "exp": first_issue()
    if XAT == "mix": first_issue(0, 2)
    stamp(a, 6)
    a("s_mov_b32 s73, 0")
    a("s_branch M_CSET")
    a.label("M_MOD")
    a(f"""
    s_cmp_ge_u32 s2, 243
    s_cbranch_scc1 M_MODX
    """)
    for i in range(4): a(f"global_load_dwordx4 {vr(64+4*i,4)}, v{216+i}, {P(sWMOD)} offset:3456 {NT}")
    if not MODF:
        mod_item(0, 11)
        a("s_setprio 0")
        stamp(a, 7)
        mod_item(1, 4)
    a.label("M_MODX")
    su_conv(); su_xn(); su_epi()
    if HINT: a("v_add_u32 v250, 8, v247\nv_mov_b32 v253, v246")
    a("s_setprio 0")
    a(f"""
    s_cmp_lg_u32 s3, 6
    s_cbranch_scc1 M_W7X
    """)
    spin(a, C_TAB if MODF else C_K, int(E("M_MPN", "1")))
    a(f"global_load_ushort v{VD}, v{VD}, {P(sDSK)}")
    mp_issue()
    a(f"""
    s_mov_b32 s41, {SPIN}
    M_MP:
    s_waitcnt vmcnt(0)
    v_xor_b32 v16, s{sTAG}, v{VMP+1}
    v_xor_b32 v17, s{sTAG}, v{VMP+3}
    v_xor_b32 v18, s{sTAG}, v{VMP+5}
    v_or3_b32 v16, v16, v17, v18
    v_cmp_ne_u32 vcc, 0, v16
    s_cbranch_vccz M_MPD
    """)
    mp_issue()
    a(f"""
    s_waitcnt vmcnt(0)
    s_sub_u32 s41, s41, 1
    s_cbranch_scc0 M_MP
    M_MPD:
    {"s_setprio 1" if int(E("M_PRS", "1")) else ""}
    s_mov_b32 exec_lo, 0xfe00fe00
    s_mov_b32 exec_hi, 0xfe00fe00
    v_mov_b32 v{VMP}, 0
    v_mov_b32 v{VMP+2}, 0
    v_mov_b32 v{VMP+4}, 0
    s_mov_b64 exec, -1
    """)
    for sh in (1, 2, 4, 8):
        for r in (VMP, VMP+2, VMP+4): a(f"v_add_f32 v{r}, v{r}, v{r} row_shr:{sh} {DPP_ALL} bound_ctrl:0")
    a(f"""
    v_cvt_pk_bf16_f32 v17, v{VMP}, v{VMP+2}
    v_cvt_pk_bf16_f32 v18, v{VMP+4}, v{VMP+4}
    v_lshlrev_b32 v16, 16, v17         ; sa
    v_and_b32 v17, 0xffff0000, v17     ; ca
    v_add_f32 v17, 1.0, v17
    v_cvt_pk_bf16_f32 v17, v17, v17
    v_and_b32 v17, 0xffff0000, v17     ; c1
    v_mul_f32 v19, 0x42800000, v17
    v_add_f32 v19, abs(v19), abs(v16)
    v_frexp_exp_i32_f32 v19, v19
    v_sub_u32 v19, 15, v19
    v_ldexp_f32 v17, v17, v19
    v_ldexp_f32 v16, v16, v19
    v_sub_u32 v19, 0, v19
    v_lshlrev_b32 v{VD}, 16, v{VD}
    v_lshlrev_b32 v18, 16, v18
    v_ldexp_f32 v{VD}, v{VD}, v19
    v_lshrrev_b32 v20, 2, v2
    v_and_b32 v20, 12, v20
    s_mov_b32 exec_lo, 0x80008000
    s_mov_b32 exec_hi, 0x00008000
    ds_write_b32 v20, v17 offset:{L_PRM}
    ds_write_b32 v20, v16 offset:{L_PRM + 16}
    ds_write_b32 v{VZ}, v33 offset:{L_CNT + C_PR + 4}
    ds_write_b32 v20, v{VD} offset:{L_PRM + 32}
    ds_write_b32 v20, v18 offset:{L_PRM + 48}
    ds_write_b32 v20, v19 offset:{L_PRM + 64}
    s_mov_b64 exec, -1
    """)
    signal(a, C_PR)
    a("s_setprio 0")
    stamp(a, 14)
    a("s_branch M_NI2")
    a.label("M_W7X")
    I2L = int(E("M_I2L", "0"))
    if MODF and not I2L:
        a("s_cmp_ge_u32 s2, 243\ns_cbranch_scc1 M_NI2")
        mod_item(1, 3)
    a.label("M_NI2")
    stamp(a, 3)
    spin(a, C_K, int(E("M_W6N", "1")))
    xn_issue(4 if S4 else 3)
    if I2L:
        a("s_mov_b32 s73, 0\nv_mov_b32 v124, v35")
        for i in range(4): a(f"v_mov_b32 v{120+i}, v{28+i}")
    else:
        a("s_mov_b32 s73, 0\ns_cmp_lg_u32 s3, 6\ns_cbranch_scc1 M_CSET\ns_cmp_ge_u32 s2, 243\ns_cbranch_scc1 M_CSET")
        mod_item(1, 7 if S4 else 6)
        a("s_mov_b32 s73, 1")
    def pf_waves(spec, tag, v0):
        for grp in filter(None, spec.split(";")):
            w, items = grp.split(":")
            l = a.newlabel("PF")
            a(f"s_cmp_lg_u32 s3, {w}"); a(f"s_cbranch_scc1 {l}")
            for it in items.split(","): pf_lines(a, it[:-1], int(it[-1]), v0)
            a.label(l)
    pf_waves(E("M_PFA", ""), "a", 100)
    a.label("M_CSET")
    jobs = {"A": Job([(0, JA, "A")]), "B": Job([(0, JB, "B")]), "C": Job([(0, JC, "C")]), "D": Job([(1, JD, "D"), (0, JD, "D")])}
    for k in range(4): jobs[f"K{k}"] = Job([(0, JCH(k), None)], int(E("M_NPXK", "2")))
    a(f"""
    s_lshl_b32 s40, s3, 2
    s_lshr_b32 s40, {E('M_JOBS', '0x31242010')}, s40
    s_and_b32 s62, s40, 15
    s_and_b32 s40, s2, 3
    s_cmp_eq_u32 s62, 4
    s_cselect_b32 s40, s40, 0
    s_add_u32 s62, s62, s40
    """)
    def dispatch(pre):
        for i, nm in enumerate(list(jobs)[:-1]):
            a(f"s_cmp_eq_u32 s62, {i}")
            a(f"s_cbranch_scc1 {pre}{nm}")
        a(f"s_branch {pre}K3")
    SF = int(E("M_SF", "1"))
    if SF: a("s_cmp_ge_u32 s3, 6\ns_cbranch_scc1 M_TGS\nM_PL0:")
    spin(a, C_K, 2, 1)
    dispatch("M_PL")
    for nm, jb in jobs.items():
        a.label(f"M_PL{nm}")
        if nm == "D": spin(a, C_K + 4, 2)
        jb.preload(a)
        a("s_branch M_STG")
    a.label("M_STG")
    stamp(a, 8)
    a(f"""
    s_cmp_ge_u32 s3, 4
    s_cbranch_scc1 M_HW
    {"s_cmp_ge_u32 s3, 2" if S4 else ""}
    {"s_cbranch_scc1 M_U3" if S4 else ""}
    """)
    a(f"""
    M_TGS:
    {"s_setprio 1" if int(E("M_PRS", "1")) else ""}
    ds_read_b64 v[16:17], v{VZ} offset:{L_CNT + C_PR}
    ds_read_b128 v[48:51], v{VZ} offset:{L_PRM}
    ds_read_b128 v[52:55], v{VZ} offset:{L_PRM + 16}
    s_lshl_b32 s40, s63, 8
    s_add_u32 s40, s40, {L_HB + 480}
    s_mov_b32 m0, s40
    s_mov_b32 s41, {SPIN}
    v_mov_b32 v62, 0x3f80
    v_mov_b32 v63, 0x3f800000
    s_waitcnt lgkmcnt(0)
    v_readfirstlane_b32 s94, v16
    v_readfirstlane_b32 s{sTAG}, v17
    v_readfirstlane_b32 s66, v48
    v_readfirstlane_b32 s69, v50
    v_readfirstlane_b32 s67, v49
    v_readfirstlane_b32 s70, v52
    v_readfirstlane_b32 s71, v53
    v_readfirstlane_b32 s72, v54
    s_lshr_b32 s66, s66, 16
    s_lshr_b32 s68, s69, 16
    s_cmp_ge_u32 s94, 1
    s_cbranch_scc0 M_TGS
    s_waitcnt vmcnt(1)
    s_cmp_eq_u32 s73, 1
    s_cbranch_scc1 M_XP1
    M_XP:
    s_waitcnt vmcnt(0)
    M_XP1:
    v_xor_b32 v16, s{sTAG}, v{XG+3}
    v_xor_b32 v17, s{sTAG}, v{XG+7}
    v_xor_b32 v18, s{sTAG}, v{XG+11}
    {"v_xor_b32 v19, s%d, v%d" % (sTAG, XG+15) if S4 else "s_cmp_lt_u32 s3, 2"}
    {"v_or_b32 v18, v18, v19" if S4 else "s_cselect_b32 s40, 0, -1"}
    {"" if S4 else "v_and_b32 v18, s40, v18"}
    v_or3_b32 v16, v16, v17, v18
    v_cmp_ne_u32 vcc, 0, v16
    s_cbranch_vccz M_XD
    s_mov_b64 exec, vcc
    """)
    xn_issue(4 if S4 else 3)
    a(f"""
    s_mov_b64 exec, -1
    s_sub_u32 s41, s41, 1
    s_cbranch_scc0 M_XP
    M_XD:
    """)
    stamp(a, 9)
    pf_waves(E("M_PFX", ""), "x", 16)
    def units(lst, FO=16):
        Y = 32
        for n, u in enumerate(lst):
            g = XG + 4*u; y = Y + 6*n
            for k, (src, cs) in enumerate(((g, 66), (g+1, 66), (g, 67), (g+1, 67), (g+2, 68), (g+2, 69))):
                a(f"v_dot2_f32_bf16 v{y+k}, v{src}, s{cs}, 0")
        if len(lst) == 1: a("s_nop 0")
        prs = [Y + 2*i for i in range(3*len(lst))]
        for p in prs: a(f"v_cvt_pk_bf16_f32 v{p+1}, v{p}, v{p+1}")
        for i, p in enumerate(prs):
            a(f"v_dot2_f32_bf16 v{p}, v{p+1}, v62, s{70 + i%3}")
            a(f"v_dot2_f32_bf16 v{p+1}, v{p+1}, v63, s{70 + i%3}")
        a("s_nop 1")
        rnd_pairs(a, prs)
        for i, p in enumerate(prs): a(f"v_cvt_pk_f16_f32 v{FO+i}, v{p}, v{p+1}")
        for i, p in enumerate(prs): a(f"ds_write_addtid_b32 v{FO+i} offset:{(i%3)*HB_P + lst[i//3]*256}")
    if S4:
        units([0, 1]); units([2, 3], 56)
    else:
        a("""
        s_cmp_lt_u32 s3, 2
        s_cbranch_scc1 M_U2
        """)
        units([0, 1, 2])
        a("s_branch M_U3")
        a.label("M_U2")
        units([0, 1])
    a.label("M_U3")
    signal(a, C_H)
    pf_waves(E("M_PFS", ""), "s", 16)
    a("s_setprio 0")
    if I2L:
        a("s_cmp_lt_u32 s3, 6\ns_cbranch_scc1 M_NI4\ns_cmp_ge_u32 s2, 243\ns_cbranch_scc1 M_PL0")
        a(f"v_mov_b32 v33, s{sTAG}\nv_mov_b32 v35, v124")
        for i in range(4): a(f"v_mov_b32 v{28+i}, v{120+i}\nv_lshlrev_b32 v{24+i}, 16, v{120+i}")
        mod_item(1, 3)
        a("s_branch M_PL0")
        a.label("M_NI4")
    else: a("s_cmp_ge_u32 s3, 6\ns_cbranch_scc1 M_PL0")
    RR = 160
    def red_issue():
        for s_ in range(8): a(f"global_load_dwordx2 {vr(RR+2*s_,2)}, v178, {P(sWS)} offset:{512*s_} sc1")
        a(f"global_load_dwordx2 {vr(RR+16,2)}, v179, {P(sWS)} sc1")
    def red_addr():
        a(f"""
        s_sub_u32 s40, s2, {229 - 27}
        s_mul_i32 s40, s40, {9*512}
        s_add_u32 s40, s40, {WS_MP}
        v_lshl_add_u32 v178, v2, 3, s40
        v_add_u32 v179, 4096, v178
        """)
    a(f"""
    M_HW:
    ; f-slice of D workgroups, down weights -> LDS
    s_and_b32 s40, s2, 7
    s_mul_i32 s40, s40, 18
    s_lshr_b32 s41, s2, 3
    s_add_u32 s46, s40, s41            ; fs
    """)
    def dn_fill(tag):
        L = ["v_lshrrev_b32 v15, 2, v2", "s_mul_i32 s40, s3, 144", "v_add_u32 v15, s40, v15", "v_mul_u32_u24 v15, 9216, v15", "v_and_b32 v251, 3, v2",
             "v_lshl_add_u32 v15, v251, 4, v15", "s_lshl_b32 s40, s46, 6", "v_add_u32 v15, s40, v15", "s_mul_i32 s40, s3, 9216", f"s_add_u32 m0, s40, {L_G}", f"s_mov_b32 s40, {16*9216}"]
        for i in range(9):
            L.append(f"s_cmp_ge_u32 s2, s47\ns_cbranch_scc1 DN{tag}_{i}\nglobal_load_lds_dwordx4 v15, {P(sWG)} {E('F_GFL', '')}\nDN{tag}_{i}:")
            if i < 8: L += ["s_add_u32 m0, m0, 1024\nv_add_u32 v15, s40, v15"]
        return L
    def pf_fill(spec):
        b = Asm(); b.uid = a.uid + 1000
        for it in spec.split(","): pf_lines(b, it[:-1], int(it[-1]), 252)
        return [x.strip() for x in b.lines if x.strip()]
    a("""
    s_cmp_lt_u32 s3, 4
    s_cselect_b32 s47, 144, 0
    s_bitcmp1_b32 s3, 1
    s_cselect_b32 s78, s24, s22
    s_cselect_b32 s79, s25, s23
    """)
    pf_waves(E("M_PFR", ""), "r", 16)
    if int(E("M_PRIO4", "1")):
        a("s_cmp_lg_u32 s3, 4\ns_cbranch_scc1 M_NP4\ns_setprio 1\nM_NP4:")
    PFJ = dict(x.split(":") for x in E("M_PFJ", "A:g0;B:g1;C:g2").split(";") if x)
    dispatch("M_RUN")
    def hspin(nm): a(f"""
    M_HS{nm}:
    ds_read_b32 v251, v{VZ} offset:{L_CNT + C_H}
    ds_read_b32 v15, v{VZ} offset:{L_TAG}
    s_waitcnt lgkmcnt(0)
    v_readfirstlane_b32 s94, v251
    v_readfirstlane_b32 s{sTAG}, v15
    s_cmp_ge_u32 s94, {6 if PK23 else 8}
    s_cbranch_scc0 M_HS{nm}
    """)
    for nm, jb in jobs.items():
        a.label(f"M_RUN{nm}")
        hspin(nm)
        stamp(a, 10)
        fl_ = []
        if nm in PFJ: fl_ += pf_fill(PFJ[nm])
        if nm == "B":
            b_ = Asm(); sv = a.lines; a.lines = b_.lines
            a("s_cmp_lg_u32 s3, 1\ns_cbranch_scc1 M_NRI\ns_cmp_lt_u32 s2, 229\ns_cbranch_scc1 M_NRI"); red_addr(); red_issue(); a.label("M_NRI")
            a.lines = sv
            fl_ = fl_ + [""] * (2*int(E("M_RAT", "30")) - len(fl_)) + ["\n".join(b_.lines)]
        acc = jb.run(a, fl_)
        if nm[0] == "K":
            k = int(nm[1])
            c0_, c1_ = acc[(0, k)], acc[(0, 7-k)]
            t0_, t1_ = (k, 7-k) if c0_ < c1_ else (7-k, k)
            a(f"""
            ds_read_b32 v40, v{VZ} offset:{L_PRM + 32 + 8}
            ds_read_b32 v41, v{VZ} offset:{L_PRM + 48 + 8}
            ds_read_b32 v42, v{VZ} offset:{L_PRM + 64 + 8}
            ds_read_b32 v43, v{VZ} offset:{L_PRM + 80 + 8}
            ds_read_b64 v[44:45], v3 offset:{2*HB_P + 512*t0_}
            ds_read_b64 v[46:47], v3 offset:{2*HB_P + 512*t1_}
            v_and_b32 v16, 15, v2
            v_mul_u32_u24 v16, 96, v16
            v_lshrrev_b32 v17, 5, v2
            v_mul_u32_u24 v17, 48, v17
            v_bfe_u32 v18, v2, 4, 1
            v_lshl_add_u32 v17, v18, 3, v17
            v_add_u32 v16, v16, v17
            v_add_u32 v16, {L_TAB + 32}, v16
            s_waitcnt lgkmcnt(0)
            v_ldexp_f32 v43, v43, v42
            """)
            c0 = min(c0_, c1_)
            epi_core(a, c0, 44, 48, "v43", "v40", "v41", 8)
            for i in range(4): a(f"v_cvt_pk_bf16_f32 v{48+i}, v{c0+2*i}, v{c0+2*i+1}")
            a(f"ds_write_b64 v16, v[48:49] offset:{1536*t0_}")
            a(f"ds_write_b64 v16, v[50:51] offset:{1536*t1_}")
        a("s_branch M_FIN")
    a.label("M_FIN")
    a("s_setprio 0")
    stamp(a, 11)
    a(f"""
    s_cmp_lg_u32 s3, 1
    s_cbranch_scc1 M_NRED
    s_cmp_lt_u32 s2, 229
    s_cbranch_scc1 M_NRED
    s_mov_b32 s41, {SPIN}
    """)
    red_addr()
    a(f"""
    s_waitcnt vmcnt(0)
    M_RP:
    v_xor_b32 v180, s{sTAG}, v{RR+17}
    """)
    for s_ in range(8):
        a(f"v_xor_b32 v181, s{sTAG}, v{RR+2*s_+1}")
        a("v_or_b32 v180, v180, v181")
    a(f"""
    v_cmp_ne_u32 vcc, 0, v180
    s_cbranch_vccz M_RD
    """)
    red_issue()
    a(f"""
    s_waitcnt vmcnt(0)
    s_sub_u32 s41, s41, 1
    s_cbranch_scc0 M_RP
    M_RD:
    """)
    for s_ in range(8): a(f"v_add_f32 v{RR+16}, v{RR+16}, v{RR+2*s_}")
    a(f"""
    v_cvt_pk_bf16_f32 v180, v{RR+16}, v{RR+16}
    s_sub_u32 s40, s2, {229 + 9}
    s_cmp_lt_u32 s40, 9
    s_cbranch_scc0 M_RNC
    v_lshlrev_b32 v180, 16, v180
    v_add_f32 v180, 1.0, v180
    v_cvt_pk_bf16_f32 v180, v180, v180
    M_RNC:
    s_sub_u32 s40, s2, 229
    s_lshl_b32 s40, s40, 8
    s_add_u32 s40, s40, {WS_PT16}
    v_mov_b32 v182, v180 quad_perm:[1,1,3,3] {DPP_ALL}
    v_lshl_add_u32 v183, v2, 2, s40
    v_mov_b32 v181, s{sTAG}
    v_alignbit_b32 v180, v182, v180, 16
    s_mov_b32 exec_lo, 0x55555555
    s_mov_b32 exec_hi, 0x55555555
    global_store_dwordx2 v183, v[180:181], {P(sWS)} sc1
    s_mov_b64 exec, -1
    M_NRED:
    s_cmp_lg_u32 s3, 5
    s_cbranch_scc1 M_NWR
    v_lshlrev_b32 v180, 4, v2
    s_mov_b32 m0, {L_PT + 3456}
    s_nop 0
    global_load_lds_dwordx4 v180, {P(sWR)}
    s_mov_b64 exec, 0xff
    global_load_lds_dwordx4 v180, {P(sWR)} offset:1024
    s_mov_b64 exec, -1
    M_NWR:
    """)
    a(f"""
    ds_read_b64 v[64:65], v{VZ} offset:{L_PRM + 32}
    ds_read_b64 v[66:67], v{VZ} offset:{L_PRM + 48}
    ds_read_b64 v[68:69], v{VZ} offset:{L_PRM + 64}
    ds_read_b64 v[70:71], v{VZ} offset:{L_PRM + 80}
    ds_read_b64 v[72:73], v27
    ds_read_b64 v[74:75], v27 offset:{HB_P}
    s_waitcnt lgkmcnt(6)
    s_barrier                          ; B6
    ds_read_b128 v[80:83], v24
    ds_read_b128 v[84:87], v25
    ds_read_b128 v[88:91], v26
    ds_read_b128 v[92:95], v24 offset:18432
    ds_read_b128 v[96:99], v25 offset:18432
    ds_read_b128 v[100:103], v26 offset:18432
    v_min_u32 v124, 175, v0
    v_lshlrev_b32 v125, 4, v0
    v_lshlrev_b32 v124, 4, v124
    v_add_u32 v126, {WS_PT16}, v125
    v_add_u32 v127, {WS_PT16 + 4096}, v124
    s_cmp_ge_u32 s3, 4
    s_cbranch_scc1 M_NPL
    global_load_dwordx4 v[128:131], v126, {P(sWS)} sc1
    global_load_dwordx4 v[132:135], v127, {P(sWS)} sc1
    M_NPL:
    s_waitcnt lgkmcnt(6)
    """)
    for e in range(4): a(f"v_fma_mix_f32 v{104+e}, v{72+e//2}, v64, 0 op_sel:[{e&1},0,0] op_sel_hi:[1,0,0]")
    for e in range(4): a(f"v_fma_mix_f32 v{108+e}, v{74+e//2}, v65, 0 op_sel:[{e&1},0,0] op_sel_hi:[1,0,0]")
    a("v_ldexp_f32 v70, v70, v68\nv_ldexp_f32 v71, v71, v69")
    rnd_pairs(a, [104, 106, 108, 110])
    if "2a" in HINT: a("s_cmp_lg_u32 s3, 5\ns_cbranch_scc1 M_NH2"); hint_add(a, 0, "H2"); a.label("M_NH2")
    a("s_waitcnt lgkmcnt(3)")
    for e in range(4): a(f"v_add_f32 v{84+e}, v{84+e}, v{88+e}")
    for e in range(4): a(f"v_fmac_f32 v{80+e}, s82, v{84+e}")
    a("s_waitcnt lgkmcnt(0)")
    for e in range(4): a(f"v_add_f32 v{96+e}, v{96+e}, v{100+e}")
    for e in range(4): a(f"v_fma_f32 v{84+e}, s82, v{96+e}, v{92+e}")
    for e in range(8): a(f"v_mul_f32 v{80+e}, v{70+e//4}, v{80+e}")
    for i in range(4): a(f"v_cvt_pk_bf16_f32 v{88+i}, v{80+2*i}, v{81+2*i}")
    a("v_mov_b32 v62, 0x3f80")
    a("v_mov_b32 v63, 0x3f800000")
    for e in range(8): a(f"v_dot2_f32_bf16 v{80+e}, v{88+e//2}, v{62+(e&1)}, v{104+e}")
    rnd_pairs(a, [80, 82, 84, 86])
    for e in range(8): a(f"v_mul_f32 v{80+e}, v{66+e//4}, v{80+e}")
    for e in range(4): a(f"v_cvt_pk_bf16_f32 v{88+e}, v{80+e}, v{84+e}")
    a(f"""
    ds_write_b128 v28, v[88:91]
    ds_read2_b32 v[116:117], v29 offset0:0 offset1:1
    ds_read_b32 v118, v29 offset:8
    ds_read2_b32 v[120:121], v29 offset0:12 offset1:13
    ds_read_b32 v122, v29 offset:56
    v_mov_b32 v119, s{sTAG}
    v_mov_b32 v123, s{sTAG}
    v_add_u32 v31, 16384, v30
    v_lshrrev_b32 v125, 1, v125
    v_lshrrev_b32 v124, 1, v124
    v_add_u32 v125, {L_PT}, v125
    v_add_u32 v124, {L_PT + 2048}, v124
    s_waitcnt lgkmcnt(2)
    global_store_dwordx4 v30, v[116:119], {P(sWS)} sc1
    s_waitcnt lgkmcnt(0)
    global_store_dwordx4 v31, v[120:123], {P(sWS)} sc1
    """)
    if "2b" in HINT: a("s_cmp_lg_u32 s3, 0\ns_cbranch_scc1 M_NH2"); hint_add(a, 0, "H2"); a.label("M_NH2")
    stamp(a, 17)
    gen_tail(a)
    return ("ka_kernel", 256, 512, M_LDS, 256, 100, 256)

def dn_touch(a):
    a("s_cmp_ge_u32 s3, 3\ns_cbranch_scc1 T_NT")
    a("""
    s_lshr_b32 s64, s2, 3
    s_mul_i32 s64, s64, 162
    s_mul_i32 s65, s3, 54
    s_add_u32 s64, s64, s65
    s_and_b32 s65, s2, 7
    s_mul_i32 s65, s65, 5184
    s_add_u32 s64, s64, s65
    v_min_u32 v252, 53, v2
    v_add_u32 v252, s64, v252
    v_lshlrev_b32 v252, 7, v252
    """)
    a(f"global_load_dword v250, v252, {P(sWD)}")
    a.label("T_NT")


def hint_add(a, hop, lab):
    a(f"""
    s_lshr_b32 s64, s2, 3
    s_lshl_b32 s64, s64, 7
    s_add_u32 s64, s64, {WS_CNT + hop*32768}
    v_lshlrev_b32 v252, 12, v2
    s_mov_b64 exec, 0xff
    v_add_u32 v252, s64, v252
    global_atomic_add v252, v{VONE}, {P(sWS)} sc1
    s_mov_b64 exec, -1
    """)
def hint_wait(a, hop, lab, bo):
    a(f"""
    s_mov_b32 s64, 200
    s_mov_b32 exec_lo, {-1 if hop == 0 else 0}
    s_mov_b32 exec_hi, {0 if hop == 0 else -1}
    {lab}:
    global_load_dword v252, v253, {P(sWS)} sc1
    s_waitcnt vmcnt(0)
    v_cmp_ne_u32 vcc, v252, v250
    s_cbranch_vccz {lab}D
    s_mov_b64 exec, vcc
    s_sleep {bo}
    s_sub_u32 s64, s64, 1
    s_cbranch_scc0 {lab}
    {lab}D:
    s_mov_b64 exec, -1
    """)

def reduce2(a, A, B):
    for m in [f"row_shr:1 {DPP_ALL} bound_ctrl:0", f"row_shr:2 {DPP_ALL} bound_ctrl:0", f"row_shr:4 {DPP_ALL} bound_ctrl:0", f"row_shr:8 {DPP_ALL} bound_ctrl:0",
              "row_bcast:15 row_mask:0xa bank_mask:0xf", "row_bcast:31 row_mask:0xc bank_mask:0xf"]:
        a(f"v_add_f32 v{A}, v{A}, v{A} {m}")
        if B is not None: a(f"v_add_f32 v{B}, v{B}, v{B} {m}")
        a("s_nop 0" if B is not None else "s_nop 1")

def gen_tail(a):
    XF, C1, SB, GB, WR = 16, 26, 36, 46, 56
    ONES, LO, HI, RC = 61, 62, 63, 15
    Z, X1, P1, T, H2, O = 64, 70, 80, 86, 96, 102
    WG_, WD_ = 136, 176
    ZG, ZA = 192, 208
    sel = lambda e: LO + (e & 1)
    sKEY, sOWN = 47, 48
    GUK = 1
    GUAT = E('F_GU', 'b7')
    PFIRST = int(E('F_PFIRST', '1'))
    PLAN = E("F_PLAN", "D")
    def w_dma(mats):
        a(f"""
        v_lshrrev_b32 v9, 2, v2
        s_mul_i32 s40, s3, 144
        v_add_u32 v9, s40, v9
        v_mul_u32_u24 v9, 9216, v9
        v_and_b32 v8, 3, v2
        v_lshl_add_u32 v9, v8, 4, v9
        s_lshl_b32 s40, s46, 6
        v_add_u32 v9, s40, v9
        s_mul_i32 s50, s3, 9216
        s_mov_b32 s40, {16*9216}
        """)
        for k, m in enumerate(mats):
            a(f"s_add_u32 m0, s50, {L_G if m == 'g' else L_U}")
            a(f"v_mov_b32 v8, v9")
            for i in range(9):
                a(f"global_load_lds_dwordx4 v8, {P(sWG if m == 'g' else sWU)}")
                if i < 8: a("s_add_u32 m0, m0, 1024\nv_add_u32 v8, s40, v8")
    def gu_dma():
        a("s_cmp_ge_u32 s2, 144\ns_cbranch_scc1 T_NGU")
        if PLAN != "C": w_dma("gu" if PLAN in "AD" else "g")
        if not PFIRST: a(f"s_waitcnt vmcnt({20 if PLAN == 'A' else 11})\ns_branch T_PP1")
        a.label("T_NGU")
    def dn_dma():
        a('s_cmp_ge_u32 s2, 144\ns_cbranch_scc1 T_NDN\ns_cmp_ge_u32 s3, 4\ns_cbranch_scc1 T_NDN')
        a(f"""
        s_mul_i32 s40, s46, 36864
        s_mul_i32 s51, s3, 9216
        s_add_u32 s40, s40, s51
        s_add_u32 m0, s51, {L_D2}
        v_lshl_add_u32 v9, v2, 4, s40
        """)
        for i in range(9):
            a(f"global_load_lds_dwordx4 v9, {P(sWD)} offset:{1024*(i%3)} {E('F_DFL', '')}")
            if i % 3 == 2 and i < 8: a("s_add_u32 m0, m0, 3072\nv_add_u32 v9, 3072, v9")
        a.label("T_NDN")
    a(f"""
    s_cmp_lg_u32 s3, 5
    s_cbranch_scc1 T_B7
    s_waitcnt vmcnt(2)
    T_B7:
    s_barrier                          ; B7
    s_cmp_ge_u32 s3, 4
    s_cbranch_scc1 T_ZW
    """)
    a(f"""
    s_mov_b32 s41, {SPIN}
    """)
    if not PFIRST: gu_dma()
    a(f"""
    s_waitcnt vmcnt(2)
    s_branch T_PP1
    T_PP:
    global_load_dwordx4 v[128:131], v126, {P(sWS)} sc1
    global_load_dwordx4 v[132:135], v127, {P(sWS)} sc1
    s_waitcnt vmcnt(0)
    T_PP1:
    v_xor_b32 v129, s{sTAG}, v129
    v_xor_b32 v131, s{sTAG}, v131
    v_xor_b32 v133, s{sTAG}, v133
    v_xor_b32 v135, s{sTAG}, v135
    v_or3_b32 v129, v129, v131, v133
    v_or_b32 v129, v129, v135
    v_cmp_ne_u32 vcc, 0, v129
    s_cbranch_vccz T_PD
    s_sub_u32 s41, s41, 1
    s_cbranch_scc0 T_PP
    T_PD:
    ds_write2_b32 v125, v128, v130 offset0:0 offset1:1
    ds_write2_b32 v124, v132, v134 offset0:0 offset1:1
    """)
    signal(a, C_P)
    if PFIRST: gu_dma()
    a(f"""
    s_branch T_COM
    T_ZW:
    s_sub_u32 s40, s3, 4
    s_lshl_b32 s41, s40, 12
    s_lshl_b32 s50, s2, 14
    s_add_u32 s41, s41, s50
    s_add_u32 s41, s41, {WS_Z2}
    v_lshl_add_u32 v{ZA+3}, v2, 4, s41
    s_lshl_b32 s40, s40, 8             ; 4 * 64(w-4)
    v_lshrrev_b32 v64, 2, v2
    v_lshl_add_u32 v65, v64, 2, s40    ; 4p
    v_and_b32 v66, 3, v2               ; g
    v_mul_u32_u24 v67, {3*ZR_P}, v66
    v_add_u32 v{ZA}, v65, v67
    v_add_u32 v{ZA}, {L_ZR}, v{ZA}
    v_add_u32 v{ZA+1}, {ZR_P}, v{ZA}
    v_add_u32 v{ZA+2}, {2*ZR_P}, v{ZA}
    s_lshr_b32 s41, s2, 5
    s_sub_u32 s50, 7, s41
    s_min_u32 s41, s41, s50            ; owner k
    v_and_b32 v67, 3, v64
    v_and_b32 v65, -16, v65            ; (p>>2)*16
    v_add_u32 v65, {L_ZC}, v65
    v_mov_b32 v68, {L_ZC + 1024}
    v_cmp_eq_u32 vcc, s41, v67
    s_nop 1
    v_cndmask_b32 v65, v68, v65, vcc
    v_add_u32 v67, 4, v65
    v_add_u32 v68, 8, v65
    v_add_u32 v69, 12, v65
    v_cmp_eq_u32 vcc, 2, v66
    s_nop 1
    v_cndmask_b32 v{ZA+2}, v{ZA+2}, v65, vcc
    v_cmp_eq_u32 vcc, 3, v66
    s_nop 1
    v_cndmask_b32 v{ZA}, v{ZA}, v67, vcc
    v_cndmask_b32 v{ZA+1}, v{ZA+1}, v68, vcc
    v_cndmask_b32 v{ZA+2}, v{ZA+2}, v69, vcc
    """)
    a.label("T_COM")
    a(f"""
    v_mov_b32 v64, 0
    v_mov_b32 v65, 0
    v_mov_b32 v66, 0
    v_mov_b32 v67, 0
    v_lshlrev_b32 v68, 4, v0
    v_min_u32 v69, 15, v0
    v_lshlrev_b32 v69, 4, v69
    ds_write_b128 v68, v[64:67] offset:{L_LIST}
    ds_write_b128 v69, v[64:67] offset:{L_LIST + 8192}
    v_mov_b32 v{ONES}, 0x3f803f80
    v_mov_b32 v{RC}, {fbits(1.0/576)}
    v_and_b32 v212, 3, v2
    v_lshlrev_b32 v212, 4, v212
    v_lshrrev_b32 v213, 2, v2
    v_lshlrev_b32 v213, 14, v213
    s_lshl_b32 s41, s2, 6
    s_add_u32 s41, s41, {WS_KEY}
    v_add3_u32 v213, v213, v212, s41
    s_lshl_b32 s41, s3, 3
    v_mov_b32 v214, s41
    v_mov_b32 v217, s{sTAG}
    s_lshl_b32 s61, s2, 3
    s_add_u32 s61, s61, s3
    s_sub_u32 s61, 0xffff, s61
    """)
    for w in range(4): unpk(a, XF+2*w, XF+2*w+1, 10+w)
    a(f"""
    v_lshlrev_b32 v{XF+8}, 16, v14
    v_lshlrev_b32 v4, 4, v2
    v_add_u32 v4, {L_PT}, v4
    v_lshlrev_b32 v5, 1, v2
    v_add_u32 v5, {L_PT + 1024}, v5
    s_mul_i32 s40, s3, {ZR_P}
    s_add_u32 s40, s40, {L_ZR}
    v_lshl_add_u32 v6, v2, 4, s40
    s_lshl_b32 s40, s3, 1
    s_add_u32 s40, s40, {L_ZC}
    v_lshl_add_u32 v7, v2, 4, s40
    """)
    def z_issue():
        for n in range(4): a(f"global_load_dwordx4 {vr(ZG+4*n,4)}, v{ZA+3}, {P(sWS)} offset:{1024*n} sc1")
    stamp(a, 18)
    spin(a, C_P, 4)
    for t, d in ((0, 112), (1, 118), (2, 124)):
        a(f"ds_read_b128 {vr(72+8*t, 4)}, v4 offset:{1152*t}")
        a(f"ds_read_u16 v{76+8*t}, v5 offset:{1152*t}")
    a(f"""
    ds_read_b128 {vr(WR,4)}, v4 offset:3456
    ds_read_u16 v{WR+4}, v5 offset:3456
    s_waitcnt lgkmcnt(4)
    """)
    for w in range(4): unpk(a, SB+2*w, SB+2*w+1, 72+w)
    a(f"v_lshlrev_b32 v{SB+8}, 16, v76")
    for w in range(4):
        a(f"v_and_b32 v{C1+2*w}, 0xffff, v{80+w}")
        a(f"v_and_b32 v{C1+2*w+1}, 0xffff0000, v{80+w}")
    a(f"v_mov_b32 v{C1+8}, v84")
    a("s_waitcnt lgkmcnt(2)")
    for w in range(4):
        a(f"v_and_b32 v{GB+2*w}, 0xffff, v{88+w}")
        a(f"v_and_b32 v{GB+2*w+1}, 0xffff0000, v{88+w}")
    a(f"""
    v_mov_b32 v{GB+8}, v92
    s_cmp_lt_u32 s3, 4
    s_cbranch_scc1 T_LW
    s_mov_b32 s41, {SPIN}
    """)
    if "2" in HINT:
        a("s_cmp_lg_u32 s3, 7\ns_cbranch_scc1 T_H2S")
        hint_wait(a, 0, "T_H2W", int(E("HBO", "6")))
        signal(a, C_KP + 8)
        a("s_branch T_ZP1")
        a.label("T_H2S")
        spin(a, C_KP + 8, 1)
        a("s_branch T_ZP1")
    a(f"""
    s_waitcnt vmcnt(0)
    T_ZP:
    s_sleep {BO_Z}
    T_ZP1:
    """)
    z_issue()
    a(f"""
    s_waitcnt vmcnt(0)
    s_mov_b64 exec, -1
    v_xor_b32 v64, s{sTAG}, v{ZG+3}
    v_xor_b32 v65, s{sTAG}, v{ZG+7}
    v_xor_b32 v66, s{sTAG}, v{ZG+11}
    v_xor_b32 v67, s{sTAG}, v{ZG+15}
    v_or3_b32 v64, v64, v65, v66
    v_or_b32 v64, v64, v67
    v_cmp_ne_u32 vcc, 0, v64
    s_cbranch_vccz T_ZD
    s_mov_b64 exec, vcc
    s_sub_u32 s41, s41, 1
    s_cbranch_scc1 T_ZPX
    s_and_b32 s40, s41, 3
    s_cbranch_scc1 T_ZP1
    s_branch T_ZP
    T_ZPX:
    s_mov_b64 exec, -1
    T_ZD:
    """)
    stamp(a, 19)
    signal(a, C_KP + 8)
    for n in (0, 2):
        for s_ in range(3): a(f"ds_write2_b32 v{ZA+s_}, v{ZG+4*n+s_}, v{ZG+4*n+4+s_} offset0:{16*n} offset1:{16*n+16}")
    a("s_branch T_B9")
    a.label("T_LW")
    spin(a, C_KP + 8, 4)
    if PLAN == "A": dn_dma()
    else:
        a("s_cmp_ge_u32 s2, 144\ns_cbranch_scc1 T_NUP\ns_cmp_ge_u32 s3, 4\ns_cbranch_scc1 T_NUP")
        if PLAN != "D": w_dma("u" if PLAN == "B" else "gu")
        a.label("T_NUP")
        dn_touch(a)
    a(f"""
    T_B9:
    {"s_setprio 1" if int(E("F_PRIO", "1")) else ""}
    s_waitcnt lgkmcnt(0)
    s_barrier                          ; B9
    ds_read_b128 {vr(Z,4)}, v6
    ds_read_u16 v{Z+4}, v7
    s_waitcnt lgkmcnt(0)
    """)
    stamp(a, 20)
    if "3a" in HINT: a("s_cmp_lg_u32 s3, 5\ns_cbranch_scc1 T_NH3"); hint_add(a, 1, "H3"); a.label("T_NH3")
    def pack(dst, src):
        for i in range(4): a(f"v_cvt_pk_bf16_f32 v{dst+i}, v{src+2*i}, v{src+2*i+1}")
        a(f"v_cvt_pk_bf16_f32 v{dst+4}, v{src+8}, 0")
    def dots(dst, src, bf, cf):
        for e in (8, 0, 1, 2, 3, 4, 5, 6, 7): a(f"v_dot2_f32_bf16 v{dst+e}, v{src+e//2}, {bf(e)}, {cf(e)}")
    vsel = lambda e: f"v{sel(e)}"
    dots(X1, Z, vsel, lambda e: f"v{XF+e}")
    pack(P1, X1)
    ln_core(a, P1, X1, T, ONES, LO, RC, "T_FAST")
    if "3b" in HINT: a("s_cmp_lg_u32 s3, 5\ns_cbranch_scc1 T_NH3"); hint_add(a, 1, "H3"); a.label("T_NH3")
    pack(Z, X1)
    dots(X1, Z, lambda e: f"v{C1+e}", lambda e: "0")
    pack(Z, X1)
    dots(X1, Z, vsel, lambda e: f"v{SB+e}")
    pack(H2, X1)
    for i in range(5): a(f"v_dot2_f32_bf16 v{T}, v{H2+i}, v{WR+i}, {'0' if i == 0 else 'v%d' % T}")
    a("s_nop 2")
    reduce2(a, T, None)
    a(f"""
    v_cvt_pk_bf16_f32 v{T}, v{T}, v{T}
    s_mov_b64 exec, 1
    v_readlane_b32 s{sKEY}, v{T}, 63
    s_ashr_i32 s41, s{sKEY}, 31
    s_or_b32 s41, s41, 0x80000000
    s_xor_b32 s{sKEY}, s{sKEY}, s41
    s_and_b32 s{sKEY}, s{sKEY}, 0xffff0000
    s_or_b32 s{sKEY}, s{sKEY}, s61
    v_mov_b32 v216, s{sKEY}
    ds_write_b64 v214, v[216:217] offset:{L_CNT + C_KEYS}
    ds_add_u32 v{VZ}, v{VONE} offset:{L_CNT + C_KEY}
    s_mov_b64 exec, -1
    s_mov_b32 s41, s3
    s_cmp_lg_u32 s3, 7
    s_cbranch_scc1 T_NK
    T_KS:
    ds_read_b32 v{T+3}, v{VZ} offset:{L_CNT + C_KEY}
    ds_read_b128 v[108:111], v212 offset:{L_CNT + C_KEYS}
    s_waitcnt lgkmcnt(0)
    v_readfirstlane_b32 s94, v{T+3}
    s_cmp_ge_u32 s94, 8
    s_cbranch_scc0 T_KS
    {"s_mov_b32 exec_hi, 0" if NREP == 8 else ("" if NREP == 16 else "s_mov_b64 exec, %s" % hex((1 << (4*NREP)) - 1))}
    s_waitcnt lgkmcnt(0)
    global_store_dwordx4 v213, v[108:111], {P(sWS)} sc1
    s_mov_b64 exec, -1
    T_NK:
    s_setprio 0
    """)
    stamp(a, 21)
    if DNAT == "kp":
        k0_ = len(a.lines); dn_touch(a)
    dots(X1, H2, lambda e: f"v{GB+e}", lambda e: "0")
    for w in range(4): unpk(a, XF+2*w, XF+2*w+1, P1+w)
    a(f"v_lshlrev_b32 v{XF+8}, 16, v{P1+4}")
    pack(Z, X1)
    dots(X1, Z, vsel, lambda e: f"v{XF+e}")
    a(f"""
    s_and_b32 s40, s2, {NREP-1}
    s_lshl_b32 s40, s40, 14
    s_lshl_b32 s50, s3, 11
    s_add_u32 s40, s40, s50
    s_add_u32 s40, s40, {WS_KEY}
    v_lshl_add_u32 v6, v2, 4, s40
    """)
    pack(O, X1)
    a(f"""
    s_cmp_lg_u32 s41, 7
    s_cbranch_scc1 T_NK2
    """)
    if "3" in HINT: hint_wait(a, 1, "T_H3W", int(E("HBO", "6")))
    else: a("s_waitcnt vmcnt(0)")
    signal(a, C_KP)
    a(f"""
    T_NK2:
    """)
    KK = 108
    OLATE = int(E('F_OLATE', '0'))
    DNP = E("F_DNP", "k")
    a(f"""
    s_cmp_ge_u32 s2, 144
    s_cbranch_scc1 T_NW
    s_cmp_ge_u32 s3, 4
    s_cbranch_scc1 T_W2
    s_waitcnt vmcnt({9 if PLAN == "A" else 0})
    """)
    signal(a, C_KP + 4)
    a(f"""
    T_W2:
    v_bfe_u32 v7, v2, 2, 2             ; r
    v_lshrrev_b32 v8, 4, v2            ; q
    v_lshl_add_u32 v7, v8, 3, v7       ; 8q + r
    v_and_b32 v8, 3, v2
    v_lshlrev_b32 v8, 3, v8            ; 8c
    v_mul_u32_u24 v21, 1152, v7
    v_add_u32 v21, v21, v8
    s_lshl_b32 s40, s3, 5
    s_add_u32 s40, s40, {L_D2}
    v_add_u32 v21, s40, v21
    v_lshl_add_u32 v7, v7, 6, v8
    s_lshr_b32 s40, s3, 1
    s_mul_i32 s50, s40, 5
    s_cmp_eq_u32 s40, 3
    s_cselect_b32 s50, 14, s50
    s_lshl_b32 s51, s50, 11
    s_and_b32 s40, s3, 1
    s_lshl_b32 s40, s40, 5
    s_add_u32 s40, s40, s51
    s_add_u32 s40, s40, {L_U}
    v_add_u32 v7, s40, v7
    v_add_u32 v8, {L_G - L_U}, v7
    """)
    spin(a, C_KP + 4, 4)
    stamp(a, 30)
    for i in range(5):
        a(f"ds_read_b64_tr_b16 {vr(WG_+8*i,2)}, v8 offset:{2048*i}")
        a(f"ds_read_b64_tr_b16 {vr(WG_+8*i+2,2)}, v8 offset:{2048*i + 256}")
        a(f"ds_read_b64_tr_b16 {vr(WG_+8*i+4,2)}, v7 offset:{2048*i}")
        a(f"ds_read_b64_tr_b16 {vr(WG_+8*i+6,2)}, v7 offset:{2048*i + 256}")
    if DNP == "k": dn_dma()
    a.label("T_NW")
    def dn_tr(v):
        for i in range(5):
            a(f"ds_read_b64_tr_b16 {vr(WD_+4*i,2)}, v{v} offset:{256*i}")
            a(f"ds_read_b64_tr_b16 {vr(WD_+4*i+2,2)}, v{v} offset:{256*i + 4608}")
    def k_issue():
        for i in range(2): a(f"global_load_dwordx4 {vr(KK+4*i,4)}, v6, {P(sWS)} offset:{1024*i} sc1")
    a(f"""
    v_and_b32 v4, 3, v2
    v_lshlrev_b32 v4, 3, v4
    s_mov_b32 s41, {SPIN}
    """)
    spin(a, C_KP, 1)
    stamp(a, 22)
    if "3" in HINT: a("s_branch T_KP1")
    elif int(E("F_DSK", "1")): a("s_cmp_lt_u32 s2, 144\ns_cbranch_scc1 T_KP1")
    a(f"T_KP:\ns_sleep {BO_K}\nT_KP1:")
    k_issue()
    a(f"""
    s_waitcnt vmcnt(0)
    s_mov_b64 exec, -1
    v_xor_b32 v64, s{sTAG}, v{KK+1}
    v_xor_b32 v65, s{sTAG}, v{KK+3}
    v_xor_b32 v66, s{sTAG}, v{KK+5}
    v_xor_b32 v67, s{sTAG}, v{KK+7}
    v_or3_b32 v64, v64, v65, v66
    v_or_b32 v64, v64, v67
    v_cmp_ne_u32 vcc, 0, v64
    s_cbranch_vccz T_KD
    s_mov_b64 exec, vcc
    s_sub_u32 s41, s41, 1
    s_cbranch_scc1 T_KPX
    s_and_b32 s40, s41, 3
    s_cbranch_scc1 T_KP1
    s_branch T_KP
    T_KPX:
    s_mov_b64 exec, -1
    T_KD:
    """)
    stamp(a, 23)
    a(f"""
    v_max_u32 v64, v{KK}, v{KK+4}
    v_max_u32 v65, v{KK+2}, v{KK+6}
    s_nop 0
    v_max_u32 v64, v64, v64 row_shr:4 {DPP_ALL} bound_ctrl:0
    v_max_u32 v65, v65, v65 row_shr:4 {DPP_ALL} bound_ctrl:0
    s_nop 0
    v_max_u32 v64, v64, v64 row_shr:8 {DPP_ALL} bound_ctrl:0
    v_max_u32 v65, v65, v65 row_shr:8 {DPP_ALL} bound_ctrl:0
    s_mov_b32 exec_lo, 0xf000f000
    s_mov_b32 exec_hi, 0xf000f000
    ds_max_u32 v4, v64 offset:{L_CNT + C_MX}
    ds_max_u32 v4, v65 offset:{L_CNT + C_MX + 4}
    s_mov_b64 exec, -1
    s_waitcnt lgkmcnt(0)
    s_barrier                          ; B10
    ds_read_b128 v[64:67], v{VZ} offset:{L_CNT + C_MX}
    ds_read_b128 v[68:71], v{VZ} offset:{L_CNT + C_MX + 16}
    s_waitcnt lgkmcnt(0)
    v_min3_u32 v64, v64, v65, v66
    v_min3_u32 v68, v68, v69, v70
    v_min3_u32 v64, v64, v67, v71
    v_min_u32 v64, v64, v68
    s_lshl_b32 s40, s2, 3
    s_add_u32 s40, s40, s3
    s_mul_i32 s51, s40, 3072
    v_cmp_ge_u32 vcc, s{sKEY}, v64
    """)
    for i in range(4): a(f"v_cmp_ge_u32 s[{66+2*i}:{67+2*i}], v{KK+2*i}, v64")
    a(f"""
    s_bcnt1_i32_b64 s74, s[66:67]
    s_bcnt1_i32_b64 s75, s[68:69]
    s_bcnt1_i32_b64 s76, s[70:71]
    s_bcnt1_i32_b64 s77, s[72:73]
    s_add_u32 s75, s75, s74
    s_add_u32 s76, s76, s75
    s_add_u32 s77, s77, s76
    s_mov_b64 exec, 1
    v_mov_b32 v65, s77
    ds_add_rtn_u32 v66, v{VZ}, v65 offset:{L_CNT + C_N}
    s_mov_b64 exec, -1
    s_cbranch_vccz T_NPUB
    ; candidate row: publish h2 and x1 (slot = token)
    s_add_u32 s51, s51, {WS_ROW}
    v_lshl_add_u32 v5, v2, 4, s51
    v_mov_b32 v72, v{H2+3}
    v_mov_b32 v73, v{P1+3}
    v_lshl_or_b32 v74, v{P1+4}, 16, v{H2+4}
    v_mov_b32 v75, s{sTAG}
    v_mov_b32 v{H2+3}, s{sTAG}
    v_mov_b32 v{P1+3}, s{sTAG}
    global_store_dwordx4 v5, {vr(H2,4)}, {P(sWS)} sc1
    global_store_dwordx4 v5, v[72:75], {P(sWS)} offset:1024 sc1
    global_store_dwordx4 v5, {vr(P1,4)}, {P(sWS)} offset:2048 sc1
    T_NPUB:
    """)
    for i in range(4):
        if i: a(f"v_mov_b32 v{68+i}, s{73+i}")
        a(f"v_mbcnt_lo_u32_b32 v{68+i}, s{66+2*i}, {'v%d' % (68+i) if i else 0}")
        a(f"v_mbcnt_hi_u32_b32 v{68+i}, s{67+2*i}, v{68+i}")
    a(f"""
    s_waitcnt lgkmcnt(0)
    v_readfirstlane_b32 s74, v66
    v_and_b32 v4, 31, v2
    v_lshlrev_b32 v4, 2, v4
    v_lshrrev_b32 v7, 5, v2
    v_lshlrev_b32 v7, 4, v7
    s_mov_b32 s{sOWN}, 8
    """)
    for i in range(4): a(f"v_add_lshl_u32 v{68+i}, v{68+i}, s74, 2")
    for i in range(4):
        a(f"s_mov_b64 exec, s[{66+2*i}:{67+2*i}]")
        a(f"ds_write_b32 v{68+i}, v{KK+2*i} offset:{L_LIST}")
    a(f"""
    s_mov_b64 exec, -1
    s_mov_b32 s76, 0
    s_mov_b32 s77, 0
    s_waitcnt lgkmcnt(0)
    s_barrier                          ; B11
    ds_read_b32 v65, v{VZ} offset:{L_CNT + C_N}
    T_OUT:
    ds_read_b32 v64, v4 offset:{L_LIST}
    """)
    NPRE = 4
    for i in range(NPRE): a(f"ds_read_b128 {vr(KK+4*i,4)}, v7 offset:{L_LIST + 32*i}")
    a(f"""
    v_mov_b32 v66, 0
    v_add_u32 v67, {32*NPRE}, v7
    s_waitcnt lgkmcnt({NPRE})
    v_readfirstlane_b32 s74, v65       ; n
    """)
    for i in range(NPRE):
        a(f"s_waitcnt lgkmcnt({NPRE-1-i})")
        for e in range(4):
            a(f"v_cmp_gt_u32 vcc, v{KK+4*i+e}, v64")
            a(f"v_addc_co_u32 v66, vcc, 0, v66, vcc")
        if i == 0: a("s_min_u32 s74, s74, 2048")
        if i in (1, 2):
            a(f"s_cmp_le_u32 s74, {8*i+8}")
            a("s_cbranch_scc1 T_RK")
    a(f"""
    s_mov_b32 s75, {8*NPRE}
    T_IN:
    s_cmp_ge_u32 s75, s74
    s_cbranch_scc1 T_RK
    ds_read_b128 {vr(KK,4)}, v67 offset:{L_LIST}
    v_add_u32 v67, 32, v67
    s_add_u32 s75, s75, 8
    s_waitcnt lgkmcnt(0)
    """)
    for e in range(4):
        a(f"v_cmp_gt_u32 vcc, v{KK+e}, v64")
        a(f"v_addc_co_u32 v66, vcc, 0, v66, vcc")
    a(f"""
    s_branch T_IN
    T_RK:
    v_mov_b32 v67, v66
    s_waitcnt lgkmcnt(0)
    s_nop 0
    v_permlane32_swap_b32 v66, v67
    v_add_u32 v66, v66, v67
    v_cmp_eq_u32 vcc, s3, v66
    v_cmp_eq_u32 s[66:67], s{sKEY}, v64
    v_min_u32 v66, 8, v66
    s_ff1_i32_b64 s75, vcc
    v_lshlrev_b32 v67, 2, v66
    s_cbranch_vccz T_NMINE
    v_readlane_b32 s77, v64, s75
    T_NMINE:
    s_ff1_i32_b64 s75, s[66:67]
    ds_write_b32 v67, v64 offset:{L_CNT + C_SEL}
    s_cmp_eq_u64 s[66:67], 0
    s_cbranch_scc1 T_NOWN
    v_readlane_b32 s{sOWN}, v66, s75
    T_NOWN:
    v_add_u32 v4, 128, v4
    s_add_u32 s76, s76, 32
    s_cmp_lt_u32 s76, s74
    s_cbranch_scc1 T_OUT
    """)
    stamp(a, 24)
    a(f"""
    s_andn2_b32 s77, 0x7ff, s77
    s_mul_i32 s77, s77, 3072
    s_add_u32 s77, s77, {WS_ROW}
    v_lshl_add_u32 v4, v2, 4, s77
    s_cmp_ge_u32 s2, 144
    s_cbranch_scc1 T_NRL
    global_load_dwordx4 v[64:67], v4, {P(sWS)} sc1
    global_load_dwordx4 v[68:71], v4, {P(sWS)} offset:1024 sc1
    global_load_dwordx4 v[72:75], v4, {P(sWS)} offset:2048 sc1
    T_NRL:
    s_mul_i32 s40, s40, 1152
    s_cmp_lt_u32 s{sOWN}, 8
    s_cbranch_scc1 T_STD
    v_lshl_add_u32 v18, v2, 4, s40
    v_lshl_add_u32 v19, v2, 1, s40
    global_store_dwordx4 v18, {vr(O,4)}, {P(sOUT)} {E('F_OST', '')}
    global_store_short v19, v{O+4}, {P(sOUT)} offset:1024 {E('F_OST', '')}
    T_STD:
    s_cmp_ge_u32 s2, 144
    s_cbranch_scc1 T_END
    s_mul_i32 s40, s3, {SR_P}
    s_add_u32 s40, s40, {L_SH}
    v_lshl_add_u32 v5, v2, 4, s40
    v_lshl_add_u32 v6, v2, 1, s40
    s_mov_b32 s41, {SPIN}
    """)
    dn_tr(21)
    a(f"""
    v_and_b32 v7, 7, v2
    v_mul_u32_u24 v17, 80, v7
    v_mul_u32_u24 v7, {SR_P}, v7
    v_and_b32 v8, 0x30, v2
    v_add_u32 v17, v17, v8
    s_lshl_b32 s40, s50, 6
    s_add_u32 s40, s40, {L_SH}
    v_add3_u32 v7, v7, v8, s40
    s_lshl_b32 s40, s3, 10
    s_add_u32 s40, s40, {L_GP}
    v_lshl_add_u32 v8, v2, 4, s40
    v_and_b32 v9, 1, v2
    v_lshlrev_b32 v9, 9, v9
    v_bfe_u32 v16, v2, 1, 4
    v_lshl_add_u32 v9, v16, 4, v9
    v_lshrrev_b32 v16, 5, v2
    v_lshl_add_u32 v9, v16, 10, v9
    s_lshr_b32 s40, s3, 2
    s_lshl_b32 s40, s40, 8
    s_and_b32 s51, s3, 3
    s_lshl_b32 s51, s51, 2
    s_add_u32 s40, s40, s51
    s_add_u32 s40, s40, {L_GP}
    v_add_u32 v9, s40, v9
    s_mul_i32 s40, s3, 80
    v_and_b32 v16, -2, v2
    v_add_u32 v16, s40, v16
    s_branch T_RP2
    T_RP:
    s_sleep {BO_R}
    T_RP1:
    global_load_dwordx4 v[64:67], v4, {P(sWS)} sc1
    global_load_dwordx4 v[68:71], v4, {P(sWS)} offset:1024 sc1
    global_load_dwordx4 v[72:75], v4, {P(sWS)} offset:2048 sc1
    T_RP2:
    s_waitcnt vmcnt(0)
    v_xor_b32 v76, s{sTAG}, v67
    v_xor_b32 v77, s{sTAG}, v71
    v_xor_b32 v78, s{sTAG}, v75
    v_or3_b32 v76, v76, v77, v78
    v_cmp_ne_u32 vcc, 0, v76
    s_cbranch_vccz T_RD
    s_sub_u32 s41, s41, 1
    s_cbranch_scc1 T_RD
    s_and_b32 s40, s41, 3
    s_cbranch_scc1 T_RP1
    s_branch T_RP
    T_RD:
    v_mov_b32 v67, v68
    v_mov_b32 v75, v69
    ds_write_b128 v5, v[64:67]
    ds_write_b16 v6, v70 offset:1024
    s_waitcnt lgkmcnt(0)
    """)
    stamp(a, 25)
    a("s_barrier                          ; B12")
    AF = 108; AG, AU = 84, 88
    for i in range(5): a(f"ds_read_b128 {vr(AF+4*i,4)}, v7 offset:{64*i}")
    a(f"ds_write_b128 v5, v[72:75] offset:{L_SX - L_SH}")
    a(f"ds_write_b16_d16_hi v6, v70 offset:{L_SX - L_SH + 1024}")
    for i in range(5):
        if i == 4: a("s_cmp_ge_u32 s3, 4"); a("s_cbranch_scc1 T_G4")
        a(f"s_waitcnt lgkmcnt({6-i})")
        a(f"v_mfma_f32_16x16x32_bf16 {vr(AG,4)}, {vr(AF+4*i,4)}, {vr(WG_+8*i,4)}, {'0' if i == 0 else vr(AG,4)}")
        a(f"v_mfma_f32_16x16x32_bf16 {vr(AU,4)}, {vr(AF+4*i,4)}, {vr(WG_+8*i+4,4)}, {'0' if i == 0 else vr(AU,4)}")
    a(f"""
    T_G4:
    v_lshrrev_b32 v18, 5, v2
    v_lshlrev_b32 v18, 5, v18
    v_bfe_u32 v19, v2, 3, 2
    v_add_u32 v18, v18, v19
    s_lshl_b32 s40, s3, 2
    v_add_u32 v18, s40, v18
    v_mul_u32_u24 v18, {144*128}, v18
    s_mov_b32 exec_hi, 0
    ds_write_b128 v8, {vr(AG,4)}
    ds_write_b128 v8, {vr(AU,4)} offset:512
    s_mov_b64 exec, -1
    v_and_b32 v19, 7, v2
    v_lshl_add_u32 v18, v19, 4, v18
    s_lshl_b32 s40, s2, 7
    s_add_u32 s40, s40, {WS_PT}
    v_add_u32 v18, s40, v18
    v_add_u32 v19, {64*144*128}, v18
    v_add_u32 v20, {128*144*128}, v18
    s_waitcnt lgkmcnt(0)
    s_barrier                          ; B13
    ds_read_b32 v64, v9
    ds_read_b32 v65, v9 offset:2048
    ds_read_b32 v66, v9 offset:4096
    ds_read_b32 v67, v9 offset:6144
    """)
    NX = 0
    a(f"""
    s_mov_b32 s52, 0x05030201
    s_mov_b32 s53, 0x06050302
    s_mov_b32 s54, 0x07060503
    v_mov_b32 v71, s{sTAG}
    v_mov_b32 v75, s{sTAG}
    v_mov_b32 v79, s{sTAG}
    s_waitcnt lgkmcnt({2 + NX})
    v_add_f32 v64, v64, v65
    s_waitcnt lgkmcnt({NX})
    v_add_f32 v66, v66, v67
    v_add_f32 v64, v64, v66
    v_cvt_pk_bf16_f32 v64, v64, v64
    v_lshlrev_b32 v64, 16, v64
    v_mul_f32 v65, {fbits(-LOG2E)}, v64
    v_exp_f32 v65, v65
    s_nop 0
    v_add_f32 v65, 1.0, v65
    v_rcp_f32 v65, v65
    s_nop 0
    v_mul_f32 v65, v64, v65
    v_cvt_pk_bf16_f32 v65, v65, v65
    v_lshlrev_b32 v65, 16, v65
    s_nop 0
    v_mul_f32 v65, v64, v65 quad_perm:[1,1,3,3] {DPP_ALL}
    v_cvt_pk_bf16_f32 v65, v65, v65
    s_mov_b32 exec_lo, 0x55555555
    s_mov_b32 exec_hi, 0x55555555
    ds_write_b16 v16, v65 offset:{L_ACT}
    s_mov_b64 exec, -1
    s_waitcnt lgkmcnt(0)
    s_barrier                          ; B14
    ds_read_b128 v[64:67], v17 offset:{L_ACT}
    s_waitcnt lgkmcnt(0)
    """)
    stamp(a, 26)
    DA = 80
    for i in range(5): a(f"v_mfma_f32_16x16x32_bf16 {vr(DA+4*i,4)}, v[64:67], {vr(WD_+4*i,4)}, 0")
    a(f"""
    s_mul_i32 s40, s2, {144*128}
    s_add_u32 s40, s40, {WS_PT}
    v_lshl_add_u32 v4, v0, 4, s40
    v_add_u32 v5, 8192, v4
    v_add_u32 v6, 16384, v4
    s_nop 0
    """)
    def p24(d, s_):
        a(f"v_perm_b32 v{d}, v{s_+1}, v{s_}, s52")
        a(f"v_perm_b32 v{d+1}, v{s_+2}, v{s_+1}, s53")
        a(f"v_perm_b32 v{d+2}, v{s_+3}, v{s_+2}, s54")
    for r_ in range(4): a(f"v_permlane32_swap_b32 v{DA+r_}, v{DA+4+r_}")
    p24(68, DA)
    a(f"global_store_dwordx4 v18, v[68:71], {P(sWS)} sc1")
    for r_ in range(4): a(f"v_permlane32_swap_b32 v{DA+8+r_}, v{DA+12+r_}")
    p24(72, DA+8)
    a(f"global_store_dwordx4 v19, v[72:75], {P(sWS)} sc1")
    a("s_cmp_ge_u32 s3, 4")
    a("s_cbranch_scc1 T_NS3")
    p24(76, DA+16)
    a(f"""
    s_mov_b32 exec_hi, 0
    global_store_dwordx4 v20, v[76:79], {P(sWS)} sc1
    s_mov_b64 exec, -1
    T_NS3:
    """)
    stamp(a, 27)
    a(f"""
    s_cmp_lg_u32 s3, 7
    s_cbranch_scc1 T_NF
    s_lshr_b32 s40, s2, 2
    s_lshl_b32 s40, s40, 4
    s_and_b32 s41, s2, 1
    s_lshl_b32 s41, s41, 3
    s_add_u32 s40, s40, s41
    v_and_b32 v24, 7, v2
    v_add_u32 v24, s40, v24
    v_lshlrev_b32 v24, 1, v24          ; 2d
    v_bfe_u32 v25, v2, 3, 2
    s_and_b32 s41, s2, 2
    s_lshl_b32 s41, s41, 1
    v_add_u32 v25, s41, v25            ; row
    v_lshlrev_b32 v26, 2, v25
    v_mul_u32_u24 v25, {SR_P}, v25
    v_add_u32 v25, v25, v24
    v_add_u32 v27, {L_PT + 2304}, v24
    ds_read_b32 v28, v26 offset:{L_CNT + C_SEL}
    ds_read_u16 v29, v25 offset:{L_SH}
    ds_read_u16 v30, v25 offset:{L_SX}
    ds_read_u16 v31, v27
    s_waitcnt lgkmcnt(0)
    v_and_b32 v32, 0xffff, v28
    v_sub_u32 v32, 0xffff, v32
    v_min_u32 v32, 2047, v32
    v_mul_u32_u24 v32, 1152, v32
    v_add_u32 v32, v32, v24
    v_ashrrev_i32 v33, 31, v28
    v_not_b32 v33, v33
    v_or_b32 v33, 0x80000000, v33
    v_xor_b32 v33, v33, v28
    v_and_b32 v33, 0xffff0000, v33     ; r
    v_mul_f32 v33, {fbits(-LOG2E)}, v33
    v_exp_f32 v33, v33
    v_lshlrev_b32 v29, 16, v29
    v_add_f32 v33, 1.0, v33
    v_rcp_f32 v33, v33
    v_lshlrev_b32 v30, 16, v30
    v_cvt_pk_bf16_f32 v33, v33, v33
    v_lshlrev_b32 v33, 16, v33
    v_lshlrev_b32 v31, 16, v31
    s_cmp_lg_u32 s2, 0
    s_cbranch_scc1 T_NF
    ; epoch update: every workgroup read the epoch before its first publication, which this workgroup has consumed
    v_mov_b32 v34, {WS_EPOCH}
    v_mov_b32 v35, s{sTAG}
    s_mov_b64 exec, 1
    global_store_dword v34, v35, {P(sWS)}
    s_mov_b64 exec, -1
    T_NF:
    s_mov_b32 s52, 0x0201000c
    s_mov_b32 s53, 0x0504030c
    s_mov_b32 s54, 0x0403020c
    s_mov_b32 s55, 0x0302010c
    v_mov_b32 v107, s{sTAG}
    v_mov_b32 v104, 0
    v_mov_b32 v105, 0
    v_mov_b32 v106, 0
    v_bfe_u32 v7, v2, 4, 2
    v_lshlrev_b32 v7, 5, v7
    v_and_b32 v8, 7, v2
    v_lshl_add_u32 v7, v8, 2, v7
    s_lshl_b32 s40, s3, 7
    v_add_u32 v7, s40, v7
    s_mov_b32 s41, {SPIN}
    s_waitcnt vmcnt(0)
    T_GP:
    s_sleep {BO_G}
    global_load_dwordx4 v[96:99], v4, {P(sWS)} sc1
    global_load_dwordx4 v[100:103], v5, {P(sWS)} sc1
    s_cmp_ge_u32 s3, 2
    s_cbranch_scc1 T_G3
    global_load_dwordx4 v[104:107], v6, {P(sWS)} sc1
    T_G3:
    s_waitcnt vmcnt(0)
    s_mov_b64 exec, -1
    v_xor_b32 v64, s{sTAG}, v99
    v_xor_b32 v65, s{sTAG}, v103
    v_xor_b32 v66, s{sTAG}, v107
    v_or3_b32 v64, v64, v65, v66
    v_cmp_ne_u32 vcc, 0, v64
    s_cbranch_vccz T_GD
    s_mov_b64 exec, vcc
    s_sub_u32 s41, s41, 1
    s_cbranch_scc0 T_GP
    s_mov_b64 exec, -1
    T_GD:
    """)
    stamp(a, 28)
    for n in range(3):
        g = 96 + 4*n; d = 64 + 4*n
        a(f"v_perm_b32 v{d}, v{g}, v{g}, s52")
        a(f"v_perm_b32 v{d+1}, v{g+1}, v{g}, s53")
        a(f"v_perm_b32 v{d+2}, v{g+2}, v{g+1}, s54")
        a(f"v_perm_b32 v{d+3}, v{g+2}, v{g+2}, s55")
    for e in range(4): a(f"v_add_f32 v{64+e}, v{64+e}, v{68+e}")
    for e in range(4): a(f"v_add_f32 v{64+e}, v{64+e}, v{72+e}")
    a(f"""
    s_nop 1
    v_permlane32_swap_b32 v64, v66
    v_permlane32_swap_b32 v65, v67
    v_add_f32 v64, v64, v66
    v_add_f32 v65, v65, v67
    s_nop 1
    v_permlane16_swap_b32 v64, v65
    v_add_f32 v64, v64, v65
    s_nop 1
    v_add_f32 v64, v64, v64 row_shl:8 row_mask:0xf bank_mask:0x3
    s_mov_b32 exec_lo, 0x00ff00ff
    s_mov_b32 exec_hi, 0x00ff00ff
    ds_write_b32 v7, v64 offset:{L_RED}
    s_mov_b64 exec, -1
    v_lshlrev_b32 v8, 2, v2
    s_waitcnt lgkmcnt(0)
    s_barrier                          ; B15
    s_cmp_lg_u32 s3, 7
    s_cbranch_scc1 T_END
    """)
    for w in range(8): a(f"ds_read_b32 v{64+w}, v8 offset:{L_RED + 128*w}")
    a("s_waitcnt lgkmcnt(4)")
    a("v_add_f32 v64, v64, v65"); a("v_add_f32 v66, v66, v67")
    a("s_waitcnt lgkmcnt(0)")
    a("v_add_f32 v68, v68, v69"); a("v_add_f32 v70, v70, v71")
    a("v_add_f32 v64, v64, v66"); a("v_add_f32 v68, v68, v70"); a("v_add_f32 v64, v64, v68")
    rnd1(a, 64); a("v_mul_f32 v64, v64, v33")
    rnd1(a, 64); a("v_add_f32 v64, v64, v29")
    rnd1(a, 64); a("v_mul_f32 v64, v64, v31")
    rnd1(a, 64); a("v_add_f32 v64, v64, v30")
    a(f"""
    v_cvt_pk_bf16_f32 v64, v64, v64
    s_mov_b32 exec_hi, 0
    global_store_short v32, v64, {P(sOUT)}
    """)
    if int(E("F_DBG", "0")): a(f"""
    s_cmp_ge_u32 s2, 4
    s_cbranch_scc1 T_END
    v_lshlrev_b32 v26, 0, v26
    v_add_u32 v26, {WS_SEL}, v26
    global_store_dword v26, v28, {P(sWS)}
    """)
    a.label("T_END")
    diag_end(a)
    stamp_flush(a, 29, 0)
    a.label("M_END")
    a("s_endpgm")
```

```python
from nc import *
import re
KG_PITCH = 272
KG_STAGE = 16 * KG_PITCH
L_PRM = 0
L_ZERO = 512
L_STG = 1536
L_PART = 1536
L_LNR = L_STG + 25600
L_CB = L_LNR + 4 * 2592
KC_P = 4160
L_KC2 = L_CB + 1024
L_STG2 = L_KC2
L_HB = L_KC2 + 4 * KC_P
HB_P = 4608
L_TAB = 69120
TP = 2816
L_KC = L_TAB + 6 * TP
L_DN = L_KC + 8 * KC_P
L_PT = L_DN + 36864
M_LDS = L_PT + 4608
L_GU = L_DN - 73728
L_G, L_U, L_D2 = L_DN, L_GU, L_GU + 36864
assert L_KC % 64 == 0 and L_KC2 % 64 == 0 and L_HB + 3 * HB_P <= L_TAB
ZR_P = 1056
L_ZR = 1536
L_ZC = L_ZR + 8 * ZR_P
L_LIST = L_ZC + 1280
SR_P = 1168
L_SH = L_LIST + 8448
L_SX = L_SH + 8 * SR_P
L_GP = L_ZR
L_ACT = L_SX + 8 * SR_P
L_RED = L_ACT + 640
assert L_RED + 1024 <= L_GU
WS_Z2 = 0x600000; WS_KEY = 0x10000; WS_ROW = 0xD00000; WS_PT16 = 0x70000; WS_PF = 0x72000; WS_PT = 0xA00000; WS_CNT = 0xC90000; WS_EPOCH = 0x1300000
DNAT = E("F_DN", "ln2")
LATE_DN = DNAT in ("nd", "b9s", "b7s", "dir", "kp")
BO_Z, BO_K, BO_R, BO_G = [int(x) for x in E("BO", "16,6,10,3").split(",")]
HINT = E("HINT", "")
NREP = int(E("F_NREP", "8")); RREP = int(E("F_RREP", "1"))
NT = E("M_NT", "nt")
PNT = E("M_PNT", "")
XNT = E("M_XNT", "nt")
ZST = E("M_ZST", "")
SPIN = 1 << 16
BETA = float(E('BETA', '1.25'))
KST = int(E('KST', '0'))
W2LATE = int(E('M_W2LATE', '1'))
CPL = int(E('M_CPL', '10'))
DIRECT = {1, 8, 128, 1024}
sTAG, sD, sHH, sKS = 38, 42, 43, 44
sDAB, sDC, sLD = 46, 47, 48

L_CNT = L_PRM + 192
C_LN, C_TAG, C_TAB, C_K, C_H = 0, 4, 16, 32, 48
C_P, C_KEY, C_N, C_KP, C_PR = 52, 56, 60, 64, 80
C_MX, C_KEYS, C_SEL = 96, 128, 192
L_TAG = L_CNT + C_TAG
VZ, VONE = 248, 249
def signal(a, off, vaddr=None):
    a("s_mov_b64 exec, 1")
    a(f"ds_add_u32 v{vaddr or VZ}, v{VONE} offset:{L_CNT + off}")
    a("s_mov_b64 exec, -1")
def spin(a, off, n, vaddr=None, vt=251, st=94):
    l = a.newlabel("SP")
    a(f"""
    {l}:
    ds_read_b32 v{vt}, v{vaddr or VZ} offset:{L_CNT + off}
    s_waitcnt lgkmcnt(0)
    v_readfirstlane_b32 s{st}, v{vt}
    s_cmp_ge_u32 s{st}, {n}
    s_cbranch_scc0 {l}
    """)

def ln_stats(a, X, T, sX0, vC):
    D = T + 4
    a(f"v_readfirstlane_b32 s{sX0}, v{X}")
    a("s_nop 1")
    a(f"v_subrev_f32 v{D+8}, s{sX0}, v{X+8}")
    a(f"s_mov_b32 s{sX0+1}, s{sX0}")
    for i in range(4): a(f"v_pk_add_f32 {vr(D+2*i,2)}, {vr(X+2*i,2)}, s[{sX0}:{sX0+1}] neg_lo:[0,1] neg_hi:[0,1]")
    a(f"v_pk_mul_f32 {vr(T+2,2)}, {vr(D,2)}, {vr(D,2)}")
    a(f"v_pk_add_f32 {vr(T,2)}, {vr(D,2)}, {vr(D+2,2)}")
    a(f"v_pk_fma_f32 {vr(T+2,2)}, {vr(D+2,2)}, {vr(D+2,2)}, {vr(T+2,2)}")
    a(f"v_pk_add_f32 {vr(D,2)}, {vr(D+4,2)}, {vr(D+6,2)}")
    a(f"v_pk_fma_f32 {vr(T+2,2)}, {vr(D+4,2)}, {vr(D+4,2)}, {vr(T+2,2)}")
    a(f"v_pk_add_f32 {vr(T,2)}, {vr(T,2)}, {vr(D,2)}")
    a(f"v_pk_fma_f32 {vr(T+2,2)}, {vr(D+6,2)}, {vr(D+6,2)}, {vr(T+2,2)}")
    a(f"v_add_f32 v{T}, v{T}, v{T+1}")
    a(f"v_fmac_f32 v{T+2}, v{D+8}, v{D+8}")
    a(f"v_add_f32 v{T}, v{T}, v{D+8}")
    a(f"v_add_f32 v{T+2}, v{T+2}, v{T+3}")
    a("s_nop 0")
    for m in [f"row_shr:1 {DPP_ALL} bound_ctrl:0", f"row_shr:2 {DPP_ALL} bound_ctrl:0", f"row_shr:4 {DPP_ALL} bound_ctrl:0", f"row_shr:8 {DPP_ALL} bound_ctrl:0",
              "row_bcast:15 row_mask:0xa bank_mask:0xf", "row_bcast:31 row_mask:0xc bank_mask:0xf"]:
        a(f"v_add_f32 v{T}, v{T}, v{T} {m}")
        a(f"v_add_f32 v{T+2}, v{T+2}, v{T+2} {m}")
        a("s_nop 0")
    a(f"""
    v_readlane_b32 s{sX0+2}, v{T}, 63
    v_readlane_b32 s{sX0+3}, v{T+2}, 63
    s_nop 0
    v_mul_f32 v{T}, s{sX0+2}, v{vC}
    v_mul_f32 v{T+1}, s{sX0+3}, v{vC}
    v_fma_f32 v{T+1}, -v{T}, v{T}, v{T+1}
    v_add_f32 v{T}, s{sX0}, v{T}
    v_max_f32 v{T+1}, 0, v{T+1}
    v_cvt_pk_bf16_f32 v{T+1}, v{T}, v{T+1}
    v_lshlrev_b32 v{T}, 16, v{T+1}
    v_and_b32 v{T+1}, 0xffff0000, v{T+1}
    v_add_f32 v{T+1}, {fbits(1e-5)}, v{T+1}
    v_cvt_pk_bf16_f32 v{T+1}, v{T+1}, v{T+1}
    v_lshlrev_b32 v{T+1}, 16, v{T+1}
    v_sqrt_f32 v{T+1}, v{T+1}
    """)
    a(f"v_sub_f32 v{D+8}, v{X+8}, v{T}")
    for i in range(4): a(f"v_pk_add_f32 {vr(D+2*i,2)}, {vr(X+2*i,2)}, {vr(T,2)} op_sel_hi:[1,0] neg_lo:[0,1] neg_hi:[0,1]")
    a(f"""
    v_cvt_pk_bf16_f32 v{T+1}, v{T+1}, v{T+1}
    v_lshlrev_b32 v{T+1}, 16, v{T+1}
    v_rcp_f32 v{T+1}, v{T+1}
    """)
    rnd_pairs(a, [D, D+2, D+4, D+6]); rnd1(a, D+8)
    for i in range(4): a(f"v_pk_mul_f32 {vr(D+2*i,2)}, {vr(D+2*i,2)}, {vr(T,2)} op_sel:[0,1] op_sel_hi:[1,1]")
    a(f"v_mul_f32 v{D+8}, v{D+8}, v{T+1}")
    return D


VFA, VT0, VT1, VT2 = 210, 211, 212, 213
VE0, VE1, VE2, VE3, VE4, VC0, VC1, VC2, VED = 200, 201, 202, 203, 204, 205, 206, 207, 208
XG = 224; VMP = 120; VD = 243; VMA = 240; VXA = 252
sSH = 48
def kgen_setup(a):
    a(f"""
    s_mul_i32 s50, s3, {KG_STAGE}
    s_add_u32 s51, s50, {L_STG2 - 4*KG_STAGE}
    s_add_u32 s50, s50, {L_STG}
    s_cmp_ge_u32 s3, 4
    s_cselect_b32 s50, s51, s50
    s_mov_b32 m0, s50
    v_mul_u32_u24 v{VFA}, {KG_PITCH}, v10
    v_lshl_add_u32 v{VFA}, v11, 4, v{VFA}
    v_add_u32 v{VFA}, s50, v{VFA}
    s_mov_b32 s88, -1
    s_mov_b32 s89, 0
    s_mul_i32 s61, s3, {TP}
    s_add_u32 s61, s61, {L_TAB}          ; own partial table
    v_lshrrev_b32 v12, 1, v11
    v_lshlrev_b32 v{VT0}, 9, v12
    v_and_b32 v13, 1, v11
    v_lshl_add_u32 v{VT0}, v13, 4, v{VT0}
    v_lshl_add_u32 v{VT0}, v10, 5, v{VT0}
    v_add_u32 v{VT0}, s61, v{VT0}
    ; tile1: idx = 256 + 64q + (q<2 ? 4j : 2j), second pair at +(q<2 ? 2 : 32)
    v_sub_u32 v13, 4, v12
    v_lshlrev_b32 v13, v13, v10
    v_lshl_add_u32 v13, v11, 8, v13
    v_add_u32 v13, s61, v13
    v_add_u32 v{VT1}, 1024, v13
    v_mul_u32_u24 v12, 120, v12
    v_add3_u32 v{VT1+3}, v{VT1}, v12, 8
    v_lshlrev_b32 v{VT2}, 8, v11
    v_lshl_add_u32 v{VT2}, v10, 2, v{VT2}
    v_add_u32 v{VT2}, s61, v{VT2}
    ; expansion
    s_mul_i32 s60, s41, {2*TP}
    s_add_u32 s60, s60, {L_TAB}          ; channel table pair
    v_mov_b32 v{VC0}, s60
    v_add_u32 v{VC1}, -4, v{VC0}
    v_add_u32 v{VC2}, -8, v{VC0}
    v_sub_u32 v12, 63, v2                ; L
    s_lshl_b32 s51, s{sHH}, 8
    s_sub_u32 s51, s60, s51
    s_add_u32 s51, s51, {4*576}
    v_lshl_add_u32 v{VE0}, v12, 2, s51
    v_add_u32 v{VE1}, 4, v{VE0}
    s_add_u32 s51, s60, {4*384}
    v_lshl_add_u32 v{VE2}, v12, 3, s51
    v_add_u32 v{VE3}, 4, v{VE2}
    v_add_u32 v{VE4}, 8, v{VE2}
    v_lshlrev_b32 v13, 5, v12
    v_lshlrev_b32 v12, 4, v12
    v_add_u32 v12, 512, v12
    v_min_u32 v12, v12, v13
    v_add_u32 v12, s60, v12
    s_cmp_eq_u32 s{sHH}, 0
    s_cselect_b64 vcc, -1, 0
    s_mul_i32 s51, s41, {4*KC_P}
    s_add_u32 s51, s51, {L_KC}
    s_cmp_eq_u32 s41, 2
    s_cselect_b32 s51, {L_KC2}, s51
    v_cndmask_b32 v{VE2}, v{VE2}, v12, vcc
    v_lshlrev_b32 v12, 2, v11
    v_sub_u32 v12, v10, v12              ; j - 4q
    s_add_u32 s59, s60, 1520
    v_lshl_add_u32 v13, v12, 3, s59
    v_cndmask_b32 v{VE0}, v{VE0}, v13, vcc
    v_med3_i32 v13, v12, -1, 1
    v_lshlrev_b32 v13, 4, v13
    v_sub_u32 v13, 16, v13
    v_lshrrev_b64 v[24:25], v13, s[88:89]
    v_cndmask_b32 v{VE3}, v{VE3}, v24, vcc
    v_add_u32 v12, -2, v12
    v_med3_i32 v13, v12, -1, 1
    v_lshlrev_b32 v13, 4, v13
    v_sub_u32 v13, 16, v13
    v_lshrrev_b64 v[24:25], v13, s[88:89]
    v_cndmask_b32 v{VE4}, v{VE4}, v24, vcc
    v_lshrrev_b32 v12, 1, v2
    v_mul_u32_u24 v12, {KC_P}, v12
    v_and_b32 v13, 1, v2
    v_lshl_add_u32 v12, v13, 4, v12
    v_add_u32 v{VT1+2}, s51, v12
    v_lshl_add_u32 v{VED}, v2, 4, s51
    s_lshl_b32 s51, s41, 2
    v_mov_b32 v{VED+1}, s51
    s_lshl_b32 s{sSH}, s{sHH}, 4
    s_sub_u32 s{sSH}, 16, s{sSH}
    s_mov_b32 s52, {fbits(L_HI)}
    s_mov_b32 s53, {fbits(L_LO)}
    s_mov_b32 s54, {fbits(LN2)}
    s_mov_b32 s55, {fbits(P_HI)}
    s_mov_b32 s56, {fbits(P_LO)}
    s_mov_b32 s58, {fbits(BETA)}
    """)

def gen_kgen(a, cp, hooks):
    R = Regs(56, 200)
    AR, BH, CR, CI, DT, T0, T1, BL, VE = 40, 41, 42, 43, 44, 45, 46, 47, 48
    if cp: a(f"""
    s_waitcnt vmcnt({cp})
    s_cmp_eq_u32 s3, 3
    s_cbranch_scc1 KG_W1
    """)
    if DNAT == "t0": a("s_waitcnt vmcnt(1)\ns_cmp_lt_u32 s3, 3\ns_cbranch_scc1 KG_W1")
    a(f"s_waitcnt vmcnt({max(cp-1, 0)})")
    a.label("KG_W1")
    stamp(a, 13)
    hooks.get("p", lambda: None)()
    a(f"v_lshlrev_b32 v{DT}, 16, v{DT}")
    a(f"v_lshlrev_b32 v{AR}, s{sSH}, v{AR}")
    a(f"v_lshlrev_b32 v{BH}, s{sSH}, v{BH}")
    exp_bf16(a, DT, DT, T0, T1, 52, 53, 54)
    a(f"v_and_b32 v{AR}, 0xffff0000, v{AR}")
    a(f"v_and_b32 v{BH}, 0xffff0000, v{BH}")
    exp_bf16(a, AR, AR, T0, T1, 52, 53, 54)
    a(f"""
    v_mul_f32 v{AR}, v{AR}, v{DT}
    v_mul_f32 v{T0}, v{BH}, v{DT}
    v_mul_f32 v{AR}, s52, v{AR}
    v_sub_f32 v{AR}, 0, v{AR}
    v_mul_f32 v{BH}, s55, v{T0}
    v_fma_f32 v{BL}, v{T0}, s55, -v{BH}
    v_fma_f32 v{BL}, v{T0}, s56, v{BL}
    v_and_b32 v{VE}, 0x7fff7fff, v{CR}
    v_and_b32 v{T1}, 0x7fff7fff, v{CI}
    v_pk_max_u16 v{VE}, v{VE}, v{T1}
    v_lshlrev_b32 v{T1}, 16, v{VE}
    v_max_u32 v{VE}, v{VE}, v{T1}
    """)
    def anchor(Pp):
        d = R.get(2); t = R.get(2)
        pc = fbits(float(Pp)) if Pp not in (1, 2, 4) else f"{Pp}.0"
        a(f"v_mul_f32 v{t}, {pc}, v{AR}")
        a(f"v_mul_f32 v{t+1}, {pc}, v{BH}")
        a(f"v_exp_f32 v{t}, v{t}")
        a(f"v_fract_f32 v{t+1}, v{t+1}")
        a(f"v_fmamk_f32 v{t+1}, v{BL}, {fbits(float(Pp))}, v{t+1}")
        a(f"v_cos_f32 v{d}, v{t+1}")
        a(f"v_sin_f32 v{d+1}, v{t+1}")
        a("s_nop 0")
        a(f"v_pk_mul_f32 {vr(d,2)}, {vr(d,2)}, {vr(t,2)} op_sel_hi:[1,0]")
        R.put(t, 2)
        return d
    def mul(x, y):
        d = R.get(2); cmul(a, d, x, y); return d
    def power(Pp, half):
        return anchor(Pp) if Pp in DIRECT else mul(half, half)
    NPK = 6
    PK = R.get(NPK, 2); pk = [0]
    Q = LdsQ(a); pending = []; rows_since = [0]; wq = []; late = []
    WB = int(E("KG_WB", "2"))
    def flush_w():
        while wq: Q.issue(wq.pop(0))
    def put_row(row, x, neg):
        t = PK + (pk[0] % NPK); pk[0] += 1
        rows_since[0] += 1
        if pending and rows_since[0] >= 4: flush_mfma(1)
        if late and rows_since[0] >= 11: Q.issue(late.pop(0))
        a(f"v_cvt_pk_f16_f32 v{t}, v{x}, {'-' if neg else ''}v{x+1}")
        if len(wq) >= WB: flush_w()
        wq.append(f"ds_write_addtid_b32 v{t} offset:{row*KG_PITCH}")
    def flush_mfma(k):
        while k > 0 and pending:
            op, txt = pending.pop(0)
            Q.need(op); a(txt); k -= 1
    F = {}
    a(f"v_mov_b32 v{PK}, 0x3c00")
    Q.issue(f"ds_write_addtid_b32 v{PK} offset:0"); pk[0] = 1
    F[1] = anchor(8); put_row(1, F[1], False)
    dpp = [f"row_shr:1 {DPP_ALL} bound_ctrl:0", f"row_shr:2 {DPP_ALL} bound_ctrl:0", f"row_shr:4 {DPP_ALL} bound_ctrl:0", f"row_shr:8 {DPP_ALL} bound_ctrl:0",
           "row_bcast:15 row_mask:0xa bank_mask:0xf", "row_bcast:31 row_mask:0xc bank_mask:0xf"]
    def dstep():
        if dpp: a(f"v_max_u32 v{VE}, v{VE}, v{VE} {dpp.pop(0)}")
    F[2] = power(16, F[1]); put_row(2, F[2], False); dstep()
    F[3] = mul(F[1], F[2]); put_row(3, F[3], False); dstep()
    F[4] = power(32, F[2]); put_row(4, F[4], False); dstep()
    for j in (5, 6, 7):
        F[j] = mul(F[4], F[j-4]); put_row(j, F[j], False); dstep()
    F[8] = power(64, F[4]); put_row(8, F[8], False)
    a(f"v_readlane_b32 s57, v{VE}, 63")
    for j in range(9, 16):
        t = mul(F[8], F[j-8]); put_row(j, t, False); R.put(t, 2)
    for j in range(1, 9): R.put(F[j], 2)
    BF = R.get(16, 4)
    flush_w()
    if KST: stamp(a, 14)
    for k in range(4): Q.issue(f"ds_read_b128 {vr(BF+4*k,4)}, v{VFA} offset:{64*k}")
    Ee = {}
    Ee[1] = anchor(1)
    a(f"""
    s_and_b32 s57, s57, 0xffff0000
    v_frexp_exp_i32_f32 v{VE}, s57
    v_lshlrev_b32 v{CR}, s{sSH}, v{CR}
    v_lshlrev_b32 v{CI}, s{sSH}, v{CI}
    v_sub_u32 v{VE}, 6, v{VE}
    v_and_b32 v{CR}, 0xffff0000, v{CR}
    v_and_b32 v{CI}, 0xffff0000, v{CI}
    v_ldexp_f32 v{T0}, s58, v{VE}
    v_mul_f32 v{DT}, {fbits(1.0/BETA)}, v{DT}
    v_mul_f32 v{CR}, v{CR}, v{T0}
    v_mul_f32 v{CI}, v{CI}, v{T0}
    v_sub_u32 v{VE}, 1, v{VE}
    v_ldexp_f32 v{DT}, v{DT}, v{VE}
    """)
    Q.issue(f"ds_write_b32 v{VED+1}, v{DT} offset:{L_PRM + 5*16}")
    G = {0: CR}
    Ee[2] = power(2, Ee[1]); Ee[4] = power(4, Ee[2])
    Ee[128] = anchor(128)
    ACC = R.get(12, 4); AFR = R.get(16, 4)
    def tile_mfma(tau):
        flush_w(); flush_mfma(100)
        while late: Q.issue(late.pop(0))
        c = vr(ACC+4*tau, 4)
        for k in range(4):
            oh = Q.issue(f"ds_read_b128 {vr(AFR+4*k,4)}, v{VFA} offset:{64*k}")
            pending.append((oh, f"v_mfma_f32_16x16x32_f16 {c}, {vr(AFR+4*k,4)}, {vr(BF+4*k,4)}, {'0' if k == 0 else c}"))
        rows_since[0] = 0
        if tau == 0: late.append(f"ds_write_b128 v{VT0}, {c}")
    put_row(0, G[0], True)
    G[1] = mul(G[0], Ee[1]); put_row(1, G[1], True)
    G[2] = mul(G[0], Ee[2]); put_row(2, G[2], True)
    G[3] = mul(G[1], Ee[2]); put_row(3, G[3], True)
    G[4] = mul(G[0], Ee[4]); put_row(4, G[4], True)
    for r in (5, 6, 7):
        G[r] = mul(G[r-4], Ee[4]); put_row(r, G[r], True)
    R.put(Ee[1], 2); R.put(Ee[2], 2); R.put(Ee[4], 2)
    for r in range(8):
        G[128+r] = mul(G[r], Ee[128]); put_row(8+r, G[128+r], True)
        if r & 1:
            R.put(G[r], 2); R.put(G[128+r], 2)
    Ee[256] = power(256, Ee[128]); R.put(Ee[128], 2)
    if KST: stamp(a, 15)
    tile_mfma(0)
    Ee[512] = power(512, Ee[256])
    hooks.get("t0", lambda: None)()
    gl = [0, 4, 128, 132]
    for kk in range(2):
        for r in range(4):
            g = 128*kk + 2*r
            t = mul(G[g], Ee[256]); put_row(4*kk + r, t, True)
            if g in gl: G[256+g] = t
            else: R.put(t, 2); R.put(G[g], 2)
    R.put(Ee[256], 2)
    for r, g in enumerate(gl):
        G[512+g] = mul(G[g], Ee[512]); put_row(8+r, G[512+g], True)
        if g & 4: R.put(G[512+g], 2); R.put(G[g], 2)
    for r, g in enumerate(gl):
        G[768+g] = mul(G[256+g], Ee[512]); put_row(12+r, G[768+g], True)
        if g & 4: R.put(G[768+g], 2); R.put(G[256+g], 2)
    R.put(Ee[512], 2)
    if KST: stamp(a, 16)
    tile_mfma(1)
    Ee[1024] = power(1024, None)
    hooks.get("t1", lambda: None)()
    for k in range(8):
        t = mul(G[128*k], Ee[1024]); put_row(k, t, True); R.put(t, 2)
    Ee[2048] = power(2048, Ee[1024])
    t = mul(G[0], Ee[2048]); put_row(8, t, True); R.put(t, 2)
    tile_mfma(2)
    hooks.get("t2", lambda: None)()
    Q.issue(f"ds_write_b64 v{VT1}, {vr(ACC+4,2)}")
    Q.issue(f"ds_write_b64 v{VT1+3}, {vr(ACC+6,2)}")
    flush_mfma(100)
    a(f"""
    s_mov_b32 exec_hi, 0xffff
    s_nop 6
    ds_write_b32 v{VT2}, v{ACC+8} offset:2048
    s_mov_b32 exec_hi, 0
    ds_write_b32 v{VT2}, v{ACC+9} offset:{2048+64}
    ds_write_b32 v{VT2}, v{ACC+10} offset:{2048+128}
    ds_write_b32 v{VT2}, v{ACC+11} offset:{2048+192}
    """)
    print("kgen vgpr hi", R.hi, file=sys.stderr)

def expand_emit(a, W, C4, C5, T, rho, hi=None):
    o = 1024*rho
    if hi: a(f"s_mov_b32 exec_lo, 0\ns_mov_b32 exec_hi, {hi}")
    a(f"""
    ds_write_b128 v{VED}, {vr(W,4)} offset:{3*KC_P + o}
    v_mov_b32 v{C4}, v{W} wave_shl:1 {DPP_ALL}
    v_mov_b32 v{C5}, v{W+1} wave_shl:1 {DPP_ALL}
    v_alignbit_b32 v{T}, v{W+1}, v{W}, 16
    v_alignbit_b32 v{T+1}, v{W+2}, v{W+1}, 16
    v_alignbit_b32 v{T+2}, v{W+3}, v{W+2}, 16
    v_alignbit_b32 v{T+3}, v{C4}, v{W+3}, 16
    v_mov_b32 v{T+4}, v{W+1}
    v_mov_b32 v{T+5}, v{W+2}
    ds_write_b128 v{VED}, {vr(T,4)} offset:{2*KC_P + o}
    v_mov_b32 v{T+6}, v{W+3}
    v_mov_b32 v{T+7}, v{C4}
    v_mov_b32 v{T+8}, v{T+1}
    v_mov_b32 v{T+9}, v{T+2}
    ds_write_b128 v{VED}, {vr(T+4,4)} offset:{KC_P + o}
    v_mov_b32 v{T+10}, v{T+3}
    v_alignbit_b32 v{T+11}, v{C5}, v{C4}, 16
    ds_write_b128 v{VED}, {vr(T+8,4)} offset:{o}
    """)
    if hi: a("s_mov_b64 exec, -1")

def expand(a, hh):
    r2 = lambda d, v, o: a(f"ds_read2st64_b32 {vr(d,2)}, v{v} offset0:{o} offset1:{o + TP//256}")
    if hh == 0:
        for i in range(2):
            a(f"ds_read_b128 {vr(64+4*i,4)}, v{VE2} offset:{16*i}")
            a(f"ds_read_b128 {vr(72+4*i,4)}, v{VE2} offset:{TP + 16*i}")
        for d in range(4, 8):
            for i in range(4):
                a(f"ds_read_b64 {vr(128+16*(d-4)+2*i,2)}, v{VE0} offset:{128*d + 8*i}")
                a(f"ds_read_b64 {vr(136+16*(d-4)+2*i,2)}, v{VE0} offset:{TP + 128*d + 8*i}")
            if d == 4: a("s_waitcnt lgkmcnt(8)"); n0_ = len(a.lines)
        lateread = a.lines[n0_:]; del a.lines[n0_:]
    else:
        r2(56, VE0, 0); r2(58, VE1, 0); r2(60, VC0, 8); r2(62, VC1, 8)
        r2(64, VE2, 0); r2(66, VE3, 0); r2(68, VE4, 0); r2(70, VC0, 6); r2(72, VC1, 6); r2(74, VC2, 6)
        a(f"""
        s_waitcnt lgkmcnt(6)
        v_add_f32 v56, v56, v57
        v_add_f32 v58, v58, v59
        v_add_f32 v60, v60, v61
        v_add_f32 v62, v62, v63
        s_mov_b32 exec_hi, 0x7fffffff
        v_mov_b32 v58, 0
        v_mov_b32 v57, 0
        s_mov_b32 exec_hi, 0x3fffffff
        v_mov_b32 v56, 0
        s_mov_b32 exec_lo, 0
        s_mov_b32 exec_hi, 0x80000000
        v_mov_b32 v57, v56
        s_mov_b64 exec, -1
        v_cvt_pk_f16_f32 v80, v58, v58
        v_cvt_pk_f16_f32 v82, v56, v56
        v_cvt_pk_f16_f32 v81, v58, v57
        v_cvt_pk_f16_f32 v84, v60, v60
        v_mov_b32 v83, v82
        v_cvt_pk_f16_f32 v85, v62, v62
        """)
        expand_emit(a, 80, 84, 85, 88, 1, "0xf0000000")
        a("s_waitcnt lgkmcnt(4)")
    if hh == 0:
        for i in range(8): a(f"v_add_f32 v{64+i}, v{64+i}, v{72+i}")
        a(f"""
        v_cvt_pk_f16_f32 v100, v71, v70
        v_cvt_pk_f16_f32 v101, v69, v68
        v_cvt_pk_f16_f32 v102, v67, v66
        v_cvt_pk_f16_f32 v103, v65, v64
        v_mov_b32 v104, 0
        v_mov_b32 v105, 0
        s_mov_b32 exec_hi, 0
        v_cvt_pk_f16_f32 v100, v68, v67
        v_cvt_pk_f16_f32 v101, v66, v66
        v_cvt_pk_f16_f32 v102, v66, v65
        v_cvt_pk_f16_f32 v103, v64, v64
        s_mov_b64 exec, -1
        """)
    else:
        for i in range(6): a(f"v_add_f32 v{64+2*i}, v{64+2*i}, v{65+2*i}")
        a(f"""
        v_cvt_pk_f16_f32 v100, v68, v68
        v_cvt_pk_f16_f32 v101, v66, v66
        v_cvt_pk_f16_f32 v102, v66, v64
        v_cvt_pk_f16_f32 v103, v64, v64
        v_cvt_pk_f16_f32 v104, v70, v72
        v_cvt_pk_f16_f32 v105, v74, v74
        """)
    if hh == 0: a.lines += lateread[:8]
    expand_emit(a, 100, 104, 105, 108, 3 - hh)
    if hh == 0:
        a.lines += lateread[8:]
        for d in range(4, 8):
            b = 128 + 16*(d-4); k = 112 + 4*((d-4) & 1)
            a(f"s_waitcnt lgkmcnt({[15, 15, 10, 3][d-4]})")
            for i in range(4): a(f"v_pk_add_f32 {vr(b+2*i,2)}, {vr(b+2*i,2)}, {vr(b+8+2*i,2)}")
            a(f"v_cvt_pk_f16_f32 v{k}, v{b+6}, v{b+4}\nv_cvt_pk_f16_f32 v{k+1}, v{b+2}, v{b}\nv_cvt_pk_f16_f32 v{k+2}, v{b+7}, v{b+5}\nv_cvt_pk_f16_f32 v{k+3}, v{b+3}, v{b+1}")
            if d == 4: a(f"v_and_b32 v{k}, v{k}, v{VE3}\nv_and_b32 v{k+1}, v{k+1}, v{VE4}\nv_and_b32 v{k+2}, v{k+2}, v{VE3}\nv_and_b32 v{k+3}, v{k+3}, v{VE4}")
            if d == 7: a(f"s_mov_b64 exec, 0x8000\nv_and_b32 v{k+2}, 0xffff0000, v{k+2}\ns_mov_b64 exec, -1")
            a(f"ds_write_b128 v{VED}, {vr(k,4)} offset:{KC_P*(d-4)}")
    if hh == 0: a(f"""
    v_mov_b32 v104, 0
    v_mov_b32 v105, 0
    v_mov_b32 v106, 0
    v_mov_b32 v107, 0
    s_mov_b64 exec, 0xff
    ds_write_b128 v{VT1+2}, v[104:107] offset:4096
    """)

def pf_lines(a, mat, part, v0):
    A, B, C = v0, v0+1, v0+2
    a(f"""
    s_lshr_b32 s64, s2, 3
    s_mul_i32 s64, s64, 162
    s_add_u32 s64, s64, {54*part}
    s_and_b32 s65, s2, 7
    s_mul_i32 s65, s65, 9
    v_min_u32 v{A}, 53, v2
    v_add_u32 v{A}, s64, v{A}
    """)
    fl = E("M_PFFL", "")
    if mat == "d":
        a(f"""
        s_mul_i32 s65, s65, 576
        v_add_u32 v{B}, s65, v{A}
        v_lshlrev_b32 v{B}, 7, v{B}
        global_load_dword v250, v{B}, {P(sWD)} {fl}
        """)
    else:
        a(f"""
        v_mul_u32_u24 v{C}, 7282, v{A}
        v_lshrrev_b32 v{C}, 16, v{C}
        v_mul_u32_u24 v{B}, 9, v{C}
        v_sub_u32 v{B}, v{A}, v{B}
        v_add_u32 v{B}, s65, v{B}
        v_mul_u32_u24 v{C}, 9216, v{C}
        v_lshl_add_u32 v{C}, v{B}, 7, v{C}
        """)
        if v0 == 252:
            a(f"global_load_dword v250, v{C}, s[78:79] {fl}")
            return
        for m in mat:
            a(f"global_load_dword v250, v{C}, {P(sWG if m == 'g' else sWU)} {fl}")
            if int(E("M_PFH", "0")): a(f"global_load_dword v250, v{C}, {P(sWG if m == 'g' else sWU)} offset:64 {fl}")

JB = [(k, v) for v in range(3) for k in range(4)]
JD = [(1, 6), (0, 7)]
JA = [(k, v) for v in range(3, 7) for k in range(4) if k + v <= 7 and (k, v) not in JD]
POFF = {"B": (0, 0), "A": (6, 3), "D": (11, 4)}
def JP(k): return [(kb, 7 - k - kb) for kb in range(4)]
def JQs(k): return [(kb, k - kb) for kb in range(k + 1)]
VBX, VKF, VA32, VTF = 192, 200, 216, 220
VA = 64
VACC = 224
VB = 32
NB = 8
VAS = 16
NH = int(E("M_NH", "5"))
NPX = int(E("M_NPX", "8"))
VKA, VHA = 4, 6
VPW = 8

def aread(r, va, kap, two):
    o = 64*(63-kap)
    if two: return [f"ds_read2_b64 {vr(r,4)}, v{two + (o >> 11)} offset0:{(o & 2047) >> 3} offset1:{((o & 2047) >> 3) + 1}"]
    return [f"ds_read_b64 {vr(r,2)}, v{va} offset:{o}", f"ds_read_b64 {vr(r+2,2)}, v{va} offset:{o+8}"]
class Job:
    def __init__(self, parts, npx=None, far=None, fartag=None):
        self.parts = parts
        self.npx = NPX if npx is None else npx
        self.far = far or []; self.fartag = fartag
        self.two = VKA if (parts[-1][2] is None and int(E("K_TWO", "0"))) else 0
        use = {}
        for ci, bl, _ in parts:
            for kb, vb in bl: use[(ci, kb)] = use.get((ci, kb), 0) + 1
        order = sorted(use, key=lambda x: (-use[x], x))
        self.held = {g: i for i, g in enumerate(order[:NH])}
    def preload(self, a):
        if self.two: a(f"v_add_u32 v{VKA+1}, 2048, v{VKA}")
        elif int(E("PL_TWO", "0")):
            for ci in sorted(set(c for c, _ in self.held)): a(f"v_mov_b32 v{56+2*ci}, v{VKA+ci}\nv_add_u32 v{57+2*ci}, 2048, v{VKA+ci}")
        for x in range(7, 7 - self.npx, -1):
            for (ci, kb), i in self.held.items():
                kap = 8*kb + x; r = VA + 32*i + 4*x
                for t in aread(r, VKA+ci, kap, self.two or (56+2*ci if int(E("PL_TWO", "0")) else 0)): a(t)
        if self.far: self.far_pre(a)
    def far_pre(self, a):
        a(f"v_readfirstlane_b32 s40, v{VKA}\ns_sub_u32 s40, s40, 72\nv_lshl_add_u32 v{VTF}, v2, 4, s40")
        for t in aread(VA32, VKA, 32, 0): a(t)
        for d in range(4, max(self.far) + 1): a(f"ds_read_b128 {vr(VKF+4*(d-4),4)}, v{VTF} offset:{KC_P*(d-4)}")
    def far_run(self, a, acc, started):
        nf = max(self.far) - 3
        RB = 64 + 32*len(self.held) if len(self.held) < 4 else 232
        for f in range(nf):
            a(f"ds_read_b128 {vr(RB+8*f,4)}, v{VHA} offset:{64*(8*f+7) - 16}")
            a(f"ds_read_b128 {vr(RB+8*f+4,4)}, v{VHA} offset:{64*(8*f+7) - 32}")
        for n, g in enumerate(self.far): a(f"ds_read_b128 {vr(RB+8*nf+4*n,4)}, v{VHA} offset:{64*(8*g-25)}")
        tot = 2*nf + len(self.far)
        a("s_waitcnt vmcnt(0)")
        for f in range(nf):
            a(f"s_waitcnt lgkmcnt({tot - 2*f - 2})")
            a(f"v_mfma_f32_16x16x32_f16 {vr(32+8*f,4)}, {vr(RB+8*f,4)}, {vr(VBX,4)}, 0")
            a(f"v_mfma_f32_16x16x32_f16 {vr(36+8*f,4)}, {vr(RB+8*f+4,4)}, {vr(VBX+4,4)}, 0")
        a("s_waitcnt lgkmcnt(0)")
        for n, g in enumerate(self.far):
            a(f"v_mfma_f32_16x16x32_f16 {vr(acc[(0,g)],4)}, {vr(VA32,4)}, {vr(RB+8*nf+4*n,4)}, 0"); started.add((0, g))
        a(f"s_nop {max(7 - len(self.far) - 2*(nf-1), 0)}")
        for f in range(nf):
            w = 32 + 8*f
            if f == nf - 1 and nf > 1: a("s_nop 2")
            a(f"v_cvt_pk_f16_f32 v{w}, v{w}, v{w+1}\nv_cvt_pk_f16_f32 v{w+1}, v{w+2}, v{w+3}\nv_cvt_pk_f16_f32 v{w+2}, v{w+4}, v{w+5}\nv_cvt_pk_f16_f32 v{w+3}, v{w+6}, v{w+7}")
        a("s_nop 1")
        for f in range(nf):
            for g in self.far:
                if g - f >= 4: a(f"v_mfma_f32_16x16x32_f16 {vr(acc[(0,g)],4)}, {vr(32+8*f,4)}, {vr(VKF+4*(g-f-4),4)}, {vr(acc[(0,g)],4)}")
    def run(self, a, fillers=None):
        Q = LdsQ(a)
        fillers = list(fillers or [])
        acc = {}; seq = []
        for ci, bl, tag in self.parts:
            vbs = sorted(set(v for _, v in bl), reverse=(tag is None and int(E("K_REV", "0")) == 1))
            for vb in vbs:
                for y in range(8):
                    seq.append(((ci, 8*vb + y), [((ci, kb, 7 - y), (ci, kb + vb)) for kb, v in bl if v == vb]))
        for g in self.far: acc[(0, g)] = VACC + 4*len(acc)
        for _, ms in seq:
            for _, tk in ms:
                if tk not in acc: acc[tk] = ([VACC + 4*i for i in range(6)] + [160])[len(acc)]
        mf = []
        for bi, (bk, ms) in enumerate(seq):
            for ak, tk in ms: mf.append((bi, ak, tk))
        if int(E("M_STAG", "1")) and self.parts[-1][2]:
            nl = len(seq) - 8
            body = [m for m in mf if m[0] < nl]; tail = [m for m in mf if m[0] >= nl]
            tks = sorted(set(m[2] for m in tail))
            if len(tks) > 1:
                tail = sorted(tail, key=lambda m: (max(tks.index(m[2]) - 1, 0), m[0], m[2]))
            mf = body + tail
        last = {}
        for n, (_, _, tk) in enumerate(mf): last[tk] = n
        loads = []; sa = 0; areg = {}
        ring = [VAS + 4*i for i in range(2)]
        firstuse = {}
        for n, (bi, ak, tk) in enumerate(mf):
            if ("b", bi) not in firstuse:
                firstuse[("b", bi)] = n
                ci, v = seq[bi][0]
                loads.append((n, ("b", bi), [f"ds_read_b128 {vr(VB + 4*(bi % NB),4)}, v{VHA+ci} offset:{64*v}"]))
            ci, kb, x = ak
            if (ci, kb) in self.held:
                r = VA + 32*self.held[(ci, kb)] + 4*x; areg[n] = r
                if x <= 7 - self.npx and ("h", r) not in firstuse:
                    kap = 8*kb + x; firstuse[("h", r)] = n
                    loads.append((n, ("h", r), aread(r, VKA+ci, kap, self.two)))
            else:
                r = ring[sa % len(ring)]; kap = 8*kb + x
                loads.append((n, ("a", sa), aread(r, VKA+ci, kap, self.two)))
                areg[n] = r; firstuse[("a", sa)] = n; sa += 1
        lastuse_b = {}
        for n, (bi, _, _) in enumerate(mf): lastuse_b[bi] = n
        opid = {}; li = 0; started = set(); pend = []
        LEAD = int(E("M_LEAD", "10")); LEADH = int(E("M_LEADH", "14"))
        def can_issue(key, n):
            if key[0] == "h": return True
            if key[0] == "b": return key[1] < NB or lastuse_b[key[1] - NB] < n
            return key[1] < len(ring) or firstuse[("a", key[1] - len(ring))] < n
        akey_of = {}
        for (n0, key, _) in loads:
            if key[0] in "ah": akey_of[n0] = key
        tagof = {}
        for ci, bl, tag in self.parts:
            for kb, vb in bl: tagof[(ci, kb + vb)] = tag
        for g in self.far: tagof[(0, g)] = self.fartag
        def wr(tk2):
            if tagof[tk2] == "X":
                Q.issue(f"ds_write_b128 v{VPW}, {vr(acc[tk2],4)}")
                a("s_mov_b64 exec, 1"); Q.issue(f"ds_add_u32 v{VZ}, v{VONE} offset:{L_CNT + C_K + 12}"); a("s_mov_b64 exec, -1")
                return
            s0, g0 = POFF[tagof[tk2]]
            Q.issue(f"ds_write_b128 v{VPW+tk2[0]}, {vr(acc[tk2],4)} offset:{(s0 + tk2[1] - g0)*1024}")
        if self.far:
            self.far_run(a, acc, started)
            for g in self.far:
                if (0, g) not in last: pend.append((8, (0, g)))
        for n, (bi, ak, tk) in enumerate(mf):
            while li < len(loads) and loads[li][0] <= n + (LEADH if loads[li][1][0] == "h" else LEAD) and can_issue(loads[li][1], n):
                for t in loads[li][2]: opid[loads[li][1]] = Q.issue(t)
                li += 1
            need = opid[("b", bi)]
            if n in akey_of: need = max(need, opid[akey_of[n]])
            Q.need(need)
            c = acc[tk]
            a(f"v_mfma_f32_16x16x32_f16 {vr(c,4)}, {vr(areg[n],4)}, {vr(VB + 4*(bi % NB),4)}, {'0' if tk not in started else vr(c,4)}")
            started.add(tk)
            if fillers and n >= 2:
                for _ in range(2):
                    if fillers:
                        t_ = fillers.pop(0)
                        if t_: a(t_)
            if last[tk] == n and tagof[tk]: pend.append((n + 9, tk))
            while pend and pend[0][0] <= n:
                wr(pend.pop(0)[1])
        a("s_nop 7")
        for _, tk2 in pend: wr(tk2)
        return acc

def epi_core(a, Y, H, T, ks, dd, ga, n):
    for e in range(n): a(f"v_mul_f32 v{Y+e}, {ks}, v{Y+e}")
    for e in range(n): a(f"v_fma_mix_f32 v{T+e}, v{H+e//2}, {dd}, 0 op_sel:[{e&1},0,0] op_sel_hi:[1,0,0]")
    rnd_pairs(a, [Y+2*i for i in range(n//2)] + [T+2*i for i in range(n//2)])
    for e in range(n): a(f"v_add_f32 v{Y+e}, v{Y+e}, v{T+e}")
    rnd_pairs(a, [Y+2*i for i in range(n//2)])
    for e in range(n): a(f"v_mul_f32 v{Y+e}, {ga}, v{Y+e}")

def pack9(a, dst, src):
    for i in range(4): a(f"v_cvt_pk_bf16_f32 v{dst+i}, v{src+2*i}, v{src+2*i+1}")
    a(f"v_cvt_pk_bf16_f32 v{dst+4}, v{src+8}, 0")
def dots9(a, dst, src, bf, cf):
    for e in (8, 0, 1, 2, 3, 4, 5, 6, 7): a(f"v_dot2_f32_bf16 v{dst+e}, v{src+e//2}, {bf(e)}, {cf(e)}")
def ln_core(a, P1, X1, T, ONES, LO, RC, lab):
    vsel = lambda e: f"v{LO + (e & 1)}"
    for i in range(5):
        a(f"v_dot2_f32_bf16 v{T}, v{P1+i}, v{ONES}, {'0' if i == 0 else 'v%d' % T}")
        a(f"v_dot2_f32_bf16 v{T+2}, v{P1+i}, v{P1+i}, {'0' if i == 0 else 'v%d' % (T+2)}")
    a("s_nop 1")
    reduce2(a, T, T+2)
    a(f"""
    v_readlane_b32 s66, v{T}, 63
    v_readlane_b32 s67, v{T+2}, 63
    s_nop 0
    v_mul_f32 v{T}, s66, v{RC}
    v_mul_f32 v{T+1}, s67, v{RC}
    v_mul_f32 v{T+2}, v{T}, v{T}
    v_fma_f32 v{T+1}, -v{T}, v{T}, v{T+1}
    v_mul_f32 v{T+3}, 0x41800000, v{T+1}
    v_cmp_gt_f32 vcc, v{T+2}, v{T+3}
    s_cbranch_vccz {lab}
    v_sub_f32 v{T+3}, 0, v{T}
    """)
    dots9(a, X1, P1, vsel, lambda e: f"v{T+3}")
    a(f"v_mul_f32 v{T+2}, v{X1+8}, v{X1+8}")
    for e in range(8): a(f"v_fmac_f32 v{T+2}, v{X1+e}, v{X1+e}")
    a("s_nop 1")
    reduce2(a, T+2, None)
    a(f"""
    v_readlane_b32 s67, v{T+2}, 63
    s_nop 1
    v_mul_f32 v{T+1}, s67, v{RC}
    {lab}:
    v_cvt_pk_bf16_f32 v{T+1}, -v{T}, v{T+1}
    v_lshlrev_b32 v{T}, 16, v{T+1}
    v_and_b32 v{T+1}, 0xffff0000, v{T+1}
    v_add_f32 v{T+1}, {fbits(1e-5)}, v{T+1}
    v_cvt_pk_bf16_f32 v{T+1}, v{T+1}, v{T+1}
    v_lshlrev_b32 v{T+1}, 16, v{T+1}
    v_sqrt_f32 v{T+1}, v{T+1}
    """)
    dots9(a, X1, P1, vsel, lambda e: f"v{T}")
    a(f"""
    v_cvt_pk_bf16_f32 v{T+1}, v{T+1}, v{T+1}
    v_lshlrev_b32 v{T+1}, 16, v{T+1}
    v_rcp_f32 v{T+1}, v{T+1}
    """)
    rnd1(a, X1+8); rnd_pairs(a, [X1, X1+2, X1+4, X1+6])
    a(f"v_mul_f32 v{X1+8}, v{X1+8}, v{T+1}")
    for i in range(4): a(f"v_pk_mul_f32 {vr(X1+2*i,2)}, {vr(X1+2*i,2)}, {vr(T,2)} op_sel:[0,1] op_sel_hi:[1,1]")

def gen_F(a):
    kernel_head(a, "ka_kernel")
    if DIAG == 31: a("s_memrealtime s[90:91]")
    a(f"""
    s_cmp_ge_u32 s2, 256
    s_cbranch_scc1 M_END
    s_load_dwordx16 s[4:19], s[0:1], 0
    s_load_dwordx16 s[20:35], s[0:1], 64
    s_load_dwordx2 s[36:37], s[0:1], 128
    v_lshrrev_b32 v1, 6, v0
    v_and_b32 v2, 63, v0
    """)
    if ST: a(f"v_mov_b32 v{VST}, 0")
    a("v_readfirstlane_b32 s3, v1")
    stamp(a, 0)
    if CPL:
        a(f"""
        s_cmp_lg_u32 s3, 3
        s_cbranch_scc1 M_NCP
        s_getpc_b64 s[74:75]
        M_PC:
        s_sub_u32 s74, s74, M_PC - ka_kernel
        s_subb_u32 s75, s75, 0
        s_lshr_b32 s76, s2, 3
        s_mul_i32 s76, s76, {CPL}
        v_min_u32 v25, {CPL-1}, v2
        v_add_u32 v25, s76, v25
        v_lshlrev_b32 v25, 7, v25
        v_min_u32 v25, CODE_END - ka_kernel - 4, v25
        global_load_dword v250, v25, s[74:75]
        M_NCP:
        """)
    LL = 10; X = 80; T = 96
    a(f"""
    s_lshl_b32 s40, s2, 3
    s_add_u32 s40, s40, s3
    s_mul_i32 s40, s40, 1152
    v_lshl_add_u32 v3, v2, 4, s40
    v_lshl_add_u32 v4, v2, 1, s40
    v_mov_b32 v20, 0
    v_mov_b32 v21, 0
    v_mov_b32 v22, 0
    v_mov_b32 v23, 0
    v_mov_b32 v{VZ}, 0
    v_mov_b32 v{VONE}, 1
    v_pk_mov_b32 v[34:35], v[20:21], v[20:21]
    v_pk_mov_b32 v[252:253], v[20:21], v[20:21]
    v_pk_mov_b32 v[240:241], v[20:21], v[20:21]
    v_pk_mov_b32 v[242:243], v[20:21], v[20:21]
    v_pk_mov_b32 v[30:31], v[20:21], v[20:21]
    v_pk_mov_b32 v[210:211], v[20:21], v[20:21]
    v_lshlrev_b32 v24, 4, v2
    s_cmp_eq_u32 s3, 0
    s_cbranch_scc0 M_Z1
    s_mov_b64 exec, 0x3fffffff
    ds_write_b128 v24, v[20:23] offset:{L_HB}
    ds_write_b128 v24, v[20:23] offset:{L_HB + HB_P}
    ds_write_b128 v24, v[20:23] offset:{L_HB + 2*HB_P}
    M_Z1:
    s_cmp_eq_u32 s3, 3
    s_cbranch_scc0 M_Z0
    s_mov_b64 exec, 0xfffff
    ds_write_b128 v24, v[20:23] offset:{L_CNT}
    M_Z0:
    s_mov_b64 exec, -1
    s_lshr_b32 s41, s3, 1
    s_lshl_b32 s{sD}, s2, 1
    s_add_u32 s{sD}, s{sD}, s41
    s_lshr_b32 s45, s2, 2
    s_add_u32 s45, s45, 512            ; channel c
    s_cmp_eq_u32 s41, 2
    s_cselect_b32 s{sD}, s45, s{sD}
    s_and_b32 s{sHH}, s3, 1
    ; mod item: cg = u % 27, ks = u / 27
    s_mul_i32 s{sKS}, s2, 2428
    s_lshr_b32 s{sKS}, s{sKS}, 16
    s_mul_i32 s40, s{sKS}, 27
    s_sub_u32 s49, s2, s40             ; cg
    v_lshrrev_b32 v25, 2, v2
    s_lshl_b32 s40, s{sKS}, 6
    v_add_u32 v25, s40, v25
    v_mul_u32_u24 v25, 6912, v25
    v_and_b32 v26, 3, v2
    v_lshl_add_u32 v25, v26, 4, v25
    v_add_u32 v39, s40, v2
    s_lshl_b32 s40, s49, 7
    s_lshl_b32 s50, s{sHH}, 6
    s_add_u32 s40, s40, s50
    v_add_u32 v216, s40, v25
    v_lshlrev_b32 v39, 1, v39
    s_lshl_b32 s40, s{sD}, 8
    v_lshl_add_u32 v5, v2, 2, s40
    s_lshl_b32 s40, s{sD}, 1
    v_mov_b32 v6, s40
    s_waitcnt lgkmcnt(0)
    global_load_dwordx4 {vr(LL,4)}, v3, {P(sX)} {XNT}
    global_load_ushort v{LL+4}, v4, {P(sX)} offset:1024 {XNT}
    s_mov_b32 s50, {16*6912}
    v_add_u32 v217, s50, v216
    v_add_u32 v218, s50, v217
    v_add_u32 v219, s50, v218
    v_mov_b32 v7, {WS_EPOCH}
    """)
    if HINT: a(f"""
    v_lshrrev_b32 v246, 5, v2
    v_lshlrev_b32 v246, 15, v246
    v_and_b32 v247, 31, v2
    v_lshl_add_u32 v246, v247, 7, v246
    s_and_b32 s50, s2, 7
    s_lshl_b32 s50, s50, 12
    s_add_u32 s50, s50, {WS_CNT}
    v_add_u32 v246, s50, v246
    """)
    a(f"""
    {"s_setprio 2" if int(E("M_PRIO1", "1")) else ""}
    s_cmp_ge_u32 s3, 6
    s_cbranch_scc1 M_T0MOD
    s_barrier                          ; B0
    global_load_ushort v44, v6, {P(sLDT)}
    global_load_dword v40, v5, {P(sLAR)} {PNT}
    global_load_dword v41, v5, {P(sAIM)} {PNT}
    global_load_dword v42, v5, {P(sCR)} {PNT}
    global_load_dword v43, v5, {P(sCI)} {PNT}
    s_mov_b32 s62, 5
    """)
    if DNAT == "t0":
        k0_ = len(a.lines); dn_touch(a)
        for i in range(k0_, len(a.lines)): a.lines[i] = a.lines[i].replace("v252", "v247")
        a.lines.insert(len(a.lines) - 1, "  s_mov_b32 s62, 6")
    a(f"""
    s_branch M_T0J
    M_T0MOD:
    s_setprio {E("P67", "2")}
    s_barrier                          ; B0
    {"global_load_dword v247, v246, %s sc1" % P(sWS) if HINT else ""}
    global_load_dword v47, v7, {P(sWS)}
    s_mov_b32 s62, 2
    s_cmp_ge_u32 s2, 243
    s_cbranch_scc1 M_T0J
    global_load_ushort v44, v39, {P(sC)}
    """)
    for i in range(4): a(f"global_load_dwordx4 {vr(48+4*i,4)}, v{216+i}, {P(sWMOD)} {NT}")
    a(f"""
    s_mov_b32 s62, 7
    M_T0J:
    """)
    PK23 = int(E("M_PK23", "0"))
    S4 = int(E("M_S4", "1"))
    S23 = int(E('M_S23', '0'))
    UN = {0: 0, 1: 4, 6: 8, 7: 12, 2: 0, 3: 4, 4: 0, 5: 0} if S4 else {2: 0, 3: 3, 6: 6, 7: 9, 0: 12, 1: 14, 4: 0, 5: 0}
    unib = sum(UN[w] << (4*w) for w in range(8))
    def su_xn(): a(f"""
    s_lshl_b32 s40, s3, 2
    s_lshr_b32 s63, {hex(unib)}, s40
    s_and_b32 s63, s63, 15
    s_lshl_b32 s50, s63, 10
    s_lshl_b32 s51, s2, 14
    s_add_u32 s50, s50, s51
    s_add_u32 s50, s50, {WS_XN}
    v_lshl_add_u32 v{VXA}, v2, 4, s50
    """)
    def su_mp(): a(f"""
    v_lshrrev_b32 v21, 4, v2
    s_lshl_b32 s50, s2, 1
    v_add_u32 v20, s50, v21
    v_mov_b32 v22, s45
    v_cmp_gt_u32 vcc, 2, v21
    v_and_b32 v23, 15, v2
    v_min_u32 v23, 8, v23
    v_cndmask_b32 v20, v22, v20, vcc   ; channel
    v_lshlrev_b32 v23, 9, v23
    v_lshlrev_b32 v{VD}, 1, v20
    v_lshrrev_b32 v22, 6, v20
    v_mul_u32_u24 v22, {9*512}, v22
    v_and_b32 v20, 63, v20
    v_lshl_add_u32 v20, v20, 3, v22
    v_add_u32 v20, v20, v23
    v_add_u32 v{VMA}, {WS_MP}, v20
    v_add_u32 v{VMA+1}, {WS_MP + 9*9*512}, v20
    v_add_u32 v{VMA+2}, {WS_MP + 18*9*512}, v20
    s_mul_i32 s40, s49, 9
    s_add_u32 s40, s40, s{sKS}
    s_lshl_b32 s40, s40, 9
    s_lshl_b32 s50, s{sHH}, 8
    s_add_u32 s40, s40, s50
    s_add_u32 s40, s40, {WS_MP}
    v_and_b32 v34, 3, v2
    v_lshlrev_b32 v34, 6, v34
    v_lshrrev_b32 v35, 3, v2
    v_lshl_add_u32 v34, v35, 3, v34
    v_add_u32 v34, s40, v34
    v_add_u32 v35, {27*9*512}, v34
    """)
    def su_conv(): a(f"""
    v_and_b32 v20, 15, v2              ; i / j
    v_lshrrev_b32 v21, 4, v2
    s_lshl_b32 s40, s3, 2
    v_and_b32 v22, 3, v20
    v_mul_u32_u24 v22, {KC_P}, v22
    v_lshrrev_b32 v23, 2, v20
    v_lshlrev_b32 v23, 3, v23
    v_lshl_add_u32 v23, v21, 4, v23
    v_sub_u32 v22, v22, v23
    v_add_u32 v22, {L_KC + 72}, v22
    v_lshlrev_b32 v23, 5, v20
    v_lshlrev_b32 v19, 4, v21
    v_sub_u32 v19, v23, v19
    v_add_u32 v19, {L_HB + 48}, v19
    v_lshl_add_u32 v3, v21, 3, v23     ; 32j + 8q
    v_add_u32 v3, {L_HB + 480}, v3
    s_lshr_b32 s40, 0x10221100, s40
    s_and_b32 s40, s40, 15
    s_mul_i32 s50, s40, {4*KC_P}
    s_cmp_eq_u32 s40, 2
    s_cselect_b32 s50, {(L_KC2 - L_KC) & 0xffffffff}, s50
    v_add_u32 v{VKA}, s50, v22
    v_add_u32 v{VKA+1}, {4*KC_P}, v22
    s_mul_i32 s50, s40, {HB_P}
    v_add_u32 v{VHA}, s50, v19
    v_add_u32 v{VHA+1}, {HB_P}, v19
    s_mul_i32 s50, s40, 18432
    s_add_u32 s50, s50, {L_PART}
    v_lshl_add_u32 v{VPW}, v2, 4, s50
    v_lshlrev_b32 v{VPW+1}, 4, v2
    v_add_u32 v{VPW+1}, {L_PART + 18432}, v{VPW+1}
    s_lshl_b32 s40, s40, 2
    v_mov_b32 v1, s40
    """)
    def su_epi(): a(f"""
    ; epilogue addresses (tile w): first B[w] (w>=6: D) ; second A if w>=3 ; third D if w in 4,5 (masked otherwise)
    s_add_u32 s85, s3, 7
    s_cmp_ge_u32 s3, 6
    s_cselect_b32 s83, s85, s3
    s_add_u32 s84, s3, 3
    s_cmp_lt_u32 s3, 3
    s_cselect_b32 s84, s83, s84
    s_cselect_b32 s82, 0, 1.0
    s_add_u32 s86, s3, -4
    s_cmp_lt_u32 s86, 2
    s_cselect_b32 s85, s85, s83
    s_cselect_b32 s87, 1.0, 0
    s_lshl_b32 s83, s83, 10
    s_lshl_b32 s84, s84, 10
    s_lshl_b32 s85, s85, 10
    v_lshlrev_b32 v26, 4, v2
    v_add_u32 v26, {L_PART}, v26
    v_add_u32 v24, s83, v26
    v_add_u32 v25, s84, v26
    v_add_u32 v26, s85, v26
    s_lshl_b32 s40, s3, 9
    v_add_u32 v27, s40, v3
    s_mul_i32 s40, s3, 1536
    s_add_u32 s40, s40, {L_TAB}
    v_and_b32 v28, 15, v2
    v_mul_u32_u24 v28, 96, v28
    v_lshrrev_b32 v29, 5, v2
    v_mul_u32_u24 v29, 48, v29
    v_and_b32 v30, 16, v2
    v_add3_u32 v28, v28, v29, v30
    v_add_u32 v28, s40, v28
    v_lshrrev_b32 v30, 2, v2
    v_mul_u32_u24 v29, 96, v30
    v_and_b32 v31, 3, v2
    v_mul_u32_u24 v16, 12, v31
    v_add3_u32 v29, v29, v16, s40
    v_lshlrev_b32 v30, 15, v30
    v_lshl_add_u32 v30, v31, 4, v30
    s_lshl_b32 s40, s3, 19
    s_lshl_b32 s86, s2, 6
    s_add_u32 s40, s40, s86
    s_add_u32 s40, s40, {WS_Z2}
    v_add_u32 v30, s40, v30
    """)
    def su_pack(): a(f"""
    v_lshrrev_b32 v22, 2, v2
    {"s_lshr_b32 s40, s3, 2" if PK23 else "s_and_b32 s40, s3, 3"}
    {"s_lshl_b32 s40, s40, 1" if PK23 else ""}
    {"s_add_u32 s40, s40, s%d" % sHH if PK23 else ""}
    s_lshl_b32 s40, s40, 6
    v_add_u32 v22, s40, v22            ; u'
    v_and_b32 v23, 3, v2
    v_mul_u32_u24 v222, 2592, v23
    v_lshl_add_u32 v222, v22, 2, v222
    v_add_u32 v222, {L_LNR}, v222
    v_lshrrev_b32 v223, 2, v22
    v_lshlrev_b32 v223, 4, v223
    v_lshl_add_u32 v223, v23, 2, v223
    v_add_u32 v223, {L_CB}, v223
    v_lshlrev_b32 v22, 14, v22
    v_lshl_add_u32 v22, v23, 4, v22
    s_lshl_b32 s40, s2, 6
    s_add_u32 s40, s40, {WS_XN}
    v_add_u32 v253, s40, v22
    """)
    def su_kgen():
        a("v_and_b32 v20, 15, v2\nv_lshrrev_b32 v21, 4, v2")
        k0 = len(a.lines)
        kgen_setup(a)
        for i in range(k0, len(a.lines)):
            for o, n in (("v10", "v20"), ("v11", "v21"), ("v12", "v22"), ("v13", "v23")):
                a.lines[i] = re.sub(rf"\b{o}\b", n, a.lines[i])
    a("s_cmp_ge_u32 s3, 6\ns_cbranch_scc1 M_SU6")
    su_kgen()
    a("s_cmp_lt_u32 s3, 4\ns_cbranch_scc1 M_SUD")
    if int(E("SU45", "1")): su_conv(); su_epi()
    a("s_branch M_SUP")
    a.label("M_SU6")
    su_mp()
    a.label("M_SUP")
    su_pack()
    a.label("M_SUD")
    a(f"""
    s_lshr_b32 s40, s3, 1
    s_mul_i32 s40, s40, 2592
    s_mul_i32 s50, s{sHH}, 1280
    s_add_u32 s40, s40, s50
    s_add_u32 s40, s40, {L_LNR}
    v_lshl_add_u32 v220, v2, 4, s40
    s_lshl_b32 s40, s3, 1
    s_add_u32 s40, s40, {L_CB}
    v_lshl_add_u32 v221, v2, 4, s40
    v_mov_b32 v15, {fbits(1.0/576)}
    v_mov_b32 v92, 0x3f803f80
    v_mov_b32 v94, 0x3f80
    v_mov_b32 v95, 0x3f800000
    """)
    stamp(a, 12)
    a(f"""
    s_cmp_eq_u32 s62, 7
    s_cbranch_scc1 M_W6
    s_cmp_eq_u32 s62, 5
    s_cbranch_scc1 M_W5
    s_waitcnt vmcnt({2 if HINT else 1})
    M_W5:
    s_waitcnt vmcnt(5)
    M_W6:
    s_waitcnt vmcnt({7 if HINT else 6})
    """)
    stamp(a, 1)
    ln_core(a, LL, X, T, 92, 94, 15, "M_FAST")
    pack9(a, T, X)
    a(f"""
    ds_write_b128 v220, {vr(T,4)}
    ds_write_b16 v221, v{T+4}
    s_cmp_lt_u32 s3, 6
    s_cbranch_scc1 M_NTAG
    s_cmp_eq_u32 s62, 7
    s_cbranch_scc1 M_TG5
    s_waitcnt vmcnt(0)
    M_TG5:
    s_waitcnt vmcnt(5)
    s_mov_b32 s40, 0x9E3779B1
    v_mul_lo_u32 v33, v47, s40
    v_add_u32 v33, 0x7F4A7C15, v33
    ds_write_b32 v{VZ}, v33 offset:{L_TAG}
    M_NTAG:
    """)
    signal(a, C_LN)
    AC = 112
    def mod_item(rho, w0):
        for e in range(8): a(f"v_mov_b32 v{AC+e}, 0")
        for i in range(4):
            a(f"s_waitcnt vmcnt({w0 - i})")
            for w in range(4):
                a(f"v_dot2c_f32_bf16 v{AC+2*w}, v{48+16*rho+4*i+w}, v{108+i}")
                a(f"v_dot2c_f32_bf16 v{AC+2*w+1}, v{48+16*rho+4*i+w}, v{104+i}")
        a("s_nop 2")
        for e in range(4): a(f"v_permlane32_swap_b32 v{AC+e}, v{AC+4+e}")
        for e in range(4): a(f"v_add_f32 v{AC+e}, v{AC+e}, v{AC+4+e}")
        a("s_nop 0")
        a(f"v_permlane16_swap_b32 v{AC}, v{AC+2}")
        a(f"v_permlane16_swap_b32 v{AC+1}, v{AC+3}")
        a(f"v_add_f32 v{AC}, v{AC}, v{AC+2}")
        a(f"v_add_f32 v{AC+1}, v{AC+1}, v{AC+3}")
        a("s_nop 1")
        a(f"v_add_f32 v32, v{AC}, v{AC} row_ror:8 row_mask:0xf bank_mask:0x3")
        a(f"v_add_f32 v32, v{AC+1}, v{AC+1} row_ror:8 row_mask:0xf bank_mask:0xc")
        a("s_nop 1")
        a(f"v_add_f32 v32, v32, v32 row_shl:4 row_mask:0xf bank_mask:0x5")
        a("s_mov_b32 exec_lo, 0x0f0f0f0f")
        a("s_mov_b32 exec_hi, 0x0f0f0f0f")
        a(f"global_store_dwordx2 v{34+rho}, v[32:33], {P(sWS)} sc1")
        a("s_mov_b64 exec, -1")
    MODF = int(E("M_MODF", "1"))
    a(f"""
    {"s_bitcmp1_b32 s3, 1" if PK23 else "s_cmp_lt_u32 s3, 4"}
    {"s_cbranch_scc0 M_KG" if PK23 else "s_cbranch_scc1 M_KG"}
    s_cmp_lt_u32 s3, 6
    s_cbranch_scc1 M_PACK
    s_cmp_ge_u32 s2, 243
    s_cbranch_scc1 M_PACK
    s_mov_b32 s40, {fbits(-LOG2E)}
    s_waitcnt vmcnt(4)
    v_lshlrev_b32 v44, 16, v44
    v_mul_f32 v45, s40, v44
    v_exp_f32 v45, v45
    v_lshrrev_b32 v46, 2, v2
    v_add_f32 v45, 1.0, v45
    v_rcp_f32 v45, v45
    v_lshlrev_b32 v46, 2, v46
    v_mul_f32 v44, v44, v45
    v_cvt_pk_bf16_f32 v44, v44, 0
    """)
    for i in range(4): a(f"ds_bpermute_b32 v{108+i}, v46, v44 offset:{64*i}")
    a(f"""
    s_waitcnt lgkmcnt(0)
    """)
    for i in range(4): a(f"v_lshlrev_b32 v{104+i}, 16, v{108+i}")
    if MODF:
        mod_item(0, 3)
        stamp(a, 7)
    a.label("M_PACK")
    G0 = 80
    for i in range(1, 4): a(f"v_add_u32 v{20+i}, {64*i}, v222")
    a(f"""
    s_mov_b32 s41, {16 << 14}
    M_SPL:
    ds_read_b64 v[96:97], v{VZ} offset:{L_CNT + C_LN}
    """)
    for i in range(4):
        a(f"ds_read2st64_b32 {vr(G0+4*i,2)}, v{222 if i == 0 else 20+i} offset0:0 offset1:5")
        a(f"ds_read_b32 v{G0+4*i+2}, v223 offset:{64*i}")
    a(f"""
    s_waitcnt lgkmcnt(8)
    v_readfirstlane_b32 s94, v96
    v_readfirstlane_b32 s{sTAG}, v97
    s_cmp_ge_u32 s94, 8
    s_cbranch_scc0 M_SPL
    """)
    for i in range(4):
        a(f"v_mov_b32 v{G0+4*i+3}, v97")
        a(f"s_waitcnt lgkmcnt({6-2*i})")
        a(f"global_store_dwordx4 v253, {vr(G0+4*i,4)}, {P(sWS)} sc1")
        if i < 3: a("v_add_u32 v253, s41, v253")
    stamp(a, 2)
    a(f"""
    {"s_setprio 0" if MODF else ""}
    s_cmp_ge_u32 s3, 6
    s_cbranch_scc1 M_MOD
    s_waitcnt vmcnt(4)
    """)
    if not PK23: signal(a, C_H)
    if E("C_PRIO"): a("s_setprio 1")
    a("s_branch KG_W1")
    a.label("M_KG")
    a("s_setprio 0")
    stamp(a, 2)
    def mp_issue():
        for c in range(3): a(f"global_load_dwordx2 {vr(VMP+2*c,2)}, v{VMA+c}, {P(sWS)} sc1")
    def xn_issue(n=3):
        for i in range(n): a(f"global_load_dwordx4 {vr(XG+4*i,4)}, v{VXA}, {P(sWS)} offset:{1024*i} sc1")
    def first_issue(lo=0, hi=4):
        l = a.newlabel("NI")
        if S4:
            if lo == (2 if S23 == 1 else 0):
                a(f"s_sub_u32 s40, s3, {2 if S23 else 0}\ns_cmp_ge_u32 s40, 2\ns_cbranch_scc1 {l}"); xn_issue(4); a.label(l)
            return
        a(f"""
        s_sub_u32 s40, s3, {lo}
        s_cmp_ge_u32 s40, {hi - lo}
        s_cbranch_scc1 {l}
        s_cmp_lt_u32 s3, 2
        s_cbranch_scc1 {l}B
        global_load_dwordx4 {vr(XG+8,4)}, v{VXA}, {P(sWS)} offset:2048 sc1
        {l}B:
        """)
        xn_issue(2)
        a.label(l)
    XAT = E("M_XAT", "mix")
    def box_load(t):
        a(f"""
        s_getpc_b64 s[74:75]
        BX{t}:
        s_add_u32 s74, s74, BOXT - BX{t}
        s_addc_u32 s75, s75, 0
        v_lshlrev_b32 v{VBX}, 4, v2
        global_load_dwordx4 {vr(VBX+4,4)}, v{VBX}, s[74:75] offset:1024
        global_load_dwordx4 {vr(VBX,4)}, v{VBX}, s[74:75]
        """)
    def box5():
        a("s_cmp_lg_u32 s3, 5\ns_cbranch_scc1 M_NB5"); box_load("B5"); a.label("M_NB5")
    hooks = {"p": box5}
    if XAT not in ("tab", "exp", "pl", "mix"): hooks[XAT] = first_issue
    def chook(spec):
        def f_():
            l = a.newlabel("CH")
            a(f"""
            s_cmp_lt_u32 s3, 4
            s_cbranch_scc1 {l}
            s_mov_b32 s80, m0
            s_cmp_eq_u32 s3, 4
            s_cselect_b32 s78, s22, s24
            s_cselect_b32 s79, s23, s25
            """)
            for it in spec.split(","):
                if it[0] == "p": pf_lines(a, "g", int(it[1]), 252)
                else:
                    k = int(it[1])
                    a(f"""
                    s_cmp_ge_u32 s2, 144
                    s_cbranch_scc1 {l}_{k}
                    s_and_b32 s40, s2, 7
                    s_mul_i32 s40, s40, 18
                    s_lshr_b32 s64, s2, 3
                    s_add_u32 s40, s40, s64
                    s_mul_i32 s40, s40, 36864
                    s_mul_i32 s64, s{sHH}, 18432
                    s_add_u32 s64, s64, {6144*k}
                    s_add_u32 s40, s40, s64
                    s_add_u32 m0, s64, {L_DN}
                    v_lshl_add_u32 v252, v2, 4, s40
                    """)
                    for i in range(6):
                        if i == 3: a("s_add_u32 m0, m0, 3072\nv_add_u32 v252, 3072, v252")
                        a(f"global_load_lds_dwordx4 v252, {P(sWD)} offset:{1024*(i%3)}")
                    a(f"{l}_{k}:")
            a(f"s_mov_b32 m0, s80")
            a.label(l)
        return f_
    if E("C_PRIO"): hooks[E("C_PRIO")] = lambda: a("s_setprio 0")
    CUP = E("C_UP", "tab")
    def cup(): l = a.newlabel("CU"); a(f"s_cmp_lt_u32 s3, 4\ns_cbranch_scc1 {l}\ns_setprio {E('C_UPP', '1')}\n{l}:")
    if CUP in ("t0", "t1", "t2"): hooks[CUP] = cup
    for spec in filter(None, E("M_PFK", "").split(";")):
        hk, w_, it = spec.split(":")
        def mk(prev, w_=w_, it=it):
            def f_():
                if prev: prev()
                l = a.newlabel("PK"); a(f"s_cmp_lg_u32 s3, {w_}\ns_cbranch_scc1 {l}"); pf_lines(a, it[:-1], int(it[-1]), 49); a.label(l)
            return f_
        hooks[hk] = mk(hooks.get(hk))
    CH = dict(x.split(":") for x in E("M_CH", "").split(";") if x)
    for k_, v_ in CH.items(): hooks[k_] = chook(v_)
    if DNAT == "kg":
        def kt():
            k0_ = len(a.lines); dn_touch(a)
            for i in range(k0_, len(a.lines)): a.lines[i] = a.lines[i].replace("v252", "v247")
        hooks[E("F_DNH", "p")] = kt
    gen_kgen(a, 0, hooks)
    signal(a, C_TAB, VED+1)
    if CUP == "tab": cup()
    if int(E("SU45", "1")): a("s_cmp_ge_u32 s3, 4\ns_cbranch_scc1 M_SUE")
    su_conv(); su_xn(); su_epi()
    a.label("M_SUE")
    if XAT == "tab": first_issue()
    if XAT == "mix": first_issue(2, 4)
    stamp(a, 4)
    spin(a, C_TAB, 2, VED+1)
    stamp(a, 5)
    a(f"""
    s_cmp_eq_u32 s{sHH}, 0
    s_cbranch_scc0 M_EXB
    """)
    expand(a, 0)
    a("s_branch M_EXD")
    a.label("M_EXB")
    expand(a, 1)
    a.label("M_EXD")
    signal(a, C_K, VED+1)
    if XAT == "exp": first_issue()
    if XAT == "mix": first_issue(0, 2)
    stamp(a, 6)
    a("s_mov_b32 s73, 0")
    a("s_branch M_CSET")
    a.label("M_MOD")
    a(f"""
    s_cmp_ge_u32 s2, 243
    s_cbranch_scc1 M_MODX
    """)
    for i in range(4): a(f"global_load_dwordx4 {vr(64+4*i,4)}, v{216+i}, {P(sWMOD)} offset:3456 {NT}")
    if not MODF:
        mod_item(0, 11)
        a("s_setprio 0")
        stamp(a, 7)
        mod_item(1, 4)
    a.label("M_MODX")
    box_load("B6")
    su_conv(); su_xn(); su_epi()
    if HINT: a("v_add_u32 v250, 8, v247\nv_mov_b32 v253, v246")
    a("s_setprio 0")
    a(f"""
    s_cmp_lg_u32 s3, 6
    s_cbranch_scc1 M_W7X
    """)
    spin(a, C_TAB if MODF else C_K, int(E("M_MPN", "1")))
    a(f"global_load_ushort v{VD}, v{VD}, {P(sDSK)}")
    mp_issue()
    a(f"""
    s_mov_b32 s41, {SPIN}
    M_MP:
    s_waitcnt vmcnt(0)
    v_xor_b32 v16, s{sTAG}, v{VMP+1}
    v_xor_b32 v17, s{sTAG}, v{VMP+3}
    v_xor_b32 v18, s{sTAG}, v{VMP+5}
    v_or3_b32 v16, v16, v17, v18
    v_cmp_ne_u32 vcc, 0, v16
    s_cbranch_vccz M_MPD
    """)
    mp_issue()
    a(f"""
    s_waitcnt vmcnt(0)
    s_sub_u32 s41, s41, 1
    s_cbranch_scc0 M_MP
    M_MPD:
    {"s_setprio 1" if int(E("M_PRS", "1")) else ""}
    s_mov_b32 exec_lo, 0xfe00fe00
    s_mov_b32 exec_hi, 0xfe00fe00
    v_mov_b32 v{VMP}, 0
    v_mov_b32 v{VMP+2}, 0
    v_mov_b32 v{VMP+4}, 0
    s_mov_b64 exec, -1
    """)
    for sh in (1, 2, 4, 8):
        for r in (VMP, VMP+2, VMP+4): a(f"v_add_f32 v{r}, v{r}, v{r} row_shr:{sh} {DPP_ALL} bound_ctrl:0")
    a(f"""
    v_cvt_pk_bf16_f32 v17, v{VMP}, v{VMP+2}
    v_cvt_pk_bf16_f32 v18, v{VMP+4}, v{VMP+4}
    v_lshlrev_b32 v16, 16, v17         ; sa
    v_and_b32 v17, 0xffff0000, v17     ; ca
    v_add_f32 v17, 1.0, v17
    v_cvt_pk_bf16_f32 v17, v17, v17
    v_and_b32 v17, 0xffff0000, v17     ; c1
    v_mul_f32 v19, 0x42800000, v17
    v_add_f32 v19, abs(v19), abs(v16)
    v_frexp_exp_i32_f32 v19, v19
    v_sub_u32 v19, 11, v19
    v_ldexp_f32 v17, v17, v19
    v_ldexp_f32 v16, v16, v19
    v_sub_u32 v19, 0, v19
    v_lshlrev_b32 v{VD}, 16, v{VD}
    v_lshlrev_b32 v18, 16, v18
    v_ldexp_f32 v{VD}, v{VD}, v19
    v_lshrrev_b32 v20, 2, v2
    v_and_b32 v20, 12, v20
    s_mov_b32 exec_lo, 0x80008000
    s_mov_b32 exec_hi, 0x00008000
    ds_write_b32 v20, v17 offset:{L_PRM}
    ds_write_b32 v20, v16 offset:{L_PRM + 16}
    ds_write_b32 v{VZ}, v33 offset:{L_CNT + C_PR + 4}
    ds_write_b32 v20, v{VD} offset:{L_PRM + 32}
    ds_write_b32 v20, v18 offset:{L_PRM + 48}
    ds_write_b32 v20, v19 offset:{L_PRM + 64}
    s_mov_b64 exec, -1
    """)
    signal(a, C_PR)
    a("s_setprio 0")
    stamp(a, 14)
    a("s_branch M_NI2")
    a.label("M_W7X")
    I2L = int(E("M_I2L", "0"))
    if MODF and not I2L:
        a("s_cmp_ge_u32 s2, 243\ns_cbranch_scc1 M_NI2")
        mod_item(1, 3)
    a.label("M_NI2")
    stamp(a, 3)
    spin(a, C_K, int(E("M_W6N", "1")))
    xn_issue(4 if S4 else 3)
    if I2L:
        a("s_mov_b32 s73, 0\nv_mov_b32 v124, v35")
        for i in range(4): a(f"v_mov_b32 v{120+i}, v{28+i}")
    else:
        a("s_mov_b32 s73, 0\ns_cmp_lg_u32 s3, 6\ns_cbranch_scc1 M_CSET\ns_cmp_ge_u32 s2, 243\ns_cbranch_scc1 M_CSET")
        mod_item(1, 7 if S4 else 6)
        a("s_mov_b32 s73, 1")
    def pf_waves(spec, tag, v0):
        for grp in filter(None, spec.split(";")):
            w, items = grp.split(":")
            l = a.newlabel("PF")
            a(f"s_cmp_lg_u32 s3, {w}"); a(f"s_cbranch_scc1 {l}")
            for it in items.split(","): pf_lines(a, it[:-1], int(it[-1]), v0)
            a.label(l)
    pf_waves(E("M_PFA", ""), "a", 100)
    a.label("M_CSET")
    NPK_ = int(E("M_NPXK", "3"))
    jobs = {"A": Job([(0, JA, "A")]), "B": Job([(0, JB, "B")]), "D": Job([(0, JD, "D")], far=[4, 5, 6, 7], fartag="D")}
    for k in range(4): jobs[f"P{k}"] = Job([(0, JP(k), None)], NPK_)
    for k in range(4): jobs[f"Q{k}"] = Job([(0, JQs(k), None)], NPK_, far=[7 - k], fartag="X")
    a(f"""
    s_lshl_b32 s40, s3, 2
    s_lshr_b32 s40, 0x22731010, s40
    s_and_b32 s62, s40, 15
    s_and_b32 s40, s2, 3
    s_cmp_ge_u32 s62, 3
    s_cselect_b32 s40, s40, 0
    s_add_u32 s62, s62, s40
    """)
    def dispatch(pre):
        for i, nm in enumerate(list(jobs)[:-1]):
            a(f"s_cmp_eq_u32 s62, {i}")
            a(f"s_cbranch_scc1 {pre}{nm}")
        a(f"s_branch {pre}Q3")
    SF = int(E("M_SF", "1"))
    if SF: a("s_cmp_ge_u32 s3, 6\ns_cbranch_scc1 M_TGS\nM_PL0:")
    spin(a, C_K, 2, 1)
    dispatch("M_PL")
    for nm, jb in jobs.items():
        a.label(f"M_PL{nm}")
        jb.preload(a)
        a("s_branch M_STG")
    a.label("M_STG")
    stamp(a, 8)
    a(f"""
    s_cmp_ge_u32 s3, 4
    s_cbranch_scc1 M_HW
    {("s_cmp_lt_u32 s3, 2" if S23 else "s_cmp_ge_u32 s3, 2") if S4 else ""}
    {"s_cbranch_scc1 M_U3" if S4 else ""}
    """)
    a(f"""
    M_TGS:
    {"s_setprio 1" if int(E("M_PRS", "1")) else ""}
    ds_read_b64 v[16:17], v{VZ} offset:{L_CNT + C_PR}
    ds_read_b128 v[48:51], v{VZ} offset:{L_PRM}
    ds_read_b128 v[52:55], v{VZ} offset:{L_PRM + 16}
    s_lshl_b32 s40, s63, 8
    s_add_u32 s40, s40, {L_HB + 480}
    s_mov_b32 m0, s40
    s_mov_b32 s41, {SPIN}
    v_mov_b32 v62, 0x3f80
    v_mov_b32 v63, 0x3f800000
    s_waitcnt lgkmcnt(0)
    v_readfirstlane_b32 s94, v16
    v_readfirstlane_b32 s{sTAG}, v17
    v_readfirstlane_b32 s66, v48
    v_readfirstlane_b32 s69, v50
    v_readfirstlane_b32 s67, v49
    v_readfirstlane_b32 s70, v52
    v_readfirstlane_b32 s71, v53
    v_readfirstlane_b32 s72, v54
    s_lshr_b32 s66, s66, 16
    s_lshr_b32 s68, s69, 16
    s_cmp_ge_u32 s94, 1
    s_cbranch_scc0 M_TGS
    s_waitcnt vmcnt(1)
    s_cmp_eq_u32 s73, 1
    s_cbranch_scc1 M_XP1
    M_XP:
    s_waitcnt vmcnt(0)
    M_XP1:
    v_xor_b32 v16, s{sTAG}, v{XG+3}
    v_xor_b32 v17, s{sTAG}, v{XG+7}
    v_xor_b32 v18, s{sTAG}, v{XG+11}
    {"v_xor_b32 v19, s%d, v%d" % (sTAG, XG+15) if S4 else "s_cmp_lt_u32 s3, 2"}
    {"v_or_b32 v18, v18, v19" if S4 else "s_cselect_b32 s40, 0, -1"}
    {"" if S4 else "v_and_b32 v18, s40, v18"}
    v_or3_b32 v16, v16, v17, v18
    v_cmp_ne_u32 vcc, 0, v16
    s_cbranch_vccz M_XD
    s_mov_b64 exec, vcc
    """)
    xn_issue(4 if S4 else 3)
    a(f"""
    s_mov_b64 exec, -1
    s_sub_u32 s41, s41, 1
    s_cbranch_scc0 M_XP
    M_XD:
    """)
    stamp(a, 9)
    pf_waves(E("M_PFX", ""), "x", 16)
    def units(lst, FO=16):
        Y = 32
        for n, u in enumerate(lst):
            g = XG + 4*u; y = Y + 6*n
            for k, (src, cs) in enumerate(((g, 66), (g+1, 66), (g, 67), (g+1, 67), (g+2, 68), (g+2, 69))):
                a(f"v_dot2_f32_bf16 v{y+k}, v{src}, s{cs}, 0")
        if len(lst) == 1: a("s_nop 0")
        prs = [Y + 2*i for i in range(3*len(lst))]
        for p in prs: a(f"v_cvt_pk_bf16_f32 v{p+1}, v{p}, v{p+1}")
        for i, p in enumerate(prs):
            a(f"v_dot2_f32_bf16 v{p}, v{p+1}, v62, s{70 + i%3}")
            a(f"v_dot2_f32_bf16 v{p+1}, v{p+1}, v63, s{70 + i%3}")
        a("s_nop 1")
        rnd_pairs(a, prs)
        for i, p in enumerate(prs): a(f"v_cvt_pk_f16_f32 v{FO+i}, v{p}, v{p+1}")
        for i, p in enumerate(prs): a(f"ds_write_addtid_b32 v{FO+i} offset:{(i%3)*HB_P + lst[i//3]*256}")
    if S4:
        units([0, 1]); units([2, 3], 56)
    else:
        a("""
        s_cmp_lt_u32 s3, 2
        s_cbranch_scc1 M_U2
        """)
        units([0, 1, 2])
        a("s_branch M_U3")
        a.label("M_U2")
        units([0, 1])
    a.label("M_U3")
    signal(a, C_H)
    pf_waves(E("M_PFS", ""), "s", 16)
    a("s_setprio 0")
    if I2L:
        a("s_cmp_lt_u32 s3, 6\ns_cbranch_scc1 M_NI4\ns_cmp_ge_u32 s2, 243\ns_cbranch_scc1 M_PL0")
        a(f"v_mov_b32 v33, s{sTAG}\nv_mov_b32 v35, v124")
        for i in range(4): a(f"v_mov_b32 v{28+i}, v{120+i}\nv_lshlrev_b32 v{24+i}, 16, v{120+i}")
        mod_item(1, 3)
        a("s_branch M_PL0")
        a.label("M_NI4")
    else: a("s_cmp_ge_u32 s3, 6\ns_cbranch_scc1 M_PL0")
    RR = 128
    def red_issue():
        for s_ in range(8): a(f"global_load_dwordx2 {vr(RR+2*s_,2)}, v146, {P(sWS)} offset:{512*s_} sc1")
        a(f"global_load_dwordx2 {vr(RR+16,2)}, v147, {P(sWS)} sc1")
    def red_addr():
        a(f"""
        s_sub_u32 s40, s2, {229 - 27}
        s_mul_i32 s40, s40, {9*512}
        s_add_u32 s40, s40, {WS_MP}
        v_lshl_add_u32 v146, v2, 3, s40
        v_add_u32 v147, 4096, v146
        """)
    a(f"""
    M_HW:
    ; f-slice of D workgroups, down weights -> LDS
    s_and_b32 s40, s2, 7
    s_mul_i32 s40, s40, 18
    s_lshr_b32 s41, s2, 3
    s_add_u32 s46, s40, s41            ; fs
    """)
    def dn_fill(tag):
        L = ["v_lshrrev_b32 v15, 2, v2", "s_mul_i32 s40, s3, 144", "v_add_u32 v15, s40, v15", "v_mul_u32_u24 v15, 9216, v15", "v_and_b32 v251, 3, v2",
             "v_lshl_add_u32 v15, v251, 4, v15", "s_lshl_b32 s40, s46, 6", "v_add_u32 v15, s40, v15", "s_mul_i32 s40, s3, 9216", f"s_add_u32 m0, s40, {L_G}", f"s_mov_b32 s40, {16*9216}"]
        for i in range(9):
            L.append(f"s_cmp_ge_u32 s2, s47\ns_cbranch_scc1 DN{tag}_{i}\nglobal_load_lds_dwordx4 v15, {P(sWG)} {E('F_GFL', '')}\nDN{tag}_{i}:")
            if i < 8: L += ["s_add_u32 m0, m0, 1024\nv_add_u32 v15, s40, v15"]
        return L
    def pf_fill(spec):
        b = Asm(); b.uid = a.uid + 1000
        for it in spec.split(","): pf_lines(b, it[:-1], int(it[-1]), 252)
        return [x.strip() for x in b.lines if x.strip()]
    a("""
    s_cmp_lt_u32 s3, 4
    s_cselect_b32 s47, 144, 0
    s_lshr_b32 s40, 0x8c, s3
    s_bitcmp1_b32 s40, 0
    s_cselect_b32 s78, s24, s22
    s_cselect_b32 s79, s25, s23
    """)
    pf_waves(E("M_PFR", ""), "r", 16)
    if int(E("M_PRIO4", "1")):
        a("s_cmp_lt_u32 s3, 4\ns_cbranch_scc1 M_NP4\ns_setprio 1\nM_NP4:")
    PFJ = dict(x.split(":") for x in E("M_PFJ", "A:g0;B:g1;D:g2").split(";") if x)
    dispatch("M_RUN")
    def hspin(nm): a(f"""
    M_HS{nm}:
    ds_read_b32 v251, v{VZ} offset:{L_CNT + C_H}
    ds_read_b32 v15, v{VZ} offset:{L_TAG}
    s_waitcnt lgkmcnt(0)
    v_readfirstlane_b32 s94, v251
    v_readfirstlane_b32 s{sTAG}, v15
    s_cmp_ge_u32 s94, {6 if PK23 else 8}
    s_cbranch_scc0 M_HS{nm}
    """)
    for nm, jb in jobs.items():
        a.label(f"M_RUN{nm}")
        hspin(nm)
        stamp(a, 10)
        fl_ = []
        if nm in PFJ:
            for it in PFJ[nm].split(","):
                it, at = (it.split("@") + ["0"])[:2]
                fl_ += [""] * (2*int(at) - len(fl_)) + pf_fill(it)
        if nm == "D":
            b_ = Asm(); sv = a.lines; a.lines = b_.lines
            a("s_cmp_lg_u32 s3, 6\ns_cbranch_scc1 M_NRI\ns_cmp_lt_u32 s2, 229\ns_cbranch_scc1 M_NRI"); red_addr(); red_issue(); a.label("M_NRI")
            a.lines = sv
            fl_ = ["\n".join(b_.lines)] + fl_
        if nm[0] in "PQ": a(f"v_lshlrev_b32 v{VPW}, 4, v2\nv_add_u32 v{VPW}, {L_PART + 15*1024}, v{VPW}")
        acc = jb.run(a, fl_)
        if nm[0] in "PQ":
            k = int(nm[1]); t_ = 7 - k if nm[0] == "P" else k
            c0 = acc[(0, t_)]
            if nm[0] == "P":
                a(f"""
                M_CS{nm}:
                ds_read_b32 v40, v{VZ} offset:{L_CNT + C_K + 12}
                ds_read_b128 v[52:55], v{VPW}
                s_waitcnt lgkmcnt(0)
                v_readfirstlane_b32 s94, v40
                s_cmp_ge_u32 s94, 1
                s_cbranch_scc0 M_CS{nm}
                """)
            a(f"""
            ds_read_b32 v40, v{VZ} offset:{L_PRM + 32 + 8}
            ds_read_b32 v41, v{VZ} offset:{L_PRM + 48 + 8}
            ds_read_b32 v42, v{VZ} offset:{L_PRM + 64 + 8}
            ds_read_b32 v43, v{VZ} offset:{L_PRM + 80 + 8}
            ds_read_b64 v[44:45], v3 offset:{2*HB_P + 512*t_}
            v_and_b32 v16, 15, v2
            v_mul_u32_u24 v16, 96, v16
            v_lshrrev_b32 v17, 5, v2
            v_mul_u32_u24 v17, 48, v17
            v_bfe_u32 v18, v2, 4, 1
            v_lshl_add_u32 v17, v18, 3, v17
            v_add_u32 v16, v16, v17
            v_add_u32 v16, {L_TAB + 32}, v16
            """)
            if nm[0] == "P":
                for e in range(4): a(f"v_add_f32 v{c0+e}, v{c0+e}, v{52+e}")
            a("s_waitcnt lgkmcnt(0)\nv_ldexp_f32 v43, v43, v42")
            epi_core(a, c0, 44, 48, "v43", "v40", "v41", 4)
            for i in range(2): a(f"v_cvt_pk_bf16_f32 v{48+i}, v{c0+2*i}, v{c0+2*i+1}")
            a(f"ds_write_b64 v16, v[48:49] offset:{1536*t_}")
        a("s_branch M_FIN")
    a.label("M_FIN")
    a("s_setprio 0")
    stamp(a, 11)
    a(f"""
    s_cmp_lg_u32 s3, 6
    s_cbranch_scc1 M_NRED
    s_cmp_lt_u32 s2, 229
    s_cbranch_scc1 M_NRED
    s_mov_b32 s41, {SPIN}
    """)
    red_addr()
    a(f"""
    s_waitcnt vmcnt({1 if "D" in PFJ else 0})
    M_RP:
    v_xor_b32 v148, s{sTAG}, v{RR+17}
    """)
    for s_ in range(8):
        a(f"v_xor_b32 v149, s{sTAG}, v{RR+2*s_+1}")
        a("v_or_b32 v148, v148, v149")
    a(f"""
    v_cmp_ne_u32 vcc, 0, v148
    s_cbranch_vccz M_RD
    """)
    red_issue()
    a(f"""
    s_waitcnt vmcnt(0)
    s_sub_u32 s41, s41, 1
    s_cbranch_scc0 M_RP
    M_RD:
    """)
    for s_ in range(8): a(f"v_add_f32 v{RR+16}, v{RR+16}, v{RR+2*s_}")
    a(f"""
    v_cvt_pk_bf16_f32 v148, v{RR+16}, v{RR+16}
    s_sub_u32 s40, s2, {229 + 9}
    s_cmp_lt_u32 s40, 9
    s_cbranch_scc0 M_RNC
    v_lshlrev_b32 v148, 16, v148
    v_add_f32 v148, 1.0, v148
    v_cvt_pk_bf16_f32 v148, v148, v148
    M_RNC:
    s_sub_u32 s40, s2, 229
    s_lshl_b32 s40, s40, 8
    s_add_u32 s40, s40, {WS_PT16}
    v_mov_b32 v150, v148 quad_perm:[1,1,3,3] {DPP_ALL}
    v_lshl_add_u32 v151, v2, 2, s40
    v_mov_b32 v149, s{sTAG}
    v_alignbit_b32 v148, v150, v148, 16
    s_mov_b32 exec_lo, 0x55555555
    s_mov_b32 exec_hi, 0x55555555
    global_store_dwordx2 v151, v[148:149], {P(sWS)} sc1
    s_mov_b64 exec, -1
    M_NRED:
    s_cmp_lg_u32 s3, 7
    s_cbranch_scc1 M_NWR
    v_lshlrev_b32 v148, 4, v2
    s_mov_b32 m0, {L_PT + 3456}
    s_nop 0
    global_load_lds_dwordx4 v148, {P(sWR)}
    s_mov_b64 exec, 0xff
    global_load_lds_dwordx4 v148, {P(sWR)} offset:1024
    s_mov_b64 exec, -1
    M_NWR:
    """)
    a(f"""
    ds_read_b64 v[64:65], v{VZ} offset:{L_PRM + 32}
    ds_read_b64 v[66:67], v{VZ} offset:{L_PRM + 48}
    ds_read_b64 v[68:69], v{VZ} offset:{L_PRM + 64}
    ds_read_b64 v[70:71], v{VZ} offset:{L_PRM + 80}
    ds_read_b64 v[72:73], v27
    ds_read_b64 v[74:75], v27 offset:{HB_P}
    s_waitcnt lgkmcnt(6)
    s_barrier                          ; B6
    ds_read_b128 v[80:83], v24
    ds_read_b128 v[84:87], v25
    ds_read_b128 v[88:91], v26
    ds_read_b128 v[92:95], v24 offset:18432
    ds_read_b128 v[96:99], v25 offset:18432
    ds_read_b128 v[100:103], v26 offset:18432
    v_min_u32 v124, 175, v0
    v_lshlrev_b32 v125, 4, v0
    v_lshlrev_b32 v124, 4, v124
    v_add_u32 v126, {WS_PT16}, v125
    v_add_u32 v127, {WS_PT16 + 4096}, v124
    s_cmp_ge_u32 s3, 4
    s_cbranch_scc1 M_NPL
    global_load_dwordx4 v[128:131], v126, {P(sWS)} sc1
    global_load_dwordx4 v[132:135], v127, {P(sWS)} sc1
    M_NPL:
    s_waitcnt lgkmcnt(6)
    """)
    for e in range(4): a(f"v_fma_mix_f32 v{104+e}, v{72+e//2}, v64, 0 op_sel:[{e&1},0,0] op_sel_hi:[1,0,0]")
    for e in range(4): a(f"v_fma_mix_f32 v{108+e}, v{74+e//2}, v65, 0 op_sel:[{e&1},0,0] op_sel_hi:[1,0,0]")
    a("v_ldexp_f32 v70, v70, v68\nv_ldexp_f32 v71, v71, v69")
    rnd_pairs(a, [104, 106, 108, 110])
    if "2a" in HINT: a("s_cmp_lg_u32 s3, 5\ns_cbranch_scc1 M_NH2"); hint_add(a, 0, "H2"); a.label("M_NH2")
    a("s_waitcnt lgkmcnt(3)")
    for e in range(4): a(f"v_fmac_f32 v{80+e}, s82, v{84+e}")
    for e in range(4): a(f"v_fmac_f32 v{80+e}, s87, v{88+e}")
    a("s_waitcnt lgkmcnt(0)")
    for e in range(4): a(f"v_fma_f32 v{84+e}, s82, v{96+e}, v{92+e}")
    for e in range(4): a(f"v_fmac_f32 v{84+e}, s87, v{100+e}")
    for e in range(8): a(f"v_mul_f32 v{80+e}, v{70+e//4}, v{80+e}")
    for i in range(4): a(f"v_cvt_pk_bf16_f32 v{88+i}, v{80+2*i}, v{81+2*i}")
    a("v_mov_b32 v62, 0x3f80")
    a("v_mov_b32 v63, 0x3f800000")
    for e in range(8): a(f"v_dot2_f32_bf16 v{80+e}, v{88+e//2}, v{62+(e&1)}, v{104+e}")
    rnd_pairs(a, [80, 82, 84, 86])
    for e in range(8): a(f"v_mul_f32 v{80+e}, v{66+e//4}, v{80+e}")
    for e in range(4): a(f"v_cvt_pk_bf16_f32 v{88+e}, v{80+e}, v{84+e}")
    a(f"""
    ds_write_b128 v28, v[88:91]
    ds_read2_b32 v[116:117], v29 offset0:0 offset1:1
    ds_read_b32 v118, v29 offset:8
    ds_read2_b32 v[120:121], v29 offset0:12 offset1:13
    ds_read_b32 v122, v29 offset:56
    v_mov_b32 v119, s{sTAG}
    v_mov_b32 v123, s{sTAG}
    v_add_u32 v31, 16384, v30
    v_lshrrev_b32 v125, 1, v125
    v_lshrrev_b32 v124, 1, v124
    v_add_u32 v125, {L_PT}, v125
    v_add_u32 v124, {L_PT + 2048}, v124
    s_waitcnt lgkmcnt(2)
    global_store_dwordx4 v30, v[116:119], {P(sWS)} sc1
    s_waitcnt lgkmcnt(0)
    global_store_dwordx4 v31, v[120:123], {P(sWS)} sc1
    """)
    if "2b" in HINT: a("s_cmp_lg_u32 s3, 0\ns_cbranch_scc1 M_NH2"); hint_add(a, 0, "H2"); a.label("M_NH2")
    stamp(a, 17)
    gen_tail(a)
    return ("ka_kernel", 256, 512, M_LDS, 256, 100, 256)

def dn_touch(a):
    if E('NOW') or E('NOD'): return
    a("s_cmp_ge_u32 s3, 3\ns_cbranch_scc1 T_NT")
    a("""
    s_lshr_b32 s64, s2, 3
    s_mul_i32 s64, s64, 162
    s_mul_i32 s65, s3, 54
    s_add_u32 s64, s64, s65
    s_and_b32 s65, s2, 7
    s_mul_i32 s65, s65, 5184
    s_add_u32 s64, s64, s65
    v_min_u32 v252, 53, v2
    v_add_u32 v252, s64, v252
    v_lshlrev_b32 v252, 7, v252
    """)
    a(f"global_load_dword v250, v252, {P(sWD)}")
    a.label("T_NT")


def hint_add(a, hop, lab):
    a(f"""
    s_lshr_b32 s64, s2, 3
    s_lshl_b32 s64, s64, 7
    s_add_u32 s64, s64, {WS_CNT + hop*32768}
    v_lshlrev_b32 v252, 12, v2
    s_mov_b64 exec, 0xff
    v_add_u32 v252, s64, v252
    global_atomic_add v252, v{VONE}, {P(sWS)} sc1
    s_mov_b64 exec, -1
    """)
def hint_wait(a, hop, lab, bo):
    a(f"""
    s_mov_b32 s64, 200
    s_mov_b32 exec_lo, {-1 if hop == 0 else 0}
    s_mov_b32 exec_hi, {0 if hop == 0 else -1}
    {lab}:
    global_load_dword v252, v253, {P(sWS)} sc1
    s_waitcnt vmcnt(0)
    v_cmp_ne_u32 vcc, v252, v250
    s_cbranch_vccz {lab}D
    s_mov_b64 exec, vcc
    s_sleep {bo}
    s_sub_u32 s64, s64, 1
    s_cbranch_scc0 {lab}
    {lab}D:
    s_mov_b64 exec, -1
    """)

def reduce2(a, A, B):
    for m in [f"row_shr:1 {DPP_ALL} bound_ctrl:0", f"row_shr:2 {DPP_ALL} bound_ctrl:0", f"row_shr:4 {DPP_ALL} bound_ctrl:0", f"row_shr:8 {DPP_ALL} bound_ctrl:0",
              "row_bcast:15 row_mask:0xa bank_mask:0xf", "row_bcast:31 row_mask:0xc bank_mask:0xf"]:
        a(f"v_add_f32 v{A}, v{A}, v{A} {m}")
        if B is not None: a(f"v_add_f32 v{B}, v{B}, v{B} {m}")
        a("s_nop 0" if B is not None else "s_nop 1")

def gen_tail(a):
    XF, C1, SB, GB, WR = 16, 26, 36, 46, 56
    ONES, LO, HI, RC = 61, 62, 63, 15
    Z, X1, P1, T, H2, O = 64, 70, 80, 86, 96, 102
    WG_, WD_ = 136, 176
    ZG, ZA = 192, 208
    sel = lambda e: LO + (e & 1)
    sKEY, sOWN = 47, 48
    GUK = 1
    GUAT = E('F_GU', 'b7')
    DNP0 = E('F_DNP', 'k')
    PFIRST = int(E('F_PFIRST', '1'))
    PLAN = E("F_PLAN", "D")
    def w_dma(mats):
        if E('NOW'): return
        a(f"""
        v_lshrrev_b32 v9, 2, v2
        s_mul_i32 s40, s3, 144
        v_add_u32 v9, s40, v9
        v_mul_u32_u24 v9, 9216, v9
        v_and_b32 v8, 3, v2
        v_lshl_add_u32 v9, v8, 4, v9
        s_lshl_b32 s40, s46, 6
        v_add_u32 v9, s40, v9
        s_mul_i32 s50, s3, 9216
        s_mov_b32 s40, {16*9216}
        """)
        for k, m in enumerate(mats):
            a(f"s_add_u32 m0, s50, {L_G if m == 'g' else L_U}")
            a(f"v_mov_b32 v8, v9")
            for i in range(9):
                a(f"global_load_lds_dwordx4 v8, {P(sWG if m == 'g' else sWU)}")
                if i < 8: a("s_add_u32 m0, m0, 1024\nv_add_u32 v8, s40, v8")
    def gu_dma():
        a("s_cmp_ge_u32 s2, 144\ns_cbranch_scc1 T_NGU")
        if PLAN != "C": w_dma("gu" if PLAN in "AD" else "g")
        if not PFIRST: a(f"s_waitcnt vmcnt({20 if PLAN == 'A' else 11})\ns_branch T_PP1")
        a.label("T_NGU")
    def dn_dma():
        if E('NOW') or E('NOD'): return
        a('s_cmp_ge_u32 s2, 144\ns_cbranch_scc1 T_NDN\ns_cmp_ge_u32 s3, 4\ns_cbranch_scc1 T_NDN')
        a(f"""
        s_mul_i32 s40, s46, 36864
        s_mul_i32 s51, s3, 9216
        s_add_u32 s40, s40, s51
        s_add_u32 m0, s51, {L_D2}
        v_lshl_add_u32 v9, v2, 4, s40
        """)
        for i in range(9):
            a(f"global_load_lds_dwordx4 v9, {P(sWD)} offset:{1024*(i%3)} {E('F_DFL', '')}")
            if i % 3 == 2 and i < 8: a("s_add_u32 m0, m0, 3072\nv_add_u32 v9, 3072, v9")
        a.label("T_NDN")
    a(f"""
    s_cmp_lg_u32 s3, 7
    s_cbranch_scc1 T_B7
    s_waitcnt vmcnt(2)
    T_B7:
    s_barrier                          ; B7
    s_cmp_ge_u32 s3, 4
    s_cbranch_scc1 T_ZW
    """)
    a(f"""
    s_mov_b32 s41, {SPIN}
    """)
    if not PFIRST: gu_dma()
    a(f"""
    s_waitcnt vmcnt(2)
    s_branch T_PP1
    T_PP:
    global_load_dwordx4 v[128:131], v126, {P(sWS)} sc1
    global_load_dwordx4 v[132:135], v127, {P(sWS)} sc1
    s_waitcnt vmcnt(0)
    T_PP1:
    v_xor_b32 v129, s{sTAG}, v129
    v_xor_b32 v131, s{sTAG}, v131
    v_xor_b32 v133, s{sTAG}, v133
    v_xor_b32 v135, s{sTAG}, v135
    v_or3_b32 v129, v129, v131, v133
    v_or_b32 v129, v129, v135
    v_cmp_ne_u32 vcc, 0, v129
    s_cbranch_vccz T_PD
    s_sub_u32 s41, s41, 1
    s_cbranch_scc0 T_PP
    T_PD:
    ds_write2_b32 v125, v128, v130 offset0:0 offset1:1
    ds_write2_b32 v124, v132, v134 offset0:0 offset1:1
    """)
    signal(a, C_P)
    if PFIRST: gu_dma()
    if E("F_DT", "b9") == "b7": dn_touch(a)
    a(f"""
    s_branch T_COM
    T_ZW:
    s_sub_u32 s40, s3, 4
    s_lshl_b32 s41, s40, 12
    s_lshl_b32 s50, s2, 14
    s_add_u32 s41, s41, s50
    s_add_u32 s41, s41, {WS_Z2}
    v_lshl_add_u32 v{ZA+3}, v2, 4, s41
    s_lshl_b32 s40, s40, 8             ; 4 * 64(w-4)
    v_lshrrev_b32 v64, 2, v2
    v_lshl_add_u32 v65, v64, 2, s40    ; 4p
    v_and_b32 v66, 3, v2               ; g
    v_mul_u32_u24 v67, {3*ZR_P}, v66
    v_add_u32 v{ZA}, v65, v67
    v_add_u32 v{ZA}, {L_ZR}, v{ZA}
    v_add_u32 v{ZA+1}, {ZR_P}, v{ZA}
    v_add_u32 v{ZA+2}, {2*ZR_P}, v{ZA}
    s_lshr_b32 s41, s2, 5
    s_sub_u32 s50, 7, s41
    s_min_u32 s41, s41, s50            ; owner k
    v_and_b32 v67, 3, v64
    v_and_b32 v65, -16, v65            ; (p>>2)*16
    v_add_u32 v65, {L_ZC}, v65
    v_mov_b32 v68, {L_ZC + 1024}
    v_cmp_eq_u32 vcc, s41, v67
    s_nop 1
    v_cndmask_b32 v65, v68, v65, vcc
    v_add_u32 v67, 4, v65
    v_add_u32 v68, 8, v65
    v_add_u32 v69, 12, v65
    v_cmp_eq_u32 vcc, 2, v66
    s_nop 1
    v_cndmask_b32 v{ZA+2}, v{ZA+2}, v65, vcc
    v_cmp_eq_u32 vcc, 3, v66
    s_nop 1
    v_cndmask_b32 v{ZA}, v{ZA}, v67, vcc
    v_cndmask_b32 v{ZA+1}, v{ZA+1}, v68, vcc
    v_cndmask_b32 v{ZA+2}, v{ZA+2}, v69, vcc
    """)
    a.label("T_COM")
    a(f"""
    v_mov_b32 v64, 0
    v_mov_b32 v65, 0
    v_mov_b32 v66, 0
    v_mov_b32 v67, 0
    v_lshlrev_b32 v68, 4, v0
    v_min_u32 v69, 15, v0
    v_lshlrev_b32 v69, 4, v69
    ds_write_b128 v68, v[64:67] offset:{L_LIST}
    ds_write_b128 v69, v[64:67] offset:{L_LIST + 8192}
    v_mov_b32 v{ONES}, 0x3f803f80
    v_mov_b32 v{RC}, {fbits(1.0/576)}
    v_and_b32 v212, 3, v2
    v_lshlrev_b32 v212, 4, v212
    v_lshrrev_b32 v213, 2, v2
    v_lshlrev_b32 v213, 14, v213
    s_lshl_b32 s41, s2, 6
    s_add_u32 s41, s41, {WS_KEY}
    v_add3_u32 v213, v213, v212, s41
    s_lshl_b32 s41, s3, 3
    v_mov_b32 v214, s41
    v_mov_b32 v217, s{sTAG}
    s_lshl_b32 s61, s2, 3
    s_add_u32 s61, s61, s3
    s_sub_u32 s61, 0xffff, s61
    """)
    for w in range(4): unpk(a, XF+2*w, XF+2*w+1, 10+w)
    a(f"""
    v_lshlrev_b32 v{XF+8}, 16, v14
    v_lshlrev_b32 v4, 4, v2
    v_add_u32 v4, {L_PT}, v4
    v_lshlrev_b32 v5, 1, v2
    v_add_u32 v5, {L_PT + 1024}, v5
    s_mul_i32 s40, s3, {ZR_P}
    s_add_u32 s40, s40, {L_ZR}
    v_lshl_add_u32 v6, v2, 4, s40
    s_lshl_b32 s40, s3, 1
    s_add_u32 s40, s40, {L_ZC}
    v_lshl_add_u32 v7, v2, 4, s40
    """)
    def z_issue():
        for n in range(4): a(f"global_load_dwordx4 {vr(ZG+4*n,4)}, v{ZA+3}, {P(sWS)} offset:{1024*n} sc1")
    stamp(a, 18)
    def p_prep():
        spin(a, C_P, 4)
        for t, d in ((0, 112), (1, 118), (2, 124)):
            a(f"ds_read_b128 {vr(72+8*t, 4)}, v4 offset:{1152*t}")
            a(f"ds_read_u16 v{76+8*t}, v5 offset:{1152*t}")
        a(f"""
        ds_read_b128 {vr(WR,4)}, v4 offset:3456
        ds_read_u16 v{WR+4}, v5 offset:3456
        s_waitcnt lgkmcnt(4)
        """)
        for w in range(4): unpk(a, SB+2*w, SB+2*w+1, 72+w)
        a(f"v_lshlrev_b32 v{SB+8}, 16, v76")
        for w in range(4):
            a(f"v_and_b32 v{C1+2*w}, 0xffff, v{80+w}")
            a(f"v_and_b32 v{C1+2*w+1}, 0xffff0000, v{80+w}")
        a(f"v_mov_b32 v{C1+8}, v84")
        a("s_waitcnt lgkmcnt(2)")
        for w in range(4):
            a(f"v_and_b32 v{GB+2*w}, 0xffff, v{88+w}")
            a(f"v_and_b32 v{GB+2*w+1}, 0xffff0000, v{88+w}")
        a(f"""
        v_mov_b32 v{GB+8}, v92
        """)

    ZF = int(E("F_ZF", "0"))
    if not ZF: p_prep()
    a(f"""
    s_cmp_lt_u32 s3, 4
    s_cbranch_scc1 T_LW
    s_mov_b32 s41, {SPIN}
    s_mov_b32 s60, 0
    """)
    if "2" in HINT:
        a("s_cmp_lg_u32 s3, 7\ns_cbranch_scc1 T_H2S")
        hint_wait(a, 0, "T_H2W", int(E("HBO", "6")))
        signal(a, C_KP + 8)
        a("s_branch T_ZP1")
        a.label("T_H2S")
        spin(a, C_KP + 8, 1)
        a("s_branch T_ZP1")
    a(f"""
    s_waitcnt vmcnt(0)
    T_ZP:
    s_sleep {BO_Z}
    T_ZP1:
    """)
    z_issue()
    if ZF:
        a("s_cmp_lg_u32 s60, 0\ns_cbranch_scc1 T_ZQ\ns_mov_b32 s60, 1")
        p_prep()
        a.label("T_ZQ")
    a(f"""
    s_waitcnt vmcnt(0)
    s_mov_b64 exec, -1
    v_xor_b32 v64, s{sTAG}, v{ZG+3}
    v_xor_b32 v65, s{sTAG}, v{ZG+7}
    v_xor_b32 v66, s{sTAG}, v{ZG+11}
    v_xor_b32 v67, s{sTAG}, v{ZG+15}
    v_or3_b32 v64, v64, v65, v66
    v_or_b32 v64, v64, v67
    v_cmp_ne_u32 vcc, 0, v64
    s_cbranch_vccz T_ZD
    s_mov_b64 exec, vcc
    s_sub_u32 s41, s41, 1
    s_cbranch_scc1 T_ZPX
    s_and_b32 s40, s41, 3
    s_cbranch_scc1 T_ZP1
    s_branch T_ZP
    T_ZPX:
    s_mov_b64 exec, -1
    T_ZD:
    """)
    stamp(a, 19)
    signal(a, C_KP + 8)
    for n in (0, 2):
        for s_ in range(3): a(f"ds_write2_b32 v{ZA+s_}, v{ZG+4*n+s_}, v{ZG+4*n+4+s_} offset0:{16*n} offset1:{16*n+16}")
    a("s_branch T_B9")
    a.label("T_LW")
    if ZF: p_prep()
    spin(a, C_KP + 8, 4)
    if PLAN == "A": dn_dma()
    else:
        a("s_cmp_ge_u32 s2, 144\ns_cbranch_scc1 T_NUP\ns_cmp_ge_u32 s3, 4\ns_cbranch_scc1 T_NUP")
        if PLAN != "D": w_dma("u" if PLAN == "B" else "gu")
        a.label("T_NUP")
        if E("F_DT", "b9") == "b9": dn_touch(a)
        if DNP0 == "b9": dn_dma()
    a(f"""
    T_B9:
    {"s_setprio 1" if int(E("F_PRIO", "1")) else ""}
    s_waitcnt lgkmcnt(0)
    s_barrier                          ; B9
    ds_read_b128 {vr(Z,4)}, v6
    ds_read_u16 v{Z+4}, v7
    s_waitcnt lgkmcnt(0)
    """)
    stamp(a, 20)
    if "3a" in HINT: a("s_cmp_lg_u32 s3, 5\ns_cbranch_scc1 T_NH3"); hint_add(a, 1, "H3"); a.label("T_NH3")
    def pack(dst, src):
        for i in range(4): a(f"v_cvt_pk_bf16_f32 v{dst+i}, v{src+2*i}, v{src+2*i+1}")
        a(f"v_cvt_pk_bf16_f32 v{dst+4}, v{src+8}, 0")
    def dots(dst, src, bf, cf):
        for e in (8, 0, 1, 2, 3, 4, 5, 6, 7): a(f"v_dot2_f32_bf16 v{dst+e}, v{src+e//2}, {bf(e)}, {cf(e)}")
    vsel = lambda e: f"v{sel(e)}"
    dots(X1, Z, vsel, lambda e: f"v{XF+e}")
    pack(P1, X1)
    ln_core(a, P1, X1, T, ONES, LO, RC, "T_FAST")
    if "3b" in HINT: a("s_cmp_lg_u32 s3, 5\ns_cbranch_scc1 T_NH3"); hint_add(a, 1, "H3"); a.label("T_NH3")
    pack(Z, X1)
    dots(X1, Z, lambda e: f"v{C1+e}", lambda e: "0")
    pack(Z, X1)
    dots(X1, Z, vsel, lambda e: f"v{SB+e}")
    pack(H2, X1)
    for i in range(5): a(f"v_dot2_f32_bf16 v{T}, v{H2+i}, v{WR+i}, {'0' if i == 0 else 'v%d' % T}")
    a("s_nop 2")
    reduce2(a, T, None)
    a(f"""
    v_cvt_pk_bf16_f32 v{T}, v{T}, v{T}
    s_mov_b64 exec, 1
    v_readlane_b32 s{sKEY}, v{T}, 63
    s_ashr_i32 s41, s{sKEY}, 31
    s_or_b32 s41, s41, 0x80000000
    s_xor_b32 s{sKEY}, s{sKEY}, s41
    s_and_b32 s{sKEY}, s{sKEY}, 0xffff0000
    s_or_b32 s{sKEY}, s{sKEY}, s61
    v_mov_b32 v216, s{sKEY}
    ds_write_b64 v214, v[216:217] offset:{L_CNT + C_KEYS}
    ds_add_u32 v{VZ}, v{VONE} offset:{L_CNT + C_KEY}
    s_mov_b64 exec, -1
    s_mov_b32 s41, s3
    s_cmp_lg_u32 s3, 7
    s_cbranch_scc1 T_NK
    T_KS:
    ds_read_b32 v{T+3}, v{VZ} offset:{L_CNT + C_KEY}
    ds_read_b128 v[108:111], v212 offset:{L_CNT + C_KEYS}
    s_waitcnt lgkmcnt(0)
    v_readfirstlane_b32 s94, v{T+3}
    s_cmp_ge_u32 s94, 8
    s_cbranch_scc0 T_KS
    {"s_mov_b32 exec_hi, 0" if NREP == 8 else ("" if NREP == 16 else "s_mov_b64 exec, %s" % hex((1 << (4*NREP)) - 1))}
    s_waitcnt lgkmcnt(0)
    global_store_dwordx4 v213, v[108:111], {P(sWS)} sc1
    s_mov_b64 exec, -1
    T_NK:
    s_setprio 0
    """)
    stamp(a, 21)
    if DNAT == "kp":
        k0_ = len(a.lines); dn_touch(a)
    dots(X1, H2, lambda e: f"v{GB+e}", lambda e: "0")
    for w in range(4): unpk(a, XF+2*w, XF+2*w+1, P1+w)
    a(f"v_lshlrev_b32 v{XF+8}, 16, v{P1+4}")
    pack(Z, X1)
    dots(X1, Z, vsel, lambda e: f"v{XF+e}")
    a(f"""
    s_and_b32 s40, s2, {NREP-1}
    s_lshl_b32 s40, s40, 14
    s_lshl_b32 s50, s3, 11
    s_add_u32 s40, s40, s50
    s_add_u32 s40, s40, {WS_KEY}
    v_lshl_add_u32 v6, v2, 4, s40
    """)
    pack(O, X1)
    a(f"""
    s_cmp_lg_u32 s41, 7
    s_cbranch_scc1 T_NK2
    """)
    if "3" in HINT: hint_wait(a, 1, "T_H3W", int(E("HBO", "6")))
    else: a("s_waitcnt vmcnt(0)")
    signal(a, C_KP)
    a(f"""
    T_NK2:
    """)
    KK = 108
    OLATE = int(E('F_OLATE', '0'))
    DNP = E("F_DNP", "k")
    a(f"""
    s_cmp_ge_u32 s2, 144
    s_cbranch_scc1 T_NW
    s_cmp_ge_u32 s3, 4
    s_cbranch_scc1 T_W2
    s_waitcnt vmcnt({9 if PLAN == "A" else 0})
    """)
    signal(a, C_KP + 4)
    a(f"""
    T_W2:
    v_bfe_u32 v7, v2, 2, 2             ; r
    v_lshrrev_b32 v8, 4, v2            ; q
    v_lshl_add_u32 v7, v8, 3, v7       ; 8q + r
    v_and_b32 v8, 3, v2
    v_lshlrev_b32 v8, 3, v8            ; 8c
    v_mul_u32_u24 v21, 1152, v7
    v_add_u32 v21, v21, v8
    s_lshl_b32 s40, s3, 5
    s_add_u32 s40, s40, {L_D2}
    v_add_u32 v21, s40, v21
    v_lshl_add_u32 v7, v7, 6, v8
    s_lshr_b32 s40, s3, 1
    s_mul_i32 s50, s40, 5
    s_cmp_eq_u32 s40, 3
    s_cselect_b32 s50, 14, s50
    s_lshl_b32 s51, s50, 11
    s_and_b32 s40, s3, 1
    s_lshl_b32 s40, s40, 5
    s_add_u32 s40, s40, s51
    s_add_u32 s40, s40, {L_U}
    v_add_u32 v7, s40, v7
    v_add_u32 v8, {L_G - L_U}, v7
    """)
    spin(a, C_KP + 4, 4)
    stamp(a, 30)
    for i in range(5):
        a(f"ds_read_b64_tr_b16 {vr(WG_+8*i,2)}, v8 offset:{2048*i}")
        a(f"ds_read_b64_tr_b16 {vr(WG_+8*i+2,2)}, v8 offset:{2048*i + 256}")
        a(f"ds_read_b64_tr_b16 {vr(WG_+8*i+4,2)}, v7 offset:{2048*i}")
        a(f"ds_read_b64_tr_b16 {vr(WG_+8*i+6,2)}, v7 offset:{2048*i + 256}")
    if DNP == "k": dn_dma()
    a.label("T_NW")
    def dn_tr(v):
        for i in range(5):
            a(f"ds_read_b64_tr_b16 {vr(WD_+4*i,2)}, v{v} offset:{256*i}")
            a(f"ds_read_b64_tr_b16 {vr(WD_+4*i+2,2)}, v{v} offset:{256*i + 4608}")
    def k_issue():
        for i in range(2): a(f"global_load_dwordx4 {vr(KK+4*i,4)}, v6, {P(sWS)} offset:{1024*i} sc1")
    a(f"""
    v_and_b32 v4, 3, v2
    v_lshlrev_b32 v4, 3, v4
    s_mov_b32 s41, {SPIN}
    """)
    spin(a, C_KP, 1)
    stamp(a, 22)
    if "3" in HINT: a("s_branch T_KP1")
    elif int(E("F_DSK", "1")): a("s_cmp_lt_u32 s2, 144\ns_cbranch_scc1 T_KP1")
    a(f"T_KP:\ns_sleep {BO_K}\nT_KP1:")
    k_issue()
    a(f"""
    s_waitcnt vmcnt(0)
    s_mov_b64 exec, -1
    v_xor_b32 v64, s{sTAG}, v{KK+1}
    v_xor_b32 v65, s{sTAG}, v{KK+3}
    v_xor_b32 v66, s{sTAG}, v{KK+5}
    v_xor_b32 v67, s{sTAG}, v{KK+7}
    v_or3_b32 v64, v64, v65, v66
    v_or_b32 v64, v64, v67
    v_cmp_ne_u32 vcc, 0, v64
    s_cbranch_vccz T_KD
    s_mov_b64 exec, vcc
    s_sub_u32 s41, s41, 1
    s_cbranch_scc1 T_KPX
    s_and_b32 s40, s41, 3
    s_cbranch_scc1 T_KP1
    s_branch T_KP
    T_KPX:
    s_mov_b64 exec, -1
    T_KD:
    """)
    stamp(a, 23)
    a(f"""
    v_max_u32 v64, v{KK}, v{KK+4}
    v_max_u32 v65, v{KK+2}, v{KK+6}
    s_nop 0
    v_max_u32 v64, v64, v64 row_shr:4 {DPP_ALL} bound_ctrl:0
    v_max_u32 v65, v65, v65 row_shr:4 {DPP_ALL} bound_ctrl:0
    s_nop 0
    v_max_u32 v64, v64, v64 row_shr:8 {DPP_ALL} bound_ctrl:0
    v_max_u32 v65, v65, v65 row_shr:8 {DPP_ALL} bound_ctrl:0
    s_mov_b32 exec_lo, 0xf000f000
    s_mov_b32 exec_hi, 0xf000f000
    ds_max_u32 v4, v64 offset:{L_CNT + C_MX}
    ds_max_u32 v4, v65 offset:{L_CNT + C_MX + 4}
    s_mov_b64 exec, -1
    s_waitcnt lgkmcnt(0)
    s_barrier                          ; B10
    ds_read_b128 v[64:67], v{VZ} offset:{L_CNT + C_MX}
    ds_read_b128 v[68:71], v{VZ} offset:{L_CNT + C_MX + 16}
    s_waitcnt lgkmcnt(0)
    v_min3_u32 v64, v64, v65, v66
    v_min3_u32 v68, v68, v69, v70
    v_min3_u32 v64, v64, v67, v71
    v_min_u32 v64, v64, v68
    s_lshl_b32 s40, s2, 3
    s_add_u32 s40, s40, s3
    s_mul_i32 s51, s40, 3072
    v_cmp_ge_u32 vcc, s{sKEY}, v64
    """)
    for i in range(4): a(f"v_cmp_ge_u32 s[{66+2*i}:{67+2*i}], v{KK+2*i}, v64")
    a(f"""
    s_bcnt1_i32_b64 s74, s[66:67]
    s_bcnt1_i32_b64 s75, s[68:69]
    s_bcnt1_i32_b64 s76, s[70:71]
    s_bcnt1_i32_b64 s77, s[72:73]
    s_add_u32 s75, s75, s74
    s_add_u32 s76, s76, s75
    s_add_u32 s77, s77, s76
    s_mov_b64 exec, 1
    v_mov_b32 v65, s77
    ds_add_rtn_u32 v66, v{VZ}, v65 offset:{L_CNT + C_N}
    s_mov_b64 exec, -1
    s_cbranch_vccz T_NPUB
    ; candidate row: publish h2 and x1 (slot = token)
    s_add_u32 s51, s51, {WS_ROW}
    v_lshl_add_u32 v5, v2, 4, s51
    v_mov_b32 v72, v{H2+3}
    v_mov_b32 v73, v{P1+3}
    v_lshl_or_b32 v74, v{P1+4}, 16, v{H2+4}
    v_mov_b32 v75, s{sTAG}
    v_mov_b32 v{H2+3}, s{sTAG}
    v_mov_b32 v{P1+3}, s{sTAG}
    global_store_dwordx4 v5, {vr(H2,4)}, {P(sWS)} sc1
    global_store_dwordx4 v5, v[72:75], {P(sWS)} offset:1024 sc1
    global_store_dwordx4 v5, {vr(P1,4)}, {P(sWS)} offset:2048 sc1
    T_NPUB:
    """)
    for i in range(4):
        if i: a(f"v_mov_b32 v{68+i}, s{73+i}")
        a(f"v_mbcnt_lo_u32_b32 v{68+i}, s{66+2*i}, {'v%d' % (68+i) if i else 0}")
        a(f"v_mbcnt_hi_u32_b32 v{68+i}, s{67+2*i}, v{68+i}")
    a(f"""
    s_waitcnt lgkmcnt(0)
    v_readfirstlane_b32 s74, v66
    v_and_b32 v4, 31, v2
    v_lshlrev_b32 v4, 2, v4
    v_lshrrev_b32 v7, 5, v2
    v_lshlrev_b32 v7, 4, v7
    s_mov_b32 s{sOWN}, 8
    """)
    for i in range(4): a(f"v_add_lshl_u32 v{68+i}, v{68+i}, s74, 2")
    for i in range(4):
        a(f"s_mov_b64 exec, s[{66+2*i}:{67+2*i}]")
        a(f"ds_write_b32 v{68+i}, v{KK+2*i} offset:{L_LIST}")
    a(f"""
    s_mov_b64 exec, -1
    s_mov_b32 s76, 0
    s_mov_b32 s77, 0
    s_waitcnt lgkmcnt(0)
    s_barrier                          ; B11
    ds_read_b32 v65, v{VZ} offset:{L_CNT + C_N}
    T_OUT:
    ds_read_b32 v64, v4 offset:{L_LIST}
    """)
    NPRE = 4
    for i in range(NPRE): a(f"ds_read_b128 {vr(KK+4*i,4)}, v7 offset:{L_LIST + 32*i}")
    a(f"""
    v_mov_b32 v66, 0
    v_add_u32 v67, {32*NPRE}, v7
    s_waitcnt lgkmcnt({NPRE})
    v_readfirstlane_b32 s74, v65       ; n
    """)
    for i in range(NPRE):
        a(f"s_waitcnt lgkmcnt({NPRE-1-i})")
        for e in range(4):
            a(f"v_cmp_gt_u32 vcc, v{KK+4*i+e}, v64")
            a(f"v_addc_co_u32 v66, vcc, 0, v66, vcc")
        if i == 0: a("s_min_u32 s74, s74, 2048")
        if i in (1, 2):
            a(f"s_cmp_le_u32 s74, {8*i+8}")
            a("s_cbranch_scc1 T_RK")
    a(f"""
    s_mov_b32 s75, {8*NPRE}
    T_IN:
    s_cmp_ge_u32 s75, s74
    s_cbranch_scc1 T_RK
    ds_read_b128 {vr(KK,4)}, v67 offset:{L_LIST}
    v_add_u32 v67, 32, v67
    s_add_u32 s75, s75, 8
    s_waitcnt lgkmcnt(0)
    """)
    for e in range(4):
        a(f"v_cmp_gt_u32 vcc, v{KK+e}, v64")
        a(f"v_addc_co_u32 v66, vcc, 0, v66, vcc")
    a(f"""
    s_branch T_IN
    T_RK:
    v_mov_b32 v67, v66
    s_waitcnt lgkmcnt(0)
    s_nop 0
    v_permlane32_swap_b32 v66, v67
    v_add_u32 v66, v66, v67
    v_cmp_eq_u32 vcc, s3, v66
    v_cmp_eq_u32 s[66:67], s{sKEY}, v64
    v_min_u32 v66, 8, v66
    s_ff1_i32_b64 s75, vcc
    v_lshlrev_b32 v67, 2, v66
    s_cbranch_vccz T_NMINE
    v_readlane_b32 s77, v64, s75
    T_NMINE:
    s_ff1_i32_b64 s75, s[66:67]
    ds_write_b32 v67, v64 offset:{L_CNT + C_SEL}
    s_cmp_eq_u64 s[66:67], 0
    s_cbranch_scc1 T_NOWN
    v_readlane_b32 s{sOWN}, v66, s75
    T_NOWN:
    v_add_u32 v4, 128, v4
    s_add_u32 s76, s76, 32
    s_cmp_lt_u32 s76, s74
    s_cbranch_scc1 T_OUT
    """)
    stamp(a, 24)
    a(f"""
    s_andn2_b32 s77, 0x7ff, s77
    s_mul_i32 s77, s77, 3072
    s_add_u32 s77, s77, {WS_ROW}
    v_lshl_add_u32 v4, v2, 4, s77
    s_cmp_ge_u32 s2, 144
    s_cbranch_scc1 T_NRL
    global_load_dwordx4 v[64:67], v4, {P(sWS)} sc1
    global_load_dwordx4 v[68:71], v4, {P(sWS)} offset:1024 sc1
    global_load_dwordx4 v[72:75], v4, {P(sWS)} offset:2048 sc1
    T_NRL:
    s_mul_i32 s40, s40, 1152
    s_cmp_lt_u32 s{sOWN}, 8
    s_cbranch_scc1 T_STD
    v_lshl_add_u32 v18, v2, 4, s40
    v_lshl_add_u32 v19, v2, 1, s40
    global_store_dwordx4 v18, {vr(O,4)}, {P(sOUT)} {E('F_OST', '')}
    global_store_short v19, v{O+4}, {P(sOUT)} offset:1024 {E('F_OST', '')}
    T_STD:
    s_cmp_ge_u32 s2, 144
    s_cbranch_scc1 T_END
    s_mul_i32 s40, s3, {SR_P}
    s_add_u32 s40, s40, {L_SH}
    v_lshl_add_u32 v5, v2, 4, s40
    v_lshl_add_u32 v6, v2, 1, s40
    s_mov_b32 s41, {SPIN}
    """)
    dn_tr(21)
    a(f"""
    v_and_b32 v7, 7, v2
    v_mul_u32_u24 v17, 80, v7
    v_mul_u32_u24 v7, {SR_P}, v7
    v_and_b32 v8, 0x30, v2
    v_add_u32 v17, v17, v8
    s_lshl_b32 s40, s50, 6
    s_add_u32 s40, s40, {L_SH}
    v_add3_u32 v7, v7, v8, s40
    s_lshl_b32 s40, s3, 10
    s_add_u32 s40, s40, {L_GP}
    v_lshl_add_u32 v8, v2, 4, s40
    v_and_b32 v9, 1, v2
    v_lshlrev_b32 v9, 9, v9
    v_bfe_u32 v16, v2, 1, 4
    v_lshl_add_u32 v9, v16, 4, v9
    v_lshrrev_b32 v16, 5, v2
    v_lshl_add_u32 v9, v16, 10, v9
    s_lshr_b32 s40, s3, 2
    s_lshl_b32 s40, s40, 8
    s_and_b32 s51, s3, 3
    s_lshl_b32 s51, s51, 2
    s_add_u32 s40, s40, s51
    s_add_u32 s40, s40, {L_GP}
    v_add_u32 v9, s40, v9
    s_mul_i32 s40, s3, 80
    v_and_b32 v16, -2, v2
    v_add_u32 v16, s40, v16
    s_branch T_RP2
    T_RP:
    s_sleep {BO_R}
    T_RP1:
    global_load_dwordx4 v[64:67], v4, {P(sWS)} sc1
    global_load_dwordx4 v[68:71], v4, {P(sWS)} offset:1024 sc1
    global_load_dwordx4 v[72:75], v4, {P(sWS)} offset:2048 sc1
    T_RP2:
    s_waitcnt vmcnt(0)
    v_xor_b32 v76, s{sTAG}, v67
    v_xor_b32 v77, s{sTAG}, v71
    v_xor_b32 v78, s{sTAG}, v75
    v_or3_b32 v76, v76, v77, v78
    v_cmp_ne_u32 vcc, 0, v76
    s_cbranch_vccz T_RD
    s_sub_u32 s41, s41, 1
    s_cbranch_scc1 T_RD
    s_and_b32 s40, s41, 3
    s_cbranch_scc1 T_RP1
    s_branch T_RP
    T_RD:
    v_mov_b32 v67, v68
    v_mov_b32 v75, v69
    ds_write_b128 v5, v[64:67]
    ds_write_b16 v6, v70 offset:1024
    s_waitcnt lgkmcnt(0)
    """)
    stamp(a, 25)
    a("s_barrier                          ; B12")
    AF = 108; AG, AU = 84, 88
    for i in range(5): a(f"ds_read_b128 {vr(AF+4*i,4)}, v7 offset:{64*i}")
    a(f"ds_write_b128 v5, v[72:75] offset:{L_SX - L_SH}")
    a(f"ds_write_b16_d16_hi v6, v70 offset:{L_SX - L_SH + 1024}")
    for i in range(5):
        if i == 4: a("s_cmp_ge_u32 s3, 4"); a("s_cbranch_scc1 T_G4")
        a(f"s_waitcnt lgkmcnt({6-i})")
        a(f"v_mfma_f32_16x16x32_bf16 {vr(AG,4)}, {vr(AF+4*i,4)}, {vr(WG_+8*i,4)}, {'0' if i == 0 else vr(AG,4)}")
        a(f"v_mfma_f32_16x16x32_bf16 {vr(AU,4)}, {vr(AF+4*i,4)}, {vr(WG_+8*i+4,4)}, {'0' if i == 0 else vr(AU,4)}")
    a(f"""
    T_G4:
    v_lshrrev_b32 v18, 5, v2
    v_lshlrev_b32 v18, 5, v18
    v_bfe_u32 v19, v2, 3, 2
    v_add_u32 v18, v18, v19
    s_lshl_b32 s40, s3, 2
    v_add_u32 v18, s40, v18
    v_mul_u32_u24 v18, {144*128}, v18
    s_mov_b32 exec_hi, 0
    ds_write_b128 v8, {vr(AG,4)}
    ds_write_b128 v8, {vr(AU,4)} offset:512
    s_mov_b64 exec, -1
    v_and_b32 v19, 7, v2
    v_lshl_add_u32 v18, v19, 4, v18
    s_lshl_b32 s40, s2, 7
    s_add_u32 s40, s40, {WS_PT}
    v_add_u32 v18, s40, v18
    v_add_u32 v19, {64*144*128}, v18
    v_add_u32 v20, {128*144*128}, v18
    s_waitcnt lgkmcnt(0)
    s_barrier                          ; B13
    ds_read_b32 v64, v9
    ds_read_b32 v65, v9 offset:2048
    ds_read_b32 v66, v9 offset:4096
    ds_read_b32 v67, v9 offset:6144
    """)
    NX = 0
    a(f"""
    s_mov_b32 s52, 0x05030201
    s_mov_b32 s53, 0x06050302
    s_mov_b32 s54, 0x07060503
    v_mov_b32 v71, s{sTAG}
    v_mov_b32 v75, s{sTAG}
    v_mov_b32 v79, s{sTAG}
    s_waitcnt lgkmcnt({2 + NX})
    v_add_f32 v64, v64, v65
    s_waitcnt lgkmcnt({NX})
    v_add_f32 v66, v66, v67
    v_add_f32 v64, v64, v66
    v_cvt_pk_bf16_f32 v64, v64, v64
    v_lshlrev_b32 v64, 16, v64
    v_mul_f32 v65, {fbits(-LOG2E)}, v64
    v_exp_f32 v65, v65
    s_nop 0
    v_add_f32 v65, 1.0, v65
    v_rcp_f32 v65, v65
    s_nop 0
    v_mul_f32 v65, v64, v65
    v_cvt_pk_bf16_f32 v65, v65, v65
    v_lshlrev_b32 v65, 16, v65
    s_nop 0
    v_mul_f32 v65, v64, v65 quad_perm:[1,1,3,3] {DPP_ALL}
    v_cvt_pk_bf16_f32 v65, v65, v65
    s_mov_b32 exec_lo, 0x55555555
    s_mov_b32 exec_hi, 0x55555555
    ds_write_b16 v16, v65 offset:{L_ACT}
    s_mov_b64 exec, -1
    s_waitcnt lgkmcnt(0)
    s_barrier                          ; B14
    ds_read_b128 v[64:67], v17 offset:{L_ACT}
    s_waitcnt lgkmcnt(0)
    """)
    stamp(a, 26)
    DA = 80
    for i in range(5): a(f"v_mfma_f32_16x16x32_bf16 {vr(DA+4*i,4)}, v[64:67], {vr(WD_+4*i,4)}, 0")
    a(f"""
    s_mul_i32 s40, s2, {144*128}
    s_add_u32 s40, s40, {WS_PT}
    v_lshl_add_u32 v4, v0, 4, s40
    v_add_u32 v5, 8192, v4
    v_add_u32 v6, 16384, v4
    s_nop 0
    """)
    def p24(d, s_):
        a(f"v_perm_b32 v{d}, v{s_+1}, v{s_}, s52")
        a(f"v_perm_b32 v{d+1}, v{s_+2}, v{s_+1}, s53")
        a(f"v_perm_b32 v{d+2}, v{s_+3}, v{s_+2}, s54")
    for r_ in range(4): a(f"v_permlane32_swap_b32 v{DA+r_}, v{DA+4+r_}")
    p24(68, DA)
    a(f"global_store_dwordx4 v18, v[68:71], {P(sWS)} sc1")
    for r_ in range(4): a(f"v_permlane32_swap_b32 v{DA+8+r_}, v{DA+12+r_}")
    p24(72, DA+8)
    a(f"global_store_dwordx4 v19, v[72:75], {P(sWS)} sc1")
    a("s_cmp_ge_u32 s3, 4")
    a("s_cbranch_scc1 T_NS3")
    p24(76, DA+16)
    a(f"""
    s_mov_b32 exec_hi, 0
    global_store_dwordx4 v20, v[76:79], {P(sWS)} sc1
    s_mov_b64 exec, -1
    T_NS3:
    """)
    stamp(a, 27)
    a(f"""
    s_cmp_lg_u32 s3, 7
    s_cbranch_scc1 T_NF
    s_lshr_b32 s40, s2, 2
    s_lshl_b32 s40, s40, 4
    s_and_b32 s41, s2, 1
    s_lshl_b32 s41, s41, 3
    s_add_u32 s40, s40, s41
    v_and_b32 v24, 7, v2
    v_add_u32 v24, s40, v24
    v_lshlrev_b32 v24, 1, v24          ; 2d
    v_bfe_u32 v25, v2, 3, 2
    s_and_b32 s41, s2, 2
    s_lshl_b32 s41, s41, 1
    v_add_u32 v25, s41, v25            ; row
    v_lshlrev_b32 v26, 2, v25
    v_mul_u32_u24 v25, {SR_P}, v25
    v_add_u32 v25, v25, v24
    v_add_u32 v27, {L_PT + 2304}, v24
    ds_read_b32 v28, v26 offset:{L_CNT + C_SEL}
    ds_read_u16 v29, v25 offset:{L_SH}
    ds_read_u16 v30, v25 offset:{L_SX}
    ds_read_u16 v31, v27
    s_waitcnt lgkmcnt(0)
    v_and_b32 v32, 0xffff, v28
    v_sub_u32 v32, 0xffff, v32
    v_min_u32 v32, 2047, v32
    v_mul_u32_u24 v32, 1152, v32
    v_add_u32 v32, v32, v24
    v_ashrrev_i32 v33, 31, v28
    v_not_b32 v33, v33
    v_or_b32 v33, 0x80000000, v33
    v_xor_b32 v33, v33, v28
    v_and_b32 v33, 0xffff0000, v33     ; r
    v_mul_f32 v33, {fbits(-LOG2E)}, v33
    v_exp_f32 v33, v33
    v_lshlrev_b32 v29, 16, v29
    v_add_f32 v33, 1.0, v33
    v_rcp_f32 v33, v33
    v_lshlrev_b32 v30, 16, v30
    v_cvt_pk_bf16_f32 v33, v33, v33
    v_lshlrev_b32 v33, 16, v33
    v_lshlrev_b32 v31, 16, v31
    s_cmp_lg_u32 s2, 0
    s_cbranch_scc1 T_NF
    ; epoch update: every workgroup read the epoch before its first publication, which this workgroup has consumed
    v_mov_b32 v34, {WS_EPOCH}
    v_mov_b32 v35, s{sTAG}
    s_mov_b64 exec, 1
    global_store_dword v34, v35, {P(sWS)}
    s_mov_b64 exec, -1
    T_NF:
    s_mov_b32 s52, 0x0201000c
    s_mov_b32 s53, 0x0504030c
    s_mov_b32 s54, 0x0403020c
    s_mov_b32 s55, 0x0302010c
    v_mov_b32 v107, s{sTAG}
    v_mov_b32 v104, 0
    v_mov_b32 v105, 0
    v_mov_b32 v106, 0
    v_bfe_u32 v7, v2, 4, 2
    v_lshlrev_b32 v7, 5, v7
    v_and_b32 v8, 7, v2
    v_lshl_add_u32 v7, v8, 2, v7
    s_lshl_b32 s40, s3, 7
    v_add_u32 v7, s40, v7
    s_mov_b32 s41, {SPIN}
    s_waitcnt vmcnt(0)
    T_GP:
    s_sleep {BO_G}
    global_load_dwordx4 v[96:99], v4, {P(sWS)} sc1
    global_load_dwordx4 v[100:103], v5, {P(sWS)} sc1
    s_cmp_ge_u32 s3, 2
    s_cbranch_scc1 T_G3
    global_load_dwordx4 v[104:107], v6, {P(sWS)} sc1
    T_G3:
    s_waitcnt vmcnt(0)
    s_mov_b64 exec, -1
    v_xor_b32 v64, s{sTAG}, v99
    v_xor_b32 v65, s{sTAG}, v103
    v_xor_b32 v66, s{sTAG}, v107
    v_or3_b32 v64, v64, v65, v66
    v_cmp_ne_u32 vcc, 0, v64
    s_cbranch_vccz T_GD
    s_mov_b64 exec, vcc
    s_sub_u32 s41, s41, 1
    s_cbranch_scc0 T_GP
    s_mov_b64 exec, -1
    T_GD:
    """)
    stamp(a, 28)
    for n in range(3):
        g = 96 + 4*n; d = 64 + 4*n
        a(f"v_perm_b32 v{d}, v{g}, v{g}, s52")
        a(f"v_perm_b32 v{d+1}, v{g+1}, v{g}, s53")
        a(f"v_perm_b32 v{d+2}, v{g+2}, v{g+1}, s54")
        a(f"v_perm_b32 v{d+3}, v{g+2}, v{g+2}, s55")
    for e in range(4): a(f"v_add_f32 v{64+e}, v{64+e}, v{68+e}")
    for e in range(4): a(f"v_add_f32 v{64+e}, v{64+e}, v{72+e}")
    a(f"""
    s_nop 1
    v_permlane32_swap_b32 v64, v66
    v_permlane32_swap_b32 v65, v67
    v_add_f32 v64, v64, v66
    v_add_f32 v65, v65, v67
    s_nop 1
    v_permlane16_swap_b32 v64, v65
    v_add_f32 v64, v64, v65
    s_nop 1
    v_add_f32 v64, v64, v64 row_shl:8 row_mask:0xf bank_mask:0x3
    s_mov_b32 exec_lo, 0x00ff00ff
    s_mov_b32 exec_hi, 0x00ff00ff
    ds_write_b32 v7, v64 offset:{L_RED}
    s_mov_b64 exec, -1
    v_lshlrev_b32 v8, 2, v2
    s_waitcnt lgkmcnt(0)
    s_barrier                          ; B15
    s_cmp_lg_u32 s3, 7
    s_cbranch_scc1 T_END
    """)
    for w in range(8): a(f"ds_read_b32 v{64+w}, v8 offset:{L_RED + 128*w}")
    a("s_waitcnt lgkmcnt(4)")
    a("v_add_f32 v64, v64, v65"); a("v_add_f32 v66, v66, v67")
    a("s_waitcnt lgkmcnt(0)")
    a("v_add_f32 v68, v68, v69"); a("v_add_f32 v70, v70, v71")
    a("v_add_f32 v64, v64, v66"); a("v_add_f32 v68, v68, v70"); a("v_add_f32 v64, v64, v68")
    rnd1(a, 64); a("v_mul_f32 v64, v64, v33")
    rnd1(a, 64); a("v_add_f32 v64, v64, v29")
    rnd1(a, 64); a("v_mul_f32 v64, v64, v31")
    rnd1(a, 64); a("v_add_f32 v64, v64, v30")
    a(f"""
    v_cvt_pk_bf16_f32 v64, v64, v64
    s_mov_b32 exec_hi, 0
    global_store_short v32, v64, {P(sOUT)}
    """)
    if int(E("F_DBG", "0")): a(f"""
    s_cmp_ge_u32 s2, 4
    s_cbranch_scc1 T_END
    v_lshlrev_b32 v26, 0, v26
    v_add_u32 v26, {WS_SEL}, v26
    global_store_dword v26, v28, {P(sWS)}
    """)
    a.label("T_END")
    diag_end(a)
    stamp_flush(a, 29, 0)
    a.label("M_END")
    a("s_endpgm")
    a.raw(".p2align 7")
    a.label("BOXT")
    for wd in (4, 3):
        for lane in range(64):
            i, q = lane & 15, lane >> 4
            el = [0x3c00 if abs(16 - 8*q + e - i) <= wd else 0 for e in range(8)]
            a.raw("  .long " + ", ".join(hex(el[2*k] | (el[2*k+1] << 16)) for k in range(4)))
```
